```python
import torch

def _softmax(x, axis=-1):
    return torch.softmax(x, dim=axis)
def _gelu(x):
    return torch.nn.functional.gelu(x, approximate="tanh")
def _silu(x):
    return torch.nn.functional.silu(x)
def _sigmoid(x):
    return torch.sigmoid(x)
def _layernorm(x, axis=-1, eps=1e-5):
    m = x.mean(dim=axis, keepdim=True)
    v = x.var(dim=axis, keepdim=True, unbiased=False)
    return (x - m) / torch.sqrt(v + eps)
def _scatter_add(tgt, idx, src, axis=0):
    return tgt.clone().index_add_(axis, idx, src)
def _segment_sum(src, seg, n):
    out = torch.zeros((n,) + src.shape[1:], dtype=src.dtype)
    return out.index_add_(0, seg, src)
def _pad(x, pw):
    flat = tuple(v for pair in reversed(pw) for v in pair)
    return torch.nn.functional.pad(x, flat)

kernel_name = 'standalone__convnext_block__vision'

def setup_inputs():

    _w = (lambda a: (lambda t: t.to(torch.bfloat16) if t.is_floating_point() else t)(torch.as_tensor(a)))
    H = W = 384
    C = 192
    return {
        "x": _w((lambda *s: torch.randn(*s, dtype=torch.bfloat16) * 0.05)(1, H, W, C)),
        "dw": _w((lambda *s: torch.randn(*s, dtype=torch.bfloat16) * 0.05)(7, 7, C)),
        "w1": _w((lambda *s: torch.randn(*s, dtype=torch.bfloat16) * 0.05)(C, 4 * C)),
        "w2": _w((lambda *s: torch.randn(*s, dtype=torch.bfloat16) * 0.05)(4 * C, C)),
    }

def reference(x, dw, w1, w2):
    B, H, W, C = x.shape
    pad = 3
    xp = _pad(x, ((0,0),(pad,pad),(pad,pad),(0,0)))
    out = torch.zeros_like(x)
    for i in range(7):
        for j in range(7):
            out = out + xp[:, i:i+H, j:j+W, :] * dw[i, j][None, None, None, :]
    h = _layernorm(out, axis=-1)
    return x + _gelu(h @ w1) @ w2
```

```python
import re

REG_RE = re.compile(r'^(-|\|)?(v|a|s)\[(\d+):(\d+)\]\|?$')
REG1_RE = re.compile(r'^(-|\|)?(v|a|s)(\d+)\|?$')

def regs_of(tok):
    tok = tok.strip()
    if tok.startswith('abs('): tok = tok[4:-1]
    m = REG_RE.match(tok)
    if m: return [(m.group(2), i) for i in range(int(m.group(3)), int(m.group(4)) + 1)]
    m = REG1_RE.match(tok)
    if m: return [(m.group(2), int(m.group(3)))]
    if tok == 'vcc': return [('s', 'vcc')]
    if tok == 'exec': return [('s', 'exec')]
    if tok == 'm0': return [('s', 'm0')]
    return []

TRANS = ('v_exp_', 'v_log_', 'v_rcp_', 'v_rsq_', 'v_sqrt_', 'v_sin_', 'v_cos_')

class Ins:
    __slots__ = ('text', 'op', 'ops', 'mods', 'dst', 'src', 'kind', 'passes')
    def __init__(self, text):
        self.text = text
        t = text.split(';')[0].strip()
        parts = t.split(None, 1)
        self.op = parts[0]
        rest = parts[1] if len(parts) > 1 else ''
        toks = [x.strip() for x in rest.split(',')] if rest else []
        self.mods = ''
        if toks:
            sp = toks[-1].split(None, 1)
            toks[-1] = sp[0]
            if len(sp) > 1: self.mods = sp[1]
        self.ops = toks
        self.dst = []; self.src = []; self.passes = 0
        op = self.op
        R = regs_of
        if op.startswith('v_mfma'):
            self.kind = 'mfma'
            self.dst = R(toks[0]); self.src = R(toks[1]) + R(toks[2]) + R(toks[3])
            self.passes = {'4x4x4': 2, '16x16x32': 4, '32x32x16': 8}[re.search(r'(4x4x4|16x16x32|32x32x16)', op).group(1)]
        elif op.startswith('v_cmp'):
            self.kind = 'valu'; self.dst = R(toks[0]); self.src = sum((R(x) for x in toks[1:]), [])
        elif op.startswith('v_readfirstlane') or op.startswith('v_readlane'):
            self.kind = 'valu'; self.dst = R(toks[0]); self.src = sum((R(x) for x in toks[1:]), [])
        elif op.startswith('v_permlane') and 'swap' in op:
            self.kind = 'valu'; self.dst = R(toks[0]) + R(toks[1]); self.src = R(toks[0]) + R(toks[1])
        elif op.startswith('v_'):
            self.kind = 'valu'; self.dst = R(toks[0]); self.src = sum((R(x) for x in toks[1:]), [])
            if op.startswith(('v_fmac', 'v_dot2c', 'v_pk_fmac')) or '_sdwa' in op and 'PRESERVE' in self.mods or 'd16' in op:
                self.src += R(toks[0])
            if op.startswith('v_cndmask') and len(toks) == 3: self.src += [('s', 'vcc')]
            if op.startswith(('v_add_co', 'v_addc_co', 'v_sub_co', 'v_subb_co')):
                self.dst += R(toks[1]); self.src = sum((R(x) for x in toks[2:]), [])
        elif op.startswith('ds_read'):
            self.kind = 'dsr'; self.dst = R(toks[0]); self.src = R(toks[1])
            if 'd16' in op: self.src += R(toks[0])
        elif op.startswith('ds_write'):
            self.kind = 'dsw'; self.src = sum((R(x) for x in toks), [])
        elif op.startswith('ds_'):
            self.kind = 'dsr'; self.dst = R(toks[0]); self.src = sum((R(x) for x in toks[1:]), [])
        elif op.startswith('buffer_load') or op.startswith('global_load'):
            if 'lds' in self.mods.split() or (toks and toks[-1] == 'lds'):
                self.kind = 'dma'; self.src = sum((R(x) for x in toks), []) + [('s', 'm0')]
            else:
                self.kind = 'vld'; self.dst = R(toks[0]); self.src = sum((R(x) for x in toks[1:]), [])
                if 'd16' in op: self.src += R(toks[0])
        elif op.startswith('buffer_store') or op.startswith('global_store'):
            self.kind = 'vst'; self.src = sum((R(x) for x in toks), [])
        elif op.startswith('buffer_atomic') or op.startswith('global_atomic'):
            self.kind = 'vst'; self.src = sum((R(x) for x in toks), [])
            if 'sc0' in self.mods: self.kind = 'vld'; self.dst = R(toks[0])
        elif op.startswith(('buffer_wbl2', 'buffer_inv')):
            self.kind = 'vst'
        elif op == 's_waitcnt':
            self.kind = 'wait'; self.mods = rest
        elif op == 's_nop':
            self.kind = 'nop'
        elif op.startswith('s_load') or op.startswith('s_memtime'):
            self.kind = 'smem'; self.dst = R(toks[0]); self.src = sum((R(x) for x in toks[1:]), [])
        elif op.startswith('s_cmp') or op.endswith(':') or op.startswith(('s_cbranch', 's_branch', 's_barrier', 's_endpgm', 's_setprio', 's_sleep', 's_setpc')):
            self.kind = 'salu'; self.src = sum((R(x) for x in toks), [])
        elif op.startswith('s_'):
            self.kind = 'salu'; self.dst = R(toks[0]); self.src = sum((R(x) for x in toks[1:]), [])
            if 'saveexec' in op: self.dst += [('s', 'exec')]
        else:
            raise ValueError('unknown op ' + text)
    def states(self):
        if self.kind == 'nop': return int(self.ops[0]) + 1
        return 1

def parse(lines):
    out = []
    for l in lines:
        t = l.split(';')[0].strip()
        if not t or t.endswith(':') or t.startswith('.'): continue
        out.append(Ins(l.strip()))
    return out

def check(lines, name='trace', verbose=True):
    ins = parse(lines)
    probs = []
    pos = 0
    lastw = {}
    lastC = {}
    laststore = {}
    lgkm = []
    vm = []
    smem = []
    def need(cond, i, msg):
        if not cond: probs.append(f'{name}: [{i}] {ins[i].text} :: {msg}')
    for i, x in enumerate(ins):
        k = x.kind
        touched = set(x.src) | set(x.dst)
        for q, nm in ((lgkm, 'lgkm'), (vm, 'vm'), (smem, 'smem')):
            for (d, t, isld) in q:
                if isld and d & touched:
                    if nm == 'lgkm' and k == 'dsr' and not (d & (set(regs for regs in x.src if regs[0] in 'va') - set(x.dst))): continue
                    if nm == 'vm' and k == 'vld' and not (d & (set(x.src) - set(x.dst))): continue
                    need(False, i, f'touches pending {nm} result of: {t}')
        for r in x.src:
            if r not in lastw: continue
            p, w = lastw[r]
            d = pos - p - 1
            if w.kind == 'mfma':
                isC = k == 'mfma' and r in regs_of(x.ops[3])
                isAB = k == 'mfma' and (r in regs_of(x.ops[1]) or r in regs_of(x.ops[2]))
                if isAB or k != 'mfma':
                    n = {2: 5, 4: 8, 8: 12}[w.passes]
                    need(d >= n, i, f'mfma D->read needs {n} has {d} (w: {w.text})')
                elif isC:
                    exact = regs_of(x.ops[3]) == w.dst and x.passes == w.passes
                    n = ({2: 2, 4: 0, 8: 0} if exact else {2: 4, 4: 6, 8: 10})[w.passes]
                    need(d >= n, i, f'mfma D->C needs {n} has {d} (w: {w.text})')
            elif w.kind == 'valu':
                if r[0] in 'va':
                    if k == 'mfma': need(d >= 2, i, f'valu->mfma needs 2 has {d} (w: {w.text})')
                    if x.op.startswith('v_permlane'): need(d >= 2, i, f'valu->permlane needs 2 has {d}')
                    if x.op.startswith(('v_readfirstlane', 'v_readlane')): need(d >= 1, i, f'valu->readlane needs 1 has {d}')
                    if 'dpp' in x.op or 'row_' in x.mods or 'quad_perm' in x.mods: need(d >= 2, i, f'valu->dpp needs 2 has {d}')
                    if w.op.startswith(TRANS) and k == 'valu' and not x.op.startswith(TRANS): need(d >= 1, i, f'trans->valu needs 1 has {d} (w: {w.text})')
                    if w.op.startswith(TRANS) and k == 'valu' and x.op.startswith(TRANS): pass
                    if 'sdwa' in w.op and k == 'valu': need(d >= 1, i, f'sdwa->valu needs 1 has {d} (w: {w.text})')
                else:
                    if k in ('vld', 'vst', 'dma'): need(d >= 5, i, f'valu sgpr->vmem needs 5 has {d}')
                    if k == 'valu': need(d >= 2, i, f'valu sgpr->valu needs 2 has {d}')
            elif w.kind == 'salu':
                if r == ('s', 'm0') and k == 'dma': need(d >= 1, i, f'm0->dma needs 1 has {d}')
        for r in x.dst:
            if r in lastw:
                p, w = lastw[r]; d = pos - p - 1
                if w.kind == 'mfma' and k != 'mfma':
                    n = {2: 5, 4: 8, 8: 12}[w.passes]
                    need(d >= n, i, f'mfma D->write(WAW) needs {n} has {d} (w: {w.text})')
                if w.kind == 'mfma' and k == 'mfma' and not (r in x.src):
                    n = {2: 4, 4: 6, 8: 10}[w.passes]
                    need(d >= n, i, f'mfma D->mfma overwrite needs ~{n} has {d} (w: {w.text})')
            if r in lastC and k == 'valu':
                p, ps = lastC[r]; d = pos - p - 1
                n = {2: 1, 4: 3, 8: 7}[ps]
                need(d >= n, i, f'mfma srcC WAR needs {n} has {d}')
            if r in laststore and k in ('valu', 'mfma', 'dsr', 'vld'):
                d = pos - laststore[r] - 1
                need(d >= 2, i, f'store data WAR needs 2 has {d}')
        if k == 'wait':
            m = re.search(r'lgkmcnt\((\d+)\)', x.mods)
            if m:
                n = int(m.group(1))
                if smem and n == 0: smem.clear()
                if n > 0 and any('memtime' not in t for (_, t, _) in smem): need(False, i, 'counted lgkmcnt with smem outstanding')
                while len(lgkm) > n: lgkm.pop(0)
            m = re.search(r'vmcnt\((\d+)\)', x.mods)
            if m:
                n = int(m.group(1))
                while len(vm) > n: vm.pop(0)
        if k == 'dsr': lgkm.append((set(x.dst), x.text, True))
        if k == 'dsw': lgkm.append((set(r for r in x.src), x.text, False))
        if k == 'smem': smem.append((set(x.dst), x.text, True))
        if k == 'vld': vm.append((set(x.dst), x.text, True))
        if k in ('vst', 'dma'): vm.append((set(), x.text, False))
        need(len(lgkm) <= 15 or True, i, '')
        need(len(vm) <= 63, i, 'vmcnt overflow >63 outstanding')
        if k in ('valu', 'mfma', 'salu'):
            for r in x.dst: lastw[r] = (pos, x)
        else:
            for r in x.dst: lastw.pop(r, None)
        if k == 'mfma':
            for r in regs_of(x.ops[3]): lastC[r] = (pos, x.passes)
        if k == 'vst' and ('x4' in x.op or 'x3' in x.op):
            for r in regs_of(x.ops[0]): laststore[r] = pos
        if k == 'dsw' and ('b128' in x.op or 'b96' in x.op):
            pass
        pos += x.states()
    if verbose:
        for p in probs[:40]: print(p)
        print(f'{name}: {len(ins)} instrs checked, {len(probs)} problems')
    return probs
```

```python
import sys, importlib
HEADER = '''; ConvNeXt block: out = x + gelu(LN(dwconv7x7(x)) @ W1) @ W2, one fused kernel (generated by the author's scripts).
'''
def build(kernels, path):
    s = HEADER
    for name, lines, kd, grid, block, lds in kernels:
        if name == 'standalone__convnext_block__vision_kernel': s += f'; @launch grid=({grid},1,1) block=({block},1,1) lds={lds}\n'
        else: s += f'; @launch kernel={name} grid=({grid},1,1) block=({block},1,1) lds={lds}\n'
    s += '.amdgcn_target "amdgcn-amd-amdhsa--gfx950"\n.text\n'
    for name, lines, kd, grid, block, lds in kernels:
        s += f'.globl {name}\n.p2align 8\n.type {name},@function\n{name}:\n'
        for l in lines:
            s += (l if l.endswith(':') or l.startswith('.') else '  ' + l) + '\n'
    s += '.section .rodata,"a"\n'
    for name, lines, kd, grid, block, lds in kernels:
        s += '.p2align 6\n' + kd
    open(path, 'w').write(s)
    return s
```

```python
import struct, math
from k2 import f2u, ALPHA, WS_W, WS_H, W_BYTES, IMG_BYTES

SLAB_REC = 544
NBLK = 99
YB = NBLK * SLAB_REC
LDS_BYTES = YB + 24576
DWB = YB + 3072

vRel = 1
vLw, vRd, vY0, vY1, vR0, vR1, vG = 5, 6, 7, 8, 9, 10, 11
vA, vB = 12, 13
W0 = 14
ST = 110
BLK = 110
ACC = 160
TMP = 176
Y0 = 184
sX, sH, sD, sM = 8, 12, 16, 20
sWave, sTile, sNT, sBase, sOut, sIMG, sT, sT2, sOnes = 24, 25, 26, 27, 28, 29, 30, 31, 32
sSelL, sSelH, sAl, sEps, sInv = 33, 34, 35, 36, 37
sMaskL, sMaskR, sMask = 40, 56, 72
sC = 88

def v(b, n=1): return f'v{b}' if n == 1 else f'v[{b}:{b+n-1}]'
def Wt(k, R, C): return W0 + 32 * k + 2 * (4 * R + C)
def blk(row, bc): return BLK + 10 * (row % 5) + 2 * bc
def Y(p, s): return Y0 + 24 * p + 4 * s
M4 = 'v_mfma_f32_4x4x4_16b_bf16'

class Cfg:
    nt_x = False
    nt_h = False
    pack = True

def setexec(out, cur, val):
    if cur[0] != val:
        out.append(f's_mov_b32 exec_lo, {hex(val & 0xffffffff)}')
        out.append(f's_mov_b32 exec_hi, {hex(val >> 32)}')
        cur[0] = val
FULL = (1 << 64) - 1

def weights_gather():
    out = []
    cur = [FULL]
    rowm = lambda r: 0x3333333333333333 if r == 0 else (0xCCCCCCCCCCCCCCCC if r == 7 else FULL)
    colm = lambda c: 0x5555555555555555 if c == 0 else (0xAAAAAAAAAAAAAAAA if c == 7 else FULL)
    for k in range(3):
        for R in range(4):
            for dy in range(2):
                tl = [Y0 + 2 * c for c in range(4)];
                base = Y0 + 8 * ((2 * R + dy) % 2)
                for c in range(4):
                    out.append(f'v_mov_b32 v{base+2*c}, 0'); out.append(f'v_mov_b32 v{base+2*c+1}, 0')
                for c in range(4):
                    for dx in range(2):
                        rho, gam = 2 * R + dy, 2 * c + dx
                        setexec(out, cur, rowm(rho) & colm(gam))
                        out.append(f'ds_read_u16 v{base+2*c+dx}, v{vA} offset:{(rho*7+gam)*384 + 128*k}')
                setexec(out, cur, FULL)
                out.append('s_waitcnt lgkmcnt(0)')
                for c in range(4):
                    out.append(f'v_lshl_or_b32 v{Wt(k,R,c)+dy}, v{base+2*c+1}, 16, v{base+2*c}')
    return out

def issue_loads(cfg, stage):
    out = []
    nt = ' nt' if cfg.nt_x else ''
    out += [f's_add_u32 s{sC}, s{sBase}, {128*stage}',
            f's_add_u32 s{sC+1}, s{sC}, 384',
            f's_add_u32 s{sC+2}, s{sC}, 147456',
            f's_add_u32 s{sC+3}, s{sC+2}, 384']
    def rnd(r):
        o = []
        for dy in range(2):
            for dx in range(2):
                t = vA if (dy * 2 + dx) % 2 == 0 else vB
                o.append(f'v_add_u32 v{t}, s{sC+2*dy+dx}, v{vRel+r}')
                o.append(f'v_cmp_gt_u32 vcc, s{sIMG}, v{t}')
                m = sMask + 2 * (2 * r + dx)
                o.append(f's_and_b64 vcc, vcc, s[{m}:{m+1}]')
                o.append(f'v_cndmask_b32 v{t}, 2.0, v{t}, vcc')
                o.append(f'buffer_load_dwordx4 {v(ST + 16*r + 4*(2*dy+dx), 4)}, v{t}, s[{sX}:{sX+3}], 0 offen{nt}')
        return o
    for r in range(3): out += rnd(r)
    return out, rnd(3)

def transpose_round(r):
    out = []
    L = lambda dy, dx, d: ST + 16 * r + 4 * (2 * dy + dx) + d
    for d in range(4):
        t = TMP + 4 * (d % 2)
        out.append(f'v_perm_b32 v{t}, v{L(0,1,d)}, v{L(0,0,d)}, s{sSelL}')
        out.append(f'v_perm_b32 v{t+1}, v{L(1,1,d)}, v{L(1,0,d)}, s{sSelL}')
        out.append(f'v_perm_b32 v{t+2}, v{L(0,1,d)}, v{L(0,0,d)}, s{sSelH}')
        out.append(f'v_perm_b32 v{t+3}, v{L(1,1,d)}, v{L(1,0,d)}, s{sSelH}')
        out.append(('W', r, d, t))
    return out

def yout(py):
    out = []
    for px in range(2):
        aa = ACC + 8 * (py & 1) + 4 * px
        t = TMP + 2 * px
        vy = vY0 if px == 0 else vY1
        out.append(f'v_cvt_pk_bf16_f32 v{t}, v{aa}, v{aa+1}')
        out.append(f'v_cvt_pk_bf16_f32 v{t+1}, v{aa+2}, v{aa+3}')
        for oy in range(2):
            out.append(f'ds_write_b16 v{vy}, v{t+oy} offset:{(2*py+oy)*2048}')
            out.append(f'ds_write_b16_d16_hi v{vy}, v{t+oy} offset:{(2*py+oy)*2048+128}')
    return out

def row_reads(br):
    return [f'ds_read_b64 {v(blk(br,bc),2)}, v{vRd} offset:{(br*11+bc)*SLAB_REC}' for bc in range(5)]

def conv_stage(k):
    out = []
    for br in range(4): out += row_reads(br)
    for py in range(6):
        out.append('s_waitcnt lgkmcnt(0)')
        fill = []
        rd = row_reads(py + 4) if py + 4 <= 8 else []
        yo = yout(py - 1) if py > 0 else []
        fill = rd[:2] + yo + rd[2:]
        nslots = 16
        fi = 0
        for idx in range(16):
            R, C = divmod(idx, 4)
            for px in range(2):
                aa = ACC + 8 * (py & 1) + 4 * px
                c = '0' if idx == 0 else v(aa, 4)
                out.append(f'{M4} {v(aa,4)}, {v(Wt(k,R,C),2)}, {v(blk(py+R, px+C),2)}, {c}')
            upto = max((idx + 1) * len(fill) // nslots, min(len(fill), idx + 1))
            n0 = fi
            while fi < upto: out.append(fill[fi]); fi += 1
            if fi == n0: out.append('s_nop 0')
    out += ['s_nop 4'] + yout(5)
    return out

def ln_block(cfg):
    out = []
    t = BLK
    s1 = [t + p for p in range(3)]; s2 = [t + 4 + p for p in range(3)]
    for i in range(24):
        for p in range(3):
            r = Y0 + 24 * p + i
            c1 = '0' if i == 0 else f'v{s1[p]}'; c2 = '0' if i == 0 else f'v{s2[p]}'
            out.append(f'v_dot2_f32_bf16 v{s1[p]}, v{r}, s{sOnes}, {c1}')
            out.append(f'v_dot2_f32_bf16 v{s2[p]}, v{r}, v{r}, {c2}')
    out.append('s_nop 2')
    allr = s1 + s2
    tm = [t + 8 + i for i in range(6)]
    for sw in ('v_permlane16_swap_b32', 'v_permlane32_swap_b32'):
        for r, q in zip(allr, tm): out.append(f'v_mov_b32 v{q}, v{r}')
        out.append('s_nop 1')
        for r, q in zip(allr, tm): out.append(f'{sw} v{q}, v{r}')
        out.append('s_nop 1')
        for r, q in zip(allr, tm): out.append(f'v_add_f32 v{r}, v{r}, v{q}')
    rs = [t + 16 + p for p in range(3)]; nb = [t + 20 + p for p in range(3)]
    for p in range(3): out.append(f'v_mul_f32 v{s1[p]}, s{sInv}, v{s1[p]}')
    for p in range(3): out.append(f'v_mul_f32 v{s2[p]}, s{sInv}, v{s2[p]}')
    for p in range(3): out.append(f'v_fma_f32 v{s2[p]}, -v{s1[p]}, v{s1[p]}, v{s2[p]}')
    for p in range(3): out.append(f'v_max_f32 v{s2[p]}, 0, v{s2[p]}')
    for p in range(3): out.append(f'v_add_f32 v{s2[p]}, s{sEps}, v{s2[p]}')
    for p in range(3): out.append(f'v_rsq_f32 v{rs[p]}, v{s2[p]}')
    out.append('s_nop 0')
    for p in range(3): out.append(f'v_mul_f32 v{rs[p]}, s{sAl}, v{rs[p]}')
    for p in range(3): out.append(f'v_mul_f32 v{nb[p]}, -v{s1[p]}, v{rs[p]}')
    nt = ' nt' if cfg.nt_h else ''
    k = 0
    for p in range(3):
        out.append(f's_add_u32 s{sT}, s{sOut}, {147456*p}')
        for s in range(6):
            for d in range(4):
                r = Y(p, s) + d
                a, b = t + 24 + 2 * (k % 4), t + 25 + 2 * (k % 4); k += 1
                out.append(f'v_lshlrev_b32 v{a}, 16, v{r}')
                out.append(f'v_and_b32 v{b}, 0xffff0000, v{r}')
                out.append(f'v_fma_f32 v{a}, v{a}, v{rs[p]}, v{nb[p]}')
                out.append(f'v_fma_f32 v{b}, v{b}, v{rs[p]}, v{nb[p]}')
                out.append(f'v_cvt_pk_bf16_f32 v{r}, v{a}, v{b}')
            out.append(f'buffer_store_dwordx4 {v(Y(p,s),4)}, v{vG}, s[{sH}:{sH+3}], s{sT} offen offset:{64*s}{nt}')
    return out

def pack_block(name):
    out = []
    t = BLK
    out += [f's_sub_u32 s41, s2, 256', f's_lshl_b32 s41, s41, 2', f's_add_u32 s41, s41, s{sWave}',
            f's_mul_hi_u32 s42, s41, {(1 << 32) // 24 + 1}',
            f's_mul_i32 s43, s42, 24', f's_sub_u32 s43, s41, s43',
            f'v_and_b32 v{t}, 15, v0',
            f'v_lshrrev_b32 v{t+1}, 4, v0',
            f's_load_dwordx4 s[44:47], s[0:1], 16',
            f's_waitcnt lgkmcnt(0)',
            f's_cmp_lt_u32 s43, 12', f's_cbranch_scc0 {name}_pk2']
    out += [f's_add_u32 s48, s42, 1', f's_cmp_eq_u32 s48, 24', f's_cselect_b32 s48, 0, s48',
            f's_lshr_b32 s49, s43, 1', f's_and_b32 s50, s43, 1',
            f's_lshl_b32 s48, s48, 6', f's_lshl_b32 s50, s50, 5', f's_add_u32 s48, s48, s50',
            f's_mul_i32 s49, s49, {32*1536}', f's_add_u32 s48, s48, s49',
            f'v_mul_u32_u24 v{t+2}, {8*1536}, v{t+1}', f'v_lshl_add_u32 v{t+2}, v{t}, 1, v{t+2}',
            f's_mov_b32 s{sM}, s44', f's_mov_b32 s{sM+1}, s45', f's_mov_b32 s{sM+2}, {192*768*2}', f's_mov_b32 s{sM+3}, 0x20000']
    for e in range(8):
        out.append(f's_add_u32 s49, s48, {e*1536}')
        out.append(f'buffer_load_ushort v{t+8+e}, v{t+2}, s[{sM}:{sM+3}], s49 offen')
    out += [f's_branch {name}_pk3', f'{name}_pk2:']
    out += [f's_add_u32 s48, s42, 23', f's_cmp_ge_u32 s48, 24', f's_cselect_b32 s49, 24, 0', f's_sub_u32 s48, s48, s49',
            f's_sub_u32 s49, s43, 12', f's_lshr_b32 s50, s49, 1', f's_and_b32 s49, s49, 1',
            f's_mul_i32 s48, s48, {32*384}', f's_lshl_b32 s50, s50, 6', f's_lshl_b32 s49, s49, 3',
            f's_add_u32 s48, s48, s50', f's_add_u32 s48, s48, s49',
            f'v_lshrrev_b32 v{t+3}, 2, v{t}', f'v_lshlrev_b32 v{t+3}, 4, v{t+3}',
            f'v_and_b32 v{t+4}, 3, v{t}', f'v_lshl_add_u32 v{t+3}, v{t+4}, 1, v{t+3}',
            f'v_mul_u32_u24 v{t+2}, {4*384}, v{t+1}', f'v_add_u32 v{t+2}, v{t+2}, v{t+3}',
            f's_mov_b32 s{sM}, s46', f's_mov_b32 s{sM+1}, s47', f's_mov_b32 s{sM+2}, {192*768*2}', f's_mov_b32 s{sM+3}, 0x20000']
    for e in range(8):
        out.append(f's_add_u32 s49, s48, {(16*(e>>2) + (e&3))*384}')
        out.append(f'buffer_load_ushort v{t+8+e}, v{t+2}, s[{sM}:{sM+3}], s49 offen')
    out += [f'{name}_pk3:', 's_waitcnt vmcnt(0)']
    for d in range(4): out.append(f'v_lshl_or_b32 v{t+16+d}, v{t+8+2*d+1}, 16, v{t+8+2*d}')
    out += [f's_load_dwordx2 s[44:45], s[0:1], 48', 's_waitcnt lgkmcnt(0)',
            f's_add_u32 s{sM}, s44, {WS_W}', f's_addc_u32 s{sM+1}, s45, 0', f's_mov_b32 s{sM+2}, {W_BYTES}', f's_mov_b32 s{sM+3}, 0x20000',
            f's_lshl_b32 s41, s41, 10', f'v_lshlrev_b32 v{t+2}, 4, v0',
            f'buffer_store_dwordx4 {v(t+16,4)}, v{t+2}, s[{sM}:{sM+3}], s41 offen']
    return out

def gen(cfg, name='conv_kernel'):
    P = []; TR = []
    def emit(l, tr=True):
        P.extend(l)
        if tr: TR.extend(l)
    emit(['s_cmp_ge_u32 s2, 512', f's_cbranch_scc1 {name}_done',
          's_load_dwordx4 s[4:7], s[0:1], 0',
          's_load_dwordx2 s[38:39], s[0:1], 48',
          'v_lshrrev_b32 v1, 6, v0', 'v_and_b32 v0, 63, v0', 's_nop 0',
          f'v_readfirstlane_b32 s{sWave}, v1',
          f's_mov_b32 s{sIMG}, {IMG_BYTES}', f's_mov_b32 s{sOnes}, 0x3f803f80',
          f's_mov_b32 s{sSelL}, 0x05040100', f's_mov_b32 s{sSelH}, 0x07060302',
          f's_mov_b32 s{sAl}, {hex(f2u(ALPHA))}', f's_mov_b32 s{sEps}, {hex(f2u(1e-5))}', f's_mov_b32 s{sInv}, {hex(f2u(1.0/192))}',
          's_waitcnt lgkmcnt(0)',
          f's_mov_b32 s{sX}, s4', f's_mov_b32 s{sX+1}, s5', f's_mov_b32 s{sX+2}, {IMG_BYTES}', f's_mov_b32 s{sX+3}, 0x20000',
          f's_mov_b32 s{sD}, s6', f's_mov_b32 s{sD+1}, s7', f's_mov_b32 s{sD+2}, {49*384}', f's_mov_b32 s{sD+3}, 0x20000',
          f's_add_u32 s{sH}, s38, {WS_H}', f's_addc_u32 s{sH+1}, s39, 0', f's_mov_b32 s{sH+2}, {IMG_BYTES}', f's_mov_b32 s{sH+3}, 0x20000'])
    emit([f'v_lshlrev_b32 v{vA}, 4, v0', f's_lshl_b32 s{sT}, s{sWave}, 10'])
    for m in range(5):
        emit([f's_add_u32 m0, s{sT}, {DWB + 4096*m}', f's_add_u32 s{sT2}, s{sT}, {4096*m}',
              f'buffer_load_dwordx4 v{vA}, s[{sD}:{sD+3}], s{sT2} offen lds'])
    t = Y0
    c = []
    c += [f'v_and_b32 v{t}, 7, v0',
          f'v_lshrrev_b32 v{t+1}, 3, v0']
    for r in range(4):
        c += [f's_lshl_b32 s{sT}, s{sWave}, 3', f's_add_u32 s{sT}, s{sT}, {32*r}',
              f'v_add_u32 v{t+2}, s{sT}, v{t+1}',
              f'v_mul_u32_u24 v{t+3}, 745, v{t+2}', f'v_lshrrev_b32 v{t+3}, 13, v{t+3}',
              f'v_mul_u32_u24 v{t+4}, 11, v{t+3}', f'v_sub_u32 v{t+4}, v{t+2}, v{t+4}',
              f'v_mul_u32_u24 v{t+5}, {2*384}, v{t+3}', f'v_lshl_add_u32 v{t+5}, v{t+4}, 1, v{t+5}',
              f'v_mul_u32_u24 v{t+5}, 384, v{t+5}',
              f'v_lshl_add_u32 v{vRel+r}, v{t}, 4, v{t+5}']
        for dx in range(2):
            mL = sMaskL + 2 * (2 * r + dx); mR = sMaskR + 2 * (2 * r + dx)
            c += [f'v_lshl_add_u32 v{t+6}, v{t+4}, 1, {dx}',
                  f'v_cmp_lt_u32 s[{mL}:{mL+1}], 2, v{t+6}',
                  f'v_cmp_gt_u32 s[{mR}:{mR+1}], 19, v{t+6}']
            if r == 3:
                c += [f'v_cmp_gt_u32 vcc, {NBLK}, v{t+2}', 's_nop 1',
                      f's_and_b64 s[{mL}:{mL+1}], s[{mL}:{mL+1}], vcc', f's_and_b64 s[{mR}:{mR+1}], s[{mR}:{mR+1}], vcc']
        if r == 0:
            c += [f'v_mul_u32_u24 v{vLw}, {SLAB_REC}, v{t+2}']
    emit(c)
    c = []
    c += [f'v_lshrrev_b32 v{t}, 2, v0',
          f'v_and_b32 v{t+1}, 3, v0',
          f'v_lshrrev_b32 v{t+2}, 3, v{t}',
          f's_lshl_b32 s{sT}, s{sWave}, 1',
          f'v_add_u32 v{t+2}, s{sT}, v{t+2}',
          f'v_bfe_u32 v{t+3}, v{t}, 1, 2',
          f'v_add_u32 v{t+4}, v{t+2}, v{t+3}', f'v_and_b32 v{t+4}, 7, v{t+4}',
          f'v_lshlrev_b32 v{t+4}, 1, v{t+4}', f'v_lshl_add_u32 v{t+4}, v{t+3}, 4, v{t+4}',
          f'v_and_b32 v{t+5}, 1, v{t}', f'v_add_u32 v{t+4}, v{t+4}, v{t+5}',
          f'v_lshlrev_b32 v{t+4}, 3, v{t+4}',
          f'v_mul_u32_u24 v{t+5}, {2*SLAB_REC}, v{t+1}', f'v_add_u32 v{vRd}, v{t+4}, v{t+5}',
          f'v_and_b32 v{t+6}, 7, v{t}', f'v_lshlrev_b32 v{t+6}, 1, v{t+6}']
    for px, vy in ((0, vY0), (1, vY1)):
        c += [f'v_lshl_add_u32 v{t+7}, v{t+1}, 1, {px}',
              f'v_xor_b32 v{t+8}, v{t+7}, v{t+2}', f'v_and_b32 v{t+8}, 7, v{t+8}',
              f'v_lshl_add_u32 v{t+8}, v{t+8}, 4, v{t+6}',
              f'v_lshl_add_u32 v{t+8}, v{t+7}, 8, v{t+8}',
              f'v_add_u32 v{vy}, {YB}, v{t+8}']
    c += [f'v_and_b32 v{t}, 15, v0', f'v_lshrrev_b32 v{t+1}, 4, v0', f'v_lshrrev_b32 v{t+2}, 1, v{t}',
          f's_mul_i32 s{sT}, s{sWave}, {3*2048}', f's_add_u32 s{sT}, s{sT}, {YB}']
    for sp, vr in ((0, vR0), (1, vR1)):
        c += [f'v_add_u32 v{t+3}, {4*sp}, v{t+1}', f'v_xor_b32 v{t+3}, v{t+3}, v{t+2}', f'v_and_b32 v{t+3}, 7, v{t+3}',
              f'v_lshlrev_b32 v{t+3}, 4, v{t+3}', f'v_lshl_add_u32 v{t+3}, v{t}, 7, v{t+3}', f'v_add_u32 v{vr}, s{sT}, v{t+3}']
    c += [f'v_mul_u32_u24 v{vG}, 384, v{t}', f'v_lshl_add_u32 v{vG}, v{t+1}, 4, v{vG}']
    emit(c)
    emit([f's_lshr_b32 s{sTile}, s2, 3', f's_cmp_lt_u32 s2, 256', f's_cselect_b32 s{sNT}, 2, 1'])
    def tile_setup():
        o = [f's_and_b32 s92, s2, 7', f's_lshl_b32 s92, s92, 2', f's_and_b32 s93, s{sTile}, 3', f's_add_u32 s92, s92, s93',
             f's_lshr_b32 s93, s{sTile}, 2',
             f's_mul_i32 s94, s92, {12*384}', f's_lshl_b32 s95, s93, 4', f's_add_u32 s94, s94, s95',
             f's_sub_u32 s95, s94, {3*384+3}', f's_mul_i32 s{sBase}, s95, 384',
             f's_mul_i32 s95, s{sWave}, {3*384}', f's_add_u32 s94, s94, s95', f's_mul_i32 s{sOut}, s94, 384']
        for i in range(8):
            m, l, r = sMask + 2 * i, sMaskL + 2 * i, sMaskR + 2 * i
            o += [f's_mov_b64 s[{m}:{m+1}], -1' if i < 6 else f's_or_b64 s[{m}:{m+1}], s[{l}:{l+1}], s[{r}:{r+1}]',
                  f's_cmp_eq_u32 s93, 0', f's_cselect_b64 s[{m}:{m+1}], s[{l}:{l+1}], s[{m}:{m+1}]',
                  f's_cmp_eq_u32 s93, 23', f's_cselect_b64 s[{m}:{m+1}], s[{r}:{r+1}], s[{m}:{m+1}]']
        return o
    ts = tile_setup()
    l0a, l0b = issue_loads(cfg, 0)
    def guarded(lst, lab):
        return [f's_cmp_lg_u32 s{sWave}, 0', f's_cbranch_scc1 {lab}'] + lst + [f'{lab}:']
    emit(ts)
    emit(l0a); P.extend(guarded(l0b, f'{name}_a0')); TR.extend(l0b)
    P += [f's_cmp_lg_u32 s{sWave}, 0', f's_cbranch_scc1 {name}_w12', 's_waitcnt vmcnt(16)', f's_branch {name}_w1d', f'{name}_w12:', 's_waitcnt vmcnt(12)', f'{name}_w1d:']
    TR += ['s_waitcnt vmcnt(16)']
    emit(['s_barrier'])
    emit([f'v_lshrrev_b32 v{Y0}, 2, v0', f's_lshl_b32 s{sT}, s{sWave}, 5', f'v_lshlrev_b32 v{Y0}, 1, v{Y0}', f'v_add_u32 v{Y0}, s{sT}, v{Y0}',
          f'v_bfe_u32 v{Y0+1}, v0, 1, 1', f'v_mul_u32_u24 v{Y0+1}, {7*384}, v{Y0+1}', f'v_and_b32 v{Y0+2}, 1, v0', f'v_mul_u32_u24 v{Y0+2}, 384, v{Y0+2}',
          f'v_add_u32 v{Y0+1}, v{Y0+1}, v{Y0+2}', f'v_sub_u32 v{Y0}, v{Y0}, v{Y0+1}', f'v_add_u32 v{Y0+16}, {DWB}, v{Y0}'])
    wg = [x.replace(f'v{vA} offset', f'v{Y0+16} offset') for x in weights_gather()]
    emit(wg)
    emit(['s_barrier'])
    P += [f's_branch {name}_st0', '.p2align 6', f'{name}_tile:']
    emit(ts, tr=False)
    emit(l0a, tr=False); P.extend(guarded(l0b, f'{name}_a1'))
    P += [f'{name}_st0:']
    body = []
    for k in range(3):
        st = ['s_waitcnt vmcnt(0)']
        def tr(r):
            o = []
            for x in transpose_round(r):
                if isinstance(x, tuple):
                    _, r_, d, tt = x
                    o += [f'v_add_u32 v{vA}, {d}, v0', f'v_and_b32 v{vA}, 7, v{vA}', f'v_lshl_add_u32 v{vA}, v{vA}, 4, v{vLw}',
                          f'ds_write_b128 v{vA}, {v(tt,4)} offset:{32*SLAB_REC*r_ + 128*d}']
                else: o.append(x)
            return o
        for r in range(3): st += tr(r)
        r3 = ['s_mov_b32 exec_lo, 0x00ffffff', 's_mov_b32 exec_hi, 0'] + tr(3) + ['s_mov_b64 exec, -1']
        a_pre = st
        post = ['s_waitcnt lgkmcnt(0)', 's_barrier'] + conv_stage(k) + ['s_waitcnt lgkmcnt(0)', 's_barrier']
        yr = []
        for p in range(3):
            for sp in range(2):
                yr.append(f'ds_read_b128 {v(Y(p,2*k+sp),4)}, v{vR0 if sp == 0 else vR1} offset:{p*2048}')
        P += a_pre + guarded(r3, f'{name}_r3_{k}') + post + yr
        TR += a_pre + r3 + post + yr
        if k < 2:
            la, lb = issue_loads(cfg, k + 1)
            P += la + guarded(lb, f'{name}_ld{k}')
            TR += la + lb
        P += ['s_waitcnt lgkmcnt(0)']; TR += ['s_waitcnt lgkmcnt(0)']
    ln = ln_block(cfg)
    emit(ln)
    P += [f's_sub_u32 s{sNT}, s{sNT}, 1', f's_add_u32 s{sTile}, s{sTile}, 64', f's_cmp_lg_u32 s{sNT}, 0', f's_cbranch_scc1 {name}_tile']
    if cfg.pack:
        P += [f's_cmp_ge_u32 s2, 256', f's_cbranch_scc0 {name}_done', f's_cmp_lt_u32 s2, 400', f's_cbranch_scc0 {name}_done']
        pk = pack_block(name)
        P += pk
    P += [f'{name}_done:', 's_endpgm']
    return P, TR

def kd(name):
    return f'''.amdhsa_kernel {name}
  .amdhsa_next_free_vgpr 256
  .amdhsa_next_free_sgpr 96
  .amdhsa_accum_offset 256
  .amdhsa_group_segment_fixed_size 0
  .amdhsa_kernarg_size 56
  .amdhsa_user_sgpr_count 2
  .amdhsa_user_sgpr_kernarg_segment_ptr 1
  .amdhsa_system_sgpr_workgroup_id_x 1
  .amdhsa_float_denorm_mode_32 3
.end_amdhsa_kernel
'''
if __name__ == '__main__':
    import asmlib
    P, TR = gen(Cfg)
    asmlib.check(TR, 'k1')
    print(len(P))
```

```python
import struct, math

def f2u(f): return struct.unpack('<I', struct.pack('<f', f))[0]
LOG2E = 1.4426950408889634
A1 = 2.0 * math.sqrt(2.0 / math.pi) * LOG2E
B1 = A1 * 0.044715
ALPHA = B1 ** (1.0 / 3.0)
CC = A1 / ALPHA

WS_W = 0
W_BYTES = 24 * 24576
WS_H = 1 << 20
IMG_BYTES = 384 * 384 * 192 * 2

vLds, vDma, vG = 1, 2, 3
T0 = 8
G0 = 24
S0 = 48
ACC = 96
H0, PF0, PX0, W0, I0 = 0, 72, 144, 216, 248
NB = 8
sW, sH, sX, sO = 8, 12, 16, 20
sPass, sJ, sDst, sDstSum, sSrc, sWoff, sB, sT, sT2, sNegC, sAlpha = 24, 25, 26, 27, 28, 29, 30, 31, 32, 34, 35
sB1, sB2 = 36, 37
sSt, sLd = 44, 48
OOB = 0x70000000

def v(b, n=1): return f'v{b}' if n == 1 else f'v[{b}:{b+n-1}]'
def a(b, n=1): return f'a{b}' if n == 1 else f'a[{b}:{b+n-1}]'
def Sreg(buf, aa, p): return S0 + 24 * buf + 4 * (aa * 3 + p)
def Greg(buf, p): return G0 + 12 * buf + 4 * p
def acc(t, p): return ACC + 4 * (t * 3 + p)
def hreg(p, s): return H0 + 24 * p + 4 * s
def pfreg(p, s): return PF0 + 24 * p + 4 * s
def pxreg(p, s): return PX0 + 24 * p + 4 * s
MF = 'v_mfma_f32_16x16x32_bf16'

class Cfg:
    prof = False
    prof2 = False
    profpass = 1
    plan = ['ssss', 'sssss', 'sssss', 'ssssh', 'hhhhh', 'hhhhh', 'hhhhh', 'hhxxx', 'xxxxx', 'xxxxx', 'xxxxx', '']
    xpos = [26, 30, 34, 38, 41]
    D = 5
    gsz = 4
    nt_h = False; nt_x = False; nt_o = False

def gelu_list(buf, cfg):
    out = []
    k = 0
    for aa in range(2):
        for p in range(3):
            es = [Sreg(buf, aa, p) + i for i in range(4)]
            ts = [T0 + (k % 2) * 4 + i for i in range(4)]
            k += 1
            for u, t in zip(es, ts): out.append(f'v_fma_f32 v{t}, -v{u}, v{u}, s{sNegC}')
            for u, t in zip(es, ts): out.append(f'v_mul_f32 v{t}, v{t}, v{u}')
            for u, t in zip(es, ts): out.append(f'v_exp_f32 v{t}, v{t}')
            for u, t in zip(es, ts): out.append(f'v_fma_f32 v{t}, v{t}, s{sAlpha}, s{sAlpha}')
            for u, t in zip(es, ts): out.append(f'v_rcp_f32 v{t}, v{t}')
            for u, t in zip(es, ts): out.append(f'v_mul_f32 v{t}, v{u}, v{t}')
            g = Greg(buf, p) + 2 * aa
            out.append(f'v_cvt_pk_bf16_f32 v{g}, v{ts[0]}, v{ts[1]}')
            out.append(f'v_cvt_pk_bf16_f32 v{g+1}, v{ts[2]}, v{ts[3]}')
    return out

def g1_groups(j):
    buf = (j + 1) & 1
    base = (j & 1) * 24576
    gs = []
    for s in range(6):
        for aa in range(2):
            gs.append((base + (2 * s + aa) * 1024,
                       [(lambda w, p=p, s=s, aa=aa: f'{MF} {v(Sreg(buf,aa,p),4)}, {a(w,4)}, {a(hreg(p,s),4)}, ' + ('0' if s == 0 else v(Sreg(buf,aa,p),4))) for p in range(3)]))
    return gs

def g2_groups(j):
    buf = (j - 1) & 1
    base = (j & 1) * 24576 + 12288
    gs = []
    for t in range(12):
        gs.append((base + t * 1024,
                   [(lambda w, p=p, t=t: f'{MF} {v(acc(t,p),4)}, {a(w,4)}, {v(Greg(buf,p),4)}, {v(acc(t,p),4)}') for p in range(3)]))
    return gs

def cost(t):
    op = t.split()[0]
    if op.startswith(('v_exp', 'v_rcp')): return 8
    return 4

def wbuf(g): return W0 + 4 * (g % NB)

def dma_block(k):
    return [f's_add_u32 m0, s{sDst}, {4096*k}', f's_add_u32 s{sT}, s{sSrc}, {4096*k}']
def dma(i):
    return f'buffer_load_dwordx4 v{vDma}, s[{sW}:{sW+3}], s{sT} offen offset:{(i%4)*1024} lds'

def superstep(cfg, j0, mid=None, extra_valu=None, extra_at=None, bar_wait=None, dma_on=True, pre=None):
    D = cfg.D
    groups = g1_groups(j0) + g2_groups(j0) + g1_groups(j0 + 1) + g2_groups(j0 + 1)
    nxt = g1_groups(j0)
    out = list(pre or [])
    fifo = list(range(0, D))
    waited = 1
    fifo = [g for g in fifo if g > waited]
    vl = [gelu_list(j0 & 1, cfg), gelu_list((j0 + 1) & 1, cfg)]
    extra_at = extra_at or {}
    reads_at = {g: [] for g in range(48)}
    for g in range(48):
        r = g + D
        if r <= 46 - 0 and g < 47 - D - 1: reads_at[g].append(r)
    reads_at[47 - D - 1] = [46, 47]
    reads_at[47 - D] = []
    for k in range(D): reads_at[48 - D + k].append(48 + k)
    dma_at = {}
    if dma_on:
        for i in range(12): dma_at.setdefault(2 * i, []).append(i)
    for step in range(2):
        valu = list(vl[step])
        tot = sum(cost(t) for t in valu)
        done = 0; vi = 0
        ex = (extra_valu or {}).get(step)
        exi = 0
        for gl in range(24):
            g = step * 24 + gl
            ms = groups[g][1]
            for k, m in enumerate(ms):
                out.append(m(wbuf(g)))
                if k == 0:
                    if g == 48 - D:
                        out.append('s_waitcnt lgkmcnt(0)'); fifo = []; waited = 47
                        out += bar_wait or ['s_waitcnt vmcnt(0)']
                        out.append('s_barrier')
                        out.append(f'v_xor_b32 v{vLds}, 0xc000, v{vLds}')
                    for r in reads_at[g]:
                        off = groups[r][0] if r < 48 else nxt[r - 48][0]
                        out.append(f'ds_read_b128 {a(wbuf(r),4)}, v{vLds} offset:{off}')
                        fifo.append(r)
                    for i in dma_at.get(g, []):
                        if i % 4 == 0: out += dma_block(i // 4)
                        if i % 4 == 0: out.append('s_nop 0')
                        out.append(dma(i))
                    out += extra_at.get(g, [])
                mi = gl * 3 + k + 1
                target = tot * mi / 72.0
                while vi < len(valu) and done + cost(valu[vi]) / 2 <= target:
                    out.append(valu[vi]); done += cost(valu[vi]); vi += 1
                if mi == 72:
                    while vi < len(valu): out.append(valu[vi]); vi += 1
                if ex and ex[0] <= gl < ex[1]:
                    n = len(ex[2]); span = (ex[1] - ex[0]) * 3
                    upto = ((gl - ex[0]) * 3 + k + 1) * n // span
                    while exi < upto: out.append(ex[2][exi]); exi += 1
            if g % 2 == 1:
                needg = g + 2
                if waited < needg:
                    pend = [r for r in fifo if r > needg]
                    if len(pend) < len(fifo):
                        out.append(f's_waitcnt lgkmcnt({len(pend)})')
                    fifo = pend; waited = needg
        if step == 0 and mid: out += mid
    return out

def mid_block(cfg):
    out = []
    k = 0
    for p in range(3):
        for s in range(6):
            t = T0 + 8 + (k % 2) * 4; k += 1
            r0, r1 = acc(2 * s, p), acc(2 * s + 1, p)
            out.append(f'v_cvt_pk_bf16_f32 v{t}, v{r0}, v{r0+1}')
            out.append(f'v_cvt_pk_bf16_f32 v{t+1}, v{r0+2}, v{r0+3}')
            out.append(f'v_cvt_pk_bf16_f32 v{t+2}, v{r1}, v{r1+1}')
            out.append(f'v_cvt_pk_bf16_f32 v{t+3}, v{r1+2}, v{r1+3}')
            out.append(f'{MF} {v(acc(2*s,p),4)}, {a(I0,4)}, {a(pxreg(p,s),4)}, 0')
            out.append(f'{MF} {v(acc(2*s+1,p),4)}, {a(I0+4,4)}, {a(pxreg(p,s),4)}, 0')
            for i in range(4): out.append(f'v_accvgpr_write_b32 a{pxreg(p,s)+i}, v{t+i}')
    return out

def tail_epilogue(cfg, sbase):
    out = []
    nt = ' nt' if cfg.nt_o else ''
    k = 0
    for p in range(3):
        out.append(f's_add_u32 s{sT2}, s{sbase}, {6144*p}')
        for s in range(6):
            t = T0 + (k % 4) * 4; k += 1
            r0, r1 = acc(2 * s, p), acc(2 * s + 1, p)
            out.append(f'v_cvt_pk_bf16_f32 v{t}, v{r0}, v{r0+1}')
            out.append(f'v_cvt_pk_bf16_f32 v{t+1}, v{r0+2}, v{r0+3}')
            out.append(f'v_cvt_pk_bf16_f32 v{t+2}, v{r1}, v{r1+1}')
            out.append(f'v_cvt_pk_bf16_f32 v{t+3}, v{r1+2}, v{r1+3}')
            out.append(f'buffer_store_dwordx4 {v(t,4)}, v{vG}, s[{sO}:{sO+3}], s{sT2} offen offset:{64*s}{nt}')
    return out

def st_op(cfg, i):
    p, s = divmod(i, 6)
    return f'buffer_store_dwordx4 {a(pxreg(p,s),4)}, v{vG}, s[{sO}:{sO+3}], s{sSt+p} offen offset:{64*s}' + (' nt' if cfg.nt_o else '') + ' ;@st'
def h_op(cfg, i):
    p, s = divmod(i, 6)
    return f'buffer_load_dwordx4 {a(pfreg(p,s),4)}, v{vG}, s[{sH}:{sH+3}], s{sLd+p} offen offset:{64*s}' + (' nt' if cfg.nt_h else '') + ' ;@h'
def x_op(cfg, i):
    p, s = divmod(i, 6)
    return f'buffer_load_dwordx4 {a(pxreg(p,s),4)}, v{vG}, s[{sX}:{sX+3}], s{sLd+p} offen offset:{64*s}' + (' nt' if cfg.nt_x else '') + ' ;@x'

def resolve_vm(seq_prev, seq):
    def isvm(t):
        o = t.split()[0]
        return o.startswith(('buffer_load', 'buffer_store'))
    def tag(t):
        if ';@' in t: return t.split(';@')[1].strip()
        return 'dma' if ' lds' in t else '?'
    fifo = []
    res = None
    for rnd, sq in enumerate((seq_prev, seq)):
        out = []
        for t in sq:
            if t.startswith('WAITVM:'):
                tg = t.split(':')[1]
                idx = [i for i, x in enumerate(fifo) if x == tg]
                if idx:
                    n = len(fifo) - 1 - idx[-1]
                    out.append(f's_waitcnt vmcnt({n})')
                    fifo = fifo[len(fifo) - n:] if n else []
                continue
            if isvm(t): fifo.append(tag(t))
            assert len(fifo) <= 63, 'too many outstanding'
            out.append(t)
        res = out
    return res

def tile_loads(srd, dst0, soff_base_instrs, nt):
    out = []
    for p in range(3):
        out += soff_base_instrs(p)
        for s in range(6):
            out.append(f'buffer_load_dwordx4 {a(dst0 + 24*p + 4*s, 4)}, v{vG}, s[{srd}:{srd+3}], s{sT2} offen offset:{64*s}' + (' nt' if nt else ''))
    return out

def soff(base, add):
    def f(p):
        return [f's_add_u32 s{sT2}, s{base}, {add + 6144*p}']
    return f

def stamp(cfg, k):
    if not cfg.prof: return []
    b = 52 + 4 * k
    return [f's_memtime s[{b}:{b+1}]', f's_memrealtime s[{b+2}:{b+3}]']

_cs=[0]
def cstamp(cfg, k, cond=None):
    if not cfg.prof2: return []
    _cs[0]+=1; lab=f'mlp_cs{_cs[0]}'
    out=[f's_cmp_eq_u32 s{sPass}, {cfg.profpass}', f's_cbranch_scc0 {lab}']
    if cond: out+=[f's_cmp_eq_u32 s{cond[0]}, {cond[1]}', f's_cbranch_scc0 {lab}']
    out+=[f's_memtime s[{52+2*k}:{53+2*k}]', f'{lab}:']
    return out

def dump_stamps2(cfg, n):
    if not cfg.prof2: return []
    out = ['s_waitcnt lgkmcnt(0)', 's_load_dwordx2 s[42:43], s[0:1], 40', 's_waitcnt lgkmcnt(0)',
           's_mov_b32 s44, s42', 's_mov_b32 s45, s43', 's_mov_b32 s46, 256', 's_mov_b32 s47, 0x20000',
           's_cmp_lg_u32 s2, 17', 's_cbranch_scc1 mlp_nodump', 's_cmp_lg_u32 s40, 0', 's_cbranch_scc1 mlp_nodump',
           'v_mov_b32 v4, 0']
    for k in range(n):
        out += [f'v_mov_b32 v5, s{52+2*k}', f'buffer_store_dword v5, v4, s[44:47], 0 offen offset:{4*k}']
    out += ['mlp_nodump:']
    return out

def dump_stamps(cfg, n):
    if not cfg.prof: return []
    out = ['s_waitcnt lgkmcnt(0)', 's_load_dwordx2 s[42:43], s[0:1], 40', 's_waitcnt lgkmcnt(0)',
           's_mov_b32 s44, s42', 's_mov_b32 s45, s43', 's_mov_b32 s46, 256', 's_mov_b32 s47, 0x20000',
           's_cmp_lg_u32 s2, PROFWG', 's_cbranch_scc1 mlp_nodump', 's_cmp_lg_u32 s40, 0', 's_cbranch_scc1 mlp_nodump',
           'v_mov_b32 v4, 0']
    for k in range(n):
        b = 52 + 4 * k
        out += [f'v_mov_b32 v5, s{b}', f'buffer_store_dword v5, v4, s[44:47], 0 offen offset:{8*k}',
                f'v_mov_b32 v6, s{b+2}', f'buffer_store_dword v6, v4, s[44:47], 0 offen offset:{8*k+4}']
    out += ['mlp_nodump:']
    return [o.replace('PROFWG', '17') for o in out]

def gen(cfg, name='mlp_kernel'):
    D = cfg.D
    P = []
    TR = []
    def emit(lst, trace=True):
        P.extend(lst)
        if trace: TR.extend(lst)
    pro = [
        's_cmp_ge_u32 s2, 256',
        f's_cbranch_scc1 {name}_done',
        's_load_dwordx2 s[4:5], s[0:1], 0',
        's_load_dwordx2 s[6:7], s[0:1], 32',
        's_load_dwordx2 s[38:39], s[0:1], 48',
        f'v_lshrrev_b32 v4, 6, v0',
        f'v_and_b32 v0, 63, v0',
        's_nop 0',
        f'v_readfirstlane_b32 s40, v4',
        f'v_lshlrev_b32 v{vDma}, 4, v0',
        f'v_mov_b32 v{vLds}, v{vDma}',
        f'v_and_b32 v4, 15, v0',
        f'v_lshrrev_b32 v5, 4, v0',
        f'v_mul_u32_u24 v{vG}, 384, v4',
        f'v_lshl_add_u32 v{vG}, v5, 4, v{vG}',
        f's_mov_b32 s{sNegC}, {hex(f2u(-CC))}',
        f's_mov_b32 s{sAlpha}, {hex(f2u(ALPHA))}',
        f'v_lshrrev_b32 v6, 2, v4',
        f'v_cmp_eq_u32 vcc, v6, v5',
        f'v_and_b32 v6, 1, v4',
        f'v_lshlrev_b32 v6, 4, v6',
        f'v_mov_b32 v7, 0x3f80',
        f'v_lshlrev_b32 v7, v6, v7',
        f'v_cndmask_b32 v7, 0, v7, vcc',
        f'v_and_b32 v6, 2, v4',
        f'v_cmp_eq_u32 vcc, 0, v6',
        's_nop 1',
        f'v_cndmask_b32 v8, 0, v7, vcc',
        f'v_sub_u32 v9, v7, v8',
        f'v_mov_b32 v10, 0',
        f'v_accvgpr_write_b32 a{I0}, v8', f'v_accvgpr_write_b32 a{I0+1}, v9',
        f'v_accvgpr_write_b32 a{I0+2}, v10', f'v_accvgpr_write_b32 a{I0+3}, v10',
        f'v_accvgpr_write_b32 a{I0+4}, v10', f'v_accvgpr_write_b32 a{I0+5}, v10',
        f'v_accvgpr_write_b32 a{I0+6}, v8', f'v_accvgpr_write_b32 a{I0+7}, v9',
        's_waitcnt lgkmcnt(0)',
        f's_add_u32 s{sW}, s38, {WS_W}', f's_addc_u32 s{sW+1}, s39, 0', f's_mov_b32 s{sW+2}, {W_BYTES}', f's_mov_b32 s{sW+3}, 0x20000',
        f's_add_u32 s{sH}, s38, {WS_H}', f's_addc_u32 s{sH+1}, s39, 0', f's_mov_b32 s{sH+2}, {IMG_BYTES}', f's_mov_b32 s{sH+3}, 0x20000',
        f's_mov_b32 s{sX}, s4', f's_mov_b32 s{sX+1}, s5', f's_mov_b32 s{sX+2}, {IMG_BYTES}', f's_mov_b32 s{sX+3}, 0x20000',
        f's_mov_b32 s{sO}, s6', f's_mov_b32 s{sO+1}, s7', f's_mov_b32 s{sO+2}, {IMG_BYTES}', f's_mov_b32 s{sO+3}, 0x20000',
        f's_mul_i32 s{sB}, s2, {36*6144}',
        f's_mul_i32 s41, s40, {3*6144}',
        f's_add_u32 s{sB}, s{sB}, s41',
        f's_mul_i32 s{sWoff}, s40, 12288',
    ]
    emit(pro)
    if cfg.prof or cfg.prof2: P.extend([f's_mov_b32 s{i}, 0' for i in range(52, 96)])
    P.extend(stamp(cfg, 0))
    emit([f's_mul_i32 s41, s40, 3072',
          f's_add_u32 m0, s41, {49152+24576}',
          f's_add_u32 s{sT}, s41, {23*24576}'])
    emit([f'buffer_load_dwordx4 v{vDma}, s[{sW}:{sW+3}], s{sT} offen offset:{i*1024} lds' for i in range(3)])
    emit(tile_loads(sH, H0, soff(sB, 0), cfg.nt_h))
    emit([f's_mov_b32 s{sDst}, s{sWoff}', f's_mov_b32 s{sSrc}, s{sWoff}'])
    for k in range(3):
        emit(dma_block(k) + ['s_nop 0'] + [dma(4 * k + i) for i in range(4)])
    emit(tile_loads(sX, PX0, soff(sB, 0), cfg.nt_x))
    emit([f's_add_u32 s{sDst}, s{sWoff}, 49152',
          f's_lshl_b32 s{sDstSum}, s{sWoff}, 1', f's_add_u32 s{sDstSum}, s{sDstSum}, 49152',
          f's_add_u32 s{sSrc}, s{sWoff}, 49152',
          f's_mov_b32 s{sPass}, 0',
          's_waitcnt vmcnt(18)', 's_barrier'])
    g1 = g1_groups(-1)
    lst = [f'v_xor_b32 v4, 0xc000, v{vLds}']
    for g in range(6):
        lst.append(f'ds_read_b128 {a(wbuf(g),4)}, v4 offset:{g1[g][0]}')
    for g in range(12):
        if g % 2 == 0: lst.append(f's_waitcnt lgkmcnt({min(4, 10 - g) if g < 10 else 0})' if g <= 6 else f's_waitcnt lgkmcnt({max(0, 10 - g)})')
        for m in g1[g][1]: lst.append(m(wbuf(g)))
        if g + 6 < 12: lst.append(f'ds_read_b128 {a(wbuf(g+6),4)}, v4 offset:{g1[g+6][0]}')
    lst += ['s_waitcnt lgkmcnt(0)', 's_barrier']
    nxt = g1_groups(0)
    for g in range(D): lst.append(f'ds_read_b128 {a(wbuf(g),4)}, v{vLds} offset:{nxt[g][0]}')
    lst.append(f's_waitcnt lgkmcnt({D-2})')
    emit(lst)

    adv = [f's_sub_u32 s{sDst}, s{sDstSum}, s{sDst}',
           f's_add_u32 s{sSrc}, s{sSrc}, 49152',
           f's_cmp_ge_u32 s{sSrc}, {W_BYTES}',
           f's_cselect_b32 s{sT}, {W_BYTES}, 0',
           f's_sub_u32 s{sSrc}, s{sSrc}, s{sT}']
    L = name
    st = [st_op(cfg, i) for i in range(18)]
    hl = [h_op(cfg, i) for i in range(18)]
    xl = [x_op(cfg, i) for i in range(18)]
    plan = cfg.plan
    pools = {'s': st, 'h': hl, 'x': xl}
    extras = []
    for J in range(12):
        ops = []
        for ch in plan[J]: ops.append(pools[ch].pop(0))
        extras.append(ops)
    assert not st and not hl and not xl
    setup = [f's_cmp_eq_u32 s{sPass}, 0',
             f's_cselect_b32 s{sSt}, {hex(OOB)}, s{sB1}',
             f's_add_u32 s{sSt+1}, s{sSt}, 6144', f's_add_u32 s{sSt+2}, s{sSt}, 12288',
             f's_add_u32 s{sLd}, s{sB}, 73728',
             f's_cmp_eq_u32 s{sPass}, 2',
             f's_cselect_b32 s{sLd}, {hex(OOB)}, s{sLd}',
             f's_add_u32 s{sLd+1}, s{sLd}, 6144', f's_add_u32 s{sLd+2}, s{sLd}, 12288']
    moves = [f'v_accvgpr_mov_b32 a{H0+i}, a{PF0+i}' for i in range(72)]
    seq = []
    for J in range(12):
        ea = {47: list(adv)}
        pos = cfg.xpos
        for k, op in enumerate(extras[J]): ea.setdefault(pos[k], []).append(op)
        kw = dict(extra_at=ea, bar_wait=cstamp(cfg, 2 * J if J < 10 else 20) + ['WAITVM:dma'])
        if J == 0:
            kw['mid'] = ['WAITVM:x', 's_waitcnt vmcnt(12)'] + mid_block(cfg)
            kw['pre'] = setup
        if J == 11:
            kw['extra_valu'] = {0: (13, 24, moves)}
            ea.setdefault(12, []).append('WAITVM:h')
        seq += superstep(cfg, 2 * J, **kw)
    seq += [f's_mov_b32 s{sB1}, s{sB}', f's_add_u32 s{sB}, s{sB}, 73728', f's_add_u32 s{sPass}, s{sPass}, 1']
    body = resolve_vm(seq, seq)
    P.extend(stamp(cfg, 1))
    P += ['.p2align 6', f'{L}_pass:']
    P += body
    P += [f's_cmp_lt_u32 s{sPass}, 3', f's_cbranch_scc1 {L}_pass']
    tail = ['s_waitcnt lgkmcnt(0)']
    g2 = g2_groups(24)
    for g in range(6): tail.append(f'ds_read_b128 {a(wbuf(g),4)}, v{vLds} offset:{g2[g][0]}')
    for g in range(12):
        if g % 2 == 0: tail.append(f's_waitcnt lgkmcnt({4 if g <= 6 else max(0, 10 - g)})')
        for m in g2[g][1]: tail.append(m(wbuf(g)))
        if g + 6 < 12: tail.append(f'ds_read_b128 {a(wbuf(g+6),4)}, v{vLds} offset:{g2[g+6][0]}')
    tail += ['s_nop 7']
    tail += tail_epilogue(cfg, sB1)
    P += stamp(cfg, 4)
    P += tail
    P += stamp(cfg, 5)
    P += dump_stamps(cfg, 6)
    P += dump_stamps2(cfg, 21)
    P += [f'{L}_done:', 's_endpgm']
    TR += body + body + tail
    return P, TR

def kd(name, lds=0):
    return f'''.amdhsa_kernel {name}
  .amdhsa_next_free_vgpr 512
  .amdhsa_next_free_sgpr 96
  .amdhsa_accum_offset 256
  .amdhsa_group_segment_fixed_size 0
  .amdhsa_kernarg_size 56
  .amdhsa_user_sgpr_count 2
  .amdhsa_user_sgpr_kernarg_segment_ptr 1
  .amdhsa_system_sgpr_workgroup_id_x 1
  .amdhsa_float_denorm_mode_32 3
.end_amdhsa_kernel
'''
if __name__ == '__main__':
    import asmlib
    P, TR = gen(Cfg)
    asmlib.check(TR, 'k2')
    print(len(P), 'lines', 'alpha', ALPHA, 'c', CC)
```

```python
import sys, k1, k2, build, asmlib
class C1(k1.Cfg): pass
class C2(k2.Cfg): pass
mode = 'both'
for a in sys.argv[2:]:
    if a in ('k1only', 'k2only'): mode = a; continue
    k, val = a.split('=', 1)
    if k.startswith('k1.'): setattr(C1, k[3:], eval(val))
    else: setattr(C2, k.replace('k2.', ''), eval(val))
ks = []
if mode != 'k2only':
    P, TR = k1.gen(C1); assert not asmlib.check(TR, 'k1')
    ks.append(('conv_kernel', P, k1.kd('conv_kernel'), 256, 512, k1.LDS_BYTES))
if mode != 'k1only':
    P, TR = k2.gen(C2); assert not asmlib.check(TR, 'k2')
    ks.append(('mlp_kernel', P, k2.kd('mlp_kernel'), 256, 256, 147456))
build.build(ks, sys.argv[1])
```

```python
from k2 import f2u, ALPHA, WS_W, WS_H, W_BYTES, IMG_BYTES

REC = 544
NBLK = 99
SLAB = NBLK * REC
YB = 2 * SLAB
LDS_BYTES = YB + 2 * 24576
TAPS, ROWS = 400, 2848
DWB = YB + ROWS + TAPS

vO16 = 0
vRel = 1
vLw, vRd, vY0, vLw1, vR0, vR1, vL16 = 3, 4, 5, 6, 7, 8, 9
vA, vB = 10, 11
W0 = 12
ST = 108
BLK = 140
ACC = 180
TMP = 196
Y0 = 204
sX, sH, sD, sM = 8, 12, 16, 20
sWave, sT3, sFast, sBase, sOut, sIMG, sT, sT2, sOnes = 24, 25, 26, 27, 28, 29, 30, 31, 32
sSelL, sSelH, sAl, sEps, sInv, sHalf, sOutN = 33, 34, 35, 36, 37, 38, 39
sMaskL, sMaskR, sMask = 40, 48, 56
sC = 64
sTile = 68
sMk1 = 90
sDS, sDY = 69, 88

def v(b, n=1): return f'v{b}' if n == 1 else f'v[{b}:{b+n-1}]'
def Wt(k, R, C): return W0 + 32 * k + 2 * (4 * R + C)
def blk(row, bc): return BLK + 10 * (row % 4) + 2 * bc
def Y(p, s): return Y0 + 24 * p + 4 * s
M4 = 'v_mfma_f32_4x4x4_16b_bf16'

class Cfg:
    nt_x = False
    nt_h = False
    st_flags = ''
    pack = True
    w2f16 = False
    prof = False
    profwg = 17
    fine = False
    fine2 = False
    sched = 'spread'
    light = False
    allwg = False
    fwave = 0
    fstage = 1

def setexec(out, cur, val):
    if cur[0] != val:
        out.append(f's_mov_b32 exec_lo, {hex(val & 0xffffffff)}')
        out.append(f's_mov_b32 exec_hi, {hex(val >> 32)}')
        cur[0] = val
FULL = (1 << 64) - 1

def weights_gather(vb):
    out = []
    cur = [FULL]
    rowm = lambda r: 0x3333333333333333 if r == 0 else (0xCCCCCCCCCCCCCCCC if r == 7 else FULL)
    colm = lambda c: 0x5555555555555555 if c == 0 else (0xAAAAAAAAAAAAAAAA if c == 7 else FULL)
    for k in range(3):
        for Rh in range(2):
            items = []
            for R in (2 * Rh, 2 * Rh + 1):
                for dy in range(2):
                    for c in range(4):
                        items.append((R, dy, c))
            for i, (R, dy, c) in enumerate(items):
                if 2 * R + dy in (0, 7) or c in (0, 3):
                    for dx in range(2):
                        rho, gam = 2 * R + dy, 2 * c + dx
                        if rowm(rho) & colm(gam) != FULL: out.append(f'v_mov_b32 v{Y0+2*i+dx}, 0')
            rd = []
            for i, (R, dy, c) in enumerate(items):
                for dx in range(2):
                    rho, gam = 2 * R + dy, 2 * c + dx
                    rd.append((rowm(rho) & colm(gam), f'ds_read_u16 v{Y0+2*i+dx}, v{vb} offset:{rho*ROWS + gam*TAPS + 128*k}'))
            rd.sort(key=lambda x: -x[0])
            for m, t in rd:
                setexec(out, cur, m); out.append(t)
            setexec(out, cur, FULL)
            out.append('s_waitcnt lgkmcnt(0)')
            for i, (R, dy, c) in enumerate(items):
                out.append(f'v_lshl_or_b32 v{Wt(k,R,c)+dy}, v{Y0+2*i+1}, 16, v{Y0+2*i}')
    return out

def loads_fast(cfg, stage, r):
    nt = ' nt' if cfg.nt_x else ''
    o = []
    for dy in range(2):
        for dx in range(2):
            o.append(f'buffer_load_dwordx4 {v(ST + 16*r + 4*(2*dy+dx), 4)}, v{vRel+r}, s[{sX}:{sX+3}], s{sC+2*dy} offen offset:{384*dx}{nt}')
    return o
def loads_slow(cfg, stage, r):
    nt = ' nt' if cfg.nt_x else ''
    o = []
    for dy in range(2):
        for dx in range(2):
            t = vA if dx == 0 else vB
            o.append(f'v_add_u32 v{t}, s{sC+2*dy+dx}, v{vRel+r}')
            o.append(f'v_cmp_gt_u32 vcc, s{sIMG}, v{t}')
            m = sMask + 2 * (2 * r + dx)
            o.append(f's_and_b64 vcc, vcc, s[{m}:{m+1}]')
            o.append(f'v_cndmask_b32 v{t}, 2.0, v{t}, vcc')
            o.append(f'buffer_load_dwordx4 {v(ST + 16*r + 4*(2*dy+dx), 4)}, v{t}, s[{sX}:{sX+3}], 0 offen{nt}')
    return o

def load_consts(stage):
    return [f's_add_u32 s{sC}, s{sBase}, {128*stage}', f's_add_u32 s{sC+1}, s{sC}, 384',
            f's_add_u32 s{sC+2}, s{sC}, 147456', f's_add_u32 s{sC+3}, s{sC+2}, 384']
def load_items(cfg, stage, fast):
    its = []
    for r in range(2):
        l = (loads_fast if fast else loads_slow)(cfg, stage, r)
        n = len(l) // 4
        its += [l[i * n:(i + 1) * n] for i in range(4)]
    return its

def transpose_unit(r, d):
    L = lambda dy, dx: ST + 16 * r + 4 * (2 * dy + dx) + d
    t = TMP
    a = vA
    base = vLw if r == 0 else vLw1
    out = [f'v_xad_u32 v{a}, v{vO16}, {16*d}, v{base}',
           f'v_perm_b32 v{t}, v{L(0,1)}, v{L(0,0)}, s{sSelL}',
           f'v_perm_b32 v{t+1}, v{L(1,1)}, v{L(1,0)}, s{sSelL}',
           f'v_perm_b32 v{t+2}, v{L(0,1)}, v{L(0,0)}, s{sSelH}',
           f'v_perm_b32 v{t+3}, v{L(1,1)}, v{L(1,0)}, s{sSelH}']
    if r == 1: out.append(f's_mov_b64 exec, s[{sMk1}:{sMk1+1}]')
    out.append(f'ds_write_b128 v{a}, {v(t,4)} offset:{128*d}')
    if r == 1: out.append('s_mov_b64 exec, -1')
    return out
def transpose_round(r):
    return sum((transpose_unit(r, d) for d in range(4)), [])

def yout(py):
    out = []
    a0 = ACC + 8 * (py & 1); a1 = a0 + 4
    t = TMP + 4
    for oy in range(2):
        out.append(f'v_cvt_pk_bf16_f32 v{t+2*oy}, v{a0+2*oy}, v{a0+2*oy+1}')
        out.append(f'v_cvt_pk_bf16_f32 v{t+2*oy+1}, v{a1+2*oy}, v{a1+2*oy+1}')
        out.append(f'ds_write_b64 v{vY0}, {v(t+2*oy,2)} offset:{(2*py+oy)*2048}')
    return out

def row_reads(br):
    return [f'ds_read_b64 {v(blk(br,bc),2)}, v{vRd} offset:{(br*11+bc)*REC}' for bc in range(5)]

def conv_stage(k):
    out = []
    for br in range(4): out += row_reads(br)
    for py in range(3):
        rd = row_reads(py + 4) if py + 4 <= 5 else []
        yo = yout(py - 1) if py > 0 else []
        ndone = 0
        for idx in range(16):
            R, C = divmod(idx, 4)
            if idx == 0: out.append(f's_waitcnt lgkmcnt({5 if py == 0 else 15})' if py == 0 else 's_nop 0')
            if py == 0 and idx in (4, 8, 12): out.append(f's_waitcnt lgkmcnt({max(0, 15 - 5*(idx//4) - 5) if False else {4: 10 - 0, 8: 10, 12: 5}[idx]})')
            for px in range(2):
                aa = ACC + 8 * (py & 1) + 4 * px
                c = '0' if idx == 0 else v(aa, 4)
                out.append(f'{M4} {v(aa,4)}, {v(Wt(k,R,C),2)}, {v(blk(py+R, px+C),2)}, {c}')
            out.append(('F', py, idx))
    out += ['s_nop 4'] + yout(2)
    return out

SCHEDS = {
 'early': dict(u0=[(0, 0), (0, 1), (0, 2), (0, 3)], l0=[(0, 5), (0, 6), (0, 8), (0, 9)], u1=[(0, 10), (0, 11), (0, 12), (0, 13)], l1=[(0, 15), (1, 0), (1, 1), (1, 6)]),
 'spread': dict(u0=[(0, 0), (0, 4), (0, 8), (0, 12)], l0=[(0, 14), (0, 15), (1, 0), (1, 1)], u1=[(1, 6), (1, 9), (1, 12), (1, 14)], l1=[(2, 0), (2, 6), (2, 8), (2, 10)]),
 'mid': dict(u0=[(0, 0), (0, 3), (0, 5), (0, 6)], l0=[(0, 12), (0, 13), (0, 14), (0, 15)], u1=[(1, 0), (1, 1), (1, 6), (1, 12)], l1=[(1, 13), (1, 15), (2, 0), (2, 1)]),
}
SCHED = [SCHEDS['early']]
def conv_stage3(k, items, transp=True):
    out = []
    fifo = []
    def rd(br):
        for t in row_reads(br): yield (t, ('row', br))
    def emit_lds(t, tag): out.append(t); fifo.append(tag)
    def need(tag):
        idx = [i for i, x in enumerate(fifo) if x == tag]
        if idx:
            n = len(fifo) - 1 - idx[-1]
            out.append(f's_waitcnt lgkmcnt({min(n,15)})')
            del fifo[:idx[-1] + 1]
    for br in range(4):
        for t, tag in rd(br): emit_lds(t, tag)
    fill = {(py, i): [] for py in range(3) for i in range(16)}
    tagof = lambda t: ('w' if t.startswith('ds_') else None)
    for py in range(3):
        if py > 0:
            for t, p_ in zip(yout(py - 1), [2, 2, 3, 4, 4, 5]): fill[(py, p_)].append((t, tagof(t)))
        if py + 4 <= 5:
            for i, (t, tag) in enumerate(rd(py + 4)): fill[(py, 7 + i)].append((t, tag))
    sched = SCHED[0]
    if transp:
        for d, pos in enumerate(sched['u0']):
            for t in transpose_unit(0, d): fill[pos].append((t, tagof(t)))
        fill[sched['u1'][0]].append(('s_waitcnt vmcnt(WAIT1)', None))
        for d, pos in enumerate(sched['u1']):
            for t in transpose_unit(1, d): fill[pos].append((t, tagof(t)))
    for it, pos in zip(items[:4], sched['l0']):
        for t in it: fill[pos].append((t, None))
    for it, pos in zip(items[4:], sched['l1']):
        for t in it: fill[pos].append((t, None))
    for py in range(3):
        out.append(f';MARK{py}')
        for idx in range(16):
            R, C = divmod(idx, 4)
            if C == 0: need(('row', py + R))
            for px in range(2):
                aa = ACC + 8 * (py & 1) + 4 * px
                c = '0' if idx == 0 else v(aa, 4)
                out.append(f'{M4} {v(aa,4)}, {v(Wt(k,R,C),2)}, {v(blk(py+R, px+C),2)}, {c}')
            if fill[(py, idx)]:
                for t, tag in fill[(py, idx)]:
                    if tag: emit_lds(t, tag)
                    else: out.append(t)
            else:
                nxt_has_wait = (idx % 4 == 3) and idx < 15 and any(x == ('row', py + R + 1) for x in fifo)
                if not nxt_has_wait: out.append('s_nop 0')
    out += [';MARK3', 's_nop 4'] + yout(2) + [';MARK4']
    return out

def ln_block(cfg, NP):
    out = []
    t = BLK
    s1 = [t + p for p in range(NP)]; s2 = [t + 4 + p for p in range(NP)]
    for i in range(24):
        for p in range(NP):
            r = Y0 + 24 * p + i
            c1 = '0' if i == 0 else f'v{s1[p]}'; c2 = '0' if i == 0 else f'v{s2[p]}'
            out.append(f'v_dot2_f32_bf16 v{s1[p]}, v{r}, s{sOnes}, {c1}')
            out.append(f'v_dot2_f32_bf16 v{s2[p]}, v{r}, v{r}, {c2}')
    out.append('s_nop 2')
    allr = s1 + s2
    tm = [t + 8 + i for i in range(len(allr))]
    for sw in ('v_permlane16_swap_b32', 'v_permlane32_swap_b32'):
        for r, q in zip(allr, tm): out.append(f'v_mov_b32 v{q}, v{r}')
        out.append('s_nop 1')
        for r, q in zip(allr, tm): out.append(f'{sw} v{q}, v{r}')
        out.append('s_nop 1')
        for r, q in zip(allr, tm): out.append(f'v_add_f32 v{r}, v{r}, v{q}')
    rs = [t + 16 + p for p in range(NP)]; nb = [t + 20 + p for p in range(NP)]
    for p in range(NP): out.append(f'v_mul_f32 v{s1[p]}, s{sInv}, v{s1[p]}')
    for p in range(NP): out.append(f'v_mul_f32 v{s2[p]}, s{sInv}, v{s2[p]}')
    for p in range(NP): out.append(f'v_fma_f32 v{s2[p]}, -v{s1[p]}, v{s1[p]}, v{s2[p]}')
    for p in range(NP): out.append(f'v_max_f32 v{s2[p]}, 0, v{s2[p]}')
    for p in range(NP): out.append(f'v_add_f32 v{s2[p]}, s{sEps}, v{s2[p]}')
    for p in range(NP): out.append(f'v_rsq_f32 v{rs[p]}, v{s2[p]}')
    out.append('s_nop 0')
    for p in range(NP): out.append(f'v_mul_f32 v{rs[p]}, s{sAl}, v{rs[p]}')
    for p in range(NP): out.append(f'v_mul_f32 v{nb[p]}, -v{s1[p]}, v{rs[p]}')
    nt = cfg.st_flags
    k = 0
    for p in range(NP):
        out.append(f's_add_u32 s{sT}, s{sOut}, {147456*p}')
        out.append(f's_add_u32 s{sT2}, s{sT}, 4096')
        for s in range(6):
            for d in range(4):
                r = Y(p, s) + d
                a, b = t + 24 + 2 * (k % 4), t + 25 + 2 * (k % 4); k += 1
                out.append(f'v_lshlrev_b32 v{a}, 16, v{r}')
                out.append(f'v_and_b32 v{b}, 0xffff0000, v{r}')
                out.append(f'v_fma_f32 v{a}, v{a}, v{rs[p]}, v{nb[p]}')
                out.append(f'v_fma_f32 v{b}, v{b}, v{rs[p]}, v{nb[p]}')
                out.append(f'v_cvt_pk_bf16_f32 v{r}, v{a}, v{b}')
            so, im = (sT, 1024 * s) if s < 4 else (sT2, 1024 * (s - 4))
            out.append(f'buffer_store_dwordx4 {v(Y(p,s),4)}, v{vL16}, s[{sH}:{sH+3}], s{so} offen offset:{im}{nt}')
    return out

def pack_part1(name):
    out = []
    t = BLK
    out += [f's_mov_b32 s74, -1', f's_lshl_b32 s75, s{sWave}, 8', f's_add_u32 s75, s75, s2',
            f's_cmp_lt_u32 s75, 576', f's_cbranch_scc0 {name}_pk3', f's_mov_b32 s74, s75',
            f's_mul_hi_u32 s76, s75, {(1 << 32) // 24 + 1}',
            f's_mul_i32 s77, s76, 24', f's_sub_u32 s77, s75, s77',
            f'v_and_b32 v{t}, 15, v0', f'v_lshrrev_b32 v{t+1}, 4, v0',
            f's_cmp_lt_u32 s77, 12', f's_cbranch_scc0 {name}_pk2']
    out += [f's_add_u32 s78, s76, 1', f's_cmp_eq_u32 s78, 24', f's_cselect_b32 s78, 0, s78',
            f's_lshr_b32 s79, s77, 1', f's_and_b32 s80, s77, 1',
            f's_lshl_b32 s78, s78, 6', f's_lshl_b32 s80, s80, 5', f's_add_u32 s78, s78, s80',
            f's_mul_i32 s79, s79, {32*1536}', f's_add_u32 s78, s78, s79',
            f'v_mul_u32_u24 v{t+2}, {8*1536}, v{t+1}', f'v_lshl_add_u32 v{t+2}, v{t}, 1, v{t+2}',
            f's_mov_b32 s{sM}, s84', f's_mov_b32 s{sM+1}, s85', f's_mov_b32 s{sM+2}, {192*768*2}', f's_mov_b32 s{sM+3}, 0x20000']
    for e in range(8):
        out.append(f's_add_u32 s79, s78, {e*1536}')
        out.append(f'buffer_load_ushort v{Y0+32+e}, v{t+2}, s[{sM}:{sM+3}], s79 offen')
    out += [f's_branch {name}_pk3', f'{name}_pk2:']
    out += [f's_add_u32 s78, s76, 23', f's_cmp_ge_u32 s78, 24', f's_cselect_b32 s79, 24, 0', f's_sub_u32 s78, s78, s79',
            f's_sub_u32 s79, s77, 12', f's_lshr_b32 s80, s79, 1', f's_and_b32 s79, s79, 1',
            f's_mul_i32 s78, s78, {32*384}', f's_lshl_b32 s80, s80, 6', f's_lshl_b32 s79, s79, 3',
            f's_add_u32 s78, s78, s80', f's_add_u32 s78, s78, s79',
            f'v_lshrrev_b32 v{t+3}, 2, v{t}', f'v_lshlrev_b32 v{t+3}, 4, v{t+3}',
            f'v_and_b32 v{t+4}, 3, v{t}', f'v_lshl_add_u32 v{t+3}, v{t+4}, 1, v{t+3}',
            f'v_mul_u32_u24 v{t+2}, {4*384}, v{t+1}', f'v_add_u32 v{t+2}, v{t+2}, v{t+3}',
            f's_mov_b32 s{sM}, s86', f's_mov_b32 s{sM+1}, s87', f's_mov_b32 s{sM+2}, {192*768*2}', f's_mov_b32 s{sM+3}, 0x20000']
    for e in range(8):
        out.append(f's_add_u32 s79, s78, {(16*(e>>2) + (e&3))*384}')
        out.append(f'buffer_load_ushort v{Y0+32+e}, v{t+2}, s[{sM}:{sM+3}], s79 offen')
    out += [f'{name}_pk3:']
    return out

def pack_part2(name, cfg):
    out = [f's_cmp_eq_u32 s74, -1', f's_cbranch_scc1 {name}_pk4']
    for d in range(4): out.append(f'v_lshl_or_b32 v{Y0+d}, v{Y0+32+2*d+1}, 16, v{Y0+32+2*d}')
    if cfg.w2f16:
        out += [f's_cmp_lt_u32 s77, 12', f's_cbranch_scc1 {name}_pk5']
        for e in range(8): out.append(f'v_lshlrev_b32 v{Y0+32+e}, 16, v{Y0+32+e}')
        for d in range(4): out.append(f'v_cvt_pk_f16_f32 v{Y0+d}, v{Y0+32+2*d}, v{Y0+32+2*d+1}')
        out.append(f'{name}_pk5:')
    out += [f's_add_u32 s{sM}, s70, {WS_W}', f's_addc_u32 s{sM+1}, s71, 0', f's_mov_b32 s{sM+2}, {W_BYTES}', f's_mov_b32 s{sM+3}, 0x20000',
            f's_lshl_b32 s75, s74, 10',
            f'buffer_store_dwordx4 {v(Y0,4)}, v{vL16}, s[{sM}:{sM+3}], s75 offen', f'{name}_pk4:']
    return out

_k = [0]
def stamp(cfg):
    if not cfg.prof: return []
    k = _k[0]; _k[0] += 1
    return [f'STAMP{k}']

def gen(cfg, name='conv_kernel'):
    P = []; TR = []
    SCHED[0] = SCHEDS[cfg.sched]
    _k[0] = 0
    def emit(l, tr=True):
        P.extend(l)
        if tr: TR.extend(l)
    emit(['s_cmp_ge_u32 s2, 256', f's_cbranch_scc1 {name}_done',
          's_load_dwordx4 s[4:7], s[0:1], 0',
          's_load_dwordx2 s[70:71], s[0:1], 48',
          's_load_dwordx4 s[84:87], s[0:1], 16',
          'v_lshrrev_b32 v1, 6, v0', 'v_and_b32 v0, 63, v0', 's_nop 0',
          f'v_readfirstlane_b32 s{sWave}, v1',
          f's_mov_b32 s{sIMG}, {IMG_BYTES}', f's_mov_b32 s{sOnes}, 0x3f803f80',
          f's_mov_b32 s{sSelL}, 0x05040100', f's_mov_b32 s{sSelH}, 0x07060302',
          f's_mov_b32 s{sAl}, {hex(f2u(ALPHA))}', f's_mov_b32 s{sEps}, {hex(f2u(1e-5))}', f's_mov_b32 s{sInv}, {hex(f2u(1.0/192))}',
          f'v_lshlrev_b32 v{vL16}, 4, v0',
          's_waitcnt lgkmcnt(0)',
          f's_mov_b32 s{sX}, s4', f's_mov_b32 s{sX+1}, s5', f's_mov_b32 s{sX+2}, {IMG_BYTES}', f's_mov_b32 s{sX+3}, 0x20000',
          f's_mov_b32 s{sD}, s6', f's_mov_b32 s{sD+1}, s7', f's_mov_b32 s{sD+2}, {49*384}', f's_mov_b32 s{sD+3}, 0x20000',
          f's_add_u32 s{sH}, s70, {WS_H}', f's_addc_u32 s{sH+1}, s71, 0', f's_mov_b32 s{sH+2}, {IMG_BYTES}', f's_mov_b32 s{sH+3}, 0x20000',
          f's_lshr_b32 s{sHalf}, s{sWave}, 2', f's_mov_b32 s{sTile}, 0'])
    P.extend(stamp(cfg))
    if cfg.pack: P += pack_part1(name)
    t = Y0
    c = []
    for m in range(3):
        cc = [f's_lshl_b32 s{sT}, s{sWave}, 6', f's_add_u32 s{sT}, s{sT}, {512*m}',
              f'v_add_u32 v{t}, s{sT}, v0',
              f'v_mul_u32_u24 v{t+1}, 5892, v{t}', f'v_lshrrev_b32 v{t+1}, 20, v{t+1}',
              f'v_mul_u32_u24 v{t+2}, 178, v{t+1}', f'v_sub_u32 v{t+2}, v{t}, v{t+2}',
              f'v_mul_u32_u24 v{t+3}, 2622, v{t+2}', f'v_lshrrev_b32 v{t+3}, 16, v{t+3}',
              f'v_mul_u32_u24 v{t+4}, 25, v{t+3}', f'v_sub_u32 v{t+4}, v{t+2}, v{t+4}',
              f'v_mul_u32_u24 v{t+5}, 7, v{t+1}', f'v_add_u32 v{t+5}, v{t+5}, v{t+3}',
              f'v_mul_u32_u24 v{t+5}, 24, v{t+5}', f'v_add_u32 v{t+5}, v{t+5}, v{t+4}', f'v_lshlrev_b32 v{t+5}, 4, v{t+5}',
              f'v_cmp_gt_u32 vcc, 7, v{t+3}', f'v_cmp_gt_u32 s[72:73], 24, v{t+4}', 's_nop 1', f's_and_b64 vcc, vcc, s[72:73]',
              f'v_cndmask_b32 v{t+5}, 2.0, v{t+5}, vcc',
              f's_lshl_b32 s{sT}, s{sWave}, 10', f's_add_u32 m0, s{sT}, {DWB + 8192*m}', 's_nop 0',
              f'buffer_load_dwordx4 v{t+5}, s[{sD}:{sD+3}], 0 offen lds']
        if m < 2: c += cc
        else: c += [f's_cmp_gt_u32 s{sWave}, 3', f's_cbranch_scc1 {name}_nodw'] + cc + [f'{name}_nodw:']
    P += c; TR += [x for x in c if not x.endswith(':')]
    c = [f'v_and_b32 v{t}, 7, v0', f'v_lshrrev_b32 v{t+1}, 3, v0']
    for r in range(2):
        if r == 0: c += [f's_lshl_b32 s{sT}, s{sWave}, 3']
        else:
            c += [f's_mul_i32 s{sT}, s{sWave}, 5', f's_lshl_b32 s{sT2}, s{sWave}, 2', f's_add_u32 s{sT2}, s{sT2}, 3', f's_cmp_lt_u32 s{sWave}, 3',
                  f's_cselect_b32 s{sT}, s{sT}, s{sT2}', f's_add_u32 s{sT}, s{sT}, 64',
                  f's_cselect_b32 s{sT2}, 5, 4' if False else f's_cmp_lt_u32 s{sWave}, 3', f's_cselect_b32 s{sT2}, 5, 4',
                  f'v_cmp_gt_u32 s[{sMk1}:{sMk1+1}], s{sT2}, v{t+1}']
        c += [f'v_add_u32 v{t+2}, s{sT}, v{t+1}',
              f'v_mul_u32_u24 v{t+3}, 745, v{t+2}', f'v_lshrrev_b32 v{t+3}, 13, v{t+3}',
              f'v_mul_u32_u24 v{t+4}, 11, v{t+3}', f'v_sub_u32 v{t+4}, v{t+2}, v{t+4}',
              f'v_mul_u32_u24 v{t+5}, {2*384}, v{t+3}', f'v_lshl_add_u32 v{t+5}, v{t+4}, 1, v{t+5}',
              f'v_mul_u32_u24 v{t+5}, 384, v{t+5}',
              f'v_lshl_add_u32 v{vRel+r}, v{t}, 4, v{t+5}']
        for dx in range(2):
            mL = sMaskL + 2 * (2 * r + dx); mR = sMaskR + 2 * (2 * r + dx)
            c += [f'v_lshl_add_u32 v{t+6}, v{t+4}, 1, {dx}',
                  f'v_cmp_lt_u32 s[{mL}:{mL+1}], 2, v{t+6}', f'v_cmp_gt_u32 s[{mR}:{mR+1}], 19, v{t+6}']
            if r == 1:
                c += ['s_nop 1', f's_and_b64 s[{mL}:{mL+1}], s[{mL}:{mL+1}], s[{sMk1}:{sMk1+1}]', f's_and_b64 s[{mR}:{mR+1}], s[{mR}:{mR+1}], s[{sMk1}:{sMk1+1}]']
        c += [f'v_mul_u32_u24 v{vLw if r == 0 else vLw1}, {REC}, v{t+2}']
        if r == 1: c += [f'v_cndmask_b32 v{vRel+1}, 2.0, v{vRel+1}, s[{sMk1}:{sMk1+1}]']
    c += [f'v_lshrrev_b32 v{t}, 2, v0', f'v_and_b32 v{t+1}, 3, v0', f'v_lshrrev_b32 v{t+2}, 3, v{t}',
          f's_and_b32 s{sT2}, s{sWave}, 3', f's_lshl_b32 s{sT}, s{sT2}, 1',
          f'v_add_u32 v{t+2}, s{sT}, v{t+2}',
          f'v_bfe_u32 v{t+3}, v{t}, 1, 2',
          f'v_xor_b32 v{t+4}, v{t+2}, v{t+3}',
          f'v_lshlrev_b32 v{t+4}, 1, v{t+4}', f'v_lshl_add_u32 v{t+4}, v{t+3}, 4, v{t+4}',
          f'v_and_b32 v{t+5}, 1, v{t}', f'v_add_u32 v{t+4}, v{t+4}, v{t+5}',
          f'v_lshlrev_b32 v{t+4}, 3, v{t+4}',
          f'v_mul_u32_u24 v{t+5}, {2*REC}, v{t+1}', f'v_add_u32 v{vRd}, v{t+4}, v{t+5}',
          f's_mul_i32 s{sT}, s{sHalf}, {3*11*REC}', f'v_add_u32 v{vRd}, s{sT}, v{vRd}',
          f'v_and_b32 v{t+6}, 7, v{t}', f'v_lshlrev_b32 v{t+6}, 1, v{t+6}',
          f's_mul_i32 s{sT}, s{sHalf}, {6*2048}', f's_add_u32 s{sT}, s{sT}, {YB}']
    c += [f's_lshl_b32 s{sT2}, s{sT2}, 4', f'v_add_u32 v{t+7}, s{sT2}, v{t}',
          f'v_bfe_u32 v{t+8}, v{t+7}, 3, 1', f'v_lshlrev_b32 v{t+8}, 2, v{t+8}', f'v_xor_b32 v{t+7}, v{t+7}, v{t+8}',
          f'v_lshlrev_b32 v{t+7}, 5, v{t+7}', f'v_lshl_add_u32 v{t+7}, v{t+1}, 3, v{t+7}', f'v_add_u32 v{vY0}, s{sT}, v{t+7}']
    c += [f's_lshl_b32 s{sT3}, s{sWave}, 1', f's_add_u32 s{sT}, s{sWave}, 4', f's_cmp_gt_u32 s{sWave}, 3', f's_cselect_b32 s{sT3}, s{sT}, s{sT3}',
          f'v_lshrrev_b32 v{t}, 4, v0', f'v_bfe_u32 v{t+1}, v0, 2, 2', f'v_and_b32 v{t+2}, 3, v0',
          f's_lshl_b32 s{sT}, s{sT3}, 11', f's_add_u32 s{sT}, s{sT}, {YB}']
    for h, vr in ((0, vR0), (1, vR1)):
        c += [f'v_lshl_add_u32 v{t+3}, v{t}, 3, v{t+1}', f'v_add_u32 v{t+3}, {4*h}, v{t+3}',
              f'v_and_b32 v{t+4}, 1, v{t}', f'v_lshlrev_b32 v{t+4}, 2, v{t+4}', f'v_xor_b32 v{t+3}, v{t+3}, v{t+4}',
              f'v_lshlrev_b32 v{t+3}, 5, v{t+3}', f'v_lshl_add_u32 v{t+3}, v{t+2}, 3, v{t+3}', f'v_add_u32 v{vr}, s{sT}, v{t+3}']
    vb = Y0 + 40
    c += [f'v_lshrrev_b32 v{t}, 2, v0', f's_and_b32 s{sT}, s{sWave}, 3', f's_lshl_b32 s{sT}, s{sT}, 5', f'v_lshlrev_b32 v{t}, 1, v{t}', f'v_add_u32 v{t}, s{sT}, v{t}',
          f'v_bfe_u32 v{t+1}, v0, 1, 1', f'v_mul_u32_u24 v{t+1}, {ROWS}, v{t+1}', f'v_and_b32 v{t+2}, 1, v0', f'v_mul_u32_u24 v{t+2}, {TAPS}, v{t+2}',
          f'v_add_u32 v{t+1}, v{t+1}, v{t+2}', f'v_sub_u32 v{t}, v{t}, v{t+1}', f'v_add_u32 v{vb}, {DWB}, v{t}',
          f'v_and_b32 v{vO16}, 7, v0', f'v_lshlrev_b32 v{vO16}, 4, v{vO16}']
    emit(c)
    def tile_setup():
        o = [f's_lshr_b32 s95, s2, 3', f's_lshl_b32 s94, s{sTile}, 5', f's_add_u32 s95, s95, s94',
             f's_and_b32 s92, s2, 7', f's_lshl_b32 s92, s92, 2', f's_and_b32 s93, s95, 3', f's_add_u32 s92, s92, s93',
             f's_lshr_b32 s93, s95, 2',
             f's_mul_i32 s94, s92, {12*384}', f's_lshl_b32 s95, s93, 4', f's_add_u32 s94, s94, s95',
             f's_sub_u32 s95, s94, {3*384+3}', f's_mul_i32 s{sBase}, s95, 384',
             f's_mul_i32 s95, s{sT3}, 384', f's_add_u32 s94, s94, s95', f's_mul_i32 s{sOutN}, s94, 384',
             f's_sub_u32 s95, s93, 1', f's_cmp_lt_u32 s95, 22', f's_cselect_b32 s{sFast}, 1, 0',
             f's_cmp_eq_u32 s92, 0', f's_cselect_b32 s{sFast}, 0, s{sFast}']
        for i in range(4):
            m, l, r = sMask + 2 * i, sMaskL + 2 * i, sMaskR + 2 * i
            o += [f's_mov_b64 s[{m}:{m+1}], -1' if i < 2 else f's_or_b64 s[{m}:{m+1}], s[{l}:{l+1}], s[{r}:{r+1}]',
                  f's_cmp_eq_u32 s93, 0', f's_cselect_b64 s[{m}:{m+1}], s[{l}:{l+1}], s[{m}:{m+1}]',
                  f's_cmp_eq_u32 s93, 23', f's_cselect_b64 s[{m}:{m+1}], s[{r}:{r+1}], s[{m}:{m+1}]']
        return o
    ts = tile_setup()
    emit(ts)
    emit(load_consts(0) + sum(load_items(cfg, 0, False), []))
    emit(['s_waitcnt vmcnt(8)', 's_barrier'])
    P.extend(stamp(cfg))
    emit(weights_gather(vb))
    if cfg.pack: P += pack_part2(name, cfg)
    P.extend(stamp(cfg))
    emit(['s_waitcnt vmcnt(0)'] + transpose_round(0) + transpose_round(1))
    emit(load_consts(1) + sum(load_items(cfg, 1, False), []))
    emit([f'v_add_u32 v{vLw}, {SLAB}, v{vLw}', f'v_add_u32 v{vLw1}, {SLAB}, v{vLw1}', f's_mov_b32 s{sDS}, {SLAB}', f's_mov_b32 s{sDY}, 24576',
          's_waitcnt lgkmcnt(0)', 's_barrier'])
    P += ['.p2align 6', f'{name}_tile:']
    emit([f's_mov_b32 s{sOut}, s{sOutN}'])
    for k in range(3):
        P.extend(stamp(cfg))
        nk = (k + 2) % 3
        if k == 1:
            emit([f's_add_u32 s{sTile}, s{sTile}, 1'] + ts + [f's_cmp_eq_u32 s{sTile}, 3', f's_cselect_b32 s{sBase}, 0x60000000, s{sBase}', f's_cselect_b32 s{sFast}, 1, s{sFast}'])
        emit(load_consts(nk))
        if k == 0:
            w = [f's_cmp_eq_u32 s{sTile}, 0', f's_cbranch_scc1 {name}_w0', f's_cmp_gt_u32 s{sWave}, 3', f's_cbranch_scc1 {name}_w6',
                 's_waitcnt vmcnt(16)', f's_branch {name}_wd', f'{name}_w6:', 's_waitcnt vmcnt(10)', f's_branch {name}_wd', f'{name}_w0:', 's_waitcnt vmcnt(4)', f'{name}_wd:']
            P += w; TR += ['s_waitcnt vmcnt(4)']
        else:
            emit(['s_waitcnt vmcnt(4)'])
        P.extend(stamp(cfg))
        cf = conv_stage3(k, load_items(cfg, nk, True)); cs = conv_stage3(k, load_items(cfg, nk, False))
        cf = [x.replace('WAIT1', '4') for x in cf]; cs = [x.replace('WAIT1', '4') for x in cs]
        if cfg.fine2 and k == cfg.fstage:
            ex = lambda l, tg: sum(([f'FST{x[5:]}{tg}'] if x.startswith(';MARK') else [x] for x in l), [])
            cf = ['FST5a'] + ex(cf, 'a'); cs = ['FST5b'] + ex(cs, 'b')
        P += [f's_cmp_eq_u32 s{sFast}, 0', f's_cbranch_scc1 {name}_cs{k}'] + cf + [f's_branch {name}_cd{k}', f'{name}_cs{k}:'] + cs + [f'{name}_cd{k}:']
        TR += [x for x in cs if not x.startswith('FST')]
        P.extend(stamp(cfg))
        if cfg.fine2 and k == cfg.fstage:
            P += ['s_waitcnt lgkmcnt(0)', 'FST6c', 's_barrier', 'FST7c']; TR += ['s_waitcnt lgkmcnt(0)', 's_barrier']
        else: emit(['s_waitcnt lgkmcnt(0)', 's_barrier'])
        def yr(NP):
            o = []
            for p in range(NP):
                for sp in range(2):
                    for h in range(2):
                        o.append(f'ds_read_b64_tr_b16 {v(Y(p,2*k+sp)+2*h,2)}, v{vR0 if h == 0 else vR1} offset:{p*2048 + sp*1024}')
            return o
        P += yr(1) + [f's_cmp_gt_u32 s{sWave}, 3', f's_cbranch_scc1 {name}_y{k}'] + yr(2)[4:] + [f'{name}_y{k}:']
        TR += yr(2)
        emit([f'v_add_u32 v{vRd}, s{sDS}, v{vRd}', f'v_subrev_u32 v{vLw}, s{sDS}, v{vLw}', f'v_subrev_u32 v{vLw1}, s{sDS}, v{vLw1}',
              f'v_add_u32 v{vY0}, s{sDY}, v{vY0}',
              f'v_add_u32 v{vR0}, s{sDY}, v{vR0}', f'v_add_u32 v{vR1}, s{sDY}, v{vR1}',
              f's_sub_u32 s{sDS}, 0, s{sDS}', f's_sub_u32 s{sDY}, 0, s{sDY}'])
    emit(['s_waitcnt lgkmcnt(0)'])
    P.extend(stamp(cfg))
    l2, l1 = ln_block(cfg, 2), ln_block(cfg, 1)
    P += [f's_cmp_gt_u32 s{sWave}, 3', f's_cbranch_scc1 {name}_ln1'] + l2 + [f's_branch {name}_lnd', f'{name}_ln1:'] + l1 + [f'{name}_lnd:']
    TR += l2
    P.extend(stamp(cfg))
    P += [f's_cmp_lt_u32 s{sTile}, 3', f's_cbranch_scc1 {name}_tile']
    if cfg.fine2:
        Q = []
        for x in P:
            if x.startswith('FST'):
                k = int(x[3]); lab = x[3:]
                Q += [f's_cmp_eq_u32 s{sTile}, 2', f's_cbranch_scc0 {name}_fs{lab}', f's_memtime s[{74+2*k if k < 7 else 96}:{75+2*k if k < 7 else 97}]', f'{name}_fs{lab}:']
            else: Q.append(x)
        P = Q
        P += ['s_waitcnt vmcnt(0) lgkmcnt(0)', f's_cmp_eq_u32 s2, {cfg.profwg}', f's_cbranch_scc0 {name}_done', f's_cmp_eq_u32 s{sWave}, {cfg.fwave}', f's_cbranch_scc0 {name}_done',
              's_load_dwordx2 s[6:7], s[0:1], 40', 's_waitcnt lgkmcnt(0)']
        for k in range(8): P += [f'v_mov_b32 v{vA}, s{74+2*k if k < 7 else 96}', f'v_mov_b32 v{vB}, {4*k}', 's_nop 1', f'global_store_dword v{vB}, v{vA}, s[6:7]']
    if cfg.allwg:
        P = P[:2] + ['s_memrealtime s[98:99]'] + P[2:]
        P += ['s_waitcnt vmcnt(0)', 's_memrealtime s[82:83]', f's_cmp_eq_u32 s{sWave}, 0', f's_cbranch_scc0 {name}_done',
              's_waitcnt lgkmcnt(0)', 's_lshl_b32 s3, s2, 3', f's_add_u32 s3, s3, {200 << 20}',
              f'v_mov_b32 v{vA}, s98', f'v_mov_b32 v{vB}, s3', 's_nop 1', f'global_store_dword v{vB}, v{vA}, s[70:71]',
              f'v_mov_b32 v{vA}, s82', 's_nop 1', f'global_store_dword v{vB}, v{vA}, s[70:71] offset:4']
    if cfg.light:
        P = P[:2] + ['s_memtime s[76:77]', 's_memrealtime s[78:79]'] + P[2:]
        P += ['s_waitcnt vmcnt(0)', 's_memtime s[80:81]', 's_memrealtime s[82:83]', f's_cmp_eq_u32 s2, {cfg.profwg}', f's_cbranch_scc0 {name}_done', f's_cmp_eq_u32 s{sWave}, 0', f's_cbranch_scc0 {name}_done',
              's_load_dwordx2 s[6:7], s[0:1], 40', 's_waitcnt lgkmcnt(0)']
        for k, sr in enumerate((76, 78, 80, 82)): P += [f'v_mov_b32 v{vA}, s{sr}', f'v_mov_b32 v{vB}, {4*k}', 's_nop 1', f'global_store_dword v{vB}, v{vA}, s[6:7]']
    P += [f'{name}_done:', 's_endpgm']
    if cfg.prof:
        Q = []
        for x in P:
            if x.startswith('STAMP'):
                k = int(x[5:])
                Q += [f's_cmp_eq_u32 s2, {cfg.profwg}', f's_cbranch_scc0 {name}_ns{k}', f's_cmp_eq_u32 s{sWave}, 0', f's_cbranch_scc0 {name}_ns{k}',
                      f's_cmp_eq_u32 s{sTile}, 3', f's_cbranch_scc1 {name}_ns{k}',
                      's_memtime s[4:5]', 's_load_dwordx2 s[6:7], s[0:1], 40', 's_waitcnt lgkmcnt(0)',
                      f's_lshl_b32 s3, s{sTile}, 6', f's_add_u32 s3, s3, {4*k}' if k >= 3 else f's_mov_b32 s3, {4*k}',
                      f'v_mov_b32 v{vA}, s4', f'v_mov_b32 v{vB}, s3', 's_nop 1', f'global_store_dword v{vB}, v{vA}, s[6:7]', f'{name}_ns{k}:']
            elif x.startswith('FST'):
                k = int(x[3:])
                Q += [f's_cmp_eq_u32 s{sTile}, 1', f's_cbranch_scc0 {name}_fs{k}', f's_memtime s[{76+2*k}:{77+2*k}]', f'{name}_fs{k}:']
            else: Q.append(x)
        P = Q
        if cfg.fine:
            j = P.index(f'{name}_done:')
            d = [f's_cmp_eq_u32 s2, {cfg.profwg}', f's_cbranch_scc0 {name}_done', f's_cmp_eq_u32 s{sWave}, 0', f's_cbranch_scc0 {name}_done',
                 's_load_dwordx2 s[6:7], s[0:1], 40', 's_waitcnt lgkmcnt(0)']
            for k in range(5): d += [f'v_mov_b32 v{vA}, s{76+2*k}', f'v_mov_b32 v{vB}, {192+4*k}', 's_nop 1', f'global_store_dword v{vB}, v{vA}, s[6:7]']
            P = P[:j] + d + P[j:]
    return P, TR

def kd(name):
    return f'''.amdhsa_kernel {name}
  .amdhsa_next_free_vgpr 256
  .amdhsa_next_free_sgpr 102
  .amdhsa_accum_offset 256
  .amdhsa_group_segment_fixed_size 0
  .amdhsa_kernarg_size 56
  .amdhsa_user_sgpr_count 2
  .amdhsa_user_sgpr_kernarg_segment_ptr 1
  .amdhsa_system_sgpr_workgroup_id_x 1
  .amdhsa_float_denorm_mode_32 3
.end_amdhsa_kernel
'''
if __name__ == '__main__':
    import asmlib
    P, TR = gen(Cfg)
    asmlib.check(TR, 'k1')
    print(len(P))
```

```python
import struct, math

def f2u(f): return struct.unpack('<I', struct.pack('<f', f))[0]
LOG2E = 1.4426950408889634
A1 = 2.0 * math.sqrt(2.0 / math.pi) * LOG2E
B1 = A1 * 0.044715
ALPHA = B1 ** (1.0 / 3.0)
CC = A1 / ALPHA

WS_W = 0
W_BYTES = 24 * 24576
WS_H = 1 << 20
IMG_BYTES = 384 * 384 * 192 * 2

vLds, vDma, vG = 1, 2, 3
T0 = 8
G0 = 24
S0 = 48
ACC = 96
H0, PF0, PX0, W0, I0 = 0, 72, 144, 216, 248
NB = 8
sW, sH, sX, sO = 8, 12, 16, 20
sPass, sJ, sDst, sDstSum, sSrc, sWoff, sB, sT, sT2, sNegC, sAlpha = 24, 25, 26, 27, 28, 29, 30, 31, 32, 34, 35
sB1, sRd = 36, 37
sRet = 42
sLdH = 96 - 4
sSt, sLd = 44, 48
OOB = 0x70000000

def v(b, n=1): return f'v{b}' if n == 1 else f'v[{b}:{b+n-1}]'
def a(b, n=1): return f'a{b}' if n == 1 else f'a[{b}:{b+n-1}]'
def Sreg(buf, aa, p): return S0 + 24 * buf + 4 * (aa * 3 + p)
def Greg(buf, p): return G0 + 12 * buf + 4 * p
def acc(t, p): return ACC + 4 * (t * 3 + p)
def hreg(p, s): return H0 + 24 * p + 4 * s
def pfreg(p, s): return PF0 + 24 * p + 4 * s
def pxreg(p, s): return PX0 + 24 * p + 4 * s
MF = 'v_mfma_f32_16x16x32_bf16'

class Cfg:
    prof = False
    prof2 = False
    allwg = False
    profpass = 1
    plan = ['ssss', 'sssss', 'sssss', 'ssssh', 'hhhhh', 'hhhhh', 'hhhhh', 'hhxxx', 'xxxxx', 'xxxxx', 'xxxxx', '']
    xpos = [26, 30, 34, 38, 41]
    D = 5
    gsz = 4
    f16 = False
    warm = True
    sub = True
    nt_h = False; nt_x = False; nt_o = False

def f2h(f):
    import numpy as np
    return int(np.float16(f).view(np.uint16))

def gelu_list16(buf, cfg):
    out = []
    grp = [(aa, p) for aa in range(2) for p in range(3)]
    for i in range(0, 6, 2):
        dw = []
        for gi, (aa, p) in enumerate(grp[i:i+2]):
            for d in range(2):
                n = (i // 2 % 2) * 8 + gi * 4 + d * 2
                u = Sreg(buf, aa, p) + 2 * d
                dw.append((u, u + 1, T0 + n, T0 + n + 1, Greg(buf, p) + 2 * aa + d))
        SD = lambda w: f'dst_sel:WORD_{w} dst_unused:UNUSED_PRESERVE src0_sel:WORD_{w}'
        for u0, u1, h, t, g in dw: out.append(f'v_cvt_pk_f16_f32 v{h}, v{u0}, v{u1}')
        for u0, u1, h, t, g in dw: out.append(f'v_pk_fma_f16 v{t}, v{h}, v{h}, s{sNegC} neg_lo:[1,0,0] neg_hi:[1,0,0]')
        for u0, u1, h, t, g in dw: out.append(f'v_pk_mul_f16 v{t}, v{t}, v{h}')
        for w in range(2):
            for u0, u1, h, t, g in dw: out.append(f'v_exp_f16_sdwa v{t}, v{t} {SD(w)}')
        for u0, u1, h, t, g in dw: out.append(f'v_pk_fma_f16 v{t}, v{t}, s{sAlpha}, s{sAlpha}')
        for w in range(2):
            for u0, u1, h, t, g in dw: out.append(f'v_rcp_f16_sdwa v{t}, v{t} {SD(w)}')
        for u0, u1, h, t, g in dw: out.append(f'v_pk_mul_f16 v{g}, v{h}, v{t}')
    return out

def gelu_list(buf, cfg):
    if cfg.f16: return gelu_list16(buf, cfg)
    out = []
    k = 0
    for aa in range(2):
        for p in range(3):
            es = [Sreg(buf, aa, p) + i for i in range(4)]
            ts = [T0 + (k % 2) * 4 + i for i in range(4)]
            k += 1
            for u, t in zip(es, ts): out.append(f'v_fma_f32 v{t}, -v{u}, v{u}, s{sNegC}')
            for u, t in zip(es, ts): out.append(f'v_mul_f32 v{t}, v{t}, v{u}')
            for u, t in zip(es, ts): out.append(f'v_exp_f32 v{t}, v{t}')
            for u, t in zip(es, ts): out.append(f'v_fma_f32 v{t}, v{t}, s{sAlpha}, s{sAlpha}')
            for u, t in zip(es, ts): out.append(f'v_rcp_f32 v{t}, v{t}')
            for u, t in zip(es, ts): out.append(f'v_mul_f32 v{t}, v{u}, v{t}')
            g = Greg(buf, p) + 2 * aa
            out.append(f'v_cvt_pk_bf16_f32 v{g}, v{ts[0]}, v{ts[1]}')
            out.append(f'v_cvt_pk_bf16_f32 v{g+1}, v{ts[2]}, v{ts[3]}')
    return out

def g1_groups(j):
    buf = (j + 1) & 1
    base = (j & 1) * 24576
    gs = []
    for s in range(6):
        for aa in range(2):
            gs.append((base + (2 * s + aa) * 1024,
                       [(lambda w, p=p, s=s, aa=aa: f'{MF} {v(Sreg(buf,aa,p),4)}, {a(w,4)}, {a(hreg(p,s),4)}, ' + ('0' if s == 0 else v(Sreg(buf,aa,p),4))) for p in range(3)]))
    return gs

MF2 = [MF]
def g2_groups(j):
    buf = (j - 1) & 1
    base = (j & 1) * 24576 + 12288
    gs = []
    for t in range(12):
        gs.append((base + t * 1024,
                   [(lambda w, p=p, t=t: f'{MF2[0]} {v(acc(t,p),4)}, {a(w,4)}, {v(Greg(buf,p),4)}, {v(acc(t,p),4)}') for p in range(3)]))
    return gs

def cost(t):
    op = t.split()[0]
    if op.startswith(('v_exp', 'v_rcp')): return 8
    return 4

def wbuf(g): return W0 + 4 * (g % NB)

def dma_block(k):
    return [f's_add_u32 m0, s{sDst}, {4096*k}', f's_add_u32 s{sT}, s{sSrc}, {4096*k}']
DTAG = ['dma']
def dma(i):
    return f'buffer_load_dwordx4 v{vDma}, s[{sW}:{sW+3}], s{sT} offen offset:{(i%4)*1024} lds ;@{DTAG[0]}'

def superstep(cfg, j0, mid=None, extra_valu=None, extra_at=None, bar_wait=None, dma_on=True, pre=None):
    D = cfg.D
    groups = g1_groups(j0) + g2_groups(j0) + g1_groups(j0 + 1) + g2_groups(j0 + 1)
    nxt = g1_groups(j0)
    out = list(pre or [])
    fifo = list(range(0, D))
    waited = 1
    fifo = [g for g in fifo if g > waited]
    vl = [gelu_list(j0 & 1, cfg), gelu_list((j0 + 1) & 1, cfg)]
    extra_at = extra_at or {}
    reads_at = {g: [] for g in range(48)}
    for g in range(48):
        r = g + D
        if r <= 46 - 0 and g < 47 - D - 1: reads_at[g].append(r)
    reads_at[47 - D - 1] = [46, 47]
    reads_at[47 - D] = []
    for k in range(D): reads_at[48 - D + k].append(48 + k)
    dma_at = {}
    if dma_on:
        for i in range(12): dma_at.setdefault(2 * i, []).append(i)
    for step in range(2):
        valu = list(vl[step])
        tot = sum(cost(t) for t in valu)
        done = 0; vi = 0
        ex = (extra_valu or {}).get(step)
        exi = 0
        for gl in range(24):
            g = step * 24 + gl
            ms = groups[g][1]
            for k, m in enumerate(ms):
                out.append(m(wbuf(g)))
                if k == 0:
                    if g == 48 - D:
                        out.append('s_waitcnt lgkmcnt(0)'); fifo = []; waited = 47
                        out += bar_wait or ['s_waitcnt vmcnt(0)']
                        out.append('s_barrier')
                        out.append(f'v_add_u32 v{vLds}, s{sRd}, v{vDma}')
                    for r in reads_at[g]:
                        off = groups[r][0] if r < 48 else nxt[r - 48][0]
                        out.append(f'ds_read_b128 {a(wbuf(r),4)}, v{vLds} offset:{off}')
                        fifo.append(r)
                    for i in dma_at.get(g, []):
                        if i % 4 == 0: out += dma_block(i // 4)
                        if i % 4 == 0: out.append('s_nop 0')
                        out.append(dma(i))
                    if g == 38:
                        out += [f's_add_u32 s{sRd}, s{sRd}, 49152', f's_cmp_eq_u32 s{sRd}, 147456', f's_cselect_b32 s{sRd}, 0, s{sRd}']
                    out += extra_at.get(g, [])
                mi = gl * 3 + k + 1
                target = tot * mi / 72.0
                while vi < len(valu) and done + cost(valu[vi]) / 2 <= target:
                    out.append(valu[vi]); done += cost(valu[vi]); vi += 1
                if mi == 72:
                    while vi < len(valu): out.append(valu[vi]); vi += 1
                if ex and ex[0] <= gl < ex[1]:
                    n = len(ex[2]); span = (ex[1] - ex[0]) * 3
                    upto = ((gl - ex[0]) * 3 + k + 1) * n // span
                    while exi < upto: out.append(ex[2][exi]); exi += 1
            if g % 2 == 1:
                needg = g + 2
                if waited < needg:
                    pend = [r for r in fifo if r > needg]
                    if len(pend) < len(fifo):
                        out.append(f's_waitcnt lgkmcnt({len(pend)})')
                    fifo = pend; waited = needg
        if step == 0 and mid: out += mid
    return out

def mid_block(cfg):
    out = []
    k = 0
    for p in range(3):
        for s in range(6):
            t = T0 + 8 + (k % 2) * 4; k += 1
            r0, r1 = acc(2 * s, p), acc(2 * s + 1, p)
            out.append(f'v_cvt_pk_bf16_f32 v{t}, v{r0}, v{r0+1}')
            out.append(f'v_cvt_pk_bf16_f32 v{t+1}, v{r0+2}, v{r0+3}')
            out.append(f'v_cvt_pk_bf16_f32 v{t+2}, v{r1}, v{r1+1}')
            out.append(f'v_cvt_pk_bf16_f32 v{t+3}, v{r1+2}, v{r1+3}')
            out.append(f'{MF} {v(acc(2*s,p),4)}, {a(I0,4)}, {a(pxreg(p,s),4)}, 0')
            out.append(f'{MF} {v(acc(2*s+1,p),4)}, {a(I0+4,4)}, {a(pxreg(p,s),4)}, 0')
            for i in range(4): out.append(f'v_accvgpr_write_b32 a{pxreg(p,s)+i}, v{t+i}')
    return out

def tail_epilogue(cfg, sbase):
    out = []
    nt = ' nt' if cfg.nt_o else ''
    k = 0
    for p in range(3):
        out.append(f's_add_u32 s{sT2}, s{sbase}, {6144*p}')
        for s in range(6):
            t = T0 + (k % 4) * 4; k += 1
            r0, r1 = acc(2 * s, p), acc(2 * s + 1, p)
            out.append(f'v_cvt_pk_bf16_f32 v{t}, v{r0}, v{r0+1}')
            out.append(f'v_cvt_pk_bf16_f32 v{t+1}, v{r0+2}, v{r0+3}')
            out.append(f'v_cvt_pk_bf16_f32 v{t+2}, v{r1}, v{r1+1}')
            out.append(f'v_cvt_pk_bf16_f32 v{t+3}, v{r1+2}, v{r1+3}')
            out.append(f'buffer_store_dwordx4 {v(t,4)}, v{vG}, s[{sO}:{sO+3}], s{sT2} offen offset:{64*s}{nt}')
    return out

def st_op(cfg, i):
    p, s = divmod(i, 6)
    return f'buffer_store_dwordx4 {a(pxreg(p,s),4)}, v{vG}, s[{sO}:{sO+3}], s{sSt+p} offen offset:{64*s}' + (' nt' if cfg.nt_o else '') + ' ;@st'
def h_op(cfg, i):
    p, s = divmod(i, 6)
    so, im = (sLd + p, 1024 * s) if s < 4 else (sLdH + p, 1024 * (s - 4))
    return f'buffer_load_dwordx4 {a(pfreg(p,s),4)}, v{vDma}, s[{sH}:{sH+3}], s{so} offen offset:{im}' + (' nt' if cfg.nt_h else '') + ' ;@h'
def x_op(cfg, i):
    p, s = divmod(i, 6)
    return f'buffer_load_dwordx4 {a(pxreg(p,s),4)}, v{vG}, s[{sX}:{sX+3}], s{sLd+p} offen offset:{64*s}' + (' nt' if cfg.nt_x else '') + ' ;@x'

def resolve_vm(seq_prev, seq):
    def isvm(t):
        o = t.split()[0] if t.split() else ''
        return o.startswith(('buffer_load', 'buffer_store'))
    def tag(t):
        if ';@' in t: return t.split(';@')[1].strip()
        return 'dma' if ' lds' in t else '?'
    fifo = []
    res = None
    for rnd, sq in enumerate((seq_prev, seq)):
        out = []
        for t in sq:
            if t.startswith('WAITVM:'):
                tg = t.split(':')[1]
                idx = [i for i, x in enumerate(fifo) if x == tg]
                if idx:
                    n = len(fifo) - 1 - idx[-1]
                    out.append(f's_waitcnt vmcnt({n})')
                    fifo = fifo[len(fifo) - n:] if n else []
                continue
            if isvm(t): fifo.append(tag(t))
            assert len(fifo) <= 63, 'too many outstanding'
            out.append(t)
        res = out
    return res

def tile_loads(srd, dst0, soff_base_instrs, nt):
    out = []
    for p in range(3):
        out += soff_base_instrs(p)
        for s in range(6):
            out.append(f'buffer_load_dwordx4 {a(dst0 + 24*p + 4*s, 4)}, v{vG}, s[{srd}:{srd+3}], s{sT2} offen offset:{64*s}' + (' nt' if nt else ''))
    return out

def soff(base, add):
    def f(p):
        return [f's_add_u32 s{sT2}, s{base}, {add + 6144*p}']
    return f

def stamp(cfg, k):
    if not cfg.prof: return []
    b = 52 + 4 * k
    return [f's_memtime s[{b}:{b+1}]', f's_memrealtime s[{b+2}:{b+3}]']

_cs=[0]
def cstamp(cfg, k, cond=None):
    if not cfg.prof2: return []
    _cs[0]+=1; lab=f'mlp_cs{_cs[0]}'
    out=[f's_cmp_eq_u32 s{sPass}, {cfg.profpass}', f's_cbranch_scc0 {lab}']
    if cond: out+=[f's_cmp_eq_u32 s{cond[0]}, {cond[1]}', f's_cbranch_scc0 {lab}']
    out+=[f's_memtime s[{52+2*k}:{53+2*k}]', f'{lab}:']
    return out

def dump_stamps2(cfg, n):
    if not cfg.prof2: return []
    out = ['s_waitcnt lgkmcnt(0)', 's_load_dwordx2 s[42:43], s[0:1], 40', 's_waitcnt lgkmcnt(0)',
           's_mov_b32 s44, s42', 's_mov_b32 s45, s43', 's_mov_b32 s46, 256', 's_mov_b32 s47, 0x20000',
           's_cmp_lg_u32 s2, 17', 's_cbranch_scc1 mlp_nodump', 's_cmp_lg_u32 s40, 0', 's_cbranch_scc1 mlp_nodump',
           'v_mov_b32 v4, 0']
    for k in range(n):
        out += [f'v_mov_b32 v5, s{52+2*k}', f'buffer_store_dword v5, v4, s[44:47], 0 offen offset:{4*k}']
    out += ['mlp_nodump:']
    return out

def dump_stamps(cfg, n):
    if not cfg.prof: return []
    out = ['s_waitcnt lgkmcnt(0)', 's_load_dwordx2 s[42:43], s[0:1], 40', 's_waitcnt lgkmcnt(0)',
           's_mov_b32 s44, s42', 's_mov_b32 s45, s43', 's_mov_b32 s46, 256', 's_mov_b32 s47, 0x20000',
           's_cmp_lg_u32 s2, PROFWG', 's_cbranch_scc1 mlp_nodump', 's_cmp_lg_u32 s40, 0', 's_cbranch_scc1 mlp_nodump',
           'v_mov_b32 v4, 0']
    for k in range(n):
        b = 52 + 4 * k
        out += [f'v_mov_b32 v5, s{b}', f'buffer_store_dword v5, v4, s[44:47], 0 offen offset:{8*k}',
                f'v_mov_b32 v6, s{b+2}', f'buffer_store_dword v6, v4, s[44:47], 0 offen offset:{8*k+4}']
    out += ['mlp_nodump:']
    return [o.replace('PROFWG', '17') for o in out]

def gen(cfg, name='mlp_kernel'):
    D = cfg.D
    MF2[0] = 'v_mfma_f32_16x16x32_f16' if cfg.f16 else MF
    P = []
    TR = []
    def emit(lst, trace=True):
        P.extend(lst)
        if trace: TR.extend(lst)
    pro = [
        's_cmp_ge_u32 s2, 256',
        f's_cbranch_scc1 {name}_done',
        's_load_dwordx2 s[4:5], s[0:1], 0',
        's_load_dwordx2 s[6:7], s[0:1], 32',
        's_load_dwordx2 s[38:39], s[0:1], 48',
        f'v_lshrrev_b32 v4, 6, v0',
        f'v_and_b32 v0, 63, v0',
        's_nop 0',
        f'v_readfirstlane_b32 s40, v4',
        f'v_lshlrev_b32 v{vDma}, 4, v0',
        f'v_mov_b32 v{vLds}, v{vDma}',
        f'v_and_b32 v4, 15, v0',
        f'v_lshrrev_b32 v5, 4, v0',
        f'v_mul_u32_u24 v{vG}, 384, v4',
        f'v_lshl_add_u32 v{vG}, v5, 4, v{vG}',
        f's_mov_b32 s{sNegC}, {hex(f2u(-CC) if not cfg.f16 else f2h(-CC) * 0x10001)}',
        f's_mov_b32 s{sAlpha}, {hex(f2u(ALPHA) if not cfg.f16 else f2h(ALPHA) * 0x10001)}',
        f'v_lshrrev_b32 v6, 2, v4',
        f'v_cmp_eq_u32 vcc, v6, v5',
        f'v_and_b32 v6, 1, v4',
        f'v_lshlrev_b32 v6, 4, v6',
        f'v_mov_b32 v7, 0x3f80',
        f'v_lshlrev_b32 v7, v6, v7',
        f'v_cndmask_b32 v7, 0, v7, vcc',
        f'v_and_b32 v6, 2, v4',
        f'v_cmp_eq_u32 vcc, 0, v6',
        's_nop 1',
        f'v_cndmask_b32 v8, 0, v7, vcc',
        f'v_sub_u32 v9, v7, v8',
        f'v_mov_b32 v10, 0',
        f'v_accvgpr_write_b32 a{I0}, v8', f'v_accvgpr_write_b32 a{I0+1}, v9',
        f'v_accvgpr_write_b32 a{I0+2}, v10', f'v_accvgpr_write_b32 a{I0+3}, v10',
        f'v_accvgpr_write_b32 a{I0+4}, v10', f'v_accvgpr_write_b32 a{I0+5}, v10',
        f'v_accvgpr_write_b32 a{I0+6}, v8', f'v_accvgpr_write_b32 a{I0+7}, v9',
        's_waitcnt lgkmcnt(0)',
        f's_add_u32 s{sW}, s38, {WS_W}', f's_addc_u32 s{sW+1}, s39, 0', f's_mov_b32 s{sW+2}, {W_BYTES}', f's_mov_b32 s{sW+3}, 0x20000',
        f's_add_u32 s{sH}, s38, {WS_H}', f's_addc_u32 s{sH+1}, s39, 0', f's_mov_b32 s{sH+2}, {IMG_BYTES}', f's_mov_b32 s{sH+3}, 0x20000',
        f's_mov_b32 s{sX}, s4', f's_mov_b32 s{sX+1}, s5', f's_mov_b32 s{sX+2}, {IMG_BYTES}', f's_mov_b32 s{sX+3}, 0x20000',
        f's_mov_b32 s{sO}, s6', f's_mov_b32 s{sO+1}, s7', f's_mov_b32 s{sO+2}, {IMG_BYTES}', f's_mov_b32 s{sO+3}, 0x20000',
        f's_mul_i32 s{sB}, s2, {36*6144}',
        f's_mul_i32 s41, s40, {3*6144}',
        f's_add_u32 s{sB}, s{sB}, s41',
        f's_mul_i32 s{sWoff}, s40, 12288',
    ]
    emit(pro)
    if cfg.prof or cfg.prof2: P.extend([f's_mov_b32 s{i}, 0' for i in range(52, 96)])
    P.extend(stamp(cfg, 0))
    emit([f's_mul_i32 s41, s40, 3072',
          f's_add_u32 m0, s41, {98304+24576}',
          f's_add_u32 s{sT}, s41, {23*24576}'])
    emit([f'buffer_load_dwordx4 v{vDma}, s[{sW}:{sW+3}], s{sT} offen offset:{i*1024} lds' for i in range(3)])
    for p in range(3):
        emit([f's_add_u32 s{sT2}, s{sB}, {6144*p}'])
        for s_ in range(6):
            if s_ == 4: emit([f's_add_u32 s{sT2}, s{sT2}, 4096'])
            emit([f'buffer_load_dwordx4 {a(H0 + 24*p + 4*s_, 4)}, v{vDma}, s[{sH}:{sH+3}], s{sT2} offen offset:{1024*(s_ % 4)}' + (' nt' if cfg.nt_h else '')])
    for sl in range(2):
        emit([f's_add_u32 s{sDst}, s{sWoff}, {49152*sl}', f's_add_u32 s{sSrc}, s{sWoff}, {49152*sl}'])
        for k_ in range(3):
            emit(dma_block(k_) + ['s_nop 0'] + [dma(4 * k_ + i) for i in range(4)])
    nwarm = 0
    if cfg.warm:
        emit([f's_lshr_b32 s41, s2, 3', f's_and_b32 s41, s41, 31', f's_mul_i32 s41, s41, 18432', f's_mul_i32 s3, s40, 5120', f's_add_u32 s41, s41, s3'])
        for i in range(5):
            if i == 4: emit([f's_add_u32 s41, s41, 4096'])
            emit([f'buffer_load_dwordx4 {a(PF0 + 4*i, 4)}, v{vDma}, s[{sW}:{sW+3}], s41 offen offset:{1024*(i%4)}'])
        nwarm = 5
    emit([f's_add_u32 s{sDst}, s{sWoff}, 98304', f's_add_u32 s{sDstSum}, s{sWoff}, 147456',
          f's_add_u32 s{sSrc}, s{sWoff}, 98304', f's_mov_b32 s{sRd}, 0',
          f's_mov_b32 s{sPass}, 0',
          f's_waitcnt vmcnt({12 + nwarm})', 's_barrier'])
    emit(tile_loads(sX, PX0, soff(sB, 0), cfg.nt_x))
    g1 = g1_groups(-1)
    lst = [f'v_add_u32 v4, 98304, v{vLds}']
    for g in range(6):
        lst.append(f'ds_read_b128 {a(wbuf(g),4)}, v4 offset:{g1[g][0]}')
    for g in range(12):
        if g % 2 == 0: lst.append(f's_waitcnt lgkmcnt({min(4, 10 - g) if g < 10 else 0})' if g <= 6 else f's_waitcnt lgkmcnt({max(0, 10 - g)})')
        for m in g1[g][1]: lst.append(m(wbuf(g)))
        if g + 6 < 12: lst.append(f'ds_read_b128 {a(wbuf(g+6),4)}, v4 offset:{g1[g+6][0]}')
    lst += ['s_waitcnt lgkmcnt(0)', 's_barrier']
    nxt = g1_groups(0)
    for g in range(D): lst.append(f'ds_read_b128 {a(wbuf(g),4)}, v{vLds} offset:{nxt[g][0]}')
    lst.append(f's_waitcnt lgkmcnt({D-2})')
    emit(lst)

    adv = [f's_add_u32 s{sDst}, s{sDst}, 49152', f's_cmp_ge_u32 s{sDst}, s{sDstSum}', f's_cselect_b32 s{sT}, 147456, 0', f's_sub_u32 s{sDst}, s{sDst}, s{sT}',
           f's_add_u32 s{sSrc}, s{sSrc}, 49152',
           f's_cmp_ge_u32 s{sSrc}, {W_BYTES}',
           f's_cselect_b32 s{sT}, {W_BYTES}, 0',
           f's_sub_u32 s{sSrc}, s{sSrc}, s{sT}']
    L = name
    st = [st_op(cfg, i) for i in range(18)]
    hl = [h_op(cfg, i) for i in range(18)]
    xl = [x_op(cfg, i) for i in range(18)]
    pools = {'s': st, 'h': hl, 'x': xl}
    extras = [[pools[ch].pop(0) for ch in cfg.plan[J]] for J in range(12)]
    assert not st and not hl and not xl
    assert all(len(extras[J]) == 5 for J in range(1, 11)) and not extras[11]
    setup = [f's_cmp_eq_u32 s{sPass}, 0',
             f's_cselect_b32 s{sSt}, {hex(OOB)}, s{sB1}',
             f's_add_u32 s{sSt+1}, s{sSt}, 6144', f's_add_u32 s{sSt+2}, s{sSt}, 12288',
             f's_add_u32 s{sLd}, s{sB}, 73728',
             f's_cmp_eq_u32 s{sPass}, 2',
             f's_cselect_b32 s{sLd}, {hex(OOB)}, s{sLd}',
             f's_add_u32 s{sLd+1}, s{sLd}, 6144', f's_add_u32 s{sLd+2}, s{sLd}, 12288',
             f's_add_u32 s{sLdH}, s{sLd}, 4096', f's_add_u32 s{sLdH+1}, s{sLd+1}, 4096', f's_add_u32 s{sLdH+2}, s{sLd+2}, 4096']
    moves = [f'v_accvgpr_mov_b32 a{H0+i}, a{PF0+i}' for i in range(72)]
    parts = []
    for J in range(12):
        DTAG[0] = f'd{J}'
        ea = {47: list(adv)}
        kw = dict(extra_at=ea, bar_wait=[f'WAITVM:d{(J-1)%12}'])
        pre = cstamp(cfg, J)
        if J == 0:
            for k_, op in enumerate(extras[0]): ea.setdefault(cfg.xpos[k_], []).append(op)
            kw['mid'] = ['WAITVM:x', 's_waitcnt vmcnt(12)'] + mid_block(cfg)
            pre = pre + setup
        elif J <= 10:
            pre = pre + extras[J]
        if J == 11:
            kw['extra_valu'] = {0: (13, 24, moves)}
            ea.setdefault(12, []).append('WAITVM:h')
        parts.append((pre, superstep(cfg, 2 * J, **kw)))
    DTAG[0] = 'dma'
    endp = cstamp(cfg, 12) + [f's_mov_b32 s{sB1}, s{sB}', f's_add_u32 s{sB}, s{sB}, 73728', f's_add_u32 s{sPass}, s{sPass}, 1']
    seq = []
    for J, (pre, body) in enumerate(parts): seq += pre + [f';BEGIN{J}'] + body + [f';END{J}']
    seq += endp
    res = resolve_vm(seq, seq)
    def part(J):
        i0 = res.index(f';BEGIN{J}'); i1 = res.index(f';END{J}')
        return res[i0 + 1:i1]
    strip = lambda l: [x.split(' ;@')[0] for x in l]
    bodies = [strip(part(J)) for J in range(12)]
    def barwait(b):
        i = b.index('s_barrier'); return i - 1, int(b[i - 1].split('(')[1][:-1])
    ns = [barwait(bodies[J])[1] for J in range(1, 11)]
    nmin = min(ns)
    gen_body = list(bodies[2]); gen_body[barwait(gen_body)[0]] = f's_waitcnt vmcnt({nmin})'
    for J in range(1, 11):
        b = list(bodies[J]); b[barwait(b)[0]] = f's_waitcnt vmcnt({nmin})'
        assert b == gen_body, J
    print('k2: barrier waits', ns, 'J0', barwait(bodies[0])[1], 'J11', barwait(bodies[11])[1])
    P.extend(stamp(cfg, 1))
    P += ['.p2align 6', f'{L}_pass:']
    trace = []
    for J in range(12):
        pre = strip(parts[J][0])
        if 1 <= J <= 10 and cfg.sub:
            P += pre + [f's_call_b64 s[{sRet}:{sRet+1}], {L}_body']
            trace += [x for x in pre if not x.endswith(':')] + gen_body
        else:
            b = bodies[J] if not (1 <= J <= 10) else gen_body
            P += pre + b
            trace += [x for x in pre if not x.endswith(':')] + b
    P += endp; trace += endp
    P += [f's_cmp_lt_u32 s{sPass}, 3', f's_cbranch_scc1 {L}_pass']
    tail = ['s_waitcnt lgkmcnt(0)']
    g2 = g2_groups(24)
    for g in range(6): tail.append(f'ds_read_b128 {a(wbuf(g),4)}, v{vLds} offset:{g2[g][0]}')
    for g in range(12):
        if g % 2 == 0: tail.append(f's_waitcnt lgkmcnt({4 if g <= 6 else max(0, 10 - g)})')
        for m in g2[g][1]: tail.append(m(wbuf(g)))
        if g + 6 < 12: tail.append(f'ds_read_b128 {a(wbuf(g+6),4)}, v{vLds} offset:{g2[g+6][0]}')
    tail += ['s_nop 7']
    tail += tail_epilogue(cfg, sB1)
    P += stamp(cfg, 4)
    P += tail
    P += stamp(cfg, 5)
    P += dump_stamps(cfg, 6)
    P += dump_stamps2(cfg, 13)
    if cfg.allwg:
        P = P[:2] + ['s_memrealtime s[98:99]'] + P[2:]
        P += ['s_waitcnt vmcnt(0)', 's_memrealtime s[82:83]', 's_cmp_eq_u32 s40, 0', f's_cbranch_scc0 {L}_done',
              's_waitcnt lgkmcnt(0)', 's_lshl_b32 s3, s2, 3', f's_add_u32 s3, s3, {(200 << 20) + 4096}',
              'v_mov_b32 v4, s98', 'v_mov_b32 v5, s3', 's_nop 1', 'global_store_dword v5, v4, s[38:39]',
              'v_mov_b32 v4, s82', 's_nop 1', 'global_store_dword v5, v4, s[38:39] offset:4']
    P += [f'{L}_done:', 's_endpgm']
    if cfg.sub:
        P += ['.p2align 6', f'{L}_body:'] + gen_body + [f's_setpc_b64 s[{sRet}:{sRet+1}]']
    TR += trace + trace + tail
    return P, TR

def kd(name, lds=0):
    return f'''.amdhsa_kernel {name}
  .amdhsa_next_free_vgpr 512
  .amdhsa_next_free_sgpr 102
  .amdhsa_accum_offset 256
  .amdhsa_group_segment_fixed_size 0
  .amdhsa_kernarg_size 56
  .amdhsa_user_sgpr_count 2
  .amdhsa_user_sgpr_kernarg_segment_ptr 1
  .amdhsa_system_sgpr_workgroup_id_x 1
  .amdhsa_float_denorm_mode_32 3
.end_amdhsa_kernel
'''
if __name__ == '__main__':
    import asmlib
    P, TR = gen(Cfg)
    asmlib.check(TR, 'k2')
    print(len(P), 'lines', 'alpha', ALPHA, 'c', CC)
```

```python
import struct, math

def f2u(f): return struct.unpack('<I', struct.pack('<f', f))[0]
LOG2E = 1.4426950408889634
A1 = 2.0 * math.sqrt(2.0 / math.pi) * LOG2E
B1 = A1 * 0.044715
ALPHA = B1 ** (1.0 / 3.0)
CC = A1 / ALPHA

WS_W = 0
W_BYTES = 24 * 24576
WS_H = 1 << 20
IMG_BYTES = 384 * 384 * 192 * 2

vLds, vDma, vG = 1, 2, 3
T0 = 8
G0 = 24
S0 = 48
ACC = 96
H0, PF0, PX0, W0, I0 = 0, 72, 144, 216, 248
NB = 8
sW, sH, sX, sO = 8, 12, 16, 20
sPass, sJ, sDst, sDstSum, sSrc, sWoff, sB, sT, sT2, sNegC, sAlpha = 24, 25, 26, 27, 28, 29, 30, 31, 32, 34, 35
sB1, sRd = 36, 37
sRet = 42
sHx = 90
sLdH = 96 - 4
sSt, sLd = 44, 47
sLx, sBX = 95, 51
OOB = 0x70000000

def v(b, n=1): return f'v{b}' if n == 1 else f'v[{b}:{b+n-1}]'
def a(b, n=1): return f'a{b}' if n == 1 else f'a[{b}:{b+n-1}]'
def Sreg(buf, aa, p): return S0 + 24 * buf + 4 * (aa * 3 + p)
def Greg(buf, p): return G0 + 12 * buf + 4 * p
def acc(t, p): return ACC + 4 * (t * 3 + p)
def hreg(p, s): return H0 + 24 * p + 4 * s
def pfreg(p, s): return PF0 + 24 * p + 4 * s
def pxreg(p, s): return PX0 + 24 * p + 4 * s
MF = 'v_mfma_f32_16x16x32_bf16'

class Cfg:
    prof = False
    prof2 = False
    allwg = False
    profpass = 1
    plan = ['ssss', 'sssss', 'sssss', 'ssssh', 'hhhhh', 'hhhhh', 'hhhhh', 'hhxxx', 'xxxxx', 'xxxxx', 'xxxxx', '']
    xpos = [26, 30, 34, 38, 41]
    D = 5
    gsz = 4
    f16 = False
    warm = True
    sub = True
    hskip = False
    xps = 6144
    xts = 73728
    nt_h = False; nt_x = False; nt_o = False

def f2h(f):
    import numpy as np
    return int(np.float16(f).view(np.uint16))

def gelu_list16(buf, cfg):
    out = []
    grp = [(aa, p) for aa in range(2) for p in range(3)]
    for i in range(0, 6, 2):
        dw = []
        for gi, (aa, p) in enumerate(grp[i:i+2]):
            for d in range(2):
                n = (i // 2 % 2) * 8 + gi * 4 + d * 2
                u = Sreg(buf, aa, p) + 2 * d
                dw.append((u, u + 1, T0 + n, T0 + n + 1, Greg(buf, p) + 2 * aa + d))
        SD = lambda w: f'dst_sel:WORD_{w} dst_unused:UNUSED_PRESERVE src0_sel:WORD_{w}'
        for u0, u1, h, t, g in dw: out.append(f'v_cvt_pk_f16_f32 v{h}, v{u0}, v{u1}')
        for u0, u1, h, t, g in dw: out.append(f'v_pk_fma_f16 v{t}, v{h}, v{h}, s{sNegC} neg_lo:[1,0,0] neg_hi:[1,0,0]')
        for u0, u1, h, t, g in dw: out.append(f'v_pk_mul_f16 v{t}, v{t}, v{h}')
        for w in range(2):
            for u0, u1, h, t, g in dw: out.append(f'v_exp_f16_sdwa v{t}, v{t} {SD(w)}')
        for u0, u1, h, t, g in dw: out.append(f'v_pk_fma_f16 v{t}, v{t}, s{sAlpha}, s{sAlpha}')
        for w in range(2):
            for u0, u1, h, t, g in dw: out.append(f'v_rcp_f16_sdwa v{t}, v{t} {SD(w)}')
        for u0, u1, h, t, g in dw: out.append(f'v_pk_mul_f16 v{g}, v{h}, v{t}')
    return out

def gelu_list(buf, cfg):
    if cfg.f16: return gelu_list16(buf, cfg)
    out = []
    k = 0
    for aa in range(2):
        for p in range(3):
            es = [Sreg(buf, aa, p) + i for i in range(4)]
            ts = [T0 + (k % 2) * 4 + i for i in range(4)]
            k += 1
            for u, t in zip(es, ts): out.append(f'v_fma_f32 v{t}, -v{u}, v{u}, s{sNegC}')
            for u, t in zip(es, ts): out.append(f'v_mul_f32 v{t}, v{t}, v{u}')
            for u, t in zip(es, ts): out.append(f'v_exp_f32 v{t}, v{t}')
            for u, t in zip(es, ts): out.append(f'v_fma_f32 v{t}, v{t}, s{sAlpha}, s{sAlpha}')
            for u, t in zip(es, ts): out.append(f'v_rcp_f32 v{t}, v{t}')
            for u, t in zip(es, ts): out.append(f'v_mul_f32 v{t}, v{u}, v{t}')
            g = Greg(buf, p) + 2 * aa
            out.append(f'v_cvt_pk_bf16_f32 v{g}, v{ts[0]}, v{ts[1]}')
            out.append(f'v_cvt_pk_bf16_f32 v{g+1}, v{ts[2]}, v{ts[3]}')
    return out

def g1_groups(j):
    buf = (j + 1) & 1
    base = (j & 1) * 24576
    gs = []
    for s in range(6):
        for aa in range(2):
            gs.append((base + (2 * s + aa) * 1024,
                       [(lambda w, p=p, s=s, aa=aa: f'{MF} {v(Sreg(buf,aa,p),4)}, {a(w,4)}, {a(hreg(p,s),4)}, ' + ('0' if s == 0 else v(Sreg(buf,aa,p),4))) for p in range(3)]))
    return gs

MF2 = [MF]
def g2_groups(j):
    buf = (j - 1) & 1
    base = (j & 1) * 24576 + 12288
    gs = []
    for t in range(12):
        gs.append((base + t * 1024,
                   [(lambda w, p=p, t=t: f'{MF2[0]} {v(acc(t,p),4)}, {a(w,4)}, {v(Greg(buf,p),4)}, {v(acc(t,p),4)}') for p in range(3)]))
    return gs

def cost(t):
    op = t.split()[0]
    if op.startswith(('v_exp', 'v_rcp')): return 8
    return 4

def wbuf(g): return W0 + 4 * (g % NB)

def dma_block(k):
    return [f's_add_u32 m0, s{sDst}, {4096*k}', f's_add_u32 s{sT}, s{sSrc}, {4096*k}']
DTAG = ['dma']
def dma(i):
    return f'buffer_load_dwordx4 v{vDma}, s[{sW}:{sW+3}], s{sT} offen offset:{(i%4)*1024} lds ;@{DTAG[0]}'

def superstep(cfg, j0, mid=None, extra_valu=None, extra_at=None, bar_wait=None, dma_on=True, pre=None):
    D = cfg.D
    groups = g1_groups(j0) + g2_groups(j0) + g1_groups(j0 + 1) + g2_groups(j0 + 1)
    nxt = g1_groups(j0)
    out = list(pre or [])
    fifo = list(range(0, D))
    waited = 1
    fifo = [g for g in fifo if g > waited]
    vl = [gelu_list(j0 & 1, cfg), gelu_list((j0 + 1) & 1, cfg)]
    extra_at = extra_at or {}
    reads_at = {g: [] for g in range(48)}
    for g in range(48):
        r = g + D
        if r <= 46 - 0 and g < 47 - D - 1: reads_at[g].append(r)
    reads_at[47 - D - 1] = [46, 47]
    reads_at[47 - D] = []
    for k in range(D): reads_at[48 - D + k].append(48 + k)
    dma_at = {}
    if dma_on:
        for i in range(12): dma_at.setdefault(2 * i, []).append(i)
    for step in range(2):
        valu = list(vl[step])
        tot = sum(cost(t) for t in valu)
        done = 0; vi = 0
        ex = (extra_valu or {}).get(step)
        exi = 0
        for gl in range(24):
            g = step * 24 + gl
            ms = groups[g][1]
            for k, m in enumerate(ms):
                out.append(m(wbuf(g)))
                if k == 0:
                    if g == 48 - D:
                        out.append('s_waitcnt lgkmcnt(0)'); fifo = []; waited = 47
                        out += bar_wait or ['s_waitcnt vmcnt(0)']
                        out.append('s_barrier')
                        out.append(f'v_add_u32 v{vLds}, s{sRd}, v{vDma}')
                    for r in reads_at[g]:
                        off = groups[r][0] if r < 48 else nxt[r - 48][0]
                        out.append(f'ds_read_b128 {a(wbuf(r),4)}, v{vLds} offset:{off}')
                        fifo.append(r)
                    for i in dma_at.get(g, []):
                        if i % 4 == 0: out += dma_block(i // 4)
                        if i % 4 == 0: out.append('s_nop 0')
                        out.append(dma(i))
                    if g == 38:
                        out += [f's_add_u32 s{sRd}, s{sRd}, 49152', f's_cmp_eq_u32 s{sRd}, 147456', f's_cselect_b32 s{sRd}, 0, s{sRd}']
                    out += extra_at.get(g, [])
                mi = gl * 3 + k + 1
                target = tot * mi / 72.0
                while vi < len(valu) and done + cost(valu[vi]) / 2 <= target:
                    out.append(valu[vi]); done += cost(valu[vi]); vi += 1
                if mi == 72:
                    while vi < len(valu): out.append(valu[vi]); vi += 1
                if ex and ex[0] <= gl < ex[1]:
                    n = len(ex[2]); span = (ex[1] - ex[0]) * 3
                    upto = ((gl - ex[0]) * 3 + k + 1) * n // span
                    while exi < upto: out.append(ex[2][exi]); exi += 1
            if g % 2 == 1:
                needg = g + 2
                if waited < needg:
                    pend = [r for r in fifo if r > needg]
                    if len(pend) < len(fifo):
                        out.append(f's_waitcnt lgkmcnt({len(pend)})')
                    fifo = pend; waited = needg
        if step == 0 and mid: out += mid
    return out

def mid_block(cfg):
    out = []
    k = 0
    for p in range(3):
        for s in range(6):
            t = T0 + 8 + (k % 2) * 4; k += 1
            r0, r1 = acc(2 * s, p), acc(2 * s + 1, p)
            out.append(f'v_cvt_pk_bf16_f32 v{t}, v{r0}, v{r0+1}')
            out.append(f'v_cvt_pk_bf16_f32 v{t+1}, v{r0+2}, v{r0+3}')
            out.append(f'v_cvt_pk_bf16_f32 v{t+2}, v{r1}, v{r1+1}')
            out.append(f'v_cvt_pk_bf16_f32 v{t+3}, v{r1+2}, v{r1+3}')
            out.append(f'{MF} {v(acc(2*s,p),4)}, {a(I0,4)}, {a(pxreg(p,s),4)}, 0')
            out.append(f'{MF} {v(acc(2*s+1,p),4)}, {a(I0+4,4)}, {a(pxreg(p,s),4)}, 0')
            for i in range(4): out.append(f'v_accvgpr_write_b32 a{pxreg(p,s)+i}, v{t+i}')
    return out

def tail_epilogue(cfg, sbase):
    out = []
    nt = ' nt' if cfg.nt_o else ''
    k = 0
    for p in range(3):
        out.append(f's_add_u32 s{sT2}, s{sbase}, {cfg.xps*p}')
        for s in range(6):
            t = T0 + (k % 4) * 4; k += 1
            r0, r1 = acc(2 * s, p), acc(2 * s + 1, p)
            out.append(f'v_cvt_pk_bf16_f32 v{t}, v{r0}, v{r0+1}')
            out.append(f'v_cvt_pk_bf16_f32 v{t+1}, v{r0+2}, v{r0+3}')
            out.append(f'v_cvt_pk_bf16_f32 v{t+2}, v{r1}, v{r1+1}')
            out.append(f'v_cvt_pk_bf16_f32 v{t+3}, v{r1+2}, v{r1+3}')
            out.append(f'buffer_store_dwordx4 {v(t,4)}, v{vG}, s[{sO}:{sO+3}], s{sT2} offen offset:{64*s}{nt}')
    return out

def st_op(cfg, i):
    p, s = divmod(i, 6)
    return f'buffer_store_dwordx4 {a(pxreg(p,s),4)}, v{vG}, s[{sO}:{sO+3}], s{sSt+p} offen offset:{64*s}' + (' nt' if cfg.nt_o else '') + ' ;@st'
def h_op(cfg, i):
    p, s = divmod(i, 6)
    so, im = (sLd + p, 1024 * s) if s < 4 else (sLdH + p, 1024 * (s - 4))
    ld = f'buffer_load_dwordx4 {a(pfreg(p,s),4)}, v{vDma}, s[{sH}:{sH+3}], s{so} offen offset:{im}' + (' nt' if cfg.nt_h else '') + ' ;@h'
    if cfg.hskip: return f's_mov_b64 exec, s[{sHx}:{sHx+1}]\n' + ld + '\ns_mov_b64 exec, -1'
    return ld
def x_op(cfg, i):
    p, s = divmod(i, 6)
    return f'buffer_load_dwordx4 {a(pxreg(p,s),4)}, v{vG}, s[{sX}:{sX+3}], s{sLx+p} offen offset:{64*s}' + (' nt' if cfg.nt_x else '') + ' ;@x'

def resolve_vm(seq_prev, seq, optional=()):
    def isvm(t):
        o = t.split()[0] if t.split() else ''
        return o.startswith(('buffer_load', 'buffer_store'))
    def tag(t):
        if ';@' in t: return t.split(';@')[1].strip()
        return 'dma' if ' lds' in t else '?'
    fifo = []
    res = None
    for rnd, sq in enumerate((seq_prev, seq)):
        out = []
        for t in sq:
            if t.startswith('WAITVM:'):
                tg = t.split(':')[1]
                idx = [i for i, x in enumerate(fifo) if x == tg]
                if idx:
                    younger = fifo[idx[-1] + 1:]
                    n = sum(1 for x in younger if x not in optional)
                    out.append(f's_waitcnt vmcnt({n})')
                    keep = []; c = 0
                    for x in reversed(fifo):
                        if c >= n: break
                        keep.append(x)
                        if x not in optional: c += 1
                    fifo = keep[::-1]
                continue
            if isvm(t): fifo.append(tag(t))
            assert len(fifo) <= 63, 'too many outstanding'
            out.append(t)
        res = out
    return res

def tile_loads(srd, dst0, soff_base_instrs, nt):
    out = []
    for p in range(3):
        out += soff_base_instrs(p)
        for s in range(6):
            out.append(f'buffer_load_dwordx4 {a(dst0 + 24*p + 4*s, 4)}, v{vG}, s[{srd}:{srd+3}], s{sT2} offen offset:{64*s}' + (' nt' if nt else ''))
    return out

def soff(base, add):
    def f(p):
        return [f's_add_u32 s{sT2}, s{base}, {add + 6144*p}']
    return f

def stamp(cfg, k):
    if not cfg.prof: return []
    b = 52 + 4 * k
    return [f's_memtime s[{b}:{b+1}]', f's_memrealtime s[{b+2}:{b+3}]']

_cs=[0]
def cstamp(cfg, k, cond=None):
    if not cfg.prof2: return []
    _cs[0]+=1; lab=f'mlp_cs{_cs[0]}'
    out=[f's_cmp_eq_u32 s{sPass}, {cfg.profpass}', f's_cbranch_scc0 {lab}']
    if cond: out+=[f's_cmp_eq_u32 s{cond[0]}, {cond[1]}', f's_cbranch_scc0 {lab}']
    out+=[f's_memtime s[{52+2*k}:{53+2*k}]', f'{lab}:']
    return out

def dump_stamps2(cfg, n):
    if not cfg.prof2: return []
    out = ['s_waitcnt lgkmcnt(0)', 's_load_dwordx2 s[42:43], s[0:1], 40', 's_waitcnt lgkmcnt(0)',
           's_mov_b32 s44, s42', 's_mov_b32 s45, s43', 's_mov_b32 s46, 256', 's_mov_b32 s47, 0x20000',
           's_cmp_lg_u32 s2, 17', 's_cbranch_scc1 mlp_nodump', 's_cmp_lg_u32 s40, 0', 's_cbranch_scc1 mlp_nodump',
           'v_mov_b32 v4, 0']
    for k in range(n):
        out += [f'v_mov_b32 v5, s{52+2*k}', f'buffer_store_dword v5, v4, s[44:47], 0 offen offset:{4*k}']
    out += ['mlp_nodump:']
    return out

def dump_stamps(cfg, n):
    if not cfg.prof: return []
    out = ['s_waitcnt lgkmcnt(0)', 's_load_dwordx2 s[42:43], s[0:1], 40', 's_waitcnt lgkmcnt(0)',
           's_mov_b32 s44, s42', 's_mov_b32 s45, s43', 's_mov_b32 s46, 256', 's_mov_b32 s47, 0x20000',
           's_cmp_lg_u32 s2, PROFWG', 's_cbranch_scc1 mlp_nodump', 's_cmp_lg_u32 s40, 0', 's_cbranch_scc1 mlp_nodump',
           'v_mov_b32 v4, 0']
    for k in range(n):
        b = 52 + 4 * k
        out += [f'v_mov_b32 v5, s{b}', f'buffer_store_dword v5, v4, s[44:47], 0 offen offset:{8*k}',
                f'v_mov_b32 v6, s{b+2}', f'buffer_store_dword v6, v4, s[44:47], 0 offen offset:{8*k+4}']
    out += ['mlp_nodump:']
    return [o.replace('PROFWG', '17') for o in out]

def ident_setup():
    return [
        f'v_lshlrev_b32 v{vDma}, 4, v0',
        f'v_mov_b32 v{vLds}, v{vDma}',
        f'v_and_b32 v4, 15, v0',
        f'v_lshrrev_b32 v5, 4, v0',
        f'v_mul_u32_u24 v{vG}, 384, v4',
        f'v_lshl_add_u32 v{vG}, v5, 4, v{vG}',
        f'v_lshrrev_b32 v6, 2, v4',
        f'v_cmp_eq_u32 vcc, v6, v5',
        f'v_and_b32 v6, 1, v4',
        f'v_lshlrev_b32 v6, 4, v6',
        f'v_mov_b32 v7, 0x3f80',
        f'v_lshlrev_b32 v7, v6, v7',
        f'v_cndmask_b32 v7, 0, v7, vcc',
        f'v_and_b32 v6, 2, v4',
        f'v_cmp_eq_u32 vcc, 0, v6',
        's_nop 1',
        f'v_cndmask_b32 v8, 0, v7, vcc',
        f'v_sub_u32 v9, v7, v8',
        f'v_mov_b32 v10, 0',
        f'v_accvgpr_write_b32 a{I0}, v8', f'v_accvgpr_write_b32 a{I0+1}, v9',
        f'v_accvgpr_write_b32 a{I0+2}, v10', f'v_accvgpr_write_b32 a{I0+3}, v10',
        f'v_accvgpr_write_b32 a{I0+4}, v10', f'v_accvgpr_write_b32 a{I0+5}, v10',
        f'v_accvgpr_write_b32 a{I0+6}, v8', f'v_accvgpr_write_b32 a{I0+7}, v9']

def gelu_consts(cfg):
    return [f's_mov_b32 s{sNegC}, {hex(f2u(-CC) if not cfg.f16 else f2h(-CC) * 0x10001)}',
            f's_mov_b32 s{sAlpha}, {hex(f2u(ALPHA) if not cfg.f16 else f2h(ALPHA) * 0x10001)}']

def m_first_dma(cfg):
    a1 = [f's_mul_i32 s41, s40, 3072', f's_add_u32 m0, s41, {98304+24576}', f's_add_u32 s{sT}, s41, {23*24576}']
    a1 += [f'buffer_load_dwordx4 v{vDma}, s[{sW}:{sW+3}], s{sT} offen offset:{i*1024} lds' for i in range(3)]
    a2 = []
    for sl in range(2):
        a2 += [f's_add_u32 s{sDst}, s{sWoff}, {49152*sl}', f's_add_u32 s{sSrc}, s{sWoff}, {49152*sl}']
        for k_ in range(3): a2 += dma_block(k_) + ['s_nop 0'] + [dma(4 * k_ + i).split(' ;@')[0] for i in range(4)]
    nwarm = 0
    if cfg.warm:
        a2 += [f's_lshr_b32 s41, s2, 3', f's_and_b32 s41, s41, 31', f's_mul_i32 s41, s41, 18432', f's_mul_i32 s3, s40, 5120', f's_add_u32 s41, s41, s3']
        for i in range(5):
            if i == 4: a2 += [f's_add_u32 s41, s41, 4096']
            a2 += [f'buffer_load_dwordx4 {a(PF0 + 4*i, 4)}, v{vDma}, s[{sW}:{sW+3}], s41 offen offset:{1024*(i%4)}']
        nwarm = 5
    a2 += [f's_add_u32 s{sDst}, s{sWoff}, 98304', f's_add_u32 s{sDstSum}, s{sWoff}, 147456',
           f's_add_u32 s{sSrc}, s{sWoff}, 98304', f's_mov_b32 s{sRd}, 0', f's_mov_b32 s{sPass}, 0']
    return a1, a2, 12 + nwarm

def m_second_dma(cfg, warm_dst):
    a2 = [f's_add_u32 s{sDst}, s{sWoff}, 49152', f's_add_u32 s{sSrc}, s{sWoff}, 49152']
    for k_ in range(3): a2 += dma_block(k_) + ['s_nop 0'] + [dma(4 * k_ + i).split(' ;@')[0] for i in range(4)]
    if cfg.warm:
        a2 += [f's_lshr_b32 s41, s2, 3', f's_and_b32 s41, s41, 31', f's_mul_i32 s41, s41, 18432', f's_mul_i32 s3, s40, 5120', f's_add_u32 s41, s41, s3']
        for i in range(5):
            if i == 4: a2 += [f's_add_u32 s41, s41, 4096']
            a2 += [f'buffer_load_dwordx4 {a(warm_dst + 4*i, 4)}, v{vDma}, s[{sW}:{sW+3}], s41 offen offset:{1024*(i%4)}']
    a2 += [f's_add_u32 s{sDst}, s{sWoff}, 98304', f's_add_u32 s{sDstSum}, s{sWoff}, 147456',
           f's_add_u32 s{sSrc}, s{sWoff}, 98304', f's_mov_b32 s{sRd}, 0', f's_mov_b32 s{sPass}, 0']
    return a2

def x_first_loads(cfg):
    out = []
    for p in range(3):
        out.append(f's_add_u32 s{sT2}, s{sBX}, {cfg.xps*p}')
        for s in range(6):
            out.append(f'buffer_load_dwordx4 {a(pxreg(p,s), 4)}, v{vG}, s[{sX}:{sX+3}], s{sT2} offen offset:{64*s}' + (' nt' if cfg.nt_x else ''))
    return out

def m_g1_first(cfg, early=False):
    D = cfg.D
    g1 = g1_groups(-1)
    if early: g1 = [(off - 12288, ms) for off, ms in g1]
    lst = [f'v_add_u32 v4, {0 if early else 98304}, v{vLds}']
    for g in range(6):
        lst.append(f'ds_read_b128 {a(wbuf(g),4)}, v4 offset:{g1[g][0]}')
    for g in range(12):
        if g % 2 == 0: lst.append(f's_waitcnt lgkmcnt({min(4, 10 - g) if g < 10 else 0})' if g <= 6 else f's_waitcnt lgkmcnt({max(0, 10 - g)})')
        for m in g1[g][1]: lst.append(m(wbuf(g)))
        if g + 6 < 12: lst.append(f'ds_read_b128 {a(wbuf(g+6),4)}, v4 offset:{g1[g+6][0]}')
    lst += ['s_waitcnt lgkmcnt(0)'] + ([] if early else ['s_barrier'])
    nxt = g1_groups(0)
    for g in range(D): lst.append(f'ds_read_b128 {a(wbuf(g),4)}, v{vLds} offset:{nxt[g][0]}')
    lst.append(f's_waitcnt lgkmcnt({D-2})')
    return lst

def m_main(cfg, L):
    P = []
    adv = [f's_add_u32 s{sDst}, s{sDst}, 49152', f's_cmp_ge_u32 s{sDst}, s{sDstSum}', f's_cselect_b32 s{sT}, 147456, 0', f's_sub_u32 s{sDst}, s{sDst}, s{sT}',
           f's_add_u32 s{sSrc}, s{sSrc}, 49152',
           f's_cmp_ge_u32 s{sSrc}, {W_BYTES}',
           f's_cselect_b32 s{sT}, {W_BYTES}, 0',
           f's_sub_u32 s{sSrc}, s{sSrc}, s{sT}']
    st = [st_op(cfg, i) for i in range(18)]
    hl = [h_op(cfg, i) for i in range(18)]
    xl = [x_op(cfg, i) for i in range(18)]
    pools = {'s': st, 'h': hl, 'x': xl}
    extras = [[pools[ch].pop(0).split('\n') for ch in cfg.plan[J]] for J in range(12)]
    assert not st and not hl and not xl
    assert all(len(extras[J]) == 5 for J in range(1, 11)) and not extras[11]
    setup = [f's_cmp_eq_u32 s{sPass}, 0'] + ([f's_cselect_b64 s[{sHx}:{sHx+1}], 0, -1'] if cfg.hskip else []) + [
             f's_cselect_b32 s{sSt}, {hex(OOB)}, s{sB1}',
             f's_add_u32 s{sSt+1}, s{sSt}, {cfg.xps}', f's_add_u32 s{sSt+2}, s{sSt}, {2*cfg.xps}',
             f's_add_u32 s{sLd}, s{sB}, 73728', f's_add_u32 s{sLx}, s{sBX}, {cfg.xts}',
             f's_cmp_eq_u32 s{sPass}, 2',
             f's_cselect_b32 s{sLd}, {hex(OOB)}, s{sLd}', f's_cselect_b32 s{sLx}, {hex(OOB)}, s{sLx}',
             f's_add_u32 s{sLd+1}, s{sLd}, 6144', f's_add_u32 s{sLd+2}, s{sLd}, 12288',
             f's_add_u32 s{sLx+1}, s{sLx}, {cfg.xps}', f's_add_u32 s{sLx+2}, s{sLx}, {2*cfg.xps}',
             f's_add_u32 s{sLdH}, s{sLd}, 4096', f's_add_u32 s{sLdH+1}, s{sLd+1}, 4096', f's_add_u32 s{sLdH+2}, s{sLd+2}, 4096']
    moves = [f'v_accvgpr_mov_b32 a{H0+i}, a{PF0+i}' for i in range(72)]
    parts = []
    for J in range(12):
        DTAG[0] = f'd{J}'
        ea = {47: list(adv)}
        kw = dict(extra_at=ea, bar_wait=[f'WAITVM:d{(J-1)%12}'])
        pre = cstamp(cfg, J)
        if J == 0:
            for k_, op in enumerate(extras[0]): ea.setdefault(cfg.xpos[k_], []).extend(op)
            kw['mid'] = ['WAITVM:x', 's_waitcnt vmcnt(12)'] + mid_block(cfg)
            pre = pre + setup
        elif J <= 10:
            if cfg.sub: pre = pre + sum(extras[J], [])
            else:
                for k_, op in enumerate(extras[J]): ea.setdefault(cfg.xpos[k_], []).extend(op)
        if J == 11:
            kw['extra_valu'] = {0: (13, 24, moves)}
            ea.setdefault(12, []).append('WAITVM:h')
        parts.append((pre, superstep(cfg, 2 * J, **kw)))
    DTAG[0] = 'dma'
    endp = cstamp(cfg, 12) + [f's_mov_b32 s{sB1}, s{sBX}', f's_add_u32 s{sB}, s{sB}, 73728', f's_add_u32 s{sBX}, s{sBX}, {cfg.xts}', f's_add_u32 s{sPass}, s{sPass}, 1']
    seq = []
    for J, (pre, body) in enumerate(parts): seq += pre + [f';BEGIN{J}'] + body + [f';END{J}']
    seq += endp
    res = resolve_vm(seq, seq, ('h',) if cfg.hskip else ())
    def part(J):
        i0 = res.index(f';BEGIN{J}'); i1 = res.index(f';END{J}')
        return res[i0 + 1:i1]
    strip = lambda l: [x.split(' ;@')[0] for x in l]
    bodies = [strip(part(J)) for J in range(12)]
    def barwait(b):
        i = b.index('s_barrier'); return i - 1, int(b[i - 1].split('(')[1][:-1])
    if cfg.sub:
        ns = [barwait(bodies[J])[1] for J in range(1, 11)]
        nmin = min(ns)
        gen_body = list(bodies[2]); gen_body[barwait(gen_body)[0]] = f's_waitcnt vmcnt({nmin})'
        for J in range(1, 11):
            b = list(bodies[J]); b[barwait(b)[0]] = f's_waitcnt vmcnt({nmin})'
            assert b == gen_body, J
    P += ['.p2align 6', f'{L}_pass:']
    trace = []
    for J in range(12):
        pre = strip(parts[J][0])
        if 1 <= J <= 10 and cfg.sub:
            P += pre + [f's_call_b64 s[{sRet}:{sRet+1}], {L}_body']
            trace += [x for x in pre if not x.endswith(':')] + gen_body
        else:
            b = bodies[J]
            P += pre + b
            trace += [x for x in pre if not x.endswith(':')] + b
    P += endp; trace += endp
    P += [f's_cmp_lt_u32 s{sPass}, 3', f's_cbranch_scc1 {L}_pass']
    tail = ['s_waitcnt lgkmcnt(0)']
    g2 = g2_groups(24)
    for g in range(6): tail.append(f'ds_read_b128 {a(wbuf(g),4)}, v{vLds} offset:{g2[g][0]}')
    for g in range(12):
        if g % 2 == 0: tail.append(f's_waitcnt lgkmcnt({4 if g <= 6 else max(0, 10 - g)})')
        for m in g2[g][1]: tail.append(m(wbuf(g)))
        if g + 6 < 12: tail.append(f'ds_read_b128 {a(wbuf(g+6),4)}, v{vLds} offset:{g2[g+6][0]}')
    tail += ['s_nop 7']
    tail += tail_epilogue(cfg, sB1)
    P += stamp(cfg, 4)
    P += tail
    P += stamp(cfg, 5)
    sub = (['.p2align 6', f'{L}_body:'] + gen_body + [f's_setpc_b64 s[{sRet}:{sRet+1}]']) if cfg.sub else []
    return P, sub, trace + trace + tail

def gen(cfg, name='mlp_kernel'):
    MF2[0] = 'v_mfma_f32_16x16x32_f16' if cfg.f16 else MF
    P = []; TR = []
    def emit(lst, trace=True):
        P.extend(lst)
        if trace: TR.extend(lst)
    emit(['s_cmp_ge_u32 s2, 256', f's_cbranch_scc1 {name}_done',
          's_load_dwordx2 s[4:5], s[0:1], 0',
          's_load_dwordx2 s[6:7], s[0:1], 32',
          's_load_dwordx2 s[38:39], s[0:1], 48',
          'v_lshrrev_b32 v4, 6, v0', 'v_and_b32 v0, 63, v0', 's_nop 0', 'v_readfirstlane_b32 s40, v4'])
    emit(gelu_consts(cfg) + ident_setup())
    emit(['s_waitcnt lgkmcnt(0)',
        f's_add_u32 s{sW}, s38, {WS_W}', f's_addc_u32 s{sW+1}, s39, 0', f's_mov_b32 s{sW+2}, {W_BYTES}', f's_mov_b32 s{sW+3}, 0x20000',
        f's_add_u32 s{sH}, s38, {WS_H}', f's_addc_u32 s{sH+1}, s39, 0', f's_mov_b32 s{sH+2}, {IMG_BYTES}', f's_mov_b32 s{sH+3}, 0x20000',
        f's_mov_b32 s{sX}, s4', f's_mov_b32 s{sX+1}, s5', f's_mov_b32 s{sX+2}, {IMG_BYTES}', f's_mov_b32 s{sX+3}, 0x20000',
        f's_mov_b32 s{sO}, s6', f's_mov_b32 s{sO+1}, s7', f's_mov_b32 s{sO+2}, {IMG_BYTES}', f's_mov_b32 s{sO+3}, 0x20000',
        f's_mul_i32 s{sB}, s2, {36*6144}', f's_mul_i32 s41, s40, {3*6144}', f's_add_u32 s{sB}, s{sB}, s41', f's_mov_b32 s{sBX}, s{sB}',
        f's_mul_i32 s{sWoff}, s40, 12288'])
    if cfg.prof or cfg.prof2: P.extend([f's_mov_b32 s{i}, 0' for i in range(52, 92)])
    P.extend(stamp(cfg, 0))
    a1, a2, nafter = m_first_dma(cfg)
    emit(a1)
    for p in range(3):
        emit([f's_add_u32 s{sT2}, s{sB}, {6144*p}'])
        for s_ in range(6):
            if s_ == 4: emit([f's_add_u32 s{sT2}, s{sT2}, 4096'])
            emit([f'buffer_load_dwordx4 {a(H0 + 24*p + 4*s_, 4)}, v{vDma}, s[{sH}:{sH+3}], s{sT2} offen offset:{1024*(s_ % 4)}' + (' nt' if cfg.nt_h else '')])
    emit(a2)
    emit([f's_waitcnt vmcnt({nafter})', 's_barrier'])
    emit(x_first_loads(cfg))
    emit(m_g1_first(cfg))
    P.extend(stamp(cfg, 1))
    mp, sub, tr = m_main(cfg, name)
    P += mp; TR += tr
    P += dump_stamps(cfg, 6)
    P += dump_stamps2(cfg, 13)
    if cfg.allwg:
        P = P[:2] + ['s_memrealtime s[98:99]'] + P[2:]
        P += ['s_waitcnt vmcnt(0)', 's_memrealtime s[82:83]', 's_cmp_eq_u32 s40, 0', f's_cbranch_scc0 {name}_done',
              's_waitcnt lgkmcnt(0)', 's_lshl_b32 s3, s2, 3', f's_add_u32 s3, s3, {(200 << 20) + 4096}',
              'v_mov_b32 v4, s98', 'v_mov_b32 v5, s3', 's_nop 1', 'global_store_dword v5, v4, s[38:39]',
              'v_mov_b32 v4, s82', 's_nop 1', 'global_store_dword v5, v4, s[38:39] offset:4']
    P += [f'{name}_done:', 's_endpgm']
    P += sub
    return P, TR

def kd(name, lds=0):
    return f'''.amdhsa_kernel {name}
  .amdhsa_next_free_vgpr 512
  .amdhsa_next_free_sgpr 102
  .amdhsa_accum_offset 256
  .amdhsa_group_segment_fixed_size 0
  .amdhsa_kernarg_size 56
  .amdhsa_user_sgpr_count 2
  .amdhsa_user_sgpr_kernarg_segment_ptr 1
  .amdhsa_system_sgpr_workgroup_id_x 1
  .amdhsa_float_denorm_mode_32 3
.end_amdhsa_kernel
'''
if __name__ == '__main__':
    import asmlib
    P, TR = gen(Cfg)
    asmlib.check(TR, 'k2')
    print(len(P), 'lines', 'alpha', ALPHA, 'c', CC)
```

```python
import k2
from k2 import f2u, ALPHA, WS_W, WS_H, W_BYTES, IMG_BYTES

REC = 544
NBLK = 99
SLAB = NBLK * REC
YB = 2 * SLAB
LDS_BYTES = YB + 2 * 24576
TAPS, ROWS = 400, 2848
DWB = YB + ROWS + TAPS

vO16 = 0
vL16 = 2
vRel = 4
vLw, vLw3, vRd, vY0, vR0, vR1, vA, vB = 8, 9, 10, 11, 12, 13, 14, 15
ST = 16
BLK = 80
ACC = 120
TMP = 136
Y0 = 144
vP = 216
vPF = 240
CW = 144
sM, sH, sX, sD = 8, 12, 16, 20
sC, sBase, sFast, sIMG, sT, sT2, sSelL, sDS, sDY, sOutN, sTI = 24, 28, 29, 30, 31, 32, 33, 34, 35, 36, 37
sWave, sSelH, sPkF, sPkf = 40, 41, 42, 43
sMaskL, sMaskR, sMask = 44, 60, 76
sOnes, sAl, sEps, sInv, sOut, sLT, sLT2 = 92, 93, 94, 95, 96, 97, 98
sDbg = 4
sMk3 = 100
NPACK = 576
NPKWG = 72

def v(b, n=1): return f'v{b}' if n == 1 else f'v[{b}:{b+n-1}]'
def a(b, n=1): return f'a{b}' if n == 1 else f'a[{b}:{b+n-1}]'
def Wt(k, R, C): return CW + 32 * k + 2 * (4 * R + C)
def blk(row, bc): return BLK + 10 * (row % 4) + 2 * bc
def Y(p, s): return Y0 + 24 * p + 4 * s
M4 = 'v_mfma_f32_4x4x4_16b_bf16'
FULL = (1 << 64) - 1

class Cfg(k2.Cfg):
    f16 = True
    nt_h = True; nt_x = True; nt_o = True
    cx_nt = False
    st_flags = ' nt'
    xps = 147456
    xts = 49152
    light = False
    light2 = False
    light3 = False
    exact_vm = True
    touch = True
    early = True
    hskip = True
    spin = 1 << 14
    nosync = False

def setexec(out, cur, val):
    if cur[0] != val:
        out.append(f's_mov_b32 exec_lo, {hex(val & 0xffffffff)}')
        out.append(f's_mov_b32 exec_hi, {hex(val >> 32)}')
        cur[0] = val

def weights_gather(vb):
    out = []
    cur = [FULL]
    rowm = lambda r: 0x3333333333333333 if r == 0 else (0xCCCCCCCCCCCCCCCC if r == 7 else FULL)
    colm = lambda c: 0x5555555555555555 if c == 0 else (0xAAAAAAAAAAAAAAAA if c == 7 else FULL)
    for k in range(3):
        for Rh in range(2):
            items = [(R, dy, c) for R in (2 * Rh, 2 * Rh + 1) for dy in range(2) for c in range(4)]
            for i, (R, dy, c) in enumerate(items):
                for dx in range(2):
                    if rowm(2 * R + dy) & colm(2 * c + dx) != FULL: out.append(f'v_mov_b32 v{Y0+2*i+dx}, 0')
            rd = []
            for i, (R, dy, c) in enumerate(items):
                for dx in range(2):
                    rho, gam = 2 * R + dy, 2 * c + dx
                    rd.append((rowm(rho) & colm(gam), f'ds_read_u16 v{Y0+2*i+dx}, v{vb} offset:{rho*ROWS + gam*TAPS + 128*k}'))
            rd.sort(key=lambda x: -x[0])
            for m, t in rd:
                setexec(out, cur, m); out.append(t)
            setexec(out, cur, FULL)
            out.append('s_waitcnt lgkmcnt(0)')
            for i, (R, dy, c) in enumerate(items): out.append(f'v_lshl_or_b32 v{Y0+2*i}, v{Y0+2*i+1}, 16, v{Y0+2*i}')
            for i, (R, dy, c) in enumerate(items): out.append(f'v_accvgpr_write_b32 a{Wt(k,R,c)+dy}, v{Y0+2*i}')
    return out

def load_consts(stage):
    return [f's_add_u32 s{sC}, s{sBase}, {128*stage}', f's_add_u32 s{sC+1}, s{sC}, 384',
            f's_add_u32 s{sC+2}, s{sC}, 147456', f's_add_u32 s{sC+3}, s{sC+2}, 384']
def load_items(cfg, fast):
    nt = ' nt' if cfg.cx_nt else ''
    its = []
    for r in range(4):
        for dy in range(2):
            for dx in range(2):
                d = v(ST + 16 * r + 4 * (2 * dy + dx), 4)
                if fast:
                    its.append([f'buffer_load_dwordx4 {d}, v{vRel+r}, s[{sX}:{sX+3}], s{sC+2*dy} offen offset:{384*dx}{nt}'])
                else:
                    t = vA if dx == 0 else vB
                    m = sMask + 2 * (2 * r + dx)
                    its.append([f'v_add_u32 v{t}, s{sC+2*dy+dx}, v{vRel+r}', f'v_cmp_gt_u32 vcc, s{sIMG}, v{t}',
                                f's_and_b64 vcc, vcc, s[{m}:{m+1}]', f'v_cndmask_b32 v{t}, 2.0, v{t}, vcc',
                                f'buffer_load_dwordx4 {d}, v{t}, s[{sX}:{sX+3}], 0 offen{nt}'])
    return its

def transpose_unit(r, d):
    L = lambda dy, dx: ST + 16 * r + 4 * (2 * dy + dx) + d
    t = TMP
    base, off = (vLw, 32 * REC * r) if r < 3 else (vLw3, 0)
    out = [f'v_xad_u32 v{vA}, v{vO16}, {16*d}, v{base}',
           f'v_perm_b32 v{t}, v{L(0,1)}, v{L(0,0)}, s{sSelL}',
           f'v_perm_b32 v{t+1}, v{L(1,1)}, v{L(1,0)}, s{sSelL}',
           f'v_perm_b32 v{t+2}, v{L(0,1)}, v{L(0,0)}, s{sSelH}',
           f'v_perm_b32 v{t+3}, v{L(1,1)}, v{L(1,0)}, s{sSelH}']
    if r == 3: out.append(f's_mov_b64 exec, s[{sMk3}:{sMk3+1}]')
    out.append(f'ds_write_b128 v{vA}, {v(t,4)} offset:{off + 128*d}')
    if r == 3: out.append('s_mov_b64 exec, -1')
    return out

def yout(py):
    out = []
    a0 = ACC + 8 * (py & 1); a1 = a0 + 4
    t = TMP + 4
    for oy in range(2):
        out.append(f'v_cvt_pk_bf16_f32 v{t+2*oy}, v{a0+2*oy}, v{a0+2*oy+1}')
        out.append(f'v_cvt_pk_bf16_f32 v{t+2*oy+1}, v{a1+2*oy}, v{a1+2*oy+1}')
        out.append(f'ds_write_b64 v{vY0}, {v(t+2*oy,2)} offset:{(2*py+oy)*2048}')
    return out

def row_reads(br):
    return [f'ds_read_b64 {v(blk(br,bc),2)}, v{vRd} offset:{(br*11+bc)*REC}' for bc in range(5)]

def conv_stage(k, items, vmw=12, extra=None, transp=True, tail_items=None):
    out = []
    fifo = []
    def emit_lds(t, tag): out.append(t); fifo.append(tag)
    def need(tag):
        idx = [i for i, x in enumerate(fifo) if x == tag]
        if idx:
            n = len(fifo) - 1 - idx[-1]
            out.append(f's_waitcnt lgkmcnt({min(n,15)})')
            del fifo[:idx[-1] + 1]
    tagof = lambda t: ('w' if t.startswith('ds_') else None)
    for br in range(4):
        for t in row_reads(br): emit_lds(t, ('row', br))
    if transp:
        out.append(f's_waitcnt vmcnt({vmw})')
        for t in transpose_unit(0, 0):
            if tagof(t): emit_lds(t, 'w')
            else: out.append(t)
    fill = {(py, i): [] for py in range(6) for i in range(16)}
    for py in range(6):
        if py > 0:
            for t, p_ in zip(yout(py - 1), [2, 2, 3, 4, 4, 5]): fill[(py, p_)].append((t, tagof(t)))
        if py + 4 <= 8:
            for i, t in enumerate(row_reads(py + 4)): fill[(py, 7 + i)].append((t, ('row', py + 4)))
    upos = {0: [None, (0, 1), (0, 3), (0, 5)], 1: [(1, 6), (1, 8), (1, 12), (1, 14)], 2: [(2, 6), (2, 8), (2, 12), (2, 14)], 3: [(3, 6), (3, 8), (3, 12), (3, 14)]}
    lpos = {0: [(0, 12), (0, 14), (1, 0), (1, 1)], 1: [(2, 0), (2, 1), (1, 15), (2, 5)], 2: [(3, 0), (3, 1), (2, 15), (3, 5)], 3: [(4, 0), (4, 1), (3, 15), (4, 6)]}
    lpos = {r: sorted(p) for r, p in lpos.items()}
    for r in range(4):
        if transp:
            if r > 0: fill[upos[r][0]].append((f's_waitcnt vmcnt({vmw})', None))
            for d in range(4):
                if upos[r][d] is None: continue
                for t in transpose_unit(r, d): fill[upos[r][d]].append((t, tagof(t)))
        for i in range(4):
            if 4 * r + i < len(items):
                for t in items[4 * r + i]: fill[lpos[r][i]].append((t, None))
    for it, pos in zip(tail_items or [], [(4, 8), (4, 10), (4, 12), (4, 14)]):
        for t in it: fill[pos].append((t, None))
    for py in range(6):
        for idx in range(16):
            R, C = divmod(idx, 4)
            if C == 0: need(('row', py + R))
            for px in range(2):
                aa = ACC + 8 * (py & 1) + 4 * px
                c = '0' if idx == 0 else v(aa, 4)
                out.append(f'{M4} {v(aa,4)}, {a(Wt(k,R,C),2)}, {v(blk(py+R, px+C),2)}, {c}')
            if fill[(py, idx)]:
                for t, tag in fill[(py, idx)]:
                    if tag: emit_lds(t, tag)
                    else: out.append(t)
            else:
                nxt_has_wait = (idx % 4 == 3) and idx < 15 and any(x == ('row', py + R + 1) for x in fifo)
                if not nxt_has_wait: out.append('s_nop 0')
    out += ['s_nop 4'] + yout(5)
    return out

def ln_block(cfg, to_regs):
    NP = 3
    out = []
    t = BLK
    s1 = [t + p for p in range(NP)]; s2 = [t + 4 + p for p in range(NP)]
    for i in range(24):
        for p in range(NP):
            r = Y0 + 24 * p + i
            c1 = '0' if i == 0 else f'v{s1[p]}'; c2 = '0' if i == 0 else f'v{s2[p]}'
            out.append(f'v_dot2_f32_bf16 v{s1[p]}, v{r}, s{sOnes}, {c1}')
            out.append(f'v_dot2_f32_bf16 v{s2[p]}, v{r}, v{r}, {c2}')
    out.append('s_nop 2')
    allr = s1 + s2
    tm = [t + 8 + i for i in range(len(allr))]
    for sw in ('v_permlane16_swap_b32', 'v_permlane32_swap_b32'):
        for r, q in zip(allr, tm): out.append(f'v_mov_b32 v{q}, v{r}')
        out.append('s_nop 1')
        for r, q in zip(allr, tm): out.append(f'{sw} v{q}, v{r}')
        out.append('s_nop 1')
        for r, q in zip(allr, tm): out.append(f'v_add_f32 v{r}, v{r}, v{q}')
    rs = [t + 16 + p for p in range(NP)]; nb = [t + 20 + p for p in range(NP)]
    for p in range(NP): out.append(f'v_mul_f32 v{s1[p]}, s{sInv}, v{s1[p]}')
    for p in range(NP): out.append(f'v_mul_f32 v{s2[p]}, s{sInv}, v{s2[p]}')
    for p in range(NP): out.append(f'v_fma_f32 v{s2[p]}, -v{s1[p]}, v{s1[p]}, v{s2[p]}')
    for p in range(NP): out.append(f'v_max_f32 v{s2[p]}, 0, v{s2[p]}')
    for p in range(NP): out.append(f'v_add_f32 v{s2[p]}, s{sEps}, v{s2[p]}')
    for p in range(NP): out.append(f'v_rsq_f32 v{rs[p]}, v{s2[p]}')
    out.append('s_nop 0')
    for p in range(NP): out.append(f'v_mul_f32 v{rs[p]}, s{sAl}, v{rs[p]}')
    for p in range(NP): out.append(f'v_mul_f32 v{nb[p]}, -v{s1[p]}, v{rs[p]}')
    k = 0
    for p in range(NP):
        if not to_regs:
            out.append(f's_add_u32 s{sLT}, s{sOut}, {6144*p}')
            out.append(f's_add_u32 s{sLT2}, s{sLT}, 4096')
        for s in range(6):
            for d in range(4):
                r = Y(p, s) + d
                x0, x1 = t + 24 + 2 * (k % 4), t + 25 + 2 * (k % 4); k += 1
                out.append(f'v_lshlrev_b32 v{x0}, 16, v{r}')
                out.append(f'v_and_b32 v{x1}, 0xffff0000, v{r}')
                out.append(f'v_fma_f32 v{x0}, v{x0}, v{rs[p]}, v{nb[p]}')
                out.append(f'v_fma_f32 v{x1}, v{x1}, v{rs[p]}, v{nb[p]}')
                out.append(f'v_cvt_pk_bf16_f32 v{r}, v{x0}, v{x1}')
                if to_regs: out.append(f'v_accvgpr_write_b32 a{k2.hreg(p, s) + d}, v{r}')
            if not to_regs:
                so, im = (sLT, 1024 * s) if s < 4 else (sLT2, 1024 * (s - 4))
                out.append(f'buffer_store_dwordx4 {v(Y(p,s),4)}, v{vL16}, s[{sH}:{sH+3}], s{so} offen offset:{im}{cfg.st_flags}')
    return out

def pack_loads(lab, dst, t, lane):
    out = [f's_mul_hi_u32 s46, s{sPkF}, {(1 << 32) // 24 + 1}',
           f's_mul_i32 s47, s46, 24', f's_sub_u32 s{sPkf}, s{sPkF}, s47',
           f'v_and_b32 v{t}, 15, v{lane}', f'v_lshrrev_b32 v{t+1}, 4, v{lane}',
           f's_cmp_lt_u32 s{sPkf}, 12', f's_cbranch_scc0 {lab}_pk2']
    out += [f's_add_u32 s48, s46, 1', f's_cmp_eq_u32 s48, 24', f's_cselect_b32 s48, 0, s48',
            f's_lshr_b32 s49, s{sPkf}, 1', f's_and_b32 s50, s{sPkf}, 1',
            f's_lshl_b32 s48, s48, 6', f's_lshl_b32 s50, s50, 5', f's_add_u32 s48, s48, s50',
            f's_mul_i32 s49, s49, {32*1536}', f's_add_u32 s48, s48, s49',
            f'v_mul_u32_u24 v{t+2}, {8*1536}, v{t+1}', f'v_lshl_add_u32 v{t+2}, v{t}, 1, v{t+2}',
            f's_mov_b32 s{sM}, s52', f's_mov_b32 s{sM+1}, s53', f's_mov_b32 s{sM+2}, {192*768*2}', f's_mov_b32 s{sM+3}, 0x20000']
    for e in range(8):
        out.append(f's_add_u32 s49, s48, {e*1536}')
        out.append(f'buffer_load_ushort v{dst+e}, v{t+2}, s[{sM}:{sM+3}], s49 offen')
    out += [f's_branch {lab}_pk3', f'{lab}_pk2:']
    out += [f's_add_u32 s48, s46, 23', f's_cmp_ge_u32 s48, 24', f's_cselect_b32 s49, 24, 0', f's_sub_u32 s48, s48, s49',
            f's_sub_u32 s49, s{sPkf}, 12', f's_lshr_b32 s50, s49, 1', f's_and_b32 s49, s49, 1',
            f's_mul_i32 s48, s48, {32*384}', f's_lshl_b32 s50, s50, 6', f's_lshl_b32 s49, s49, 3',
            f's_add_u32 s48, s48, s50', f's_add_u32 s48, s48, s49',
            f'v_lshrrev_b32 v{t+3}, 2, v{t}', f'v_lshlrev_b32 v{t+3}, 4, v{t+3}',
            f'v_and_b32 v{t+4}, 3, v{t}', f'v_lshl_add_u32 v{t+3}, v{t+4}, 1, v{t+3}',
            f'v_mul_u32_u24 v{t+2}, {4*384}, v{t+1}', f'v_add_u32 v{t+2}, v{t+2}, v{t+3}',
            f's_mov_b32 s{sM}, s54', f's_mov_b32 s{sM+1}, s55', f's_mov_b32 s{sM+2}, {192*768*2}', f's_mov_b32 s{sM+3}, 0x20000']
    for e in range(8):
        out.append(f's_add_u32 s49, s48, {(16*(e>>2) + (e&3))*384}')
        out.append(f'buffer_load_ushort v{dst+e}, v{t+2}, s[{sM}:{sM+3}], s49 offen')
    out += [f'{lab}_pk3:']
    return out

def pack_store(lab, cfg, src, dst):
    out = []
    for d in range(4): out.append(f'v_lshl_or_b32 v{dst+d}, v{src+2*d+1}, 16, v{src+2*d}')
    if cfg.f16:
        out += [f's_cmp_lt_u32 s{sPkf}, 12', f's_cbranch_scc1 {lab}_pk5']
        for e in range(8): out.append(f'v_lshlrev_b32 v{src+e}, 16, v{src+e}')
        for d in range(4): out.append(f'v_cvt_pk_f16_f32 v{dst+d}, v{src+2*d}, v{src+2*d+1}')
        out.append(f'{lab}_pk5:')
    out += [f's_add_u32 s{sM}, s38, {WS_W}', f's_addc_u32 s{sM+1}, s39, 0', f's_mov_b32 s{sM+2}, {W_BYTES}', f's_mov_b32 s{sM+3}, 0x20000',
            f's_lshl_b32 s3, s{sPkF}, 10',
            f'buffer_store_dwordx4 {v(dst,4)}, v{vL16}, s[{sM}:{sM+3}], s3 offen sc1']
    return out

def gen(cfg, name='fused_kernel'):
    k2.MF2[0] = 'v_mfma_f32_16x16x32_f16' if cfg.f16 else k2.MF
    P = []; TR = []
    n3 = [0]
    def st3():
        if cfg.light3:
            P.extend(['s_memtime s[102:103]' if False else 's_memtime s[98:99]', 's_waitcnt lgkmcnt(0)', f'v_writelane_b32 v253, s98, {n3[0]}']); n3[0] += 1
    def emit(l, tr=True):
        P.extend(l)
        if tr: TR.extend([x for x in l if not x.endswith(':')])
    emit(['s_cmp_ge_u32 s2, 256', f's_cbranch_scc1 {name}_done'])
    if cfg.light: P += ['s_memtime s[6:7]', 's_memrealtime s[8:9]', 's_waitcnt lgkmcnt(0)', 'v_writelane_b32 v255, s6, 0', 'v_writelane_b32 v255, s8, 1']
    st3()
    emit(['s_load_dwordx4 s[4:7], s[0:1], 0',
          's_load_dwordx2 s[38:39], s[0:1], 48',
          's_load_dwordx4 s[52:55], s[0:1], 16',
          'v_lshrrev_b32 v1, 6, v0', 'v_and_b32 v0, 63, v0', 's_nop 0',
          f'v_readfirstlane_b32 s{sWave}, v1',
          f's_mov_b32 s{sIMG}, {IMG_BYTES}', f's_mov_b32 s{sOnes}, 0x3f803f80',
          f's_mov_b32 s{sSelL}, 0x05040100', f's_mov_b32 s{sSelH}, 0x07060302',
          f's_mov_b32 s{sAl}, {hex(f2u(ALPHA))}', f's_mov_b32 s{sEps}, {hex(f2u(1e-5))}', f's_mov_b32 s{sInv}, {hex(f2u(1.0/192))}',
          f'v_lshlrev_b32 v{vL16}, 4, v0', f'v_mov_b32 v{vP+1}, 0',
          's_waitcnt lgkmcnt(0)',
          f's_mov_b32 s{sX}, s4', f's_mov_b32 s{sX+1}, s5', f's_mov_b32 s{sX+2}, {IMG_BYTES}', f's_mov_b32 s{sX+3}, 0x20000',
          f's_mov_b32 s{sD}, s6', f's_mov_b32 s{sD+1}, s7', f's_mov_b32 s{sD+2}, {49*384}', f's_mov_b32 s{sD+3}, 0x20000',
          f's_add_u32 s{sH}, s38, {WS_H}', f's_addc_u32 s{sH+1}, s39, 0', f's_mov_b32 s{sH+2}, {IMG_BYTES}', f's_mov_b32 s{sH+3}, 0x20000',
          f's_load_dwordx2 s[{sDbg}:{sDbg+1}], s[0:1], 40', f's_mov_b32 s{sTI}, 0'])
    st3()
    t = Y0
    c = []
    for m in range(5):
        c += [f's_lshl_b32 s{sT}, s{sWave}, 6', f's_add_u32 s{sT}, s{sT}, {256*m}',
              f'v_add_u32 v{t}, s{sT}, v0',
              f'v_mul_u32_u24 v{t+1}, 5892, v{t}', f'v_lshrrev_b32 v{t+1}, 20, v{t+1}',
              f'v_mul_u32_u24 v{t+2}, 178, v{t+1}', f'v_sub_u32 v{t+2}, v{t}, v{t+2}',
              f'v_mul_u32_u24 v{t+3}, 2622, v{t+2}', f'v_lshrrev_b32 v{t+3}, 16, v{t+3}',
              f'v_mul_u32_u24 v{t+4}, 25, v{t+3}', f'v_sub_u32 v{t+4}, v{t+2}, v{t+4}',
              f'v_mul_u32_u24 v{t+5}, 7, v{t+1}', f'v_add_u32 v{t+5}, v{t+5}, v{t+3}',
              f'v_mul_u32_u24 v{t+5}, 24, v{t+5}', f'v_add_u32 v{t+5}, v{t+5}, v{t+4}', f'v_lshlrev_b32 v{t+5}, 4, v{t+5}',
              f'v_cmp_gt_u32 vcc, 7, v{t+3}', f'v_cmp_gt_u32 s[44:45], 24, v{t+4}', 's_nop 1', f's_and_b64 vcc, vcc, s[44:45]',
              f'v_cndmask_b32 v{t+5}, 2.0, v{t+5}, vcc',
              f's_lshl_b32 s{sT}, s{sWave}, 10', f's_add_u32 m0, s{sT}, {DWB + 4096*m}', 's_nop 0',
              f'buffer_load_dwordx4 v{t+5}, s[{sD}:{sD+3}], 0 offen lds']
    emit(c)
    pk = [f's_mov_b32 s{sPkF}, -1', f's_cmp_lt_u32 s2, {NPKWG}', f's_cbranch_scc0 {name}_nopk',
          f's_lshl_b32 s44, s2, 3', f's_lshl_b32 s45, s{sWave}, 1', f's_add_u32 s{sPkF}, s44, s45']
    pk += pack_loads(f'{name}_a', Y0 + 32, BLK, 0) + [f's_add_u32 s{sPkF}, s{sPkF}, 1'] + pack_loads(f'{name}_a2', Y0 + 41, BLK, 0) + [f'{name}_nopk:']
    st3()
    if not cfg.nosync: P += pk
    st3()
    c = [f'v_and_b32 v{t}, 7, v0', f'v_lshrrev_b32 v{t+1}, 3, v0']
    for r in range(4):
        if r < 3: c += [f's_lshl_b32 s{sT}, s{sWave}, 3', f's_add_u32 s{sT}, s{sT}, {32*r}', f'v_add_u32 v{t+2}, s{sT}, v{t+1}']
        else:
            c += [f's_add_u32 s{sT}, s{sWave}, 96', f's_min_u32 s{sT}, s{sT}, 98', f'v_mov_b32 v{t+2}, s{sT}',
                  f'v_cmp_gt_u32 s[{sMk3}:{sMk3+1}], 8, v0']
        c += [f'v_mul_u32_u24 v{t+3}, 745, v{t+2}', f'v_lshrrev_b32 v{t+3}, 13, v{t+3}',
              f'v_mul_u32_u24 v{t+4}, 11, v{t+3}', f'v_sub_u32 v{t+4}, v{t+2}, v{t+4}',
              f'v_mul_u32_u24 v{t+5}, {2*384}, v{t+3}', f'v_lshl_add_u32 v{t+5}, v{t+4}, 1, v{t+5}',
              f'v_mul_u32_u24 v{t+5}, 384, v{t+5}',
              f'v_lshl_add_u32 v{vRel+r}, v{t}, 4, v{t+5}']
        for dx in range(2):
            mL = sMaskL + 2 * (2 * r + dx); mR = sMaskR + 2 * (2 * r + dx)
            c += [f'v_lshl_add_u32 v{t+6}, v{t+4}, 1, {dx}',
                  f'v_cmp_lt_u32 s[{mL}:{mL+1}], 2, v{t+6}', f'v_cmp_gt_u32 s[{mR}:{mR+1}], 19, v{t+6}']
            if r == 3:
                c += ['s_nop 1', f's_and_b64 s[{mL}:{mL+1}], s[{mL}:{mL+1}], s[{sMk3}:{sMk3+1}]', f's_and_b64 s[{mR}:{mR+1}], s[{mR}:{mR+1}], s[{sMk3}:{sMk3+1}]']
        if r == 0: c += [f'v_mul_u32_u24 v{vLw}, {REC}, v{t+2}']
        if r == 3: c += [f'v_mul_u32_u24 v{vLw3}, {REC}, v{t+2}', f'v_cndmask_b32 v{vRel+3}, 2.0, v{vRel+3}, s[{sMk3}:{sMk3+1}]']
    c += [f'v_lshrrev_b32 v{t}, 2, v0', f'v_and_b32 v{t+1}, 3, v0', f'v_lshrrev_b32 v{t+2}, 3, v{t}',
          f's_lshl_b32 s{sT}, s{sWave}, 1',
          f'v_add_u32 v{t+2}, s{sT}, v{t+2}', f'v_bfe_u32 v{t+3}, v{t}, 1, 2', f'v_xor_b32 v{t+4}, v{t+2}, v{t+3}',
          f'v_lshlrev_b32 v{t+4}, 1, v{t+4}', f'v_lshl_add_u32 v{t+4}, v{t+3}, 4, v{t+4}',
          f'v_and_b32 v{t+5}, 1, v{t}', f'v_add_u32 v{t+4}, v{t+4}, v{t+5}', f'v_lshlrev_b32 v{t+4}, 3, v{t+4}',
          f'v_mul_u32_u24 v{t+5}, {2*REC}, v{t+1}', f'v_add_u32 v{vRd}, v{t+4}, v{t+5}']
    c += [f's_lshl_b32 s{sT2}, s{sWave}, 4', f'v_add_u32 v{t+7}, s{sT2}, v{t}',
          f'v_bfe_u32 v{t+8}, v{t+7}, 3, 1', f'v_lshlrev_b32 v{t+8}, 2, v{t+8}', f'v_xor_b32 v{t+7}, v{t+7}, v{t+8}',
          f'v_lshlrev_b32 v{t+7}, 5, v{t+7}', f'v_lshl_add_u32 v{t+7}, v{t+1}, 3, v{t+7}', f'v_add_u32 v{vY0}, {YB}, v{t+7}']
    c += [f'v_lshrrev_b32 v{t}, 4, v0', f'v_bfe_u32 v{t+1}, v0, 2, 2', f'v_and_b32 v{t+2}, 3, v0',
          f's_mul_i32 s{sT}, s{sWave}, {3*2048}', f's_add_u32 s{sT}, s{sT}, {YB}']
    for h, vr in ((0, vR0), (1, vR1)):
        c += [f'v_lshl_add_u32 v{t+3}, v{t}, 3, v{t+1}', f'v_add_u32 v{t+3}, {4*h}, v{t+3}',
              f'v_and_b32 v{t+4}, 1, v{t}', f'v_lshlrev_b32 v{t+4}, 2, v{t+4}', f'v_xor_b32 v{t+3}, v{t+3}, v{t+4}',
              f'v_lshlrev_b32 v{t+3}, 5, v{t+3}', f'v_lshl_add_u32 v{t+3}, v{t+2}, 3, v{t+3}', f'v_add_u32 v{vr}, s{sT}, v{t+3}']
    if cfg.touch:
        for j in range(4):
            c += [f's_lshl_b32 s{sT}, s{sWave}, 6', f's_add_u32 s{sT}, s{sT}, {256*j}', f'v_add_u32 v{t}, s{sT}, v0',
                  f'v_lshrrev_b32 v{t+1}, 1, v{t}', f'v_mul_u32_u24 v{t+2}, 2979, v{t+1}', f'v_lshrrev_b32 v{t+2}, 16, v{t+2}',
                  f'v_mul_u32_u24 v{t+3}, 22, v{t+2}', f'v_sub_u32 v{t+3}, v{t+1}, v{t+3}',
                  f'v_mul_u32_u24 v{t+2}, 384, v{t+2}', f'v_add_u32 v{t+2}, v{t+2}, v{t+3}', f'v_mul_u32_u24 v{t+2}, 384, v{t+2}',
                  f'v_and_b32 v{t+3}, 1, v{t}', f'v_lshlrev_b32 v{t+3}, 7, v{t+3}', f'v_add_u32 v{t+2}, v{t+2}, v{t+3}', f'v_add_u32 v{t+2}, 128, v{t+2}',
                  f'v_cmp_gt_u32 vcc, 396, v{t+1}' if False else f'v_mov_b32 v{t+3}, 396', f'v_cmp_gt_u32 vcc, v{t+3}, v{t+1}', 's_nop 1',
                  f'v_cndmask_b32 v{vPF+j}, 2.0, v{t+2}, vcc']
    vb = Y0 + 40
    c += [f'v_lshrrev_b32 v{t}, 2, v0', f's_lshl_b32 s{sT}, s{sWave}, 5', f'v_lshlrev_b32 v{t}, 1, v{t}', f'v_add_u32 v{t}, s{sT}, v{t}',
          f'v_bfe_u32 v{t+1}, v0, 1, 1', f'v_mul_u32_u24 v{t+1}, {ROWS}, v{t+1}', f'v_and_b32 v{t+2}, 1, v0', f'v_mul_u32_u24 v{t+2}, {TAPS}, v{t+2}',
          f'v_add_u32 v{t+1}, v{t+1}, v{t+2}', f'v_sub_u32 v{t}, v{t}, v{t+1}', f'v_add_u32 v{vb}, {DWB}, v{t}',
          f'v_and_b32 v{vO16}, 7, v0', f'v_lshlrev_b32 v{vO16}, 4, v{vO16}']
    emit(c)
    def tile_setup():
        o = [f's_sub_u32 s24, 2, s{sTI}',
             f's_mul_i32 s25, s2, 3', f's_add_u32 s25, s25, s24', f's_mul_i32 s25, s25, 12', f's_mul_i32 s26, s{sWave}, 3', f's_add_u32 s25, s25, s26',
             f's_mul_i32 s{sOutN}, s25, 6144',
             f's_lshr_b32 s25, s2, 3', f's_lshl_b32 s24, s24, 5', f's_add_u32 s25, s25, s24',
             f's_and_b32 s26, s2, 7', f's_lshl_b32 s26, s26, 2', f's_and_b32 s27, s25, 3', f's_add_u32 s26, s26, s27',
             f's_lshr_b32 s27, s25, 2',
             f's_mul_i32 s24, s26, {12*384}', f's_lshl_b32 s25, s27, 4', f's_add_u32 s24, s24, s25',
             f's_sub_u32 s24, s24, {3*384+3}', f's_mul_i32 s{sBase}, s24, 384',
             f's_sub_u32 s25, s27, 1', f's_cmp_lt_u32 s25, 22', f's_cselect_b32 s{sFast}, 1, 0',
             f's_cmp_eq_u32 s26, 0', f's_cselect_b32 s{sFast}, 0, s{sFast}']
        for i in range(8):
            m, l, r = sMask + 2 * i, sMaskL + 2 * i, sMaskR + 2 * i
            o += [f's_mov_b64 s[{m}:{m+1}], -1' if i < 6 else f's_or_b64 s[{m}:{m+1}], s[{l}:{l+1}], s[{r}:{r+1}]',
                  f's_cmp_eq_u32 s27, 0', f's_cselect_b64 s[{m}:{m+1}], s[{l}:{l+1}], s[{m}:{m+1}]',
                  f's_cmp_eq_u32 s27, 23', f's_cselect_b64 s[{m}:{m+1}], s[{r}:{r+1}], s[{m}:{m+1}]']
        return o
    st3()
    def touch_items():
        if not cfg.touch: return []
        return [[f'v_add_u32 v{vB}, s{sBase}, v{vPF+j}', f'buffer_load_dword v{vPF+4}, v{vB}, s[{sX}:{sX+3}], 0 offen'] for j in range(4)]
    ts = tile_setup()
    emit(ts)
    emit(load_consts(0) + sum(load_items(cfg, False), []))
    emit(sum(touch_items(), []))
    st3()
    emit([f's_waitcnt vmcnt({20 if cfg.touch else 16})'])
    st3()
    emit(['s_barrier'])
    st3()
    if not cfg.nosync:
        P += [f's_cmp_eq_u32 s{sPkF}, -1', f's_cbranch_scc1 {name}_nops'] + pack_store(f'{name}_b', cfg, Y0 + 41, Y0)
        P += [f's_sub_u32 s{sPkF}, s{sPkF}, 1', f's_sub_u32 s{sPkf}, s{sPkf}, 1'] + pack_store(f'{name}_b2', cfg, Y0 + 32, Y0 + 4) + ['s_nop 1', f'{name}_nops:']
    emit(weights_gather(vb))
    st3()
    emit(['s_waitcnt vmcnt(0)'])
    st3()
    emit([f'v_add_u32 v{vLw}, {SLAB}, v{vLw}', f'v_add_u32 v{vLw3}, {SLAB}, v{vLw3}', f'v_add_u32 v{vRd}, {SLAB}, v{vRd}'])
    for r in range(4):
        for d in range(4): emit(transpose_unit(r, d))
    emit(load_consts(1) + sum(load_items(cfg, False), []))
    if cfg.exact_vm:
        emit([f's_mov_b32 s{sT}, 0x70000000'] + [f'buffer_store_dword v{vA}, v{vL16}, s[{sH}:{sH+3}], s{sT} offen'] * 18)
    emit([f'v_subrev_u32 v{vLw}, {SLAB}, v{vLw}', f'v_subrev_u32 v{vLw3}, {SLAB}, v{vLw3}', f's_mov_b32 s{sDS}, {-SLAB & 0xffffffff}', f's_mov_b32 s{sDY}, 24576',
          's_waitcnt lgkmcnt(0)'])
    st3()
    emit(['s_barrier'])
    st3()
    if not cfg.nosync:
        P += [f's_cmp_eq_u32 s{sPkF}, -1', f's_cbranch_scc1 {name}_nopub', f's_cmp_eq_u32 s{sWave}, 0', f's_cbranch_scc0 {name}_nopub',
              f'v_mov_b32 v{vB}, 1', 's_mov_b32 exec_lo, 1', 's_mov_b32 exec_hi, 0',
              f'global_atomic_add v{vP+1}, v{vB}, s[{sDbg}:{sDbg+1}]', 's_mov_b64 exec, -1', f'{name}_nopub:']
    P += ['.p2align 6', f'{name}_tile:']
    emit([f's_mov_b32 s{sOut}, s{sOutN}'])
    def st2(n):
        if not cfg.light2: return []
        return ['s_memtime s[6:7]', f's_lshl_b32 s3, s{sTI}, 2', f's_add_u32 s3, s3, {n}', 's_waitcnt lgkmcnt(0)', 's_mov_b32 m0, s3', 'v_writelane_b32 v254, s6, m0']
    for k in range(3):
        P += st2(k)
        nk = (k + 2) % 3
        if k == 1:
            emit([f's_add_u32 s{sTI}, s{sTI}, 1'] + ts + [f's_cmp_eq_u32 s{sTI}, 3', f's_cselect_b32 s{sBase}, 0x60000000, s{sBase}', f's_cselect_b32 s{sFast}, 1, s{sFast}'])
        if k == 0 and not cfg.nosync:
            P += [f's_cmp_eq_u32 s{sTI}, 2', f's_cbranch_scc0 {name}_nopoll', f's_cmp_eq_u32 s{sWave}, 0', f's_cbranch_scc0 {name}_nopoll',
                  f'global_load_dword v{vP}, v{vP+1}, s[{sDbg}:{sDbg+1}] sc1', f'{name}_nopoll:']
        if k == 1 and not cfg.nosync:
            fb = [f's_cmp_eq_u32 s{sTI}, 3', f's_cbranch_scc0 {name}_nochk', f's_cmp_eq_u32 s{sWave}, 0', f's_cbranch_scc0 {name}_nochk',
                  f's_waitcnt vmcnt(16)', f'v_readfirstlane_b32 s44, v{vP}', 's_nop 3', f's_cmp_ge_u32 s44, {NPKWG}', f's_cbranch_scc1 {name}_acq',
                  f's_mov_b32 s45, {cfg.spin}', f'{name}_spin:',
                  f'global_load_dword v{vP}, v{vP+1}, s[{sDbg}:{sDbg+1}] sc1', 's_waitcnt vmcnt(0)', f'v_readfirstlane_b32 s44, v{vP}', 's_nop 3',
                  f's_cmp_ge_u32 s44, {NPKWG}', f's_cbranch_scc1 {name}_acq',
                  's_sub_u32 s45, s45, 1', 's_cmp_lg_u32 s45, 0', f's_cbranch_scc1 {name}_spin',
                  's_load_dwordx4 s[52:55], s[0:1], 16', f'v_lshrrev_b32 v{vP+2}, 4, v{vL16}', f's_mov_b32 s{sPkF}, 0', 's_waitcnt lgkmcnt(0)', f'{name}_self:']
            fb += pack_loads(f'{name}_c', vP + 16, vP + 4, vP + 2) + ['s_waitcnt vmcnt(0)'] + pack_store(f'{name}_d', cfg, vP + 16, vP + 12)
            fb += ['s_waitcnt vmcnt(0)', f's_add_u32 s{sPkF}, s{sPkF}, 1', f's_cmp_lt_u32 s{sPkF}, {NPACK}', f's_cbranch_scc1 {name}_self',
                   f'{name}_acq:', 'buffer_inv sc1', f'{name}_nochk:']
            P += fb
        emit(load_consts(nk))
        vmw = 12
        if k == 0 and cfg.exact_vm: vmw = 30
        if k == 2 and cfg.touch: vmw = 16
        ti = touch_items() if k == 1 else None
        cf = conv_stage(k, load_items(cfg, True), vmw, tail_items=ti); cs = conv_stage(k, load_items(cfg, False), vmw, tail_items=ti)
        if k == 2:
            K = k2
            pre = [f's_add_u32 s{K.sW}, s38, {WS_W}', f's_addc_u32 s{K.sW+1}, s39, 0', f's_mov_b32 s{K.sW+2}, {W_BYTES}', f's_mov_b32 s{K.sW+3}, 0x20000',
                   f's_mul_i32 s{K.sWoff}, s40, 12288', f's_cmp_eq_u32 s40, 1', f's_cselect_b32 s24, {23*24576}, s{K.sWoff}']
            its = []
            for i in range(12):
                it = []
                if i % 4 == 0: it += [f's_add_u32 m0, s{K.sWoff}, {4096*(i//4)}', f's_add_u32 s{sT}, s24, {4096*(i//4)}', 's_nop 0']
                it.append(f'buffer_load_dwordx4 v{vL16}, s[{K.sW}:{K.sW+3}], s{sT} offen offset:{1024*(i%4)} lds')
                its.append(it)
            cl = conv_stage(k, its, 0, transp=False)
            P += [f's_cmp_eq_u32 s{sTI}, 3', f's_cbranch_scc0 {name}_nl'] + pre + cl + [f's_branch {name}_cd{k}', f'{name}_nl:']
        P += [f's_cmp_eq_u32 s{sFast}, 0', f's_cbranch_scc1 {name}_cs{k}'] + cf + [f's_branch {name}_cd{k}', f'{name}_cs{k}:'] + cs + [f'{name}_cd{k}:']
        TR += cs
        emit(['s_waitcnt lgkmcnt(0)', 's_barrier'])
        for p in range(3):
            for sp in range(2):
                for h in range(2):
                    emit([f'ds_read_b64_tr_b16 {v(Y(p,2*k+sp)+2*h,2)}, v{vR0 if h == 0 else vR1} offset:{p*2048 + sp*1024}'])
        emit([f'v_add_u32 v{vRd}, s{sDS}, v{vRd}', f'v_subrev_u32 v{vLw}, s{sDS}, v{vLw}', f'v_subrev_u32 v{vLw3}, s{sDS}, v{vLw3}',
              f'v_add_u32 v{vY0}, s{sDY}, v{vY0}', f'v_add_u32 v{vR0}, s{sDY}, v{vR0}', f'v_add_u32 v{vR1}, s{sDY}, v{vR1}',
              f's_sub_u32 s{sDS}, 0, s{sDS}', f's_sub_u32 s{sDY}, 0, s{sDY}'])
    emit(['s_waitcnt lgkmcnt(0)'])
    P += st2(3)
    lns = ln_block(cfg, False)
    lnr = ln_block(cfg, True)
    dummy = [f's_mov_b32 s{sLT}, 0x70000000'] + [f'buffer_store_dword v{vA}, v{vL16}, s[{sH}:{sH+3}], s{sLT} offen'] * 18
    mv = [f'v_accvgpr_mov_b32 a{k2.PF0+i}, a{k2.H0+i}' for i in range(72)]
    P += [f's_cmp_eq_u32 s{sTI}, 3', f's_cbranch_scc1 {name}_last', f's_cmp_eq_u32 s{sTI}, 2', f's_cbranch_scc1 {name}_ln1'] + lns + [f's_branch {name}_tile', f'{name}_ln1:']
    P += [f's_call_b64 s[42:43], {name}_lnregs'] + mv + dummy + [f's_branch {name}_tile', f'{name}_last:']
    TR += lns + lnr + mv + dummy
    emit(['s_waitcnt vmcnt(0)', 's_barrier'])
    if cfg.light: P += ['s_memtime s[6:7]', 's_memrealtime s[24:25]', 's_waitcnt lgkmcnt(0)', 'v_writelane_b32 v255, s6, 2', 'v_writelane_b32 v255, s24, 3']
    K = k2
    emit(['s_load_dwordx2 s[6:7], s[0:1], 32',
          'v_mbcnt_lo_u32_b32 v0, -1, 0', 'v_mbcnt_hi_u32_b32 v0, -1, v0'])
    emit(K.gelu_consts(cfg) + K.ident_setup())
    emit([f's_add_u32 s{K.sW}, s38, {WS_W}', f's_addc_u32 s{K.sW+1}, s39, 0', f's_mov_b32 s{K.sW+2}, {W_BYTES}', f's_mov_b32 s{K.sW+3}, 0x20000',
          f's_mul_i32 s{K.sWoff}, s40, 12288',
          f's_mul_i32 s{K.sB}, s2, {36*6144}', f's_mul_i32 s41, s40, {3*6144}', f's_add_u32 s{K.sB}, s{K.sB}, s41',
          f's_lshr_b32 s24, s2, 3', f's_and_b32 s25, s2, 7', f's_lshl_b32 s25, s25, 2', f's_and_b32 s26, s24, 3', f's_add_u32 s25, s25, s26',
          f's_lshr_b32 s24, s24, 2', f's_mul_i32 s25, s25, 12', f's_mul_i32 s26, s40, 3', f's_add_u32 s25, s25, s26',
          f's_mul_i32 s25, s25, 24', f's_add_u32 s25, s25, s24', f's_mul_i32 s{K.sBX}, s25, 6144',
          's_waitcnt lgkmcnt(0)',
          f's_mov_b32 s{K.sO}, s6', f's_mov_b32 s{K.sO+1}, s7', f's_mov_b32 s{K.sO+2}, {IMG_BYTES}', f's_mov_b32 s{K.sO+3}, 0x20000'])
    emit(K.m_second_dma(cfg, K.PX0) + K.x_first_loads(cfg))
    P += [f's_call_b64 s[42:43], {name}_lnregs']; TR += lnr
    emit(K.m_g1_first(cfg, early=True))
    if cfg.light: P += ['s_memtime s[6:7]', 's_memrealtime s[4:5]', 's_waitcnt lgkmcnt(0)', 'v_writelane_b32 v255, s6, 4', 'v_writelane_b32 v255, s4, 5']
    mp, sub, tr = K.m_main(cfg, name)
    P += mp; TR += tr
    P += K.dump_stamps2(cfg, 13)
    if cfg.light:
        P += ['s_waitcnt vmcnt(0)', 's_memtime s[6:7]', 's_memrealtime s[4:5]', 's_load_dwordx2 s[8:9], s[0:1], 40', 's_waitcnt lgkmcnt(0)', 'v_writelane_b32 v255, s6, 6', 'v_writelane_b32 v255, s4, 7',
              's_cmp_eq_u32 s2, 17', f's_cbranch_scc0 {name}_done', 's_cmp_eq_u32 s40, 0', f's_cbranch_scc0 {name}_done',
              'v_mbcnt_lo_u32_b32 v0, -1, 0', 'v_mbcnt_hi_u32_b32 v0, -1, v0', 'v_lshlrev_b32 v1, 2, v0', 'v_cmp_gt_u32 vcc, 8, v0', 's_and_saveexec_b64 s[10:11], vcc',
              'global_store_dword v1, v255, s[8:9] offset:16']
    if cfg.light3:
        P += ['s_waitcnt vmcnt(0)', 's_load_dwordx2 s[8:9], s[0:1], 40', 's_waitcnt lgkmcnt(0)',
              's_cmp_eq_u32 s2, 17', f's_cbranch_scc0 {name}_done', 's_cmp_eq_u32 s40, 0', f's_cbranch_scc0 {name}_done',
              'v_mbcnt_lo_u32_b32 v0, -1, 0', 'v_mbcnt_hi_u32_b32 v0, -1, v0', 'v_lshlrev_b32 v1, 2, v0', 'v_cmp_gt_u32 vcc, 20, v0', 's_and_saveexec_b64 s[10:11], vcc',
              'global_store_dword v1, v253, s[8:9] offset:64']
    if cfg.light2:
        P += ['s_waitcnt vmcnt(0)', 's_load_dwordx2 s[8:9], s[0:1], 40', 's_waitcnt lgkmcnt(0)',
              's_cmp_eq_u32 s2, 17', f's_cbranch_scc0 {name}_done', 's_cmp_eq_u32 s40, 0', f's_cbranch_scc0 {name}_done',
              'v_mbcnt_lo_u32_b32 v0, -1, 0', 'v_mbcnt_hi_u32_b32 v0, -1, v0', 'v_lshlrev_b32 v1, 2, v0', 'v_cmp_gt_u32 vcc, 20, v0', 's_and_saveexec_b64 s[10:11], vcc',
              'global_store_dword v1, v254, s[8:9] offset:64']
    P += [f'{name}_done:', 's_endpgm']
    P += ['.p2align 6', f'{name}_lnregs:'] + lnr + ['s_setpc_b64 s[42:43]']
    P += sub
    return P, TR

def kd(name):
    return k2.kd(name)

if __name__ == '__main__':
    import asmlib
    P, TR = gen(Cfg)
    asmlib.check(TR, 'kf')
    print(len(P))
```

```python
import sys, kf, build, asmlib
class C(kf.Cfg): pass
for a in sys.argv[2:]:
    k, val = a.split('=', 1); setattr(C, k, eval(val))
nm = getattr(C, 'kname', 'fused_kernel')
P, TR = kf.gen(C, nm); assert not asmlib.check(TR, 'kf')
build.build([(nm, P, kf.kd(nm), 256, 256, 163840 if getattr(C, 'hlds', False) else kf.LDS_BYTES)], sys.argv[1])
```

```python
import struct, math

def f2u(f): return struct.unpack('<I', struct.pack('<f', f))[0]
LOG2E = 1.4426950408889634
A1 = 2.0 * math.sqrt(2.0 / math.pi) * LOG2E
B1 = A1 * 0.044715
ALPHA = B1 ** (1.0 / 3.0)
CC = A1 / ALPHA

WS_W = 0
W_BYTES = 24 * 24576
WS_H = 1 << 20
IMG_BYTES = 384 * 384 * 192 * 2

vLds, vDma, vG = 1, 2, 3
T0 = 8
G0 = 24
S0 = 48
ACC = 96
H0, PF0, PX0, W0, I0 = 0, 72, 144, 216, 248
NB = 8
sW, sH, sX, sO = 8, 12, 16, 20
sPass, sJ, sDst, sDstSum, sSrc, sWoff, sB, sT, sT2, sNegC, sAlpha = 24, 25, 26, 27, 28, 29, 30, 31, 32, 34, 35
sB1, sRd = 36, 37
sRet = 42
sHx = 90
sLdH = 96 - 4
sSt, sLd = 44, 47
sLx, sBX = 95, 51
OOB = 0x70000000

def v(b, n=1): return f'v{b}' if n == 1 else f'v[{b}:{b+n-1}]'
def a(b, n=1): return f'a{b}' if n == 1 else f'a[{b}:{b+n-1}]'
def Sreg(buf, aa, p): return S0 + 24 * buf + 4 * (aa * 3 + p)
def Greg(buf, p): return G0 + 12 * buf + 4 * p
def acc(t, p): return ACC + 4 * (t * 3 + p)
def hreg(p, s): return H0 + 24 * p + 4 * s
def pfreg(p, s): return PF0 + 24 * p + 4 * s
def pxreg(p, s): return PX0 + 24 * p + 4 * s
MF = 'v_mfma_f32_16x16x32_bf16'

class Cfg:
    prof = False
    prof2 = False
    allwg = False
    profpass = 1
    plan = ['ssss', 'sssss', 'sssss', 'ssssh', 'hhhhh', 'hhhhh', 'hhhhh', 'hhxxx', 'xxxxx', 'xxxxx', 'xxxxx', '']
    xpos = [26, 30, 34, 38, 41]
    D = 5
    gsz = 4
    f16 = False
    warm = True
    sub = True
    hskip = False
    diag_nodma = False
    xps = 6144
    xts = 73728
    nt_h = False; nt_x = False; nt_o = False

def f2h(f):
    import numpy as np
    return int(np.float16(f).view(np.uint16))

def gelu_list16(buf, cfg):
    out = []
    grp = [(aa, p) for aa in range(2) for p in range(3)]
    for i in range(0, 6, 2):
        dw = []
        for gi, (aa, p) in enumerate(grp[i:i+2]):
            for d in range(2):
                n = (i // 2 % 2) * 8 + gi * 4 + d * 2
                u = Sreg(buf, aa, p) + 2 * d
                dw.append((u, u + 1, T0 + n, T0 + n + 1, Greg(buf, p) + 2 * aa + d))
        SD = lambda w: f'dst_sel:WORD_{w} dst_unused:UNUSED_PRESERVE src0_sel:WORD_{w}'
        for u0, u1, h, t, g in dw: out.append(f'v_cvt_pk_f16_f32 v{h}, v{u0}, v{u1}')
        for u0, u1, h, t, g in dw: out.append(f'v_pk_fma_f16 v{t}, v{h}, v{h}, s{sNegC} neg_lo:[1,0,0] neg_hi:[1,0,0]')
        for u0, u1, h, t, g in dw: out.append(f'v_pk_mul_f16 v{t}, v{t}, v{h}')
        for w in range(2):
            for u0, u1, h, t, g in dw: out.append(f'v_exp_f16_sdwa v{t}, v{t} {SD(w)}')
        for u0, u1, h, t, g in dw: out.append(f'v_pk_fma_f16 v{t}, v{t}, s{sAlpha}, s{sAlpha}')
        for w in range(2):
            for u0, u1, h, t, g in dw: out.append(f'v_rcp_f16_sdwa v{t}, v{t} {SD(w)}')
        for u0, u1, h, t, g in dw: out.append(f'v_pk_mul_f16 v{g}, v{h}, v{t}')
    return out

def gelu_list(buf, cfg):
    if cfg.f16: return gelu_list16(buf, cfg)
    out = []
    k = 0
    for aa in range(2):
        for p in range(3):
            es = [Sreg(buf, aa, p) + i for i in range(4)]
            ts = [T0 + (k % 2) * 4 + i for i in range(4)]
            k += 1
            for u, t in zip(es, ts): out.append(f'v_fma_f32 v{t}, -v{u}, v{u}, s{sNegC}')
            for u, t in zip(es, ts): out.append(f'v_mul_f32 v{t}, v{t}, v{u}')
            for u, t in zip(es, ts): out.append(f'v_exp_f32 v{t}, v{t}')
            for u, t in zip(es, ts): out.append(f'v_fma_f32 v{t}, v{t}, s{sAlpha}, s{sAlpha}')
            for u, t in zip(es, ts): out.append(f'v_rcp_f32 v{t}, v{t}')
            for u, t in zip(es, ts): out.append(f'v_mul_f32 v{t}, v{u}, v{t}')
            g = Greg(buf, p) + 2 * aa
            out.append(f'v_cvt_pk_bf16_f32 v{g}, v{ts[0]}, v{ts[1]}')
            out.append(f'v_cvt_pk_bf16_f32 v{g+1}, v{ts[2]}, v{ts[3]}')
    return out

def g1_groups(j):
    buf = (j + 1) & 1
    base = (j & 1) * 24576
    gs = []
    for s in range(6):
        for aa in range(2):
            gs.append((base + (2 * s + aa) * 1024,
                       [(lambda w, p=p, s=s, aa=aa: f'{MF} {v(Sreg(buf,aa,p),4)}, {a(w,4)}, {a(hreg(p,s),4)}, ' + ('0' if s == 0 else v(Sreg(buf,aa,p),4))) for p in range(3)]))
    return gs

MF2 = [MF]
def g2_groups(j):
    buf = (j - 1) & 1
    base = (j & 1) * 24576 + 12288
    gs = []
    for t in range(12):
        gs.append((base + t * 1024,
                   [(lambda w, p=p, t=t: f'{MF2[0]} {v(acc(t,p),4)}, {a(w,4)}, {v(Greg(buf,p),4)}, {v(acc(t,p),4)}') for p in range(3)]))
    return gs

def cost(t):
    op = t.split()[0]
    if op.startswith(('v_exp', 'v_rcp')): return 8
    return 4

def wbuf(g): return W0 + 4 * (g % NB)

def dma_block(k):
    return [f's_add_u32 m0, s{sDst}, {4096*k}', f's_add_u32 s{sT}, s{sSrc}, {4096*k}']
DTAG = ['dma']
def dma(i):
    return f'buffer_load_dwordx4 v{vDma}, s[{sW}:{sW+3}], s{sT} offen offset:{(i%4)*1024} lds ;@{DTAG[0]}'

def superstep(cfg, j0, mid=None, extra_valu=None, extra_at=None, bar_wait=None, dma_on=True, pre=None):
    D = cfg.D
    groups = g1_groups(j0) + g2_groups(j0) + g1_groups(j0 + 1) + g2_groups(j0 + 1)
    nxt = g1_groups(j0)
    out = list(pre or [])
    fifo = list(range(0, D))
    waited = 1
    fifo = [g for g in fifo if g > waited]
    vl = [gelu_list(j0 & 1, cfg), gelu_list((j0 + 1) & 1, cfg)]
    extra_at = extra_at or {}
    reads_at = {g: [] for g in range(48)}
    for g in range(48):
        r = g + D
        if r <= 46 - 0 and g < 47 - D - 1: reads_at[g].append(r)
    reads_at[47 - D - 1] = [46, 47]
    reads_at[47 - D] = []
    for k in range(D): reads_at[48 - D + k].append(48 + k)
    dma_at = {}
    if dma_on and not cfg.diag_nodma:
        for i in range(12): dma_at.setdefault(2 * i, []).append(i)
    for step in range(2):
        valu = list(vl[step])
        tot = sum(cost(t) for t in valu)
        done = 0; vi = 0
        ex = (extra_valu or {}).get(step)
        exi = 0
        for gl in range(24):
            g = step * 24 + gl
            ms = groups[g][1]
            for k, m in enumerate(ms):
                out.append(m(wbuf(g)))
                if k == 0:
                    if g == 48 - D:
                        out.append('s_waitcnt lgkmcnt(0)'); fifo = []; waited = 47
                        out += bar_wait or ['s_waitcnt vmcnt(0)']
                        out.append('s_barrier')
                        out.append(f'v_add_u32 v{vLds}, s{sRd}, v{vDma}')
                    for r in reads_at[g]:
                        off = groups[r][0] if r < 48 else nxt[r - 48][0]
                        out.append(f'ds_read_b128 {a(wbuf(r),4)}, v{vLds} offset:{off}')
                        fifo.append(r)
                    for i in dma_at.get(g, []):
                        if i % 4 == 0: out += dma_block(i // 4)
                        if i % 4 == 0: out.append('s_nop 0')
                        out.append(dma(i))
                    if g == 38:
                        out += [f's_add_u32 s{sRd}, s{sRd}, 49152', f's_cmp_eq_u32 s{sRd}, 147456', f's_cselect_b32 s{sRd}, 0, s{sRd}']
                    out += extra_at.get(g, [])
                mi = gl * 3 + k + 1
                target = tot * mi / 72.0
                while vi < len(valu) and done + cost(valu[vi]) / 2 <= target:
                    out.append(valu[vi]); done += cost(valu[vi]); vi += 1
                if mi == 72:
                    while vi < len(valu): out.append(valu[vi]); vi += 1
                if ex and ex[0] <= gl < ex[1]:
                    n = len(ex[2]); span = (ex[1] - ex[0]) * 3
                    upto = ((gl - ex[0]) * 3 + k + 1) * n // span
                    while exi < upto: out.append(ex[2][exi]); exi += 1
            if g % 2 == 1:
                needg = g + 2
                if waited < needg:
                    pend = [r for r in fifo if r > needg]
                    if len(pend) < len(fifo):
                        out.append(f's_waitcnt lgkmcnt({len(pend)})')
                    fifo = pend; waited = needg
        if step == 0 and mid: out += mid
    return out

def mid_block(cfg):
    out = []
    k = 0
    for p in range(3):
        for s in range(6):
            t = T0 + 8 + (k % 2) * 4; k += 1
            r0, r1 = acc(2 * s, p), acc(2 * s + 1, p)
            out.append(f'v_cvt_pk_bf16_f32 v{t}, v{r0}, v{r0+1}')
            out.append(f'v_cvt_pk_bf16_f32 v{t+1}, v{r0+2}, v{r0+3}')
            out.append(f'v_cvt_pk_bf16_f32 v{t+2}, v{r1}, v{r1+1}')
            out.append(f'v_cvt_pk_bf16_f32 v{t+3}, v{r1+2}, v{r1+3}')
            out.append(f'{MF} {v(acc(2*s,p),4)}, {a(I0,4)}, {a(pxreg(p,s),4)}, 0')
            out.append(f'{MF} {v(acc(2*s+1,p),4)}, {a(I0+4,4)}, {a(pxreg(p,s),4)}, 0')
            for i in range(4): out.append(f'v_accvgpr_write_b32 a{pxreg(p,s)+i}, v{t+i}')
    return out

def tail_epilogue(cfg, sbase):
    out = []
    nt = ' nt' if cfg.nt_o else ''
    k = 0
    for p in range(3):
        out.append(f's_add_u32 s{sT2}, s{sbase}, {cfg.xps*p}')
        for s in range(6):
            t = T0 + (k % 4) * 4; k += 1
            r0, r1 = acc(2 * s, p), acc(2 * s + 1, p)
            out.append(f'v_cvt_pk_bf16_f32 v{t}, v{r0}, v{r0+1}')
            out.append(f'v_cvt_pk_bf16_f32 v{t+1}, v{r0+2}, v{r0+3}')
            out.append(f'v_cvt_pk_bf16_f32 v{t+2}, v{r1}, v{r1+1}')
            out.append(f'v_cvt_pk_bf16_f32 v{t+3}, v{r1+2}, v{r1+3}')
            out.append(f'buffer_store_dwordx4 {v(t,4)}, v{vG}, s[{sO}:{sO+3}], s{sT2} offen offset:{64*s}{nt}')
    return out

def st_op(cfg, i):
    p, s = divmod(i, 6)
    return f'buffer_store_dwordx4 {a(pxreg(p,s),4)}, v{vG}, s[{sO}:{sO+3}], s{sSt+p} offen offset:{64*s}' + (' nt' if cfg.nt_o else '') + ' ;@st'
def h_op(cfg, i):
    p, s = divmod(i, 6)
    so, im = (sLd + p, 1024 * s) if s < 4 else (sLdH + p, 1024 * (s - 4))
    ld = f'buffer_load_dwordx4 {a(pfreg(p,s),4)}, v{vDma}, s[{sH}:{sH+3}], s{so} offen offset:{im}' + (' nt' if cfg.nt_h else '') + ' ;@h'
    if cfg.hskip: return f's_mov_b64 exec, s[{sHx}:{sHx+1}]\n' + ld + '\ns_mov_b64 exec, -1'
    return ld
def x_op(cfg, i):
    p, s = divmod(i, 6)
    return f'buffer_load_dwordx4 {a(pxreg(p,s),4)}, v{vG}, s[{sX}:{sX+3}], s{sLx+p} offen offset:{64*s}' + (' nt' if cfg.nt_x else '') + ' ;@x'

def resolve_vm(seq_prev, seq, optional=()):
    def isvm(t):
        o = t.split()[0] if t.split() else ''
        return o.startswith(('buffer_load', 'buffer_store'))
    def tag(t):
        if ';@' in t: return t.split(';@')[1].strip()
        return 'dma' if ' lds' in t else '?'
    fifo = []
    res = None
    for rnd, sq in enumerate((seq_prev, seq)):
        out = []
        for t in sq:
            if t.startswith('WAITVM:'):
                tg = t.split(':')[1]
                idx = [i for i, x in enumerate(fifo) if x == tg]
                if idx:
                    younger = fifo[idx[-1] + 1:]
                    n = sum(1 for x in younger if x not in optional)
                    out.append(f's_waitcnt vmcnt({n})')
                    keep = []; c = 0
                    for x in reversed(fifo):
                        if c >= n: break
                        keep.append(x)
                        if x not in optional: c += 1
                    fifo = keep[::-1]
                continue
            if isvm(t): fifo.append(tag(t))
            assert len(fifo) <= 63, 'too many outstanding'
            out.append(t)
        res = out
    return res

def tile_loads(srd, dst0, soff_base_instrs, nt):
    out = []
    for p in range(3):
        out += soff_base_instrs(p)
        for s in range(6):
            out.append(f'buffer_load_dwordx4 {a(dst0 + 24*p + 4*s, 4)}, v{vG}, s[{srd}:{srd+3}], s{sT2} offen offset:{64*s}' + (' nt' if nt else ''))
    return out

def soff(base, add):
    def f(p):
        return [f's_add_u32 s{sT2}, s{base}, {add + 6144*p}']
    return f

def stamp(cfg, k):
    if not cfg.prof: return []
    b = 52 + 4 * k
    return [f's_memtime s[{b}:{b+1}]', f's_memrealtime s[{b+2}:{b+3}]']

_cs=[0]
def cstamp(cfg, k, cond=None):
    if not cfg.prof2: return []
    _cs[0]+=1; lab=f'mlp_cs{_cs[0]}'
    out=[f's_cmp_eq_u32 s{sPass}, {cfg.profpass}', f's_cbranch_scc0 {lab}']
    if cond: out+=[f's_cmp_eq_u32 s{cond[0]}, {cond[1]}', f's_cbranch_scc0 {lab}']
    out+=[f's_memtime s[{52+2*k}:{53+2*k}]', f'{lab}:']
    return out

def dump_stamps2(cfg, n):
    if not cfg.prof2: return []
    out = ['s_waitcnt lgkmcnt(0)', 's_load_dwordx2 s[42:43], s[0:1], 40', 's_waitcnt lgkmcnt(0)',
           's_mov_b32 s44, s42', 's_mov_b32 s45, s43', 's_mov_b32 s46, 256', 's_mov_b32 s47, 0x20000',
           's_cmp_lg_u32 s2, 17', 's_cbranch_scc1 mlp_nodump', 's_cmp_lg_u32 s40, 0', 's_cbranch_scc1 mlp_nodump',
           'v_mov_b32 v4, 0']
    for k in range(n):
        out += [f'v_mov_b32 v5, s{52+2*k}', f'buffer_store_dword v5, v4, s[44:47], 0 offen offset:{4*k}']
    out += ['mlp_nodump:']
    return out

def dump_stamps(cfg, n):
    if not cfg.prof: return []
    out = ['s_waitcnt lgkmcnt(0)', 's_load_dwordx2 s[42:43], s[0:1], 40', 's_waitcnt lgkmcnt(0)',
           's_mov_b32 s44, s42', 's_mov_b32 s45, s43', 's_mov_b32 s46, 256', 's_mov_b32 s47, 0x20000',
           's_cmp_lg_u32 s2, PROFWG', 's_cbranch_scc1 mlp_nodump', 's_cmp_lg_u32 s40, 0', 's_cbranch_scc1 mlp_nodump',
           'v_mov_b32 v4, 0']
    for k in range(n):
        b = 52 + 4 * k
        out += [f'v_mov_b32 v5, s{b}', f'buffer_store_dword v5, v4, s[44:47], 0 offen offset:{8*k}',
                f'v_mov_b32 v6, s{b+2}', f'buffer_store_dword v6, v4, s[44:47], 0 offen offset:{8*k+4}']
    out += ['mlp_nodump:']
    return [o.replace('PROFWG', '17') for o in out]

def ident_setup():
    return [
        f'v_lshlrev_b32 v{vDma}, 4, v0',
        f'v_mov_b32 v{vLds}, v{vDma}',
        f'v_and_b32 v4, 15, v0',
        f'v_lshrrev_b32 v5, 4, v0',
        f'v_mul_u32_u24 v{vG}, 384, v4',
        f'v_lshl_add_u32 v{vG}, v5, 4, v{vG}',
        f'v_lshrrev_b32 v6, 2, v4',
        f'v_cmp_eq_u32 vcc, v6, v5',
        f'v_and_b32 v6, 1, v4',
        f'v_lshlrev_b32 v6, 4, v6',
        f'v_mov_b32 v7, 0x3f80',
        f'v_lshlrev_b32 v7, v6, v7',
        f'v_cndmask_b32 v7, 0, v7, vcc',
        f'v_and_b32 v6, 2, v4',
        f'v_cmp_eq_u32 vcc, 0, v6',
        's_nop 1',
        f'v_cndmask_b32 v8, 0, v7, vcc',
        f'v_sub_u32 v9, v7, v8',
        f'v_mov_b32 v10, 0',
        f'v_accvgpr_write_b32 a{I0}, v8', f'v_accvgpr_write_b32 a{I0+1}, v9',
        f'v_accvgpr_write_b32 a{I0+2}, v10', f'v_accvgpr_write_b32 a{I0+3}, v10',
        f'v_accvgpr_write_b32 a{I0+4}, v10', f'v_accvgpr_write_b32 a{I0+5}, v10',
        f'v_accvgpr_write_b32 a{I0+6}, v8', f'v_accvgpr_write_b32 a{I0+7}, v9']

def gelu_consts(cfg):
    return [f's_mov_b32 s{sNegC}, {hex(f2u(-CC) if not cfg.f16 else f2h(-CC) * 0x10001)}',
            f's_mov_b32 s{sAlpha}, {hex(f2u(ALPHA) if not cfg.f16 else f2h(ALPHA) * 0x10001)}']

def m_first_dma(cfg):
    a1 = [f's_mul_i32 s41, s40, 3072', f's_add_u32 m0, s41, {98304+24576}', f's_add_u32 s{sT}, s41, {23*24576}']
    a1 += [f'buffer_load_dwordx4 v{vDma}, s[{sW}:{sW+3}], s{sT} offen offset:{i*1024} lds' for i in range(3)]
    a2 = []
    for sl in range(2):
        a2 += [f's_add_u32 s{sDst}, s{sWoff}, {49152*sl}', f's_add_u32 s{sSrc}, s{sWoff}, {49152*sl}']
        for k_ in range(3): a2 += dma_block(k_) + ['s_nop 0'] + [dma(4 * k_ + i).split(' ;@')[0] for i in range(4)]
    nwarm = 0
    if cfg.warm:
        a2 += [f's_lshr_b32 s41, s2, 3', f's_and_b32 s41, s41, 31', f's_mul_i32 s41, s41, 18432', f's_mul_i32 s3, s40, 5120', f's_add_u32 s41, s41, s3']
        for i in range(5):
            if i == 4: a2 += [f's_add_u32 s41, s41, 4096']
            a2 += [f'buffer_load_dwordx4 {a(PF0 + 4*i, 4)}, v{vDma}, s[{sW}:{sW+3}], s41 offen offset:{1024*(i%4)}']
        nwarm = 5
    a2 += [f's_add_u32 s{sDst}, s{sWoff}, 98304', f's_add_u32 s{sDstSum}, s{sWoff}, 147456',
           f's_add_u32 s{sSrc}, s{sWoff}, 98304', f's_mov_b32 s{sRd}, 0', f's_mov_b32 s{sPass}, 0']
    return a1, a2, 12 + nwarm

def m_second_dma(cfg, warm_dst):
    a2 = [f's_add_u32 s{sDst}, s{sWoff}, 49152', f's_add_u32 s{sSrc}, s{sWoff}, 49152']
    for k_ in range(3): a2 += dma_block(k_) + ['s_nop 0'] + [dma(4 * k_ + i).split(' ;@')[0] for i in range(4)]
    if cfg.warm:
        a2 += [f's_lshr_b32 s41, s2, 3', f's_and_b32 s41, s41, 31', f's_mul_i32 s41, s41, 18432', f's_mul_i32 s3, s40, 5120', f's_add_u32 s41, s41, s3']
        for i in range(5):
            if i == 4: a2 += [f's_add_u32 s41, s41, 4096']
            a2 += [f'buffer_load_dwordx4 {a(warm_dst + 4*i, 4)}, v{vDma}, s[{sW}:{sW+3}], s41 offen offset:{1024*(i%4)}']
    a2 += [f's_add_u32 s{sDst}, s{sWoff}, 98304', f's_add_u32 s{sDstSum}, s{sWoff}, 147456',
           f's_add_u32 s{sSrc}, s{sWoff}, 98304', f's_mov_b32 s{sRd}, 0', f's_mov_b32 s{sPass}, 0']
    return a2

def x_first_loads(cfg):
    out = []
    for p in range(3):
        out.append(f's_add_u32 s{sT2}, s{sBX}, {cfg.xps*p}')
        for s in range(6):
            out.append(f'buffer_load_dwordx4 {a(pxreg(p,s), 4)}, v{vG}, s[{sX}:{sX+3}], s{sT2} offen offset:{64*s}' + (' nt' if cfg.nt_x else ''))
    return out

def m_g1_first(cfg, early=False):
    D = cfg.D
    g1 = g1_groups(-1)
    if early: g1 = [(off - 12288, ms) for off, ms in g1]
    lst = [f'v_add_u32 v4, {0 if early else 98304}, v{vLds}']
    for g in range(6):
        lst.append(f'ds_read_b128 {a(wbuf(g),4)}, v4 offset:{g1[g][0]}')
    for g in range(12):
        if g % 2 == 0: lst.append(f's_waitcnt lgkmcnt({min(4, 10 - g) if g < 10 else 0})' if g <= 6 else f's_waitcnt lgkmcnt({max(0, 10 - g)})')
        for m in g1[g][1]: lst.append(m(wbuf(g)))
        if g + 6 < 12: lst.append(f'ds_read_b128 {a(wbuf(g+6),4)}, v4 offset:{g1[g+6][0]}')
    lst += ['s_waitcnt lgkmcnt(0)'] + ([] if early else ['s_barrier'])
    nxt = g1_groups(0)
    for g in range(D): lst.append(f'ds_read_b128 {a(wbuf(g),4)}, v{vLds} offset:{nxt[g][0]}')
    lst.append(f's_waitcnt lgkmcnt({D-2})')
    return lst

def m_main(cfg, L):
    P = []
    adv = [f's_add_u32 s{sDst}, s{sDst}, 49152', f's_cmp_ge_u32 s{sDst}, s{sDstSum}', f's_cselect_b32 s{sT}, 147456, 0', f's_sub_u32 s{sDst}, s{sDst}, s{sT}',
           f's_add_u32 s{sSrc}, s{sSrc}, 49152',
           f's_cmp_ge_u32 s{sSrc}, {W_BYTES}',
           f's_cselect_b32 s{sT}, {W_BYTES}, 0',
           f's_sub_u32 s{sSrc}, s{sSrc}, s{sT}']
    st = [st_op(cfg, i) for i in range(18)]
    hl = [h_op(cfg, i) for i in range(18)]
    xl = [x_op(cfg, i) for i in range(18)]
    pools = {'s': st, 'h': hl, 'x': xl}
    extras = [[pools[ch].pop(0).split('\n') for ch in cfg.plan[J]] for J in range(12)]
    assert not st and not hl and not xl
    assert all(len(extras[J]) == 5 for J in range(1, 11)) and not extras[11]
    setup = [f's_cmp_eq_u32 s{sPass}, 0'] + ([f's_cselect_b64 s[{sHx}:{sHx+1}], 0, -1'] if cfg.hskip else []) + [
             f's_cselect_b32 s{sSt}, {hex(OOB)}, s{sB1}',
             f's_add_u32 s{sSt+1}, s{sSt}, {cfg.xps}', f's_add_u32 s{sSt+2}, s{sSt}, {2*cfg.xps}',
             f's_add_u32 s{sLd}, s{sB}, 73728', f's_add_u32 s{sLx}, s{sBX}, {cfg.xts}',
             f's_cmp_eq_u32 s{sPass}, 2',
             f's_cselect_b32 s{sLd}, {hex(OOB)}, s{sLd}', f's_cselect_b32 s{sLx}, {hex(OOB)}, s{sLx}',
             f's_add_u32 s{sLd+1}, s{sLd}, 6144', f's_add_u32 s{sLd+2}, s{sLd}, 12288',
             f's_add_u32 s{sLx+1}, s{sLx}, {cfg.xps}', f's_add_u32 s{sLx+2}, s{sLx}, {2*cfg.xps}',
             f's_add_u32 s{sLdH}, s{sLd}, 4096', f's_add_u32 s{sLdH+1}, s{sLd+1}, 4096', f's_add_u32 s{sLdH+2}, s{sLd+2}, 4096']
    moves = [f'v_accvgpr_mov_b32 a{H0+i}, a{PF0+i}' for i in range(72)]
    parts = []
    for J in range(12):
        DTAG[0] = f'd{J}'
        ea = {47: list(adv)}
        kw = dict(extra_at=ea, bar_wait=[f'WAITVM:d{(J-1)%12}'])
        pre = cstamp(cfg, J)
        if J == 0:
            for k_, op in enumerate(extras[0]): ea.setdefault(cfg.xpos[k_], []).extend(op)
            kw['mid'] = ['WAITVM:x', 's_waitcnt vmcnt(12)' if not cfg.diag_nodma else 's_waitcnt vmcnt(0)'] + mid_block(cfg)
            pre = pre + setup
        elif J <= 10:
            if cfg.sub: pre = pre + sum(extras[J], [])
            else:
                for k_, op in enumerate(extras[J]): ea.setdefault(cfg.xpos[k_], []).extend(op)
        if J == 11:
            kw['extra_valu'] = {0: (13, 24, moves)}
            ea.setdefault(12, []).append('WAITVM:h')
        parts.append((pre, superstep(cfg, 2 * J, **kw)))
    DTAG[0] = 'dma'
    endp = cstamp(cfg, 12) + [f's_mov_b32 s{sB1}, s{sBX}', f's_add_u32 s{sB}, s{sB}, 73728', f's_add_u32 s{sBX}, s{sBX}, {cfg.xts}', f's_add_u32 s{sPass}, s{sPass}, 1']
    seq = []
    for J, (pre, body) in enumerate(parts): seq += pre + [f';BEGIN{J}'] + body + [f';END{J}']
    seq += endp
    res = resolve_vm(seq, seq, ('h',) if cfg.hskip else ())
    def part(J):
        i0 = res.index(f';BEGIN{J}'); i1 = res.index(f';END{J}')
        return res[i0 + 1:i1]
    strip = lambda l: [x.split(' ;@')[0] for x in l]
    bodies = [strip(part(J)) for J in range(12)]
    def barwait(b):
        i = b.index('s_barrier'); return i - 1, int(b[i - 1].split('(')[1][:-1])
    if cfg.diag_nodma: assert not cfg.sub
    if cfg.sub:
        ns = [barwait(bodies[J])[1] for J in range(1, 11)]
        nmin = min(ns)
        gen_body = list(bodies[2]); gen_body[barwait(gen_body)[0]] = f's_waitcnt vmcnt({nmin})'
        for J in range(1, 11):
            b = list(bodies[J]); b[barwait(b)[0]] = f's_waitcnt vmcnt({nmin})'
            assert b == gen_body, J
    P += ['.p2align 6', f'{L}_pass:']
    trace = []
    for J in range(12):
        pre = strip(parts[J][0])
        if 1 <= J <= 10 and cfg.sub:
            P += pre + [f's_call_b64 s[{sRet}:{sRet+1}], {L}_body']
            trace += [x for x in pre if not x.endswith(':')] + gen_body
        else:
            b = bodies[J]
            P += pre + b
            trace += [x for x in pre if not x.endswith(':')] + b
    P += endp; trace += endp
    P += [f's_cmp_lt_u32 s{sPass}, 3', f's_cbranch_scc1 {L}_pass']
    tail = ['s_waitcnt lgkmcnt(0)']
    g2 = g2_groups(24)
    for g in range(6): tail.append(f'ds_read_b128 {a(wbuf(g),4)}, v{vLds} offset:{g2[g][0]}')
    for g in range(12):
        if g % 2 == 0: tail.append(f's_waitcnt lgkmcnt({4 if g <= 6 else max(0, 10 - g)})')
        for m in g2[g][1]: tail.append(m(wbuf(g)))
        if g + 6 < 12: tail.append(f'ds_read_b128 {a(wbuf(g+6),4)}, v{vLds} offset:{g2[g+6][0]}')
    tail += ['s_nop 7']
    tail += tail_epilogue(cfg, sB1)
    P += stamp(cfg, 4)
    P += tail
    P += stamp(cfg, 5)
    sub = (['.p2align 6', f'{L}_body:'] + gen_body + [f's_setpc_b64 s[{sRet}:{sRet+1}]']) if cfg.sub else []
    return P, sub, trace + trace + tail

def gen(cfg, name='mlp_kernel'):
    MF2[0] = 'v_mfma_f32_16x16x32_f16' if cfg.f16 else MF
    P = []; TR = []
    def emit(lst, trace=True):
        P.extend(lst)
        if trace: TR.extend(lst)
    emit(['s_cmp_ge_u32 s2, 256', f's_cbranch_scc1 {name}_done',
          's_load_dwordx2 s[4:5], s[0:1], 0',
          's_load_dwordx2 s[6:7], s[0:1], 32',
          's_load_dwordx2 s[38:39], s[0:1], 48',
          'v_lshrrev_b32 v4, 6, v0', 'v_and_b32 v0, 63, v0', 's_nop 0', 'v_readfirstlane_b32 s40, v4'])
    emit(gelu_consts(cfg) + ident_setup())
    emit(['s_waitcnt lgkmcnt(0)',
        f's_add_u32 s{sW}, s38, {WS_W}', f's_addc_u32 s{sW+1}, s39, 0', f's_mov_b32 s{sW+2}, {W_BYTES}', f's_mov_b32 s{sW+3}, 0x20000',
        f's_add_u32 s{sH}, s38, {WS_H}', f's_addc_u32 s{sH+1}, s39, 0', f's_mov_b32 s{sH+2}, {IMG_BYTES}', f's_mov_b32 s{sH+3}, 0x20000',
        f's_mov_b32 s{sX}, s4', f's_mov_b32 s{sX+1}, s5', f's_mov_b32 s{sX+2}, {IMG_BYTES}', f's_mov_b32 s{sX+3}, 0x20000',
        f's_mov_b32 s{sO}, s6', f's_mov_b32 s{sO+1}, s7', f's_mov_b32 s{sO+2}, {IMG_BYTES}', f's_mov_b32 s{sO+3}, 0x20000',
        f's_mul_i32 s{sB}, s2, {36*6144}', f's_mul_i32 s41, s40, {3*6144}', f's_add_u32 s{sB}, s{sB}, s41', f's_mov_b32 s{sBX}, s{sB}',
        f's_mul_i32 s{sWoff}, s40, 12288'])
    if cfg.prof or cfg.prof2: P.extend([f's_mov_b32 s{i}, 0' for i in range(52, 92)])
    P.extend(stamp(cfg, 0))
    a1, a2, nafter = m_first_dma(cfg)
    emit(a1)
    for p in range(3):
        emit([f's_add_u32 s{sT2}, s{sB}, {6144*p}'])
        for s_ in range(6):
            if s_ == 4: emit([f's_add_u32 s{sT2}, s{sT2}, 4096'])
            emit([f'buffer_load_dwordx4 {a(H0 + 24*p + 4*s_, 4)}, v{vDma}, s[{sH}:{sH+3}], s{sT2} offen offset:{1024*(s_ % 4)}' + (' nt' if cfg.nt_h else '')])
    emit(a2)
    emit([f's_waitcnt vmcnt({nafter})', 's_barrier'])
    emit(x_first_loads(cfg))
    emit(m_g1_first(cfg))
    P.extend(stamp(cfg, 1))
    mp, sub, tr = m_main(cfg, name)
    P += mp; TR += tr
    P += dump_stamps(cfg, 6)
    P += dump_stamps2(cfg, 13)
    if cfg.allwg:
        P = P[:2] + ['s_memrealtime s[98:99]'] + P[2:]
        P += ['s_waitcnt vmcnt(0)', 's_memrealtime s[82:83]', 's_cmp_eq_u32 s40, 0', f's_cbranch_scc0 {name}_done',
              's_waitcnt lgkmcnt(0)', 's_lshl_b32 s3, s2, 3', f's_add_u32 s3, s3, {(200 << 20) + 4096}',
              'v_mov_b32 v4, s98', 'v_mov_b32 v5, s3', 's_nop 1', 'global_store_dword v5, v4, s[38:39]',
              'v_mov_b32 v4, s82', 's_nop 1', 'global_store_dword v5, v4, s[38:39] offset:4']
    P += [f'{name}_done:', 's_endpgm']
    P += sub
    return P, TR

def kd(name, lds=0):
    return f'''.amdhsa_kernel {name}
  .amdhsa_next_free_vgpr 512
  .amdhsa_next_free_sgpr 102
  .amdhsa_accum_offset 256
  .amdhsa_group_segment_fixed_size 0
  .amdhsa_kernarg_size 56
  .amdhsa_user_sgpr_count 2
  .amdhsa_user_sgpr_kernarg_segment_ptr 1
  .amdhsa_system_sgpr_workgroup_id_x 1
  .amdhsa_float_denorm_mode_32 3
.end_amdhsa_kernel
'''
if __name__ == '__main__':
    import asmlib
    P, TR = gen(Cfg)
    asmlib.check(TR, 'k2')
    print(len(P), 'lines', 'alpha', ALPHA, 'c', CC)
```

```python
import k2
from k2 import f2u, ALPHA, WS_W, WS_H, W_BYTES, IMG_BYTES

REC = 544
NBLK = 99
SLAB = NBLK * REC
YB = 2 * SLAB
LDS_BYTES = YB + 2 * 24576
TAPS, ROWS = 400, 2848
DWB = YB + ROWS + TAPS

vO16 = 0
vP = 1
vL16 = 2
vZ = 3
vRel = 4
vLw, vLw3, vRd, vY0, vR0, vR1, vA, vB = 8, 9, 10, 11, 12, 13, 14, 15
STS = (16, 80)
ACC = 144
TMP = 160
Y0 = 168
VO = 240
BLK = 0
CW = 144
sM, sH, sX, sD = 8, 12, 16, 20
sBase, sIMG, sT, sT2, sSelL, sDS, sDY, sOutN, sTI = 28, 30, 31, 32, 33, 34, 35, 36, 37
sWave, sSelH, sPkF, sPkf = 40, 41, 42, 43
sMaskL, sMaskR = 44, 60
sSt3 = 76
sOnes, sAl, sEps, sInv, sOut = 92, 93, 94, 95, 96
sDbg = 4
sMk3 = 100
NPACK = 576
NPKWG = 72
STAMP0 = 82

def v(b, n=1): return f'v{b}' if n == 1 else f'v[{b}:{b+n-1}]'
def a(b, n=1): return f'a{b}' if n == 1 else f'a[{b}:{b+n-1}]'
def Wt(k, R, C): return CW + 32 * k + 2 * (4 * R + C)
def blk(row, bc): return BLK + 10 * (row % 4) + 2 * bc
def Y(p, s): return Y0 + 24 * p + 4 * s
M4 = 'v_mfma_f32_4x4x4_16b_bf16'
FULL = (1 << 64) - 1

class Cfg(k2.Cfg):
    f16 = True
    nt_h = True; nt_x = True; nt_o = True
    cx_nt = False
    st_flags = ' nt'
    xps = 147456
    xts = 49152
    light = False
    light2 = False
    light3 = False
    exact_vm = True
    touch = False
    l2tile = 0
    diag_nox = False
    htouch = False
    diag_nost = False
    l3sel = [0, 1, 2, 3, 4]
    early = True
    hskip = True
    spin = 1 << 14
    nosync = False

def setexec(out, cur, val):
    if cur[0] != val:
        out.append(f's_mov_b32 exec_lo, {hex(val & 0xffffffff)}')
        out.append(f's_mov_b32 exec_hi, {hex(val >> 32)}')
        cur[0] = val

def weights_gather(vb):
    out = []
    cur = [FULL]
    rowm = lambda r: 0x3333333333333333 if r == 0 else (0xCCCCCCCCCCCCCCCC if r == 7 else FULL)
    colm = lambda c: 0x5555555555555555 if c == 0 else (0xAAAAAAAAAAAAAAAA if c == 7 else FULL)
    for k in range(3):
        for Rh in range(2):
            items = [(R, dy, c) for R in (2 * Rh, 2 * Rh + 1) for dy in range(2) for c in range(4)]
            for i, (R, dy, c) in enumerate(items):
                for dx in range(2):
                    if rowm(2 * R + dy) & colm(2 * c + dx) != FULL: out.append(f'v_mov_b32 v{Y0+2*i+dx}, 0')
            rd = []
            for i, (R, dy, c) in enumerate(items):
                for dx in range(2):
                    rho, gam = 2 * R + dy, 2 * c + dx
                    rd.append((rowm(rho) & colm(gam), f'ds_read_u16 v{Y0+2*i+dx}, v{vb} offset:{rho*ROWS + gam*TAPS + 128*k}'))
            rd.sort(key=lambda x: -x[0])
            for m, t in rd:
                setexec(out, cur, m); out.append(t)
            setexec(out, cur, FULL)
            out.append('s_waitcnt lgkmcnt(0)')
            for i, (R, dy, c) in enumerate(items): out.append(f'v_lshl_or_b32 v{Y0+2*i}, v{Y0+2*i+1}, 16, v{Y0+2*i}')
            for i, (R, dy, c) in enumerate(items): out.append(f'v_accvgpr_write_b32 a{Wt(k,R,c)+dy}, v{Y0+2*i}')
    return out

def vo(r, dy, dx): return VO + 4 * r + 2 * dy + dx
def tile_offsets():
    out = []
    for dx in range(2):
        for r in range(4):
            l, rr = sMaskL + 2 * (2 * r + dx), sMaskR + 2 * (2 * r + dx)
            out += [f's_mov_b64 s[24:25], -1' if r < 3 else f's_or_b64 s[24:25], s[{l}:{l+1}], s[{rr}:{rr+1}]',
                    f's_cmp_eq_u32 s27, 0', f's_cselect_b64 s[24:25], s[{l}:{l+1}], s[24:25]',
                    f's_cmp_eq_u32 s27, 23', f's_cselect_b64 s[24:25], s[{rr}:{rr+1}], s[24:25]']
            for dy in range(2):
                t = vo(r, dy, dx)
                out += [f's_add_u32 s26, s{sBase}, {147456*dy + 384*dx}', f'v_add_u32 v{t}, s26, v{vRel+r}', f'v_cmp_gt_u32 vcc, s{sIMG}, v{t}',
                        f's_and_b64 vcc, vcc, s[24:25]', f'v_cndmask_b32 v{t}, 2.0, v{t}, vcc']
    return out
def load_items(cfg, stage, sset):
    nt = ' nt' if cfg.cx_nt else ''
    its = []
    for r in range(4):
        for dy in range(2):
            for dx in range(2):
                its.append([f'buffer_load_dwordx4 {v(STS[sset] + 16 * r + 4 * (2 * dy + dx), 4)}, v{vo(r,dy,dx)}, s[{sX}:{sX+3}], 0 offen offset:{128*stage}{nt} ;@l{r}'])
    return its
def store_items(cfg, k):
    its = []
    for p in range(3):
        for s in (2 * k, 2 * k + 1):
            so, im = (sSt3 + p, 1024 * s) if s < 4 else (sSt3 + 3 + p, 1024 * (s - 4))
            its.append([f'buffer_store_dwordx4 {v(Y(p,s),4)}, v{vL16}, s[{sH}:{sH+3}], s{so} offen offset:{im}{cfg.st_flags} ;@s'])
    return its

def transpose_unit(r, d, sset):
    L = lambda dy, dx: STS[sset] + 16 * r + 4 * (2 * dy + dx) + d
    t = TMP
    base, off = (vLw, 32 * REC * r) if r < 3 else (vLw3, 0)
    out = [f'v_xad_u32 v{vA}, v{vO16}, {16*d}, v{base}',
           f'v_perm_b32 v{t}, v{L(0,1)}, v{L(0,0)}, s{sSelL}',
           f'v_perm_b32 v{t+1}, v{L(1,1)}, v{L(1,0)}, s{sSelL}',
           f'v_perm_b32 v{t+2}, v{L(0,1)}, v{L(0,0)}, s{sSelH}',
           f'v_perm_b32 v{t+3}, v{L(1,1)}, v{L(1,0)}, s{sSelH}']
    if r == 3: out.append(f's_mov_b64 exec, s[{sMk3}:{sMk3+1}]')
    out.append(f'ds_write_b128 v{vA}, {v(t,4)} offset:{off + 128*d}')
    if r == 3: out.append('s_mov_b64 exec, -1')
    return out

def yout(py):
    out = []
    a0 = ACC + 8 * (py & 1); a1 = a0 + 4
    t = TMP + 4
    for oy in range(2):
        out.append(f'v_cvt_pk_bf16_f32 v{t+2*oy}, v{a0+2*oy}, v{a0+2*oy+1}')
        out.append(f'v_cvt_pk_bf16_f32 v{t+2*oy+1}, v{a1+2*oy}, v{a1+2*oy+1}')
        out.append(f'ds_write_b64 v{vY0}, {v(t+2*oy,2)} offset:{(2*py+oy)*2048}')
    return out

def row_reads(br):
    return [f'ds_read_b64 {a(blk(br,bc),2)}, v{vRd} offset:{(br*11+bc)*REC}' for bc in range(5)]

def conv_stage(k, sset, items, stores, transp=True):
    out = []
    fifo = []
    def emit_lds(t, tag): out.append(t); fifo.append(tag)
    def need(tag):
        idx = [i for i, x in enumerate(fifo) if x == tag]
        if idx:
            n = len(fifo) - 1 - idx[-1]
            out.append(f's_waitcnt lgkmcnt({min(n,15)})')
            del fifo[:idx[-1] + 1]
    tagof = lambda t: ('w' if t.startswith('ds_') else None)
    for br in range(4):
        for t in row_reads(br): emit_lds(t, ('row', br))
    if transp:
        out.append('WAITL:0')
        for t in transpose_unit(0, 0, sset):
            if tagof(t): emit_lds(t, 'w')
            else: out.append(t)
    fill = {(py, i): [] for py in range(6) for i in range(16)}
    for py in range(6):
        if py > 0:
            for t, p_ in zip(yout(py - 1), [2, 2, 3, 4, 4, 5]): fill[(py, p_)].append((t, tagof(t)))
        if py + 4 <= 8:
            for i, t in enumerate(row_reads(py + 4)): fill[(py, 7 + i)].append((t, ('row', py + 4)))
    upos = {0: [None, (0, 1), (0, 3), (0, 5)], 1: [(1, 6), (1, 8), (1, 12), (1, 14)], 2: [(2, 6), (2, 8), (2, 12), (2, 14)], 3: [(3, 6), (3, 8), (3, 12), (3, 14)]}
    lpos = {0: [(0, 12), (0, 14), (1, 0), (1, 1)], 1: [(1, 15), (2, 0), (2, 1), (2, 5)], 2: [(2, 15), (3, 0), (3, 1), (3, 5)], 3: [(3, 15), (4, 0), (4, 1), (4, 6)]}
    spos = [(0, 7), (0, 10), (4, 8), (4, 12), (5, 0), (5, 6)]
    for r in range(4):
        if transp:
            if r > 0: fill[upos[r][0]].append((f'WAITL:{r}', None))
            for d in range(4):
                if upos[r][d] is None: continue
                for t in transpose_unit(r, d, sset): fill[upos[r][d]].append((t, tagof(t)))
        for i in range(4):
            if 4 * r + i < len(items):
                for t in items[4 * r + i]: fill[lpos[r][i]].append((t, None))
    for it, pos in zip(stores, spos):
        for t in it: fill[pos].append((t, None))
    for py in range(6):
        for idx in range(16):
            R, C = divmod(idx, 4)
            if C == 0: need(('row', py + R))
            for px in range(2):
                aa = ACC + 8 * (py & 1) + 4 * px
                c = '0' if idx == 0 else v(aa, 4)
                out.append(f'{M4} {v(aa,4)}, {a(Wt(k,R,C),2)}, {a(blk(py+R, px+C),2)}, {c}')
            if fill[(py, idx)]:
                for t, tag in fill[(py, idx)]:
                    if tag: emit_lds(t, tag)
                    else: out.append(t)
            else:
                nxt_has_wait = (idx % 4 == 3) and idx < 15 and any(x == ('row', py + R + 1) for x in fifo)
                if not nxt_has_wait: out.append('s_nop 0')
    out += ['s_nop 4'] + yout(5)
    return out

def resolve_l(stages):
    seq = []
    for si in range(3):
        for st in stages: seq.append(st)
    fifo = []
    need = {r: [] for r in range(4)}
    for si, st in enumerate(seq):
        for t in st:
            if t.startswith('WAITL:'):
                r = int(t[6:])
                if si >= 2:
                    idx = max(i for i, x in enumerate(fifo) if x == (si - 2, f'l{r}'))
                    need[r].append(len(fifo) - 1 - idx)
            elif ';@' in t: fifo.append((si, t.split(';@')[1].strip()))
    return {r: min(x) for r, x in need.items()}

def ln_block(cfg):
    NP = 3
    out = []
    t = ACC
    s1 = [t + p for p in range(NP)]; s2 = [t + 3 + p for p in range(NP)]
    for i in range(24):
        for p in range(NP):
            r = Y0 + 24 * p + i
            c1 = '0' if i == 0 else f'v{s1[p]}'; c2 = '0' if i == 0 else f'v{s2[p]}'
            out.append(f'v_dot2_f32_bf16 v{s1[p]}, v{r}, s{sOnes}, {c1}')
            out.append(f'v_dot2_f32_bf16 v{s2[p]}, v{r}, v{r}, {c2}')
    out.append('s_nop 2')
    allr = s1 + s2
    tm = [t + 12 + i for i in range(len(allr))]
    for sw in ('v_permlane16_swap_b32', 'v_permlane32_swap_b32'):
        for r, q in zip(allr, tm): out.append(f'v_mov_b32 v{q}, v{r}')
        out.append('s_nop 1')
        for r, q in zip(allr, tm): out.append(f'{sw} v{q}, v{r}')
        out.append('s_nop 1')
        for r, q in zip(allr, tm): out.append(f'v_add_f32 v{r}, v{r}, v{q}')
    rs = [t + 6 + p for p in range(NP)]; nb = [t + 9 + p for p in range(NP)]
    for p in range(NP): out.append(f'v_mul_f32 v{s1[p]}, s{sInv}, v{s1[p]}')
    for p in range(NP): out.append(f'v_mul_f32 v{s2[p]}, s{sInv}, v{s2[p]}')
    for p in range(NP): out.append(f'v_fma_f32 v{s2[p]}, -v{s1[p]}, v{s1[p]}, v{s2[p]}')
    for p in range(NP): out.append(f'v_max_f32 v{s2[p]}, 0, v{s2[p]}')
    for p in range(NP): out.append(f'v_add_f32 v{s2[p]}, s{sEps}, v{s2[p]}')
    for p in range(NP): out.append(f'v_rsq_f32 v{rs[p]}, v{s2[p]}')
    out.append('s_nop 0')
    for p in range(NP): out.append(f'v_mul_f32 v{rs[p]}, s{sAl}, v{rs[p]}')
    for p in range(NP): out.append(f'v_mul_f32 v{nb[p]}, -v{s1[p]}, v{rs[p]}')
    k = 0
    for p in range(NP):
        for s in range(6):
            for d in range(4):
                r = Y(p, s) + d
                x0, x1 = t + 12 + 2 * (k % 4), t + 13 + 2 * (k % 4); k += 1
                out.append(f'v_lshlrev_b32 v{x0}, 16, v{r}')
                out.append(f'v_and_b32 v{x1}, 0xffff0000, v{r}')
                out.append(f'v_fma_f32 v{x0}, v{x0}, v{rs[p]}, v{nb[p]}')
                out.append(f'v_fma_f32 v{x1}, v{x1}, v{rs[p]}, v{nb[p]}')
                out.append(f'v_cvt_pk_bf16_f32 v{r}, v{x0}, v{x1}')
    return out

def pack_loads(lab, dst, t, lane):
    out = [f's_mul_hi_u32 s46, s{sPkF}, {(1 << 32) // 24 + 1}',
           f's_mul_i32 s47, s46, 24', f's_sub_u32 s{sPkf}, s{sPkF}, s47',
           f'v_and_b32 v{t}, 15, v{lane}', f'v_lshrrev_b32 v{t+1}, 4, v{lane}',
           f's_cmp_lt_u32 s{sPkf}, 12', f's_cbranch_scc0 {lab}_pk2']
    out += [f's_add_u32 s48, s46, 1', f's_cmp_eq_u32 s48, 24', f's_cselect_b32 s48, 0, s48',
            f's_lshr_b32 s49, s{sPkf}, 1', f's_and_b32 s50, s{sPkf}, 1',
            f's_lshl_b32 s48, s48, 6', f's_lshl_b32 s50, s50, 5', f's_add_u32 s48, s48, s50',
            f's_mul_i32 s49, s49, {32*1536}', f's_add_u32 s48, s48, s49',
            f'v_mul_u32_u24 v{t+2}, {8*1536}, v{t+1}', f'v_lshl_add_u32 v{t+2}, v{t}, 1, v{t+2}',
            f's_mov_b32 s{sM}, s52', f's_mov_b32 s{sM+1}, s53', f's_mov_b32 s{sM+2}, {192*768*2}', f's_mov_b32 s{sM+3}, 0x20000']
    for e in range(8):
        out.append(f's_add_u32 s49, s48, {e*1536}')
        out.append(f'buffer_load_ushort v{dst+e}, v{t+2}, s[{sM}:{sM+3}], s49 offen')
    out += [f's_branch {lab}_pk3', f'{lab}_pk2:']
    out += [f's_add_u32 s48, s46, 23', f's_cmp_ge_u32 s48, 24', f's_cselect_b32 s49, 24, 0', f's_sub_u32 s48, s48, s49',
            f's_sub_u32 s49, s{sPkf}, 12', f's_lshr_b32 s50, s49, 1', f's_and_b32 s49, s49, 1',
            f's_mul_i32 s48, s48, {32*384}', f's_lshl_b32 s50, s50, 6', f's_lshl_b32 s49, s49, 3',
            f's_add_u32 s48, s48, s50', f's_add_u32 s48, s48, s49',
            f'v_lshrrev_b32 v{t+3}, 2, v{t}', f'v_lshlrev_b32 v{t+3}, 4, v{t+3}',
            f'v_and_b32 v{t+4}, 3, v{t}', f'v_lshl_add_u32 v{t+3}, v{t+4}, 1, v{t+3}',
            f'v_mul_u32_u24 v{t+2}, {4*384}, v{t+1}', f'v_add_u32 v{t+2}, v{t+2}, v{t+3}',
            f's_mov_b32 s{sM}, s54', f's_mov_b32 s{sM+1}, s55', f's_mov_b32 s{sM+2}, {192*768*2}', f's_mov_b32 s{sM+3}, 0x20000']
    for e in range(8):
        out.append(f's_add_u32 s49, s48, {(16*(e>>2) + (e&3))*384}')
        out.append(f'buffer_load_ushort v{dst+e}, v{t+2}, s[{sM}:{sM+3}], s49 offen')
    out += [f'{lab}_pk3:']
    return out

def pack_store(lab, cfg, src, dst):
    out = []
    for d in range(4): out.append(f'v_lshl_or_b32 v{dst+d}, v{src+2*d+1}, 16, v{src+2*d}')
    if cfg.f16:
        out += [f's_cmp_lt_u32 s{sPkf}, 12', f's_cbranch_scc1 {lab}_pk5']
        for e in range(8): out.append(f'v_lshlrev_b32 v{src+e}, 16, v{src+e}')
        for d in range(4): out.append(f'v_cvt_pk_f16_f32 v{dst+d}, v{src+2*d}, v{src+2*d+1}')
        out.append(f'{lab}_pk5:')
    out += [f's_add_u32 s{sM}, s38, {WS_W}', f's_addc_u32 s{sM+1}, s39, 0', f's_mov_b32 s{sM+2}, {W_BYTES}', f's_mov_b32 s{sM+3}, 0x20000',
            f's_lshl_b32 s3, s{sPkF}, 10',
            f'buffer_store_dwordx4 {v(dst,4)}, v{vL16}, s[{sM}:{sM+3}], s3 offen sc1']
    return out

def gen(cfg, name='fused_kernel'):
    k2.MF2[0] = 'v_mfma_f32_16x16x32_f16' if cfg.f16 else k2.MF
    P = []; TR = []
    n3 = [0]
    def st3():
        if cfg.light3 and n3[0] in cfg.l3sel:
            j = cfg.l3sel.index(n3[0])
            P.extend([f's_memtime s[{82+2*j}:{83+2*j}]'])
        n3[0] += 1
        if False:
            P.extend(['s_memtime s[102:103]' if False else 's_memtime s[98:99]', 's_waitcnt lgkmcnt(0)', f'v_writelane_b32 v253, s98, {n3[0]}']); n3[0] += 1
    def emit(l, tr=True):
        P.extend(l)
        if tr: TR.extend([x for x in l if not x.endswith(':')])
    emit(['s_cmp_ge_u32 s2, 256', f's_cbranch_scc1 {name}_done'])
    if cfg.light: P += ['s_memtime s[6:7]', 's_memrealtime s[8:9]', 's_waitcnt lgkmcnt(0)', 's_mov_b32 s82, s6', 's_mov_b32 s83, s8']
    st3()
    emit(['s_load_dwordx4 s[4:7], s[0:1], 0',
          's_load_dwordx2 s[38:39], s[0:1], 48',
          's_load_dwordx4 s[52:55], s[0:1], 16',
          'v_lshrrev_b32 v1, 6, v0', 'v_and_b32 v0, 63, v0', 's_nop 0',
          f'v_readfirstlane_b32 s{sWave}, v1',
          f's_mov_b32 s{sIMG}, {IMG_BYTES}', f's_mov_b32 s{sOnes}, 0x3f803f80',
          f's_mov_b32 s{sSelL}, 0x05040100', f's_mov_b32 s{sSelH}, 0x07060302',
          f's_mov_b32 s{sAl}, {hex(f2u(ALPHA))}', f's_mov_b32 s{sEps}, {hex(f2u(1e-5))}', f's_mov_b32 s{sInv}, {hex(f2u(1.0/192))}',
          f'v_lshlrev_b32 v{vL16}, 4, v0', f'v_mov_b32 v{vZ}, 0',
          's_waitcnt lgkmcnt(0)',
          f's_mov_b32 s{sX}, s4', f's_mov_b32 s{sX+1}, s5', f's_mov_b32 s{sX+2}, {IMG_BYTES}', f's_mov_b32 s{sX+3}, 0x20000',
          f's_mov_b32 s{sD}, s6', f's_mov_b32 s{sD+1}, s7', f's_mov_b32 s{sD+2}, {49*384}', f's_mov_b32 s{sD+3}, 0x20000',
          f's_add_u32 s{sH}, s38, {WS_H}', f's_addc_u32 s{sH+1}, s39, 0', f's_mov_b32 s{sH+2}, {IMG_BYTES}', f's_mov_b32 s{sH+3}, 0x20000',
          f's_load_dwordx2 s[{sDbg}:{sDbg+1}], s[0:1], 40', f's_mov_b32 s{sTI}, 0'])
    st3()
    t = Y0
    c = []
    for m in range(5):
        c += [f's_lshl_b32 s{sT}, s{sWave}, 6', f's_add_u32 s{sT}, s{sT}, {256*m}',
              f'v_add_u32 v{t}, s{sT}, v0',
              f'v_mul_u32_u24 v{t+1}, 5892, v{t}', f'v_lshrrev_b32 v{t+1}, 20, v{t+1}',
              f'v_mul_u32_u24 v{t+2}, 178, v{t+1}', f'v_sub_u32 v{t+2}, v{t}, v{t+2}',
              f'v_mul_u32_u24 v{t+3}, 2622, v{t+2}', f'v_lshrrev_b32 v{t+3}, 16, v{t+3}',
              f'v_mul_u32_u24 v{t+4}, 25, v{t+3}', f'v_sub_u32 v{t+4}, v{t+2}, v{t+4}',
              f'v_mul_u32_u24 v{t+5}, 7, v{t+1}', f'v_add_u32 v{t+5}, v{t+5}, v{t+3}',
              f'v_mul_u32_u24 v{t+5}, 24, v{t+5}', f'v_add_u32 v{t+5}, v{t+5}, v{t+4}', f'v_lshlrev_b32 v{t+5}, 4, v{t+5}',
              f'v_cmp_gt_u32 vcc, 7, v{t+3}', f'v_cmp_gt_u32 s[44:45], 24, v{t+4}', 's_nop 1', f's_and_b64 vcc, vcc, s[44:45]',
              f'v_cndmask_b32 v{t+5}, 2.0, v{t+5}, vcc',
              f's_lshl_b32 s{sT}, s{sWave}, 10', f's_add_u32 m0, s{sT}, {DWB + 4096*m}', 's_nop 0',
              f'buffer_load_dwordx4 v{t+5}, s[{sD}:{sD+3}], 0 offen lds']
    emit(c)
    pk = [f's_mov_b32 s{sPkF}, -1', f's_cmp_lt_u32 s2, {NPKWG}', f's_cbranch_scc0 {name}_nopk',
          f's_lshl_b32 s44, s2, 3', f's_lshl_b32 s45, s{sWave}, 1', f's_add_u32 s{sPkF}, s44, s45']
    pk += pack_loads(f'{name}_a', Y0 + 32, ACC, 0) + [f's_add_u32 s{sPkF}, s{sPkF}, 1'] + pack_loads(f'{name}_a2', Y0 + 41, ACC, 0) + [f'{name}_nopk:']
    st3()
    if not cfg.nosync: P += pk
    st3()
    c = [f'v_and_b32 v{t}, 7, v0', f'v_lshrrev_b32 v{t+1}, 3, v0']
    for r in range(4):
        if r < 3: c += [f's_lshl_b32 s{sT}, s{sWave}, 3', f's_add_u32 s{sT}, s{sT}, {32*r}', f'v_add_u32 v{t+2}, s{sT}, v{t+1}']
        else:
            c += [f's_add_u32 s{sT}, s{sWave}, 96', f's_min_u32 s{sT}, s{sT}, 98', f'v_mov_b32 v{t+2}, s{sT}',
                  f'v_cmp_gt_u32 s[{sMk3}:{sMk3+1}], 8, v0']
        c += [f'v_mul_u32_u24 v{t+3}, 745, v{t+2}', f'v_lshrrev_b32 v{t+3}, 13, v{t+3}',
              f'v_mul_u32_u24 v{t+4}, 11, v{t+3}', f'v_sub_u32 v{t+4}, v{t+2}, v{t+4}',
              f'v_mul_u32_u24 v{t+5}, {2*384}, v{t+3}', f'v_lshl_add_u32 v{t+5}, v{t+4}, 1, v{t+5}',
              f'v_mul_u32_u24 v{t+5}, 384, v{t+5}',
              f'v_lshl_add_u32 v{vRel+r}, v{t}, 4, v{t+5}']
        for dx in range(2):
            mL = sMaskL + 2 * (2 * r + dx); mR = sMaskR + 2 * (2 * r + dx)
            c += [f'v_lshl_add_u32 v{t+6}, v{t+4}, 1, {dx}',
                  f'v_cmp_lt_u32 s[{mL}:{mL+1}], 2, v{t+6}', f'v_cmp_gt_u32 s[{mR}:{mR+1}], 19, v{t+6}']
            if r == 3:
                c += ['s_nop 1', f's_and_b64 s[{mL}:{mL+1}], s[{mL}:{mL+1}], s[{sMk3}:{sMk3+1}]', f's_and_b64 s[{mR}:{mR+1}], s[{mR}:{mR+1}], s[{sMk3}:{sMk3+1}]']
        if r == 0: c += [f'v_mul_u32_u24 v{vLw}, {REC}, v{t+2}']
        if r == 3: c += [f'v_mul_u32_u24 v{vLw3}, {REC}, v{t+2}', f'v_cndmask_b32 v{vRel+3}, 2.0, v{vRel+3}, s[{sMk3}:{sMk3+1}]']
    c += [f'v_lshrrev_b32 v{t}, 2, v0', f'v_and_b32 v{t+1}, 3, v0', f'v_lshrrev_b32 v{t+2}, 3, v{t}',
          f's_lshl_b32 s{sT}, s{sWave}, 1',
          f'v_add_u32 v{t+2}, s{sT}, v{t+2}', f'v_bfe_u32 v{t+3}, v{t}, 1, 2', f'v_xor_b32 v{t+4}, v{t+2}, v{t+3}',
          f'v_lshlrev_b32 v{t+4}, 1, v{t+4}', f'v_lshl_add_u32 v{t+4}, v{t+3}, 4, v{t+4}',
          f'v_and_b32 v{t+5}, 1, v{t}', f'v_add_u32 v{t+4}, v{t+4}, v{t+5}', f'v_lshlrev_b32 v{t+4}, 3, v{t+4}',
          f'v_mul_u32_u24 v{t+5}, {2*REC}, v{t+1}', f'v_add_u32 v{vRd}, v{t+4}, v{t+5}']
    c += [f's_lshl_b32 s{sT2}, s{sWave}, 4', f'v_add_u32 v{t+7}, s{sT2}, v{t}',
          f'v_bfe_u32 v{t+8}, v{t+7}, 3, 1', f'v_lshlrev_b32 v{t+8}, 2, v{t+8}', f'v_xor_b32 v{t+7}, v{t+7}, v{t+8}',
          f'v_lshlrev_b32 v{t+7}, 5, v{t+7}', f'v_lshl_add_u32 v{t+7}, v{t+1}, 3, v{t+7}', f'v_add_u32 v{vY0}, {YB}, v{t+7}']
    c += [f'v_lshrrev_b32 v{t}, 4, v0', f'v_bfe_u32 v{t+1}, v0, 2, 2', f'v_and_b32 v{t+2}, 3, v0',
          f's_mul_i32 s{sT}, s{sWave}, {3*2048}', f's_add_u32 s{sT}, s{sT}, {YB}']
    for h, vr in ((0, vR0), (1, vR1)):
        c += [f'v_lshl_add_u32 v{t+3}, v{t}, 3, v{t+1}', f'v_add_u32 v{t+3}, {4*h}, v{t+3}',
              f'v_and_b32 v{t+4}, 1, v{t}', f'v_lshlrev_b32 v{t+4}, 2, v{t+4}', f'v_xor_b32 v{t+3}, v{t+3}, v{t+4}',
              f'v_lshlrev_b32 v{t+3}, 5, v{t+3}', f'v_lshl_add_u32 v{t+3}, v{t+2}, 3, v{t+3}', f'v_add_u32 v{vr}, s{sT}, v{t+3}']
    vb = Y0 + 40
    c += [f'v_lshrrev_b32 v{t}, 2, v0', f's_lshl_b32 s{sT}, s{sWave}, 5', f'v_lshlrev_b32 v{t}, 1, v{t}', f'v_add_u32 v{t}, s{sT}, v{t}',
          f'v_bfe_u32 v{t+1}, v0, 1, 1', f'v_mul_u32_u24 v{t+1}, {ROWS}, v{t+1}', f'v_and_b32 v{t+2}, 1, v0', f'v_mul_u32_u24 v{t+2}, {TAPS}, v{t+2}',
          f'v_add_u32 v{t+1}, v{t+1}, v{t+2}', f'v_sub_u32 v{t}, v{t}, v{t+1}', f'v_add_u32 v{vb}, {DWB}, v{t}',
          f'v_and_b32 v{vO16}, 7, v0', f'v_lshlrev_b32 v{vO16}, 4, v{vO16}']
    emit(c)
    def tile_setup(fetch):
        o = [f's_sub_u32 s24, 2, {fetch}',
             f's_lshr_b32 s25, s2, 3', f's_lshl_b32 s24, s24, 5', f's_add_u32 s25, s25, s24',
             f's_and_b32 s26, s2, 7', f's_lshl_b32 s26, s26, 2', f's_and_b32 s27, s25, 3', f's_add_u32 s26, s26, s27',
             f's_lshr_b32 s27, s25, 2',
             f's_mul_i32 s24, s26, {12*384}', f's_lshl_b32 s25, s27, 4', f's_add_u32 s24, s24, s25',
             f's_sub_u32 s24, s24, {3*384+3}', f's_mul_i32 s{sBase}, s24, 384',
             f's_cmp_eq_u32 {fetch}, 3', f's_cselect_b32 s{sBase}, 0x60000000, s{sBase}']
        if cfg.diag_nox: o += [f's_mov_b32 s{sBase}, 0x60000000']
        return o + tile_offsets()
    strip = lambda l: [x.split(' ;@')[0] for x in l]
    def store_bases(real):
        if real and not cfg.diag_nost:
            o = [f's_mul_i32 s25, s2, 3', f's_add_u32 s25, s25, 2', f's_mul_i32 s25, s25, 12', f's_mul_i32 s26, s{sWave}, 3', f's_add_u32 s25, s25, s26',
                 f's_mul_i32 s{sSt3}, s25, 6144']
        else: o = [f's_mov_b32 s{sSt3}, 0x70000000']
        return o + [f's_add_u32 s{sSt3+1}, s{sSt3}, 6144', f's_add_u32 s{sSt3+2}, s{sSt3}, 12288'] + [f's_add_u32 s{sSt3+3+p}, s{sSt3+p}, 4096' for p in range(3)]
    emit(tile_setup('0'))
    emit(strip(sum(load_items(cfg, 0, 0), [])) + strip(sum(load_items(cfg, 1, 1), [])))
    if cfg.htouch:
        emit(store_bases(True) + [f'v_lshlrev_b32 v{vA}, 3, v{vL16}'])
        for i in range(3):
            emit([f's_add_u32 s{sT}, s{sSt3}, {8192*i}', f'buffer_load_dword v{vB}, v{vA}, s[{sH}:{sH+3}], s{sT} offen'])
    st3()
    emit([f's_waitcnt vmcnt({35 if cfg.htouch else 32})'])
    st3()
    emit(['s_barrier'])
    st3()
    if not cfg.nosync:
        P += [f's_cmp_eq_u32 s{sPkF}, -1', f's_cbranch_scc1 {name}_nops'] + pack_store(f'{name}_b', cfg, Y0 + 41, Y0)
        P += [f's_sub_u32 s{sPkF}, s{sPkF}, 1', f's_sub_u32 s{sPkf}, s{sPkf}, 1'] + pack_store(f'{name}_b2', cfg, Y0 + 32, Y0 + 4) + ['s_nop 1', f'{name}_nops:']
    emit(weights_gather(vb))
    st3()
    emit(['s_waitcnt vmcnt(0)'])
    st3()
    emit([f'v_add_u32 v{vLw}, {SLAB}, v{vLw}', f'v_add_u32 v{vLw3}, {SLAB}, v{vLw3}', f'v_add_u32 v{vRd}, {SLAB}, v{vRd}'])
    for r in range(4):
        for d in range(4): emit(transpose_unit(r, d, 0))
    emit(strip(sum(load_items(cfg, 2, 0), [])))
    emit([f's_mov_b32 s{sT}, 0x70000000'] + [f'buffer_store_dword v{vA}, v{vL16}, s[{sH}:{sH+3}], s{sT} offen'] * 4)
    emit([f'v_subrev_u32 v{vLw}, {SLAB}, v{vLw}', f'v_subrev_u32 v{vLw3}, {SLAB}, v{vLw3}', f's_mov_b32 s{sDS}, {-SLAB & 0xffffffff}', f's_mov_b32 s{sDY}, 24576',
          's_waitcnt lgkmcnt(0)'])
    st3()
    emit(['s_barrier'])
    st3()
    if not cfg.nosync:
        P += [f's_cmp_eq_u32 s{sPkF}, -1', f's_cbranch_scc1 {name}_nopub', f's_cmp_eq_u32 s{sWave}, 0', f's_cbranch_scc0 {name}_nopub',
              f'v_mov_b32 v{vB}, 1', 's_mov_b32 exec_lo, 1', 's_mov_b32 exec_hi, 0',
              f'global_atomic_add v{vZ}, v{vB}, s[{sDbg}:{sDbg+1}]', 's_mov_b64 exec, -1', f'{name}_nopub:']
    raw = {(k, st): conv_stage(k, st, load_items(cfg, k, st), store_items(cfg, k)) for k in range(3) for st in range(2)}
    nw = resolve_l([raw[(0, 1)], raw[(1, 0)], raw[(2, 1)], raw[(0, 0)], raw[(1, 1)], raw[(2, 0)]])
    fix = lambda l: [(f's_waitcnt vmcnt({nw[int(x[6:])]})' if x.startswith('WAITL:') else x.split(' ;@')[0]) for x in l]
    body = {key: fix(val) for key, val in raw.items()}
    def after(k):
        o = ['s_waitcnt lgkmcnt(0)', 's_barrier']
        for p in range(3):
            for sp in range(2):
                for h in range(2):
                    o.append(f'ds_read_b64_tr_b16 {v(Y(p,2*k+sp)+2*h,2)}, v{vR0 if h == 0 else vR1} offset:{p*2048 + sp*1024}')
        o += [f'v_add_u32 v{vRd}, s{sDS}, v{vRd}', f'v_subrev_u32 v{vLw}, s{sDS}, v{vLw}', f'v_subrev_u32 v{vLw3}, s{sDS}, v{vLw3}',
              f'v_add_u32 v{vY0}, s{sDY}, v{vY0}', f'v_add_u32 v{vR0}, s{sDY}, v{vR0}', f'v_add_u32 v{vR1}, s{sDY}, v{vR1}',
              f's_sub_u32 s{sDS}, 0, s{sDS}', f's_sub_u32 s{sDY}, 0, s{sDY}']
        return o
    sn = [0]
    def st2():
        if not cfg.light2: return []
        sn[0] += 1
        return [f's_cmp_eq_u32 s{sTI}, {cfg.l2tile}', f's_cbranch_scc0 {name}_s2_{sn[0]}', f's_memtime s[{STAMP0-2+2*((sn[0]-1)%5+1)}:{STAMP0-1+2*((sn[0]-1)%5+1)}]', f'{name}_s2_{sn[0]}:']
    lns = ln_block(cfg)
    K = k2
    emit([f's_mov_b32 s{sTI}, 0'])
    P += ['.p2align 6', f'{name}_tileX:']
    P += st2()
    emit([f's_add_u32 s3, s{sTI}, 1'] + tile_setup('s3') + store_bases(False))
    if not cfg.nosync:
        P += [f's_cmp_eq_u32 s{sTI}, 2', f's_cbranch_scc0 {name}_nopoll', f's_cmp_eq_u32 s{sWave}, 0', f's_cbranch_scc0 {name}_nopoll',
              f'global_load_dword v{vP}, v{vZ}, s[{sDbg}:{sDbg+1}] sc1', f'{name}_nopoll:']
    emit(body[(0, 1)] + after(0))
    P += st2()
    if not cfg.nosync:
        ft = ACC
        fb = [f's_cmp_eq_u32 s{sTI}, 2', f's_cbranch_scc0 {name}_nochk', f's_cmp_eq_u32 s{sWave}, 0', f's_cbranch_scc0 {name}_nochk',
              f's_waitcnt vmcnt(22)', f'v_readfirstlane_b32 s44, v{vP}', 's_nop 3', f's_cmp_ge_u32 s44, {NPKWG}', f's_cbranch_scc1 {name}_acq',
              f's_mov_b32 s45, {cfg.spin}', f'{name}_spin:',
              f'global_load_dword v{vP}, v{vZ}, s[{sDbg}:{sDbg+1}] sc1', 's_waitcnt vmcnt(0)', f'v_readfirstlane_b32 s44, v{vP}', 's_nop 3',
              f's_cmp_ge_u32 s44, {NPKWG}', f's_cbranch_scc1 {name}_acq',
              's_sub_u32 s45, s45, 1', 's_cmp_lg_u32 s45, 0', f's_cbranch_scc1 {name}_spin',
              's_load_dwordx4 s[52:55], s[0:1], 16', f'v_lshrrev_b32 v{ft}, 4, v{vL16}', f's_mov_b32 s{sPkF}, 0', 's_waitcnt vmcnt(0) lgkmcnt(0)', f'{name}_self:']
        fb += pack_loads(f'{name}_c', ft + 8, ft + 1, ft) + ['s_waitcnt vmcnt(0)'] + pack_store(f'{name}_d', cfg, ft + 8, ft + 16)
        fb += ['s_waitcnt vmcnt(0)', f's_add_u32 s{sPkF}, s{sPkF}, 1', f's_cmp_lt_u32 s{sPkF}, {NPACK}', f's_cbranch_scc1 {name}_self',
               f'{name}_acq:', 'buffer_inv sc1', f'{name}_nochk:']
        P += fb
    emit(body[(1, 0)] + after(1))
    P += st2()
    pre = [f's_add_u32 s{K.sW}, s38, {WS_W}', f's_addc_u32 s{K.sW+1}, s39, 0', f's_mov_b32 s{K.sW+2}, {W_BYTES}', f's_mov_b32 s{K.sW+3}, 0x20000',
           f's_mul_i32 s{K.sWoff}, s40, 12288', f's_cmp_eq_u32 s40, 1', f's_cselect_b32 s24, {23*24576}, s{K.sWoff}']
    its = []
    for i in range(12):
        it = []
        if i % 4 == 0: it += [f's_add_u32 m0, s{K.sWoff}, {4096*(i//4)}', f's_add_u32 s{sT}, s24, {4096*(i//4)}', 's_nop 0']
        it.append(f'buffer_load_dwordx4 v{vL16}, s[{K.sW}:{K.sW+3}], s{sT} offen offset:{1024*(i%4)} lds')
        its.append(it)
    cl = conv_stage(2, 0, its, [], transp=False)
    P += [f's_cmp_eq_u32 s{sTI}, 2', f's_cbranch_scc0 {name}_nl'] + pre + cl + after(2) + [f's_branch {name}_last', f'{name}_nl:']
    emit(body[(2, 1)] + after(2) + ['s_waitcnt lgkmcnt(0)'])
    P += st2()
    P += [f's_call_b64 s[42:43], {name}_ln']; TR += lns
    P += st2()
    emit([f's_mov_b32 s{sTI}, 1'])
    sn[0] = 10
    P += st2()
    emit(tile_setup('2') + store_bases(True))
    emit(body[(0, 0)] + after(0))
    P += st2()
    emit(body[(1, 1)] + after(1))
    P += st2()
    emit(body[(2, 0)] + after(2) + ['s_waitcnt lgkmcnt(0)'])
    P += st2()
    P += [f's_call_b64 s[42:43], {name}_ln']; TR += lns
    emit([f'v_accvgpr_write_b32 a{K.PF0+i}, v{Y0+i}' for i in range(72)])
    emit([f's_mov_b32 s{sTI}, 2'])
    P += [f's_branch {name}_tileX', f'{name}_last:']
    emit(['s_waitcnt vmcnt(0) lgkmcnt(0)', 's_barrier'])
    if cfg.light: P += ['s_memtime s[6:7]', 's_memrealtime s[24:25]', 's_waitcnt lgkmcnt(0)', 's_mov_b32 s84, s6', 's_mov_b32 s85, s24']
    emit(['s_load_dwordx2 s[6:7], s[0:1], 32',
          'v_mbcnt_lo_u32_b32 v0, -1, 0', 'v_mbcnt_hi_u32_b32 v0, -1, v0'])
    emit(K.gelu_consts(cfg) + K.ident_setup())
    emit([f's_add_u32 s{K.sW}, s38, {WS_W}', f's_addc_u32 s{K.sW+1}, s39, 0', f's_mov_b32 s{K.sW+2}, {W_BYTES}', f's_mov_b32 s{K.sW+3}, 0x20000',
          f's_mul_i32 s{K.sWoff}, s40, 12288',
          f's_mul_i32 s{K.sB}, s2, {36*6144}', f's_mul_i32 s41, s40, {3*6144}', f's_add_u32 s{K.sB}, s{K.sB}, s41',
          f's_lshr_b32 s24, s2, 3', f's_and_b32 s25, s2, 7', f's_lshl_b32 s25, s25, 2', f's_and_b32 s26, s24, 3', f's_add_u32 s25, s25, s26',
          f's_lshr_b32 s24, s24, 2', f's_mul_i32 s25, s25, 12', f's_mul_i32 s26, s40, 3', f's_add_u32 s25, s25, s26',
          f's_mul_i32 s25, s25, 24', f's_add_u32 s25, s25, s24', f's_mul_i32 s{K.sBX}, s25, 6144',
          's_waitcnt lgkmcnt(0)',
          f's_mov_b32 s{K.sO}, s6', f's_mov_b32 s{K.sO+1}, s7', f's_mov_b32 s{K.sO+2}, {IMG_BYTES}', f's_mov_b32 s{K.sO+3}, 0x20000'])
    emit(K.m_second_dma(cfg, K.PX0) + K.x_first_loads(cfg))
    P += [f's_call_b64 s[42:43], {name}_ln']; TR += lns
    emit([f'v_accvgpr_write_b32 a{K.H0+i}, v{Y0+i}' for i in range(72)])
    emit(K.m_g1_first(cfg, early=True))
    if cfg.light: P += ['s_memtime s[6:7]', 's_memrealtime s[4:5]', 's_waitcnt lgkmcnt(0)', 's_mov_b32 s86, s6', 's_mov_b32 s87, s4']
    mp, sub, tr = K.m_main(cfg, name)
    P += mp; TR += tr
    P += K.dump_stamps2(cfg, 13)
    if cfg.light:
        P += ['s_waitcnt vmcnt(0)', 's_memtime s[6:7]', 's_memrealtime s[4:5]', 's_load_dwordx2 s[8:9], s[0:1], 40', 's_waitcnt lgkmcnt(0)', 's_mov_b32 s88, s6', 's_mov_b32 s89, s4'] + [f'v_writelane_b32 v255, s{82+i}, {i}' for i in range(8)] + [
              's_cmp_eq_u32 s2, 17', f's_cbranch_scc0 {name}_done', 's_cmp_eq_u32 s40, 0', f's_cbranch_scc0 {name}_done',
              'v_mbcnt_lo_u32_b32 v0, -1, 0', 'v_mbcnt_hi_u32_b32 v0, -1, v0', 'v_lshlrev_b32 v1, 2, v0', 'v_cmp_gt_u32 vcc, 8, v0', 's_and_saveexec_b64 s[10:11], vcc',
              'global_store_dword v1, v255, s[8:9] offset:16']
    if cfg.light2 or cfg.light3:
        P += ['s_waitcnt vmcnt(0)', 's_load_dwordx2 s[8:9], s[0:1], 40', 's_waitcnt lgkmcnt(0)',
              's_cmp_eq_u32 s2, 17', f's_cbranch_scc0 {name}_done', 's_cmp_eq_u32 s40, 0', f's_cbranch_scc0 {name}_done']
        P += [f'v_writelane_b32 v255, s{STAMP0+2*i}, {i}' for i in range(5)]
        P += ['v_mbcnt_lo_u32_b32 v0, -1, 0', 'v_mbcnt_hi_u32_b32 v0, -1, v0', 'v_lshlrev_b32 v1, 2, v0', 'v_cmp_gt_u32 vcc, 5, v0', 's_and_saveexec_b64 s[10:11], vcc',
              'global_store_dword v1, v255, s[8:9] offset:64']
    P += [f'{name}_done:', 's_endpgm']
    P += ['.p2align 6', f'{name}_ln:'] + lns + ['s_setpc_b64 s[42:43]']
    P += sub
    return P, TR

def kd(name):
    return k2.kd(name)

if __name__ == '__main__':
    import asmlib
    P, TR = gen(Cfg)
    asmlib.check(TR, 'kf')
    print(len(P))
```

```python
import struct, math

def f2u(f): return struct.unpack('<I', struct.pack('<f', f))[0]
LOG2E = 1.4426950408889634
A1 = 2.0 * math.sqrt(2.0 / math.pi) * LOG2E
B1 = A1 * 0.044715
ALPHA = B1 ** (1.0 / 3.0)
CC = A1 / ALPHA

WS_W = 0
W_BYTES = 24 * 24576
WS_H = 1 << 20
IMG_BYTES = 384 * 384 * 192 * 2

vLds, vDma, vG = 1, 2, 3
vLdsS = (1, 4, 5)
T0 = 8
G0 = 24
S0 = 48
ACC = 96
H0, PF0, PX0, W0, I0 = 0, 72, 144, 216, 248
NB = 8
sW, sH, sX, sO = 8, 12, 16, 20
sPass, sJ, sDst, sDstSum, sSrc, sWoff, sB, sT, sT2, sNegC, sAlpha = 24, 25, 26, 27, 28, 29, 30, 31, 32, 34, 35
sB1, sRd = 36, 37
sRet = 42
sHx = 90
sLdH = 96 - 4
sSt, sLd = 44, 47
sLx, sBX = 95, 51
OOB = 0x70000000

def v(b, n=1): return f'v{b}' if n == 1 else f'v[{b}:{b+n-1}]'
def a(b, n=1): return f'a{b}' if n == 1 else f'a[{b}:{b+n-1}]'
def Sreg(buf, aa, p): return S0 + 24 * buf + 4 * (aa * 3 + p)
def Greg(buf, p): return G0 + 12 * buf + 4 * p
def acc(t, p): return ACC + 4 * (t * 3 + p)
def hreg(p, s): return H0 + 24 * p + 4 * s
def pfreg(p, s): return PF0 + 24 * p + 4 * s
def pxreg(p, s): return PX0 + 24 * p + 4 * s
MF = 'v_mfma_f32_16x16x32_bf16'

class Cfg:
    prof = False
    prof2 = False
    allwg = False
    profpass = 1
    plan = ['ssss', 'sssss', 'sssss', 'ssssh', 'hhhhh', 'hhhhh', 'hhhhh', 'hhxxx', 'xxxxx', 'xxxxx', 'xxxxx', '']
    xpos = [26, 30, 34, 38, 41]
    D = 5
    gsz = 4
    f16 = False
    warm = True
    sub = True
    hskip = False
    tail_lds = False
    tail_flags = None
    out_flags = None
    static_ring = False
    wevery = 2
    mid_vm = 12
    diag_nodma = False
    xps = 6144
    xts = 73728
    nt_h = False; nt_x = False; nt_o = False

def f2h(f):
    import numpy as np
    return int(np.float16(f).view(np.uint16))

def gelu_list16(buf, cfg):
    out = []
    grp = [(aa, p) for aa in range(2) for p in range(3)]
    for i in range(0, 6, 2):
        dw = []
        for gi, (aa, p) in enumerate(grp[i:i+2]):
            for d in range(2):
                n = (i // 2 % 2) * 8 + gi * 4 + d * 2
                u = Sreg(buf, aa, p) + 2 * d
                dw.append((u, u + 1, T0 + n, T0 + n + 1, Greg(buf, p) + 2 * aa + d))
        SD = lambda w: f'dst_sel:WORD_{w} dst_unused:UNUSED_PRESERVE src0_sel:WORD_{w}'
        for u0, u1, h, t, g in dw: out.append(f'v_cvt_pk_f16_f32 v{h}, v{u0}, v{u1}')
        for u0, u1, h, t, g in dw: out.append(f'v_pk_fma_f16 v{t}, v{h}, v{h}, s{sNegC} neg_lo:[1,0,0] neg_hi:[1,0,0]')
        for u0, u1, h, t, g in dw: out.append(f'v_pk_mul_f16 v{t}, v{t}, v{h}')
        for w in range(2):
            for u0, u1, h, t, g in dw: out.append(f'v_exp_f16_sdwa v{t}, v{t} {SD(w)}')
        for u0, u1, h, t, g in dw: out.append(f'v_pk_fma_f16 v{t}, v{t}, s{sAlpha}, s{sAlpha}')
        for w in range(2):
            for u0, u1, h, t, g in dw: out.append(f'v_rcp_f16_sdwa v{t}, v{t} {SD(w)}')
        for u0, u1, h, t, g in dw: out.append(f'v_pk_mul_f16 v{g}, v{h}, v{t}')
    return out

def gelu_list(buf, cfg):
    if cfg.f16: return gelu_list16(buf, cfg)
    out = []
    k = 0
    for aa in range(2):
        for p in range(3):
            es = [Sreg(buf, aa, p) + i for i in range(4)]
            ts = [T0 + (k % 2) * 4 + i for i in range(4)]
            k += 1
            for u, t in zip(es, ts): out.append(f'v_fma_f32 v{t}, -v{u}, v{u}, s{sNegC}')
            for u, t in zip(es, ts): out.append(f'v_mul_f32 v{t}, v{t}, v{u}')
            for u, t in zip(es, ts): out.append(f'v_exp_f32 v{t}, v{t}')
            for u, t in zip(es, ts): out.append(f'v_fma_f32 v{t}, v{t}, s{sAlpha}, s{sAlpha}')
            for u, t in zip(es, ts): out.append(f'v_rcp_f32 v{t}, v{t}')
            for u, t in zip(es, ts): out.append(f'v_mul_f32 v{t}, v{u}, v{t}')
            g = Greg(buf, p) + 2 * aa
            out.append(f'v_cvt_pk_bf16_f32 v{g}, v{ts[0]}, v{ts[1]}')
            out.append(f'v_cvt_pk_bf16_f32 v{g+1}, v{ts[2]}, v{ts[3]}')
    return out

def g1_groups(j):
    buf = (j + 1) & 1
    base = (j & 1) * 24576
    gs = []
    for s in range(6):
        for aa in range(2):
            gs.append((base + (2 * s + aa) * 1024,
                       [(lambda w, p=p, s=s, aa=aa: f'{MF} {v(Sreg(buf,aa,p),4)}, {a(w,4)}, {a(hreg(p,s),4)}, ' + ('0' if s == 0 else v(Sreg(buf,aa,p),4))) for p in range(3)]))
    return gs

MF2 = [MF]
def g2_groups(j):
    buf = (j - 1) & 1
    base = (j & 1) * 24576 + 12288
    gs = []
    for t in range(12):
        gs.append((base + t * 1024,
                   [(lambda w, p=p, t=t: f'{MF2[0]} {v(acc(t,p),4)}, {a(w,4)}, {v(Greg(buf,p),4)}, {v(acc(t,p),4)}') for p in range(3)]))
    return gs

def cost(t):
    op = t.split()[0]
    if op.startswith(('v_exp', 'v_rcp')): return 8
    return 4

def wbuf(g): return W0 + 4 * (g % NB)

def dma_block(k):
    return [f's_add_u32 m0, s{sDst}, {4096*k}', f's_add_u32 s{sT}, s{sSrc}, {4096*k}']
DTAG = ['dma']
def dma(i):
    return f'buffer_load_dwordx4 v{vDma}, s[{sW}:{sW+3}], s{sT} offen offset:{(i%4)*1024} lds ;@{DTAG[0]}'

def superstep(cfg, j0, mid=None, extra_valu=None, extra_at=None, bar_wait=None, dma_on=True, pre=None):
    J = j0 // 2
    sr = cfg.static_ring
    vcur = vLdsS[J % 3] if sr else vLds
    vnxt = vLdsS[(J + 1) % 3] if sr else vLds
    D = cfg.D
    groups = g1_groups(j0) + g2_groups(j0) + g1_groups(j0 + 1) + g2_groups(j0 + 1)
    nxt = g1_groups(j0)
    out = list(pre or [])
    fifo = list(range(0, D))
    waited = cfg.wevery - 1
    fifo = [g for g in fifo if g > waited]
    vl = [gelu_list(j0 & 1, cfg), gelu_list((j0 + 1) & 1, cfg)]
    extra_at = extra_at or {}
    reads_at = {g: [] for g in range(48)}
    for g in range(48):
        r = g + D
        if r <= 46 - 0 and g < 47 - D - 1: reads_at[g].append(r)
    reads_at[47 - D - 1] = [46, 47]
    reads_at[47 - D] = []
    for k in range(D): reads_at[48 - D + k].append(48 + k)
    dma_at = {}
    if dma_on and not cfg.diag_nodma:
        for i in range(12): dma_at.setdefault(2 * i, []).append(i)
    for step in range(2):
        valu = list(vl[step])
        tot = sum(cost(t) for t in valu)
        done = 0; vi = 0
        ex = (extra_valu or {}).get(step)
        exi = 0
        for gl in range(24):
            g = step * 24 + gl
            ms = groups[g][1]
            for k, m in enumerate(ms):
                out.append(m(wbuf(g)))
                if k == 0:
                    if g == 48 - D:
                        out.append('s_waitcnt lgkmcnt(0)'); fifo = []; waited = 47
                        out += bar_wait or ['s_waitcnt vmcnt(0)']
                        out.append('s_barrier')
                        if not sr: out.append(f'v_add_u32 v{vLds}, s{sRd}, v{vDma}')
                    for r in reads_at[g]:
                        off = groups[r][0] if r < 48 else nxt[r - 48][0]
                        out.append(f'ds_read_b128 {a(wbuf(r),4)}, v{vcur if r < 48 else vnxt} offset:{off}')
                        fifo.append(r)
                    for i in dma_at.get(g, []):
                        if i % 4 == 0:
                            if sr: out += [f's_add_u32 m0, s{sWoff}, {((J + 2) % 3) * 49152 + 4096 * (i // 4)}', f's_add_u32 s{sT}, s{sWoff}, {((J + 2) % 12) * 49152 + 4096 * (i // 4)}']
                            else: out += dma_block(i // 4) + ['s_nop 0']
                        out.append(dma(i))
                    if g == 38 and not sr:
                        out += [f's_add_u32 s{sRd}, s{sRd}, 49152', f's_cmp_eq_u32 s{sRd}, 147456', f's_cselect_b32 s{sRd}, 0, s{sRd}']
                    out += extra_at.get(g, [])
                mi = gl * 3 + k + 1
                target = tot * mi / 72.0
                while vi < len(valu) and done + cost(valu[vi]) / 2 <= target:
                    out.append(valu[vi]); done += cost(valu[vi]); vi += 1
                if mi == 72:
                    while vi < len(valu): out.append(valu[vi]); vi += 1
                if ex and ex[0] <= gl < ex[1]:
                    n = len(ex[2]); span = (ex[1] - ex[0]) * 3
                    upto = ((gl - ex[0]) * 3 + k + 1) * n // span
                    while exi < upto: out.append(ex[2][exi]); exi += 1
            we = cfg.wevery
            if g % we == we - 1:
                needg = g + we
                if waited < needg:
                    pend = [r for r in fifo if r > needg]
                    if len(pend) < len(fifo):
                        out.append(f's_waitcnt lgkmcnt({len(pend)})')
                    fifo = pend; waited = needg
        if step == 0 and mid: out += mid
    return out

def mid_block(cfg):
    out = []
    k = 0
    for p in range(3):
        for s in range(6):
            t = T0 + 8 + (k % 2) * 4; k += 1
            r0, r1 = acc(2 * s, p), acc(2 * s + 1, p)
            out.append(f'v_cvt_pk_bf16_f32 v{t}, v{r0}, v{r0+1}')
            out.append(f'v_cvt_pk_bf16_f32 v{t+1}, v{r0+2}, v{r0+3}')
            out.append(f'v_cvt_pk_bf16_f32 v{t+2}, v{r1}, v{r1+1}')
            out.append(f'v_cvt_pk_bf16_f32 v{t+3}, v{r1+2}, v{r1+3}')
            out.append(f'{MF} {v(acc(2*s,p),4)}, {a(I0,4)}, {a(pxreg(p,s),4)}, 0')
            out.append(f'{MF} {v(acc(2*s+1,p),4)}, {a(I0+4,4)}, {a(pxreg(p,s),4)}, 0')
            for i in range(4): out.append(f'v_accvgpr_write_b32 a{pxreg(p,s)+i}, v{t+i}')
    return out

def tail_epilogue(cfg, sbase):
    out = []
    nt = ' nt' if cfg.nt_o else ''
    k = 0
    for p in range(3):
        out.append(f's_add_u32 s{sT2}, s{sbase}, {cfg.xps*p}')
        for s in range(6):
            t = T0 + (k % 4) * 4; k += 1
            r0, r1 = acc(2 * s, p), acc(2 * s + 1, p)
            out.append(f'v_cvt_pk_bf16_f32 v{t}, v{r0}, v{r0+1}')
            out.append(f'v_cvt_pk_bf16_f32 v{t+1}, v{r0+2}, v{r0+3}')
            out.append(f'v_cvt_pk_bf16_f32 v{t+2}, v{r1}, v{r1+1}')
            out.append(f'v_cvt_pk_bf16_f32 v{t+3}, v{r1+2}, v{r1+3}')
            out.append(f'buffer_store_dwordx4 {v(t,4)}, v{vG}, s[{sO}:{sO+3}], s{sT2} offen offset:{64*s}{nt}')
    return out

def tail_epilogue_lds(cfg, sbase):
    nt = cfg.tail_flags if cfg.tail_flags is not None else (' nt' if cfg.nt_o else '')
    vW, vR, vG2, t = 4, 5, 6, 7
    out = [f'v_lshrrev_b32 v{t}, 4, v{vDma}',
           f's_mul_i32 s{sT}, s40, 12288', f's_add_u32 s{sT}, s{sT}, 98304',
           f'v_and_b32 v{vW}, 15, v{t}', f'v_bfe_u32 v{vR}, v{t}, 1, 2', f'v_lshrrev_b32 v{vG2}, 4, v{t}', f'v_xor_b32 v{vR}, v{vR}, v{vG2}',
           f'v_lshlrev_b32 v{vW}, 6, v{vW}', f'v_lshl_add_u32 v{vW}, v{vR}, 4, v{vW}', f'v_add_u32 v{vW}, s{sT}, v{vW}',
           f'v_bfe_u32 v{vR}, v{t}, 3, 2', f'v_and_b32 v{vG2}, 3, v{t}', f'v_xor_b32 v{vR}, v{vR}, v{vG2}', f'v_lshlrev_b32 v{vR}, 4, v{vR}',
           f'v_lshrrev_b32 v{vG2}, 2, v{t}', f'v_lshl_add_u32 v{vR}, v{vG2}, 6, v{vR}', f'v_add_u32 v{vR}, s{sT}, v{vR}',
           f'v_mul_u32_u24 v{vG2}, 384, v{vG2}', f'v_and_b32 v{t}, 3, v{t}', f'v_lshl_add_u32 v{vG2}, v{t}, 4, v{vG2}']
    items = [(p, s) for p in range(3) for s in range(6)]
    LAG = 2
    def wr(i):
        p, s = items[i]; tt = T0 + 4 * (i % 2)
        r0, r1 = acc(2 * s, p), acc(2 * s + 1, p)
        return [f'v_cvt_pk_bf16_f32 v{tt}, v{r0}, v{r0+1}', f'v_cvt_pk_bf16_f32 v{tt+1}, v{r0+2}, v{r0+3}',
                f'v_cvt_pk_bf16_f32 v{tt+2}, v{r1}, v{r1+1}', f'v_cvt_pk_bf16_f32 v{tt+3}, v{r1+2}, v{r1+3}',
                f'ds_write_b128 v{vW}, {v(tt,4)} offset:{1024*(i % 12)}']
    rreg = lambda i: G0 + 4 * (i % 6)
    pend = []
    for i in range(18 + 2 * LAG):
        if i < 18: out += wr(i); pend.append(('w', i))
        j = i - LAG
        if 0 <= j < 18:
            out.append(f'ds_read_b128 {v(rreg(j),4)}, v{vR} offset:{1024*(j % 12)}'); pend.append(('r', j))
        m = i - 2 * LAG
        if 0 <= m < 18:
            idx = pend.index(('r', m)); n = len(pend) - 1 - idx
            out.append(f's_waitcnt lgkmcnt({n})'); pend = pend[idx + 1:]
            p, s = items[m]
            if s == 0: out.append(f's_add_u32 s{sT2}, s{sbase}, {cfg.xps*p}')
            out.append(f'buffer_store_dwordx4 {v(rreg(m),4)}, v{vG2}, s[{sO}:{sO+3}], s{sT2} offen offset:{64*s}{nt}')
    return out

def st_op(cfg, i):
    p, s = divmod(i, 6)
    return f'buffer_store_dwordx4 {a(pxreg(p,s),4)}, v{vG}, s[{sO}:{sO+3}], s{sSt+p} offen offset:{64*s}' + (cfg.out_flags if cfg.out_flags is not None else (' nt' if cfg.nt_o else '')) + ' ;@st'
def h_op(cfg, i):
    p, s = divmod(i, 6)
    so, im = (sLd + p, 1024 * s) if s < 4 else (sLdH + p, 1024 * (s - 4))
    ld = f'buffer_load_dwordx4 {a(pfreg(p,s),4)}, v{vDma}, s[{sH}:{sH+3}], s{so} offen offset:{im}' + (' nt' if cfg.nt_h else '') + ' ;@h'
    if cfg.hskip: return f's_mov_b64 exec, s[{sHx}:{sHx+1}]\n' + ld + '\ns_mov_b64 exec, -1'
    return ld
def x_op(cfg, i):
    p, s = divmod(i, 6)
    return f'buffer_load_dwordx4 {a(pxreg(p,s),4)}, v{vG}, s[{sX}:{sX+3}], s{sLx+p} offen offset:{64*s}' + (' nt' if cfg.nt_x else '') + ' ;@x'

def resolve_vm(seq_prev, seq, optional=()):
    def isvm(t):
        o = t.split()[0] if t.split() else ''
        return o.startswith(('buffer_load', 'buffer_store'))
    def tag(t):
        if ';@' in t: return t.split(';@')[1].strip()
        return 'dma' if ' lds' in t else '?'
    fifo = []
    res = None
    for rnd, sq in enumerate((seq_prev, seq)):
        out = []
        for t in sq:
            if t.startswith('WAITVM:'):
                tg = t.split(':')[1]
                idx = [i for i, x in enumerate(fifo) if x == tg]
                if idx:
                    younger = fifo[idx[-1] + 1:]
                    n = sum(1 for x in younger if x not in optional)
                    out.append(f's_waitcnt vmcnt({n})')
                    keep = []; c = 0
                    for x in reversed(fifo):
                        if c >= n: break
                        keep.append(x)
                        if x not in optional: c += 1
                    fifo = keep[::-1]
                continue
            if isvm(t): fifo.append(tag(t))
            assert len(fifo) <= 63, 'too many outstanding'
            out.append(t)
        res = out
    return res

def tile_loads(srd, dst0, soff_base_instrs, nt):
    out = []
    for p in range(3):
        out += soff_base_instrs(p)
        for s in range(6):
            out.append(f'buffer_load_dwordx4 {a(dst0 + 24*p + 4*s, 4)}, v{vG}, s[{srd}:{srd+3}], s{sT2} offen offset:{64*s}' + (' nt' if nt else ''))
    return out

def soff(base, add):
    def f(p):
        return [f's_add_u32 s{sT2}, s{base}, {add + 6144*p}']
    return f

def stamp(cfg, k):
    if not cfg.prof: return []
    b = 52 + 4 * k
    return [f's_memtime s[{b}:{b+1}]', f's_memrealtime s[{b+2}:{b+3}]']

_cs=[0]
def cstamp(cfg, k, cond=None):
    if not cfg.prof2: return []
    _cs[0]+=1; lab=f'mlp_cs{_cs[0]}'
    out=[f's_cmp_eq_u32 s{sPass}, {cfg.profpass}', f's_cbranch_scc0 {lab}']
    if cond: out+=[f's_cmp_eq_u32 s{cond[0]}, {cond[1]}', f's_cbranch_scc0 {lab}']
    out+=[f's_memtime s[{52+2*k}:{53+2*k}]', f'{lab}:']
    return out

def dump_stamps2(cfg, n):
    if not cfg.prof2: return []
    out = ['s_waitcnt lgkmcnt(0)', 's_load_dwordx2 s[42:43], s[0:1], 40', 's_waitcnt lgkmcnt(0)',
           's_mov_b32 s44, s42', 's_mov_b32 s45, s43', 's_mov_b32 s46, 256', 's_mov_b32 s47, 0x20000',
           's_cmp_lg_u32 s2, 17', 's_cbranch_scc1 mlp_nodump', 's_cmp_lg_u32 s40, 0', 's_cbranch_scc1 mlp_nodump',
           'v_mov_b32 v4, 0']
    for k in range(n):
        out += [f'v_mov_b32 v5, s{52+2*k}', f'buffer_store_dword v5, v4, s[44:47], 0 offen offset:{4*k}']
    out += ['mlp_nodump:']
    return out

def dump_stamps(cfg, n):
    if not cfg.prof: return []
    out = ['s_waitcnt lgkmcnt(0)', 's_load_dwordx2 s[42:43], s[0:1], 40', 's_waitcnt lgkmcnt(0)',
           's_mov_b32 s44, s42', 's_mov_b32 s45, s43', 's_mov_b32 s46, 256', 's_mov_b32 s47, 0x20000',
           's_cmp_lg_u32 s2, PROFWG', 's_cbranch_scc1 mlp_nodump', 's_cmp_lg_u32 s40, 0', 's_cbranch_scc1 mlp_nodump',
           'v_mov_b32 v4, 0']
    for k in range(n):
        b = 52 + 4 * k
        out += [f'v_mov_b32 v5, s{b}', f'buffer_store_dword v5, v4, s[44:47], 0 offen offset:{8*k}',
                f'v_mov_b32 v6, s{b+2}', f'buffer_store_dword v6, v4, s[44:47], 0 offen offset:{8*k+4}']
    out += ['mlp_nodump:']
    return [o.replace('PROFWG', '17') for o in out]

def ident_setup():
    return [
        f'v_lshlrev_b32 v{vDma}, 4, v0',
        f'v_mov_b32 v{vLds}, v{vDma}',
        f'v_and_b32 v4, 15, v0',
        f'v_lshrrev_b32 v5, 4, v0',
        f'v_mul_u32_u24 v{vG}, 384, v4',
        f'v_lshl_add_u32 v{vG}, v5, 4, v{vG}',
        f'v_lshrrev_b32 v6, 2, v4',
        f'v_cmp_eq_u32 vcc, v6, v5',
        f'v_and_b32 v6, 1, v4',
        f'v_lshlrev_b32 v6, 4, v6',
        f'v_mov_b32 v7, 0x3f80',
        f'v_lshlrev_b32 v7, v6, v7',
        f'v_cndmask_b32 v7, 0, v7, vcc',
        f'v_and_b32 v6, 2, v4',
        f'v_cmp_eq_u32 vcc, 0, v6',
        's_nop 1',
        f'v_cndmask_b32 v8, 0, v7, vcc',
        f'v_sub_u32 v9, v7, v8',
        f'v_mov_b32 v10, 0',
        f'v_accvgpr_write_b32 a{I0}, v8', f'v_accvgpr_write_b32 a{I0+1}, v9',
        f'v_accvgpr_write_b32 a{I0+2}, v10', f'v_accvgpr_write_b32 a{I0+3}, v10',
        f'v_accvgpr_write_b32 a{I0+4}, v10', f'v_accvgpr_write_b32 a{I0+5}, v10',
        f'v_accvgpr_write_b32 a{I0+6}, v8', f'v_accvgpr_write_b32 a{I0+7}, v9']

def gelu_consts(cfg):
    return [f's_mov_b32 s{sNegC}, {hex(f2u(-CC) if not cfg.f16 else f2h(-CC) * 0x10001)}',
            f's_mov_b32 s{sAlpha}, {hex(f2u(ALPHA) if not cfg.f16 else f2h(ALPHA) * 0x10001)}']

def m_first_dma(cfg):
    a1 = [f's_mul_i32 s41, s40, 3072', f's_add_u32 m0, s41, {98304+24576}', f's_add_u32 s{sT}, s41, {23*24576}']
    a1 += [f'buffer_load_dwordx4 v{vDma}, s[{sW}:{sW+3}], s{sT} offen offset:{i*1024} lds' for i in range(3)]
    a2 = []
    for sl in range(2):
        a2 += [f's_add_u32 s{sDst}, s{sWoff}, {49152*sl}', f's_add_u32 s{sSrc}, s{sWoff}, {49152*sl}']
        for k_ in range(3): a2 += dma_block(k_) + ['s_nop 0'] + [dma(4 * k_ + i).split(' ;@')[0] for i in range(4)]
    nwarm = 0
    if cfg.warm:
        a2 += [f's_lshr_b32 s41, s2, 3', f's_and_b32 s41, s41, 31', f's_mul_i32 s41, s41, 18432', f's_mul_i32 s3, s40, 5120', f's_add_u32 s41, s41, s3']
        for i in range(5):
            if i == 4: a2 += [f's_add_u32 s41, s41, 4096']
            a2 += [f'buffer_load_dwordx4 {a(PF0 + 4*i, 4)}, v{vDma}, s[{sW}:{sW+3}], s41 offen offset:{1024*(i%4)}']
        nwarm = 5
    a2 += [f's_add_u32 s{sDst}, s{sWoff}, 98304', f's_add_u32 s{sDstSum}, s{sWoff}, 147456',
           f's_add_u32 s{sSrc}, s{sWoff}, 98304', f's_mov_b32 s{sRd}, 0', f's_mov_b32 s{sPass}, 0']
    return a1, a2, 12 + nwarm

def m_second_dma(cfg, warm_dst):
    a2 = [f's_add_u32 s{sDst}, s{sWoff}, 49152', f's_add_u32 s{sSrc}, s{sWoff}, 49152']
    for k_ in range(3): a2 += dma_block(k_) + ['s_nop 0'] + [dma(4 * k_ + i).split(' ;@')[0] for i in range(4)]
    if cfg.warm:
        a2 += [f's_lshr_b32 s41, s2, 3', f's_and_b32 s41, s41, 31', f's_mul_i32 s41, s41, 18432', f's_mul_i32 s3, s40, 5120', f's_add_u32 s41, s41, s3']
        for i in range(5):
            if i == 4: a2 += [f's_add_u32 s41, s41, 4096']
            a2 += [f'buffer_load_dwordx4 {v(warm_dst + 4*(i%4), 4)}, v{vDma}, s[{sW}:{sW+3}], s41 offen offset:{1024*(i%4)}']
    a2 += [f's_add_u32 s{sDst}, s{sWoff}, 98304', f's_add_u32 s{sDstSum}, s{sWoff}, 147456',
           f's_add_u32 s{sSrc}, s{sWoff}, 98304', f's_mov_b32 s{sRd}, 0', f's_mov_b32 s{sPass}, 0']
    return a2

def x_first_loads(cfg):
    out = []
    for p in range(3):
        out.append(f's_add_u32 s{sT2}, s{sBX}, {cfg.xps*p}')
        for s in range(6):
            out.append(f'buffer_load_dwordx4 {a(pxreg(p,s), 4)}, v{vG}, s[{sX}:{sX+3}], s{sT2} offen offset:{64*s}' + (' nt' if cfg.nt_x else ''))
    return out

def m_g1_first(cfg, early=False):
    D = cfg.D
    g1 = g1_groups(-1)
    if early: g1 = [(off - 12288, ms) for off, ms in g1]
    lst = [f'v_add_u32 v4, {0 if early else 98304}, v{vLds}']
    for g in range(6):
        lst.append(f'ds_read_b128 {a(wbuf(g),4)}, v4 offset:{g1[g][0]}')
    for g in range(12):
        if g % 2 == 0: lst.append(f's_waitcnt lgkmcnt({min(4, 10 - g) if g < 10 else 0})' if g <= 6 else f's_waitcnt lgkmcnt({max(0, 10 - g)})')
        for m in g1[g][1]: lst.append(m(wbuf(g)))
        if g + 6 < 12: lst.append(f'ds_read_b128 {a(wbuf(g+6),4)}, v4 offset:{g1[g+6][0]}')
    lst += ['s_waitcnt lgkmcnt(0)'] + ([] if early else ['s_barrier'])
    nxt = g1_groups(0)
    for g in range(D): lst.append(f'ds_read_b128 {a(wbuf(g),4)}, v{vLds} offset:{nxt[g][0]}')
    lst.append(f's_waitcnt lgkmcnt({D-cfg.wevery})')
    if cfg.static_ring: lst += [f'v_add_u32 v{vLdsS[1]}, 49152, v{vDma}', f'v_add_u32 v{vLdsS[2]}, 98304, v{vDma}']
    return lst

def m_main(cfg, L):
    P = []
    adv = [f's_add_u32 s{sDst}, s{sDst}, 49152', f's_cmp_ge_u32 s{sDst}, s{sDstSum}', f's_cselect_b32 s{sT}, 147456, 0', f's_sub_u32 s{sDst}, s{sDst}, s{sT}',
           f's_add_u32 s{sSrc}, s{sSrc}, 49152',
           f's_cmp_ge_u32 s{sSrc}, {W_BYTES}',
           f's_cselect_b32 s{sT}, {W_BYTES}, 0',
           f's_sub_u32 s{sSrc}, s{sSrc}, s{sT}']
    st = [st_op(cfg, i) for i in range(18)]
    hl = [h_op(cfg, i) for i in range(18)]
    xl = [x_op(cfg, i) for i in range(18)]
    pools = {'s': st, 'h': hl, 'x': xl}
    extras = [[pools[ch].pop(0).split('\n') for ch in cfg.plan[J]] for J in range(12)]
    assert not st and not hl and not xl
    assert all(len(extras[J]) == 5 for J in range(1, 11)) and not extras[11]
    setup = [f's_cmp_eq_u32 s{sPass}, 0'] + ([f's_cselect_b64 s[{sHx}:{sHx+1}], 0, -1'] if cfg.hskip else []) + [
             f's_cselect_b32 s{sSt}, {hex(OOB)}, s{sB1}',
             f's_add_u32 s{sSt+1}, s{sSt}, {cfg.xps}', f's_add_u32 s{sSt+2}, s{sSt}, {2*cfg.xps}',
             f's_add_u32 s{sLd}, s{sB}, 73728', f's_add_u32 s{sLx}, s{sBX}, {cfg.xts}',
             f's_cmp_eq_u32 s{sPass}, 2',
             f's_cselect_b32 s{sLd}, {hex(OOB)}, s{sLd}', f's_cselect_b32 s{sLx}, {hex(OOB)}, s{sLx}',
             f's_add_u32 s{sLd+1}, s{sLd}, 6144', f's_add_u32 s{sLd+2}, s{sLd}, 12288',
             f's_add_u32 s{sLx+1}, s{sLx}, {cfg.xps}', f's_add_u32 s{sLx+2}, s{sLx}, {2*cfg.xps}',
             f's_add_u32 s{sLdH}, s{sLd}, 4096', f's_add_u32 s{sLdH+1}, s{sLd+1}, 4096', f's_add_u32 s{sLdH+2}, s{sLd+2}, 4096']
    moves = [f'v_accvgpr_mov_b32 a{H0+i}, a{PF0+i}' for i in range(72)]
    parts = []
    for J in range(12):
        DTAG[0] = f'd{J}'
        ea = {47: list(adv) if not cfg.static_ring else []}
        kw = dict(extra_at=ea, bar_wait=[f'WAITVM:d{(J-1)%12}'])
        pre = cstamp(cfg, J)
        if J == 0:
            for k_, op in enumerate(extras[0]): ea.setdefault(cfg.xpos[k_], []).extend(op)
            kw['mid'] = ['WAITVM:x', f's_waitcnt vmcnt({cfg.mid_vm})' if not cfg.diag_nodma else 's_waitcnt vmcnt(0)'] + mid_block(cfg)
            pre = pre + setup
        elif J <= 10:
            if cfg.sub: pre = pre + sum(extras[J], [])
            else:
                for k_, op in enumerate(extras[J]): ea.setdefault(cfg.xpos[k_], []).extend(op)
        if J == 11:
            kw['extra_valu'] = {0: (13, 24, moves)}
            ea.setdefault(12, []).append('WAITVM:h')
        parts.append((pre, superstep(cfg, 2 * J, **kw)))
    DTAG[0] = 'dma'
    endp = cstamp(cfg, 12) + [f's_mov_b32 s{sB1}, s{sBX}', f's_add_u32 s{sB}, s{sB}, 73728', f's_add_u32 s{sBX}, s{sBX}, {cfg.xts}', f's_add_u32 s{sPass}, s{sPass}, 1']
    seq = []
    for J, (pre, body) in enumerate(parts): seq += pre + [f';BEGIN{J}'] + body + [f';END{J}']
    seq += endp
    res = resolve_vm(seq, seq, ('h',) if cfg.hskip else ())
    def part(J):
        i0 = res.index(f';BEGIN{J}'); i1 = res.index(f';END{J}')
        return res[i0 + 1:i1]
    strip = lambda l: [x.split(' ;@')[0] for x in l]
    bodies = [strip(part(J)) for J in range(12)]
    def barwait(b):
        i = b.index('s_barrier'); return i - 1, int(b[i - 1].split('(')[1][:-1])
    if cfg.diag_nodma: assert not cfg.sub
    if cfg.sub:
        ns = [barwait(bodies[J])[1] for J in range(1, 11)]
        nmin = min(ns)
        gen_body = list(bodies[2]); gen_body[barwait(gen_body)[0]] = f's_waitcnt vmcnt({nmin})'
        for J in range(1, 11):
            b = list(bodies[J]); b[barwait(b)[0]] = f's_waitcnt vmcnt({nmin})'
            assert b == gen_body, J
    P += ['.p2align 6', f'{L}_pass:']
    trace = []
    for J in range(12):
        pre = strip(parts[J][0])
        if 1 <= J <= 10 and cfg.sub:
            P += pre + [f's_call_b64 s[{sRet}:{sRet+1}], {L}_body']
            trace += [x for x in pre if not x.endswith(':')] + gen_body
        else:
            b = bodies[J]
            P += pre + b
            trace += [x for x in pre if not x.endswith(':')] + b
    P += endp; trace += endp
    P += [f's_cmp_lt_u32 s{sPass}, 3', f's_cbranch_scc1 {L}_pass']
    tail = ['s_waitcnt lgkmcnt(0)']
    g2 = g2_groups(24)
    for g in range(6): tail.append(f'ds_read_b128 {a(wbuf(g),4)}, v{vLds} offset:{g2[g][0]}')
    for g in range(12):
        if g % 2 == 0: tail.append(f's_waitcnt lgkmcnt({4 if g <= 6 else max(0, 10 - g)})')
        for m in g2[g][1]: tail.append(m(wbuf(g)))
        if g + 6 < 12: tail.append(f'ds_read_b128 {a(wbuf(g+6),4)}, v{vLds} offset:{g2[g+6][0]}')
    tail += ['s_nop 7']
    tail += tail_epilogue_lds(cfg, sB1) if cfg.tail_lds else tail_epilogue(cfg, sB1)
    P += stamp(cfg, 4)
    P += tail
    P += stamp(cfg, 5)
    sub = (['.p2align 6', f'{L}_body:'] + gen_body + [f's_setpc_b64 s[{sRet}:{sRet+1}]']) if cfg.sub else []
    return P, sub, trace + trace + tail

def gen(cfg, name='mlp_kernel'):
    MF2[0] = 'v_mfma_f32_16x16x32_f16' if cfg.f16 else MF
    P = []; TR = []
    def emit(lst, trace=True):
        P.extend(lst)
        if trace: TR.extend(lst)
    emit(['s_cmp_ge_u32 s2, 256', f's_cbranch_scc1 {name}_done',
          's_load_dwordx2 s[4:5], s[0:1], 0',
          's_load_dwordx2 s[6:7], s[0:1], 32',
          's_load_dwordx2 s[38:39], s[0:1], 48',
          'v_lshrrev_b32 v4, 6, v0', 'v_and_b32 v0, 63, v0', 's_nop 0', 'v_readfirstlane_b32 s40, v4'])
    emit(gelu_consts(cfg) + ident_setup())
    emit(['s_waitcnt lgkmcnt(0)',
        f's_add_u32 s{sW}, s38, {WS_W}', f's_addc_u32 s{sW+1}, s39, 0', f's_mov_b32 s{sW+2}, {W_BYTES}', f's_mov_b32 s{sW+3}, 0x20000',
        f's_add_u32 s{sH}, s38, {WS_H}', f's_addc_u32 s{sH+1}, s39, 0', f's_mov_b32 s{sH+2}, {IMG_BYTES}', f's_mov_b32 s{sH+3}, 0x20000',
        f's_mov_b32 s{sX}, s4', f's_mov_b32 s{sX+1}, s5', f's_mov_b32 s{sX+2}, {IMG_BYTES}', f's_mov_b32 s{sX+3}, 0x20000',
        f's_mov_b32 s{sO}, s6', f's_mov_b32 s{sO+1}, s7', f's_mov_b32 s{sO+2}, {IMG_BYTES}', f's_mov_b32 s{sO+3}, 0x20000',
        f's_mul_i32 s{sB}, s2, {36*6144}', f's_mul_i32 s41, s40, {3*6144}', f's_add_u32 s{sB}, s{sB}, s41', f's_mov_b32 s{sBX}, s{sB}',
        f's_mul_i32 s{sWoff}, s40, 12288'])
    if cfg.prof or cfg.prof2: P.extend([f's_mov_b32 s{i}, 0' for i in range(52, 92)])
    P.extend(stamp(cfg, 0))
    a1, a2, nafter = m_first_dma(cfg)
    emit(a1)
    for p in range(3):
        emit([f's_add_u32 s{sT2}, s{sB}, {6144*p}'])
        for s_ in range(6):
            if s_ == 4: emit([f's_add_u32 s{sT2}, s{sT2}, 4096'])
            emit([f'buffer_load_dwordx4 {a(H0 + 24*p + 4*s_, 4)}, v{vDma}, s[{sH}:{sH+3}], s{sT2} offen offset:{1024*(s_ % 4)}' + (' nt' if cfg.nt_h else '')])
    emit(a2)
    emit([f's_waitcnt vmcnt({nafter})', 's_barrier'])
    emit(x_first_loads(cfg))
    emit(m_g1_first(cfg))
    P.extend(stamp(cfg, 1))
    mp, sub, tr = m_main(cfg, name)
    P += mp; TR += tr
    P += dump_stamps(cfg, 6)
    P += dump_stamps2(cfg, 13)
    if cfg.allwg:
        P = P[:2] + ['s_memrealtime s[98:99]'] + P[2:]
        P += ['s_waitcnt vmcnt(0)', 's_memrealtime s[82:83]', 's_cmp_eq_u32 s40, 0', f's_cbranch_scc0 {name}_done',
              's_waitcnt lgkmcnt(0)', 's_lshl_b32 s3, s2, 3', f's_add_u32 s3, s3, {(200 << 20) + 4096}',
              'v_mov_b32 v4, s98', 'v_mov_b32 v5, s3', 's_nop 1', 'global_store_dword v5, v4, s[38:39]',
              'v_mov_b32 v4, s82', 's_nop 1', 'global_store_dword v5, v4, s[38:39] offset:4']
    P += [f'{name}_done:', 's_endpgm']
    P += sub
    return P, TR

def kd(name, lds=0):
    return f'''.amdhsa_kernel {name}
  .amdhsa_next_free_vgpr 512
  .amdhsa_next_free_sgpr 102
  .amdhsa_accum_offset 256
  .amdhsa_group_segment_fixed_size 0
  .amdhsa_kernarg_size 56
  .amdhsa_user_sgpr_count 2
  .amdhsa_user_sgpr_kernarg_segment_ptr 1
  .amdhsa_system_sgpr_workgroup_id_x 1
  .amdhsa_float_denorm_mode_32 3
.end_amdhsa_kernel
'''
if __name__ == '__main__':
    import asmlib
    P, TR = gen(Cfg)
    asmlib.check(TR, 'k2')
    print(len(P), 'lines', 'alpha', ALPHA, 'c', CC)
```

```python
import k2
from k2 import f2u, ALPHA, WS_W, WS_H, W_BYTES, IMG_BYTES

REC = 544
NBLK = 99
SLAB = NBLK * REC
YB = 2 * SLAB
LDS_BYTES = YB + 2 * 24576
TAPS, ROWS = 400, 2848
DWB = YB + ROWS + TAPS

vO16 = 0
vP = 1
vL16 = 2
vZ = 3
vRel = 4
vLw, vLw3, vRd, vY0, vR0, vR1, vA, vB = 8, 9, 10, 11, 12, 13, 14, 15
STS = (16, 16)
BLK = 80
ACC = 120
TMP = 136
Y0 = 144
VO = 216
HOLD = 0
CW = 144
sM, sH, sX, sD = 8, 12, 16, 20
sBase, sIMG, sT, sT2, sSelL, sDS, sDY, sOutN, sTI = 28, 30, 31, 32, 33, 34, 35, 36, 37
sWave, sSelH, sPkF, sPkf = 40, 41, 42, 43
sMaskL, sMaskR = 44, 60
sSt3 = 76
sOnes, sAl, sEps, sInv, sOut = 92, 93, 94, 95, 96
sDbg = 4
sMk3 = 100
NPACK = 576
NPKWG = 72
STAMP0 = 82

def v(b, n=1): return f'v{b}' if n == 1 else f'v[{b}:{b+n-1}]'
def a(b, n=1): return f'a{b}' if n == 1 else f'a[{b}:{b+n-1}]'
def Wt(k, R, C): return CW + 32 * k + 2 * (4 * R + C)
def blk(row, bc): return BLK + 10 * (row % 4) + 2 * bc
def Y(p, s): return Y0 + 24 * p + 4 * s
M4 = 'v_mfma_f32_4x4x4_16b_bf16'
FULL = (1 << 64) - 1

class Cfg(k2.Cfg):
    f16 = True
    nt_h = True; nt_x = True; nt_o = True
    cx_nt = False
    st_flags = ' nt'
    xps = 147456
    xts = 49152
    light = False
    light2 = False
    light3 = False
    exact_vm = True
    touch = False
    l2tile = 0
    diag_nox = False
    htouch = False
    diag_nost = False
    l3sel = [0, 1, 2, 3, 4]
    early = True
    hskip = True
    spin = 1 << 14
    nosync = False

def setexec(out, cur, val):
    if cur[0] != val:
        out.append(f's_mov_b32 exec_lo, {hex(val & 0xffffffff)}')
        out.append(f's_mov_b32 exec_hi, {hex(val >> 32)}')
        cur[0] = val

def weights_gather(vb):
    out = []
    cur = [FULL]
    rowm = lambda r: 0x3333333333333333 if r == 0 else (0xCCCCCCCCCCCCCCCC if r == 7 else FULL)
    colm = lambda c: 0x5555555555555555 if c == 0 else (0xAAAAAAAAAAAAAAAA if c == 7 else FULL)
    for k in range(3):
        for Rh in range(2):
            items = [(R, dy, c) for R in (2 * Rh, 2 * Rh + 1) for dy in range(2) for c in range(4)]
            for i, (R, dy, c) in enumerate(items):
                for dx in range(2):
                    if rowm(2 * R + dy) & colm(2 * c + dx) != FULL: out.append(f'v_mov_b32 v{Y0+2*i+dx}, 0')
            rd = []
            for i, (R, dy, c) in enumerate(items):
                for dx in range(2):
                    rho, gam = 2 * R + dy, 2 * c + dx
                    rd.append((rowm(rho) & colm(gam), f'ds_read_u16 v{Y0+2*i+dx}, v{vb} offset:{rho*ROWS + gam*TAPS + 128*k}'))
            rd.sort(key=lambda x: -x[0])
            for m, t in rd:
                setexec(out, cur, m); out.append(t)
            setexec(out, cur, FULL)
            out.append('s_waitcnt lgkmcnt(0)')
            for i, (R, dy, c) in enumerate(items): out.append(f'v_lshl_or_b32 v{Y0+2*i}, v{Y0+2*i+1}, 16, v{Y0+2*i}')
            for i, (R, dy, c) in enumerate(items): out.append(f'v_accvgpr_write_b32 a{Wt(k,R,c)+dy}, v{Y0+2*i}')
    return out

def vo(r, dy, dx): return VO + 4 * r + 2 * dy + dx
def tile_offsets():
    out = []
    for dx in range(2):
        for r in range(4):
            l, rr = sMaskL + 2 * (2 * r + dx), sMaskR + 2 * (2 * r + dx)
            out += [f's_mov_b64 s[24:25], -1' if r < 3 else f's_or_b64 s[24:25], s[{l}:{l+1}], s[{rr}:{rr+1}]',
                    f's_cmp_eq_u32 s27, 0', f's_cselect_b64 s[24:25], s[{l}:{l+1}], s[24:25]',
                    f's_cmp_eq_u32 s27, 23', f's_cselect_b64 s[24:25], s[{rr}:{rr+1}], s[24:25]']
            for dy in range(2):
                t = vo(r, dy, dx)
                out += [f's_add_u32 s26, s{sBase}, {147456*dy + 384*dx}', f'v_add_u32 v{t}, s26, v{vRel+r}', f'v_cmp_gt_u32 vcc, s{sIMG}, v{t}',
                        f's_and_b64 vcc, vcc, s[24:25]', f'v_cndmask_b32 v{t}, 2.0, v{t}, vcc']
    return out
def load_items(cfg, stage, sset):
    nt = ' nt' if cfg.cx_nt else ''
    its = []
    for r in range(4):
        for dy in range(2):
            for dx in range(2):
                its.append([f'buffer_load_dwordx4 {v(STS[sset] + 16 * r + 4 * (2 * dy + dx), 4)}, v{vo(r,dy,dx)}, s[{sX}:{sX+3}], 0 offen offset:{128*stage}{nt} ;@l{r}'])
    return its
def store_items(cfg, k):
    its = []
    for s, sb in ((k, sSt3), (3 + k, sSt3 + 3)):
        for p in range(3):
            its.append([f'buffer_store_dwordx4 {a(HOLD + 24*p + 4*s, 4)}, v{vL16}, s[{sH}:{sH+3}], s{sb+p} offen offset:{1024*(s % 3)}{cfg.st_flags} ;@s'])
    return [its[0], its[3], its[1], its[4], its[2], its[5]]

def transpose_unit(r, d, sset):
    L = lambda dy, dx: STS[sset] + 16 * r + 4 * (2 * dy + dx) + d
    t = TMP
    base, off = (vLw, 32 * REC * r) if r < 3 else (vLw3, 0)
    out = [f'v_xad_u32 v{vA}, v{vO16}, {16*d}, v{base}',
           f'v_perm_b32 v{t}, v{L(0,1)}, v{L(0,0)}, s{sSelL}',
           f'v_perm_b32 v{t+1}, v{L(1,1)}, v{L(1,0)}, s{sSelL}',
           f'v_perm_b32 v{t+2}, v{L(0,1)}, v{L(0,0)}, s{sSelH}',
           f'v_perm_b32 v{t+3}, v{L(1,1)}, v{L(1,0)}, s{sSelH}']
    if r == 3: out.append(f's_mov_b64 exec, s[{sMk3}:{sMk3+1}]')
    out.append(f'ds_write_b128 v{vA}, {v(t,4)} offset:{off + 128*d}')
    if r == 3: out.append('s_mov_b64 exec, -1')
    return out

def yout(py):
    out = []
    a0 = ACC + 8 * (py & 1); a1 = a0 + 4
    t = TMP + 4
    for oy in range(2):
        out.append(f'v_cvt_pk_bf16_f32 v{t+2*oy}, v{a0+2*oy}, v{a0+2*oy+1}')
        out.append(f'v_cvt_pk_bf16_f32 v{t+2*oy+1}, v{a1+2*oy}, v{a1+2*oy+1}')
        out.append(f'ds_write_b64 v{vY0}, {v(t+2*oy,2)} offset:{(2*py+oy)*2048}')
    return out

def row_reads(br):
    return [f'ds_read_b64 {v(blk(br,bc),2)}, v{vRd} offset:{(br*11+bc)*REC}' for bc in range(5)]

def conv_stage(k, sset, items, stores, transp=True, xtra=()):
    out = []
    fifo = []
    def emit_lds(t, tag): out.append(t); fifo.append(tag)
    def need(tag):
        idx = [i for i, x in enumerate(fifo) if x == tag]
        if idx:
            n = len(fifo) - 1 - idx[-1]
            out.append(f's_waitcnt lgkmcnt({min(n,15)})')
            del fifo[:idx[-1] + 1]
    tagof = lambda t: ('w' if t.startswith('ds_') else None)
    for br in range(4):
        for t in row_reads(br): emit_lds(t, ('row', br))
    if transp:
        out.append('WAITL:0')
        for t in transpose_unit(0, 0, sset):
            if tagof(t): emit_lds(t, 'w')
            else: out.append(t)
    fill = {(py, i): [] for py in range(6) for i in range(16)}
    for py in range(6):
        if py > 0:
            for t, p_ in zip(yout(py - 1), [2, 2, 3, 4, 4, 5]): fill[(py, p_)].append((t, tagof(t)))
        if py + 4 <= 8:
            for i, t in enumerate(row_reads(py + 4)): fill[(py, 7 + i)].append((t, ('row', py + 4)))
    upos = {0: [None, (0, 1), (0, 3), (0, 5)], 1: [(1, 6), (1, 8), (1, 12), (1, 14)], 2: [(2, 6), (2, 8), (2, 12), (2, 14)], 3: [(3, 6), (3, 8), (3, 12), (3, 14)]}
    lpos = {0: [(0, 12), (0, 14), (1, 0), (1, 1)], 1: [(1, 15), (2, 0), (2, 1), (2, 5)], 2: [(2, 15), (3, 0), (3, 1), (3, 5)], 3: [(3, 15), (4, 0), (4, 1), (4, 6)]}
    spos = [(0, 7), (0, 10), (4, 8), (4, 12), (5, 0), (5, 6)]
    for r in range(4):
        if transp:
            if r > 0: fill[upos[r][0]].append((f'WAITL:{r}', None))
            for d in range(4):
                if upos[r][d] is None: continue
                for t in transpose_unit(r, d, sset): fill[upos[r][d]].append((t, tagof(t)))
        for i in range(4):
            if 4 * r + i < len(items):
                for t in items[4 * r + i]: fill[lpos[r][i]].append((t, None))
    for it, pos in zip(stores, spos):
        for t in it: fill[pos].append((t, None))
    for i, it in enumerate(xtra):
        sl = 2 + 6 * i
        for t in it: fill[(sl // 16, sl % 16)].append((t, None))
    for py in range(6):
        for idx in range(16):
            R, C = divmod(idx, 4)
            if C == 0: need(('row', py + R))
            for px in range(2):
                aa = ACC + 8 * (py & 1) + 4 * px
                c = '0' if idx == 0 else v(aa, 4)
                out.append(f'{M4} {v(aa,4)}, {a(Wt(k,R,C),2)}, {v(blk(py+R, px+C),2)}, {c}')
            if fill[(py, idx)]:
                for t, tag in fill[(py, idx)]:
                    if tag: emit_lds(t, tag)
                    else: out.append(t)
            else:
                nxt_has_wait = (idx % 4 == 3) and idx < 15 and any(x == ('row', py + R + 1) for x in fifo)
                if not nxt_has_wait: out.append('s_nop 0')
    out += ['s_nop 4'] + yout(5)
    return out

def resolve_l(stages):
    seq = []
    for si in range(3):
        for st in stages: seq.append(st)
    fifo = []
    need = {r: [] for r in range(4)}
    for si, st in enumerate(seq):
        for t in st:
            if t.startswith('WAITL:'):
                r = int(t[6:])
                if si >= 1:
                    idx = max(i for i, x in enumerate(fifo) if x == (si - 1, f'l{r}'))
                    need[r].append(len(fifo) - 1 - idx)
            elif ';@' in t: fifo.append((si, t.split(';@')[1].strip()))
    return {r: min(x) for r, x in need.items()}

def ln_block(cfg):
    NP = 3
    out = []
    t = ACC
    s1 = [t + p for p in range(NP)]; s2 = [t + 3 + p for p in range(NP)]
    for i in range(24):
        for p in range(NP):
            r = Y0 + 24 * p + i
            c1 = '0' if i == 0 else f'v{s1[p]}'; c2 = '0' if i == 0 else f'v{s2[p]}'
            out.append(f'v_dot2_f32_bf16 v{s1[p]}, v{r}, s{sOnes}, {c1}')
            out.append(f'v_dot2_f32_bf16 v{s2[p]}, v{r}, v{r}, {c2}')
    out.append('s_nop 2')
    allr = s1 + s2
    tm = [t + 12 + i for i in range(len(allr))]
    for sw in ('v_permlane16_swap_b32', 'v_permlane32_swap_b32'):
        for r, q in zip(allr, tm): out.append(f'v_mov_b32 v{q}, v{r}')
        out.append('s_nop 1')
        for r, q in zip(allr, tm): out.append(f'{sw} v{q}, v{r}')
        out.append('s_nop 1')
        for r, q in zip(allr, tm): out.append(f'v_add_f32 v{r}, v{r}, v{q}')
    rs = [t + 6 + p for p in range(NP)]; nb = [t + 9 + p for p in range(NP)]
    for p in range(NP): out.append(f'v_mul_f32 v{s1[p]}, s{sInv}, v{s1[p]}')
    for p in range(NP): out.append(f'v_mul_f32 v{s2[p]}, s{sInv}, v{s2[p]}')
    for p in range(NP): out.append(f'v_fma_f32 v{s2[p]}, -v{s1[p]}, v{s1[p]}, v{s2[p]}')
    for p in range(NP): out.append(f'v_max_f32 v{s2[p]}, 0, v{s2[p]}')
    for p in range(NP): out.append(f'v_add_f32 v{s2[p]}, s{sEps}, v{s2[p]}')
    for p in range(NP): out.append(f'v_rsq_f32 v{rs[p]}, v{s2[p]}')
    out.append('s_nop 0')
    for p in range(NP): out.append(f'v_mul_f32 v{rs[p]}, s{sAl}, v{rs[p]}')
    for p in range(NP): out.append(f'v_mul_f32 v{nb[p]}, -v{s1[p]}, v{rs[p]}')
    k = 0
    for p in range(NP):
        for s in range(6):
            for d in range(4):
                r = Y(p, s) + d
                x0, x1 = t + 12 + 2 * (k % 4), t + 13 + 2 * (k % 4); k += 1
                out.append(f'v_lshlrev_b32 v{x0}, 16, v{r}')
                out.append(f'v_and_b32 v{x1}, 0xffff0000, v{r}')
                out.append(f'v_fma_f32 v{x0}, v{x0}, v{rs[p]}, v{nb[p]}')
                out.append(f'v_fma_f32 v{x1}, v{x1}, v{rs[p]}, v{nb[p]}')
                out.append(f'v_cvt_pk_bf16_f32 v{r}, v{x0}, v{x1}')
    return out

def pack_loads(lab, dst, t, lane):
    out = [f's_mul_hi_u32 s46, s{sPkF}, {(1 << 32) // 24 + 1}',
           f's_mul_i32 s47, s46, 24', f's_sub_u32 s{sPkf}, s{sPkF}, s47',
           f'v_and_b32 v{t}, 15, v{lane}', f'v_lshrrev_b32 v{t+1}, 4, v{lane}',
           f's_cmp_lt_u32 s{sPkf}, 12', f's_cbranch_scc0 {lab}_pk2']
    out += [f's_add_u32 s48, s46, 1', f's_cmp_eq_u32 s48, 24', f's_cselect_b32 s48, 0, s48',
            f's_lshr_b32 s49, s{sPkf}, 1', f's_and_b32 s50, s{sPkf}, 1',
            f's_lshl_b32 s48, s48, 6', f's_lshl_b32 s50, s50, 5', f's_add_u32 s48, s48, s50',
            f's_mul_i32 s49, s49, {32*1536}', f's_add_u32 s48, s48, s49',
            f'v_mul_u32_u24 v{t+2}, {8*1536}, v{t+1}', f'v_lshl_add_u32 v{t+2}, v{t}, 1, v{t+2}',
            f's_mov_b32 s{sM}, s52', f's_mov_b32 s{sM+1}, s53', f's_mov_b32 s{sM+2}, {192*768*2}', f's_mov_b32 s{sM+3}, 0x20000']
    for e in range(8):
        out.append(f's_add_u32 s49, s48, {e*1536}')
        out.append(f'buffer_load_ushort v{dst+e}, v{t+2}, s[{sM}:{sM+3}], s49 offen')
    out += [f's_branch {lab}_pk3', f'{lab}_pk2:']
    out += [f's_add_u32 s48, s46, 23', f's_cmp_ge_u32 s48, 24', f's_cselect_b32 s49, 24, 0', f's_sub_u32 s48, s48, s49',
            f's_sub_u32 s49, s{sPkf}, 12', f's_lshr_b32 s50, s49, 1', f's_and_b32 s49, s49, 1',
            f's_mul_i32 s48, s48, {32*384}', f's_lshl_b32 s50, s50, 6', f's_lshl_b32 s49, s49, 3',
            f's_add_u32 s48, s48, s50', f's_add_u32 s48, s48, s49',
            f'v_lshrrev_b32 v{t+3}, 2, v{t}', f'v_lshlrev_b32 v{t+3}, 4, v{t+3}',
            f'v_and_b32 v{t+4}, 3, v{t}', f'v_lshl_add_u32 v{t+3}, v{t+4}, 1, v{t+3}',
            f'v_mul_u32_u24 v{t+2}, {4*384}, v{t+1}', f'v_add_u32 v{t+2}, v{t+2}, v{t+3}',
            f's_mov_b32 s{sM}, s54', f's_mov_b32 s{sM+1}, s55', f's_mov_b32 s{sM+2}, {192*768*2}', f's_mov_b32 s{sM+3}, 0x20000']
    for e in range(8):
        out.append(f's_add_u32 s49, s48, {(16*(e>>2) + (e&3))*384}')
        out.append(f'buffer_load_ushort v{dst+e}, v{t+2}, s[{sM}:{sM+3}], s49 offen')
    out += [f'{lab}_pk3:']
    return out

def pack_store(lab, cfg, src, dst):
    out = []
    for d in range(4): out.append(f'v_lshl_or_b32 v{dst+d}, v{src+2*d+1}, 16, v{src+2*d}')
    if cfg.f16:
        out += [f's_cmp_lt_u32 s{sPkf}, 12', f's_cbranch_scc1 {lab}_pk5']
        for e in range(8): out.append(f'v_lshlrev_b32 v{src+e}, 16, v{src+e}')
        for d in range(4): out.append(f'v_cvt_pk_f16_f32 v{dst+d}, v{src+2*d}, v{src+2*d+1}')
        out.append(f'{lab}_pk5:')
    out += [f's_add_u32 s{sM}, s38, {WS_W}', f's_addc_u32 s{sM+1}, s39, 0', f's_mov_b32 s{sM+2}, {W_BYTES}', f's_mov_b32 s{sM+3}, 0x20000',
            f's_lshl_b32 s3, s{sPkF}, 10',
            f'buffer_store_dwordx4 {v(dst,4)}, v{vL16}, s[{sM}:{sM+3}], s3 offen sc1']
    return out

def gen(cfg, name='fused_kernel'):
    k2.MF2[0] = 'v_mfma_f32_16x16x32_f16' if cfg.f16 else k2.MF
    P = []; TR = []
    n3 = [0]
    def st3():
        if cfg.light3 and n3[0] in cfg.l3sel:
            j = cfg.l3sel.index(n3[0])
            P.extend([f's_memtime s[{82+2*j}:{83+2*j}]'])
        n3[0] += 1
        if False:
            P.extend(['s_memtime s[102:103]' if False else 's_memtime s[98:99]', 's_waitcnt lgkmcnt(0)', f'v_writelane_b32 v253, s98, {n3[0]}']); n3[0] += 1
    def emit(l, tr=True):
        P.extend(l)
        if tr: TR.extend([x for x in l if not x.endswith(':')])
    emit(['s_cmp_ge_u32 s2, 256', f's_cbranch_scc1 {name}_done'])
    if cfg.light: P += ['s_memtime s[6:7]', 's_memrealtime s[8:9]', 's_waitcnt lgkmcnt(0)', 's_mov_b32 s82, s6', 's_mov_b32 s83, s8']
    st3()
    emit(['s_load_dwordx4 s[4:7], s[0:1], 0',
          's_load_dwordx2 s[38:39], s[0:1], 48',
          's_load_dwordx4 s[52:55], s[0:1], 16',
          'v_lshrrev_b32 v1, 6, v0', 'v_and_b32 v0, 63, v0', 's_nop 0',
          f'v_readfirstlane_b32 s{sWave}, v1',
          f's_mov_b32 s{sIMG}, {IMG_BYTES}', f's_mov_b32 s{sOnes}, 0x3f803f80',
          f's_mov_b32 s{sSelL}, 0x05040100', f's_mov_b32 s{sSelH}, 0x07060302',
          f's_mov_b32 s{sAl}, {hex(f2u(ALPHA))}', f's_mov_b32 s{sEps}, {hex(f2u(1e-5))}', f's_mov_b32 s{sInv}, {hex(f2u(1.0/192))}',
          f'v_lshlrev_b32 v{vL16}, 4, v0', f'v_mov_b32 v{vZ}, 0',
          's_waitcnt lgkmcnt(0)',
          f's_mov_b32 s{sX}, s4', f's_mov_b32 s{sX+1}, s5', f's_mov_b32 s{sX+2}, {IMG_BYTES}', f's_mov_b32 s{sX+3}, 0x20000',
          f's_mov_b32 s{sD}, s6', f's_mov_b32 s{sD+1}, s7', f's_mov_b32 s{sD+2}, {49*384}', f's_mov_b32 s{sD+3}, 0x20000',
          f's_add_u32 s{sH}, s38, {WS_H}', f's_addc_u32 s{sH+1}, s39, 0', f's_mov_b32 s{sH+2}, {IMG_BYTES}', f's_mov_b32 s{sH+3}, 0x20000',
          f's_load_dwordx2 s[{sDbg}:{sDbg+1}], s[0:1], 40', f's_mov_b32 s{sTI}, 0'])
    st3()
    t = Y0
    c = []
    for m in range(5):
        c += [f's_lshl_b32 s{sT}, s{sWave}, 6', f's_add_u32 s{sT}, s{sT}, {256*m}',
              f'v_add_u32 v{t}, s{sT}, v0',
              f'v_mul_u32_u24 v{t+1}, 5892, v{t}', f'v_lshrrev_b32 v{t+1}, 20, v{t+1}',
              f'v_mul_u32_u24 v{t+2}, 178, v{t+1}', f'v_sub_u32 v{t+2}, v{t}, v{t+2}',
              f'v_mul_u32_u24 v{t+3}, 2622, v{t+2}', f'v_lshrrev_b32 v{t+3}, 16, v{t+3}',
              f'v_mul_u32_u24 v{t+4}, 25, v{t+3}', f'v_sub_u32 v{t+4}, v{t+2}, v{t+4}',
              f'v_mul_u32_u24 v{t+5}, 7, v{t+1}', f'v_add_u32 v{t+5}, v{t+5}, v{t+3}',
              f'v_mul_u32_u24 v{t+5}, 24, v{t+5}', f'v_add_u32 v{t+5}, v{t+5}, v{t+4}', f'v_lshlrev_b32 v{t+5}, 4, v{t+5}',
              f'v_cmp_gt_u32 vcc, 7, v{t+3}', f'v_cmp_gt_u32 s[44:45], 24, v{t+4}', 's_nop 1', f's_and_b64 vcc, vcc, s[44:45]',
              f'v_cndmask_b32 v{t+5}, 2.0, v{t+5}, vcc',
              f's_lshl_b32 s{sT}, s{sWave}, 10', f's_add_u32 m0, s{sT}, {DWB + 4096*m}', 's_nop 0',
              f'buffer_load_dwordx4 v{t+5}, s[{sD}:{sD+3}], 0 offen lds']
    emit(c)
    pk = [f's_mov_b32 s{sPkF}, -1', f's_cmp_lt_u32 s2, {NPKWG}', f's_cbranch_scc0 {name}_nopk',
          f's_lshl_b32 s44, s2, 3', f's_lshl_b32 s45, s{sWave}, 1', f's_add_u32 s{sPkF}, s44, s45']
    pk += pack_loads(f'{name}_a', Y0 + 32, ACC, 0) + [f's_add_u32 s{sPkF}, s{sPkF}, 1'] + pack_loads(f'{name}_a2', Y0 + 41, ACC, 0) + [f'{name}_nopk:']
    st3()
    if not cfg.nosync: P += pk
    st3()
    c = [f'v_and_b32 v{t}, 7, v0', f'v_lshrrev_b32 v{t+1}, 3, v0']
    for r in range(4):
        if r < 3: c += [f's_lshl_b32 s{sT}, s{sWave}, 3', f's_add_u32 s{sT}, s{sT}, {32*r}', f'v_add_u32 v{t+2}, s{sT}, v{t+1}']
        else:
            c += [f's_add_u32 s{sT}, s{sWave}, 96', f's_min_u32 s{sT}, s{sT}, 98', f'v_mov_b32 v{t+2}, s{sT}',
                  f'v_cmp_gt_u32 s[{sMk3}:{sMk3+1}], 8, v0']
        c += [f'v_mul_u32_u24 v{t+3}, 745, v{t+2}', f'v_lshrrev_b32 v{t+3}, 13, v{t+3}',
              f'v_mul_u32_u24 v{t+4}, 11, v{t+3}', f'v_sub_u32 v{t+4}, v{t+2}, v{t+4}',
              f'v_mul_u32_u24 v{t+5}, {2*384}, v{t+3}', f'v_lshl_add_u32 v{t+5}, v{t+4}, 1, v{t+5}',
              f'v_mul_u32_u24 v{t+5}, 384, v{t+5}',
              f'v_lshl_add_u32 v{vRel+r}, v{t}, 4, v{t+5}']
        for dx in range(2):
            mL = sMaskL + 2 * (2 * r + dx); mR = sMaskR + 2 * (2 * r + dx)
            c += [f'v_lshl_add_u32 v{t+6}, v{t+4}, 1, {dx}',
                  f'v_cmp_lt_u32 s[{mL}:{mL+1}], 2, v{t+6}', f'v_cmp_gt_u32 s[{mR}:{mR+1}], 19, v{t+6}']
            if r == 3:
                c += ['s_nop 1', f's_and_b64 s[{mL}:{mL+1}], s[{mL}:{mL+1}], s[{sMk3}:{sMk3+1}]', f's_and_b64 s[{mR}:{mR+1}], s[{mR}:{mR+1}], s[{sMk3}:{sMk3+1}]']
        if r == 0: c += [f'v_mul_u32_u24 v{vLw}, {REC}, v{t+2}']
        if r == 3: c += [f'v_mul_u32_u24 v{vLw3}, {REC}, v{t+2}', f'v_cndmask_b32 v{vRel+3}, 2.0, v{vRel+3}, s[{sMk3}:{sMk3+1}]']
    c += [f'v_lshrrev_b32 v{t}, 2, v0', f'v_and_b32 v{t+1}, 3, v0', f'v_lshrrev_b32 v{t+2}, 3, v{t}',
          f's_lshl_b32 s{sT}, s{sWave}, 1',
          f'v_add_u32 v{t+2}, s{sT}, v{t+2}', f'v_bfe_u32 v{t+3}, v{t}, 1, 2', f'v_xor_b32 v{t+4}, v{t+2}, v{t+3}',
          f'v_lshlrev_b32 v{t+4}, 1, v{t+4}', f'v_lshl_add_u32 v{t+4}, v{t+3}, 4, v{t+4}',
          f'v_and_b32 v{t+5}, 1, v{t}', f'v_add_u32 v{t+4}, v{t+4}, v{t+5}', f'v_lshlrev_b32 v{t+4}, 3, v{t+4}',
          f'v_mul_u32_u24 v{t+5}, {2*REC}, v{t+1}', f'v_add_u32 v{vRd}, v{t+4}, v{t+5}']
    c += [f's_lshl_b32 s{sT2}, s{sWave}, 4', f'v_add_u32 v{t+7}, s{sT2}, v{t}',
          f'v_bfe_u32 v{t+8}, v{t+7}, 3, 1', f'v_lshlrev_b32 v{t+8}, 2, v{t+8}', f'v_xor_b32 v{t+7}, v{t+7}, v{t+8}',
          f'v_lshlrev_b32 v{t+7}, 5, v{t+7}', f'v_lshl_add_u32 v{t+7}, v{t+1}, 3, v{t+7}', f'v_add_u32 v{vY0}, {YB}, v{t+7}']
    c += [f'v_lshrrev_b32 v{t}, 4, v0', f'v_bfe_u32 v{t+1}, v0, 2, 2', f'v_and_b32 v{t+2}, 3, v0',
          f's_mul_i32 s{sT}, s{sWave}, {3*2048}', f's_add_u32 s{sT}, s{sT}, {YB}']
    for h, vr in ((0, vR0), (1, vR1)):
        c += [f'v_lshl_add_u32 v{t+3}, v{t}, 3, v{t+1}', f'v_add_u32 v{t+3}, {4*h}, v{t+3}',
              f'v_and_b32 v{t+4}, 1, v{t}', f'v_lshlrev_b32 v{t+4}, 2, v{t+4}', f'v_xor_b32 v{t+3}, v{t+3}, v{t+4}',
              f'v_lshlrev_b32 v{t+3}, 5, v{t+3}', f'v_lshl_add_u32 v{t+3}, v{t+2}, 3, v{t+3}', f'v_add_u32 v{vr}, s{sT}, v{t+3}']
    vb = Y0 + 40
    c += [f'v_lshrrev_b32 v{t}, 2, v0', f's_lshl_b32 s{sT}, s{sWave}, 5', f'v_lshlrev_b32 v{t}, 1, v{t}', f'v_add_u32 v{t}, s{sT}, v{t}',
          f'v_bfe_u32 v{t+1}, v0, 1, 1', f'v_mul_u32_u24 v{t+1}, {ROWS}, v{t+1}', f'v_and_b32 v{t+2}, 1, v0', f'v_mul_u32_u24 v{t+2}, {TAPS}, v{t+2}',
          f'v_add_u32 v{t+1}, v{t+1}, v{t+2}', f'v_sub_u32 v{t}, v{t}, v{t+1}', f'v_add_u32 v{vb}, {DWB}, v{t}',
          f'v_and_b32 v{vO16}, 7, v0', f'v_lshlrev_b32 v{vO16}, 4, v{vO16}']
    emit(c)
    def tile_setup(fetch):
        o = [f's_sub_u32 s24, 2, {fetch}',
             f's_lshr_b32 s25, s2, 3', f's_lshl_b32 s24, s24, 5', f's_add_u32 s25, s25, s24',
             f's_and_b32 s26, s2, 7', f's_lshl_b32 s26, s26, 2', f's_and_b32 s27, s25, 3', f's_add_u32 s26, s26, s27',
             f's_lshr_b32 s27, s25, 2',
             f's_mul_i32 s24, s26, {12*384}', f's_lshl_b32 s25, s27, 4', f's_add_u32 s24, s24, s25',
             f's_sub_u32 s24, s24, {3*384+3}', f's_mul_i32 s{sBase}, s24, 384',
             f's_cmp_eq_u32 {fetch}, 3', f's_cselect_b32 s{sBase}, 0x60000000, s{sBase}']
        if cfg.diag_nox: o += [f's_mov_b32 s{sBase}, 0x60000000']
        return o + tile_offsets()
    strip = lambda l: [x.split(' ;@')[0] for x in l]
    def store_bases():
        o = [f's_mul_i32 s25, s2, 3', f's_add_u32 s25, s25, 2', f's_mul_i32 s25, s25, 12', f's_mul_i32 s26, s{sWave}, 3', f's_add_u32 s25, s25, s26',
             f's_mul_i32 s25, s25, 6144', f's_add_u32 s26, s25, 3072',
             f's_cmp_eq_u32 s{sTI}, {1 if not cfg.diag_nost else 9}', f's_cselect_b32 s{sSt3}, s25, 0x70000000',
             f's_cmp_eq_u32 s{sTI}, {2 if not cfg.diag_nost else 9}', f's_cselect_b32 s{sSt3+3}, s26, 0x70000000']
        for b in (sSt3, sSt3 + 3): o += [f's_add_u32 s{b+1}, s{b}, 6144', f's_add_u32 s{b+2}, s{b}, 12288']
        return o
    emit(tile_setup('0'))
    emit(strip(sum(load_items(cfg, 0, 0), [])))
    st3()
    emit(['s_waitcnt vmcnt(16)'])
    st3()
    emit(['s_barrier'])
    st3()
    if not cfg.nosync:
        P += [f's_cmp_eq_u32 s{sPkF}, -1', f's_cbranch_scc1 {name}_nops'] + pack_store(f'{name}_b', cfg, Y0 + 41, Y0)
        P += [f's_sub_u32 s{sPkF}, s{sPkF}, 1', f's_sub_u32 s{sPkf}, s{sPkf}, 1'] + pack_store(f'{name}_b2', cfg, Y0 + 32, Y0 + 4) + ['s_nop 1', f'{name}_nops:']
    emit(weights_gather(vb))
    st3()
    emit(['s_waitcnt vmcnt(0)'])
    st3()
    emit([f'v_add_u32 v{vLw}, {SLAB}, v{vLw}', f'v_add_u32 v{vLw3}, {SLAB}, v{vLw3}', f'v_add_u32 v{vRd}, {SLAB}, v{vRd}'])
    for r in range(4):
        for d in range(4): emit(transpose_unit(r, d, 0))
    emit(strip(sum(load_items(cfg, 1, 0), [])))
    raw = {k: conv_stage(k, 0, load_items(cfg, (k + 2) % 3, 0), store_items(cfg, k)) for k in range(3)}
    nw = resolve_l([raw[0], raw[1], raw[2]])
    fix = lambda l: [(f's_waitcnt vmcnt({nw[int(x[6:])]})' if x.startswith('WAITL:') else x.split(' ;@')[0]) for x in l]
    body = {key: fix(val) for key, val in raw.items()}
    tailst = 0
    for x in reversed(raw[0]):
        if ';@l' in x: break
        if ';@s' in x: tailst += 1
    emit([f's_mov_b32 s{sT}, 0x70000000'] + [f'buffer_store_dword v{vA}, v{vL16}, s[{sH}:{sH+3}], s{sT} offen'] * tailst)
    emit([f'v_subrev_u32 v{vLw}, {SLAB}, v{vLw}', f'v_subrev_u32 v{vLw3}, {SLAB}, v{vLw3}', f's_mov_b32 s{sDS}, {-SLAB & 0xffffffff}', f's_mov_b32 s{sDY}, 24576',
          's_waitcnt lgkmcnt(0)'])
    st3()
    emit(['s_barrier'])
    st3()
    if not cfg.nosync:
        P += [f's_cmp_eq_u32 s{sPkF}, -1', f's_cbranch_scc1 {name}_nopub', f's_cmp_eq_u32 s{sWave}, 0', f's_cbranch_scc0 {name}_nopub',
              f'v_mov_b32 v{vB}, 1', 's_mov_b32 exec_lo, 1', 's_mov_b32 exec_hi, 0',
              f'global_atomic_add v{vZ}, v{vB}, s[{sDbg}:{sDbg+1}]', 's_mov_b64 exec, -1', f'{name}_nopub:']
    def after(k):
        o = ['s_waitcnt lgkmcnt(0)', 's_barrier']
        for p in range(3):
            for sp in range(2):
                for h in range(2):
                    o.append(f'ds_read_b64_tr_b16 {v(Y(p,2*k+sp)+2*h,2)}, v{vR0 if h == 0 else vR1} offset:{p*2048 + sp*1024}')
        o += [f'v_add_u32 v{vRd}, s{sDS}, v{vRd}', f'v_subrev_u32 v{vLw}, s{sDS}, v{vLw}', f'v_subrev_u32 v{vLw3}, s{sDS}, v{vLw3}',
              f'v_add_u32 v{vY0}, s{sDY}, v{vY0}', f'v_add_u32 v{vR0}, s{sDY}, v{vR0}', f'v_add_u32 v{vR1}, s{sDY}, v{vR1}',
              f's_sub_u32 s{sDS}, 0, s{sDS}', f's_sub_u32 s{sDY}, 0, s{sDY}']
        return o
    sn = [0]
    def st2():
        if not cfg.light2: return []
        sn[0] += 1
        return [f's_cmp_eq_u32 s{sTI}, {cfg.l2tile}', f's_cbranch_scc0 {name}_s2_{sn[0]}', f's_memtime s[{STAMP0-2+2*((sn[0]-1)%5+1)}:{STAMP0-1+2*((sn[0]-1)%5+1)}]', f'{name}_s2_{sn[0]}:']
    lns = ln_block(cfg)
    K = k2
    emit([f's_mov_b32 s{sTI}, 0'])
    P += ['.p2align 6', f'{name}_tile:']
    P += st2()
    emit(store_bases())
    if not cfg.nosync:
        P += [f's_cmp_eq_u32 s{sTI}, 2', f's_cbranch_scc0 {name}_nopoll', f's_cmp_eq_u32 s{sWave}, 0', f's_cbranch_scc0 {name}_nopoll',
              f'global_load_dword v{vP}, v{vZ}, s[{sDbg}:{sDbg+1}] sc1', f'{name}_nopoll:']
    emit(body[0] + after(0))
    P += st2()
    emit([f's_add_u32 s3, s{sTI}, 1'] + tile_setup('s3'))
    if not cfg.nosync:
        ft = ACC
        fb = [f's_cmp_eq_u32 s{sTI}, 2', f's_cbranch_scc0 {name}_nochk', f's_cmp_eq_u32 s{sWave}, 0', f's_cbranch_scc0 {name}_nochk',
              f's_waitcnt vmcnt(22)', f'v_readfirstlane_b32 s44, v{vP}', 's_nop 3', f's_cmp_ge_u32 s44, {NPKWG}', f's_cbranch_scc1 {name}_acq',
              f's_mov_b32 s45, {cfg.spin}', f'{name}_spin:',
              f'global_load_dword v{vP}, v{vZ}, s[{sDbg}:{sDbg+1}] sc1', 's_waitcnt vmcnt(0)', f'v_readfirstlane_b32 s44, v{vP}', 's_nop 3',
              f's_cmp_ge_u32 s44, {NPKWG}', f's_cbranch_scc1 {name}_acq',
              's_sub_u32 s45, s45, 1', 's_cmp_lg_u32 s45, 0', f's_cbranch_scc1 {name}_spin',
              's_load_dwordx4 s[52:55], s[0:1], 16', f'v_lshrrev_b32 v{ft}, 4, v{vL16}', f's_mov_b32 s{sPkF}, 0', 's_waitcnt vmcnt(0) lgkmcnt(0)', f'{name}_self:']
        fb += pack_loads(f'{name}_c', ft + 8, ft + 1, ft) + ['s_waitcnt vmcnt(0)'] + pack_store(f'{name}_d', cfg, ft + 8, ft + 16)
        fb += ['s_waitcnt vmcnt(0)', f's_add_u32 s{sPkF}, s{sPkF}, 1', f's_cmp_lt_u32 s{sPkF}, {NPACK}', f's_cbranch_scc1 {name}_self',
               f'{name}_acq:', 'buffer_inv sc1', f'{name}_nochk:']
        P += fb
    emit(body[1] + after(1))
    P += st2()
    pre = [f's_add_u32 s{K.sW}, s38, {WS_W}', f's_addc_u32 s{K.sW+1}, s39, 0', f's_mov_b32 s{K.sW+2}, {W_BYTES}', f's_mov_b32 s{K.sW+3}, 0x20000',
           f's_mul_i32 s{K.sWoff}, s40, 12288', f's_cmp_eq_u32 s40, 1', f's_cselect_b32 s24, {23*24576}, s{K.sWoff}']
    its = []
    for i in range(12):
        it = []
        if i % 4 == 0: it += [f's_add_u32 m0, s{K.sWoff}, {4096*(i//4)}', f's_add_u32 s{sT}, s24, {4096*(i//4)}', 's_nop 0']
        it.append(f'buffer_load_dwordx4 v{vL16}, s[{K.sW}:{K.sW+3}], s{sT} offen offset:{1024*(i%4)} lds')
        its.append(it)
    xbase = [f's_lshr_b32 s24, s2, 3', f's_and_b32 s25, s2, 7', f's_lshl_b32 s25, s25, 2', f's_and_b32 s26, s24, 3', f's_add_u32 s25, s25, s26',
             f's_lshr_b32 s24, s24, 2', f's_mul_i32 s25, s25, 12', f's_mul_i32 s26, s40, 3', f's_add_u32 s25, s25, s26',
             f's_mul_i32 s25, s25, 24', f's_add_u32 s25, s25, s24', f's_mul_i32 s{K.sBX}, s25, 6144']
    vgs = [f'v_and_b32 v{vA}, 0xf0, v{vL16}', f'v_mul_u32_u24 v{K.vG}, 24, v{vA}', f'v_lshrrev_b32 v{vA}, 4, v{vL16}', f'v_and_b32 v{vA}, 0x30, v{vA}',
           f'v_add_u32 v{K.vG}, v{K.vG}, v{vA}']
    xl = lambda p, s_: f'buffer_load_dwordx4 {a(K.pxreg(p,s_), 4)}, v{K.vG}, s[{K.sX}:{K.sX+3}], s{48+p} offen offset:{64*s_}' + (' nt' if cfg.nt_x else '')
    pre = xbase + [f's_mov_b32 s48, s{K.sBX}', f's_add_u32 s49, s48, {cfg.xps}', f's_add_u32 s50, s49, {cfg.xps}'] + vgs + pre
    xearly = [(p, s_) for p in range(3) for s_ in range(6) if K.pxreg(p, s_) + 3 < Wt(2, 0, 0)]
    xlate = [(p, s_) for p in range(3) for s_ in range(6) if (p, s_) not in xearly]
    cl = strip(conv_stage(2, 0, its, store_items(cfg, 2), transp=False, xtra=[[xl(p, s_)] for p, s_ in xearly]))
    P += [f's_cmp_eq_u32 s{sTI}, 2', f's_cbranch_scc0 {name}_nl'] + pre + cl + after(2) + [f's_branch {name}_last', f'{name}_nl:']
    emit(body[2] + after(2) + ['s_waitcnt lgkmcnt(0)'])
    P += st2()
    P += [f's_call_b64 s[42:43], {name}_ln']; TR += lns
    wHold = [f'v_accvgpr_write_b32 a{HOLD+i}, v{Y0+i}' for i in range(72)]
    wP = [f'v_accvgpr_write_b32 a{K.PF0+i}, v{Y0+i}' for i in range(72)]
    P += [f's_cmp_eq_u32 s{sTI}, 1', f's_cbranch_scc1 {name}_ln1'] + wHold + [f's_branch {name}_lnd', f'{name}_ln1:'] + wP + [f'{name}_lnd:']
    TR += wHold + wP
    P += st2()
    P += [f's_add_u32 s{sTI}, s{sTI}, 1', f's_branch {name}_tile', f'{name}_last:']
    emit(['s_waitcnt vmcnt(0) lgkmcnt(0)', 's_barrier'])
    if cfg.light: P += ['s_memtime s[6:7]', 's_memrealtime s[24:25]', 's_waitcnt lgkmcnt(0)', 's_mov_b32 s84, s6', 's_mov_b32 s85, s24']
    emit(['s_load_dwordx2 s[6:7], s[0:1], 32',
          'v_mbcnt_lo_u32_b32 v0, -1, 0', 'v_mbcnt_hi_u32_b32 v0, -1, v0'])
    emit(K.gelu_consts(cfg) + K.ident_setup())
    emit([f's_add_u32 s{K.sW}, s38, {WS_W}', f's_addc_u32 s{K.sW+1}, s39, 0', f's_mov_b32 s{K.sW+2}, {W_BYTES}', f's_mov_b32 s{K.sW+3}, 0x20000',
          f's_mul_i32 s{K.sWoff}, s40, 12288',
          f's_mul_i32 s{K.sB}, s2, {36*6144}', f's_mul_i32 s41, s40, {3*6144}', f's_add_u32 s{K.sB}, s{K.sB}, s41',
          's_waitcnt lgkmcnt(0)',
          f's_mov_b32 s{K.sO}, s6', f's_mov_b32 s{K.sO+1}, s7', f's_mov_b32 s{K.sO+2}, {IMG_BYTES}', f's_mov_b32 s{K.sO+3}, 0x20000'])
    emit(xbase + [f's_mov_b32 s48, s{K.sBX}', f's_add_u32 s49, s48, {cfg.xps}', f's_add_u32 s50, s49, {cfg.xps}'])
    emit(K.m_second_dma(cfg, 240) + [xl(p, s_) for p, s_ in xlate])
    P += [f's_call_b64 s[42:43], {name}_ln']; TR += lns
    emit([f'v_accvgpr_write_b32 a{K.H0+i}, v{Y0+i}' for i in range(72)])
    emit(K.m_g1_first(cfg, early=True))
    if cfg.light: P += ['s_memtime s[6:7]', 's_memrealtime s[4:5]', 's_waitcnt lgkmcnt(0)', 's_mov_b32 s86, s6', 's_mov_b32 s87, s4']
    mp, sub, tr = K.m_main(cfg, name)
    P += mp; TR += tr
    P += K.dump_stamps2(cfg, 13)
    if cfg.light:
        P += ['s_waitcnt vmcnt(0)', 's_memtime s[6:7]', 's_memrealtime s[4:5]', 's_load_dwordx2 s[8:9], s[0:1], 40', 's_waitcnt lgkmcnt(0)', 's_mov_b32 s88, s6', 's_mov_b32 s89, s4'] + [f'v_writelane_b32 v255, s{82+i}, {i}' for i in range(8)] + [
              's_cmp_eq_u32 s2, 17', f's_cbranch_scc0 {name}_done', 's_cmp_eq_u32 s40, 0', f's_cbranch_scc0 {name}_done',
              'v_mbcnt_lo_u32_b32 v0, -1, 0', 'v_mbcnt_hi_u32_b32 v0, -1, v0', 'v_lshlrev_b32 v1, 2, v0', 'v_cmp_gt_u32 vcc, 8, v0', 's_and_saveexec_b64 s[10:11], vcc',
              'global_store_dword v1, v255, s[8:9] offset:16']
    if cfg.light2 or cfg.light3:
        P += ['s_waitcnt vmcnt(0)', 's_load_dwordx2 s[8:9], s[0:1], 40', 's_waitcnt lgkmcnt(0)',
              's_cmp_eq_u32 s2, 17', f's_cbranch_scc0 {name}_done', 's_cmp_eq_u32 s40, 0', f's_cbranch_scc0 {name}_done']
        P += [f'v_writelane_b32 v255, s{STAMP0+2*i}, {i}' for i in range(5)]
        P += ['v_mbcnt_lo_u32_b32 v0, -1, 0', 'v_mbcnt_hi_u32_b32 v0, -1, v0', 'v_lshlrev_b32 v1, 2, v0', 'v_cmp_gt_u32 vcc, 5, v0', 's_and_saveexec_b64 s[10:11], vcc',
              'global_store_dword v1, v255, s[8:9] offset:64']
    P += [f'{name}_done:', 's_endpgm']
    P += ['.p2align 6', f'{name}_ln:'] + lns + ['s_setpc_b64 s[42:43]']
    P += sub
    return P, TR

def kd(name):
    return k2.kd(name)

if __name__ == '__main__':
    import asmlib
    P, TR = gen(Cfg)
    asmlib.check(TR, 'kf')
    print(len(P))
```

```python
import k2
from k2 import f2u, ALPHA, WS_W, WS_H, W_BYTES, IMG_BYTES

REC = 544
NBLK = 99
SLAB = NBLK * REC
YB = 2 * SLAB
LDS_BYTES = YB + 2 * 24576
TAPS, ROWS = 400, 3616
DWB = YB

vO16 = 0
vP = 1
vL16 = 2
vZ = 3
vRel = 4
vLw, vLw3, vRd, vY0, vR0, vR1, vA, vB = 8, 9, 10, 11, 12, 13, 14, 15
STS = (16, 16)
BLK = 80
ACC = 120
TMP = 136
Y0 = 144
VO = 216
HOLD = 0
CW = 144
sM, sH, sX, sD = 8, 12, 16, 20
sBase, sIMG, sT, sT2, sSelL, sDS, sDY, sOutN, sTI = 28, 30, 31, 32, 33, 34, 35, 36, 37
sWave, sSelH, sPkF, sPkf = 40, 41, 42, 43
sMaskL, sMaskR = 44, 60
sSt3 = 76
sOnes, sAl, sEps, sInv, sOut = 92, 93, 94, 95, 96
sDbg = 4
sMk3 = 100
NPACK = 576
NPKWG = 72
STAMP0 = 82

def v(b, n=1): return f'v{b}' if n == 1 else f'v[{b}:{b+n-1}]'
def a(b, n=1): return f'a{b}' if n == 1 else f'a[{b}:{b+n-1}]'
def Wt(k, R, C): return CW + 32 * k + 2 * (4 * R + C)
def blk(row, bc): return BLK + 10 * (row % 4) + 2 * bc
def Y(p, s): return Y0 + 24 * p + 4 * s
M4 = 'v_mfma_f32_4x4x4_16b_bf16'
FULL = (1 << 64) - 1

class Cfg(k2.Cfg):
    f16 = True
    nt_h = True; nt_x = True; nt_o = True
    cx_nt = False
    st_flags = ' nt'
    xps = 147456
    xts = 49152
    light = False
    light2 = False
    light3 = False
    exact_vm = True
    touch = False
    l2tile = 0
    force_fb = False
    ln_pk = True
    light4 = False
    l4sel = '0246'
    spread = 0
    diag_nox = False
    htouch = False
    diag_nost = False
    l3sel = [0, 1, 2, 3, 4]
    early = True
    hskip = True
    spin = 1 << 14
    nosync = False

def setexec(out, cur, val):
    if cur[0] != val:
        out.append(f's_mov_b32 exec_lo, {hex(val & 0xffffffff)}')
        out.append(f's_mov_b32 exec_hi, {hex(val >> 32)}')
        cur[0] = val

def weights_gather(vb):
    out = []
    def reads(k):
        o = []
        for R in range(4):
            for dy in range(2):
                for c in range(4):
                    i = (R * 2 + dy) * 4 + c
                    for dx in range(2):
                        rho, gam = 2 * R + dy, 2 * c + dx
                        o.append(f'ds_read_u16 v{Y0+2*i+dx}, v{vb} offset:{(rho+1)*ROWS + (gam+1)*TAPS + 128*k}')
        return o
    for k in range(3):
        rd = reads(k)
        out += rd[:32] + rd[32:] + ['s_waitcnt lgkmcnt(15)']
        for half in range(2):
            if half == 1: out.append('s_waitcnt lgkmcnt(0)')
            for i in range(16 * half, 16 * half + 16):
                if half == 0 and i == 8: out.append('s_waitcnt lgkmcnt(15)')
                R, dy, c = i // 8, (i // 4) % 2, i % 4
                out.append(f'v_lshl_or_b32 v{Y0+2*i}, v{Y0+2*i+1}, 16, v{Y0+2*i}')
                out.append(f'v_accvgpr_write_b32 a{Wt(k,R,c)+dy}, v{Y0+2*i}')
    return out

def vo(r, dy, dx): return VO + 4 * r + 2 * dy + dx
def tile_offsets():
    out = []
    for dx in range(2):
        for r in range(4):
            l, rr = sMaskL + 2 * (2 * r + dx), sMaskR + 2 * (2 * r + dx)
            out += [f's_mov_b64 s[24:25], -1' if r < 3 else f's_or_b64 s[24:25], s[{l}:{l+1}], s[{rr}:{rr+1}]',
                    f's_cmp_eq_u32 s27, 0', f's_cselect_b64 s[24:25], s[{l}:{l+1}], s[24:25]',
                    f's_cmp_eq_u32 s27, 23', f's_cselect_b64 s[24:25], s[{rr}:{rr+1}], s[24:25]']
            for dy in range(2):
                t = vo(r, dy, dx)
                out += [f's_add_u32 s26, s{sBase}, {147456*dy + 384*dx}', f'v_add_u32 v{t}, s26, v{vRel+r}', f'v_cmp_gt_u32 vcc, s{sIMG}, v{t}',
                        f's_and_b64 vcc, vcc, s[24:25]', f'v_cndmask_b32 v{t}, 2.0, v{t}, vcc']
    return out
def load_items(cfg, stage, sset):
    nt = ' nt' if cfg.cx_nt else ''
    its = []
    for r in range(4):
        for dy in range(2):
            for dx in range(2):
                if r < 3: its.append([f'buffer_load_dwordx4 {v(STS[sset] + 16 * r + 4 * (2 * dy + dx), 4)}, v{vo(r,dy,dx)}, s[{sX}:{sX+3}], 0 offen offset:{128*stage}{nt} ;@l{r}'])
                else: its.append([f'buffer_load_dword v{STS[sset] + 48 + 2 * dy + dx}, v{vo(r,dy,dx)}, s[{sX}:{sX+3}], 0 offen offset:{128*stage}{nt} ;@l{r}'])
    return its
def store_items(cfg, k):
    its = []
    for s, sb in ((k, sSt3), (3 + k, sSt3 + 3)):
        for p in range(3):
            its.append([f'buffer_store_dwordx4 {a(HOLD + 24*p + 4*s, 4)}, v{vL16}, s[{sH}:{sH+3}], s{sb+p} offen offset:{1024*(s % 3)}{cfg.st_flags} ;@s'])
    return [its[0], its[3], its[1], its[4], its[2], its[5]]

def transpose_unit(r, d, sset):
    t = TMP
    if r == 3:
        if d > 0: return []
        L = lambda dy, dx: STS[sset] + 48 + 2 * dy + dx
        return [f'v_perm_b32 v{t}, v{L(0,1)}, v{L(0,0)}, s{sSelL}', f'v_perm_b32 v{t+1}, v{L(1,1)}, v{L(1,0)}, s{sSelL}',
                f'v_perm_b32 v{t+2}, v{L(0,1)}, v{L(0,0)}, s{sSelH}', f'v_perm_b32 v{t+3}, v{L(1,1)}, v{L(1,0)}, s{sSelH}',
                f's_mov_b64 exec, s[{sMk3}:{sMk3+1}]', f'ds_write_b128 v{vLw3}, {v(t,4)}', 's_mov_b64 exec, -1']
    L = lambda dy, dx: STS[sset] + 16 * r + 4 * (2 * dy + dx) + d
    return [f'v_xad_u32 v{vA}, v{vO16}, {16*d}, v{vLw}',
            f'v_perm_b32 v{t}, v{L(0,1)}, v{L(0,0)}, s{sSelL}',
            f'v_perm_b32 v{t+1}, v{L(1,1)}, v{L(1,0)}, s{sSelL}',
            f'v_perm_b32 v{t+2}, v{L(0,1)}, v{L(0,0)}, s{sSelH}',
            f'v_perm_b32 v{t+3}, v{L(1,1)}, v{L(1,0)}, s{sSelH}',
            f'ds_write_b128 v{vA}, {v(t,4)} offset:{32 * REC * r + 128*d}']

def yout(py):
    out = []
    a0 = ACC + 8 * (py & 1); a1 = a0 + 4
    t = TMP + 4
    for oy in range(2):
        out.append(f'v_cvt_pk_bf16_f32 v{t+2*oy}, v{a0+2*oy}, v{a0+2*oy+1}')
        out.append(f'v_cvt_pk_bf16_f32 v{t+2*oy+1}, v{a1+2*oy}, v{a1+2*oy+1}')
        out.append(f'ds_write_b64 v{vY0}, {v(t+2*oy,2)} offset:{(2*py+oy)*2048}')
    return out

def row_reads(br):
    return [f'ds_read_b64 {v(blk(br,bc),2)}, v{vRd} offset:{(br*11+bc)*REC}' for bc in range(5)]

SPREAD = [3]
def conv_stage(k, sset, items, stores, transp=True, xtra=()):
    out = []
    fifo = []
    def emit_lds(t, tag): out.append(t); fifo.append(tag)
    def need(tag):
        idx = [i for i, x in enumerate(fifo) if x == tag]
        if idx:
            n = len(fifo) - 1 - idx[-1]
            out.append(f's_waitcnt lgkmcnt({min(n,15)})')
            del fifo[:idx[-1] + 1]
    tagof = lambda t: ('w' if t.startswith('ds_') else None)
    for br in range(4):
        for t in row_reads(br): emit_lds(t, ('row', br))
    if transp:
        out.append('WAITL:0')
        for t in transpose_unit(0, 0, sset):
            if tagof(t): emit_lds(t, 'w')
            else: out.append(t)
    fill = {(py, i): [] for py in range(6) for i in range(16)}
    for py in range(6):
        if py > 0:
            for t, p_ in zip(yout(py - 1), [2, 2, 3, 4, 4, 5]): fill[(py, p_)].append((t, tagof(t)))
        if py + 4 <= 8:
            for i, t in enumerate(row_reads(py + 4)): fill[(py, 7 + i)].append((t, ('row', py + 4)))
    upos = {0: [None, (0, 1), (0, 3), (0, 5)], 1: [(1, 6), (1, 8), (1, 12), (1, 14)], 2: [(2, 6), (2, 8), (2, 12), (2, 14)], 3: [(3, 6), (3, 8), (3, 12), (3, 14)]}
    lpos = {0: [(0, 12), (0, 14), (1, 0), (1, 1)], 1: [(1, 15), (2, 0), (2, 1), (2, 5)], 2: [(2, 15), (3, 0), (3, 1), (3, 5)], 3: [(3, 15), (4, 0), (4, 1), (4, 6)]}
    spos = [(0, 7), (0, 10), (4, 8), (4, 12), (5, 0), (5, 6)]
    for r in range(4):
        if transp:
            if r > 0: fill[upos[r][0]].append((f'WAITL:{r}', None))
            for d in range(4):
                if upos[r][d] is None: continue
                for t in transpose_unit(r, d, sset): fill[upos[r][d]].append((t, tagof(t)))
        for i in range(4):
            if 4 * r + i < len(items):
                for t in items[4 * r + i]: fill[lpos[r][i]].append((t, None))
    for it, pos in zip(stores, spos):
        for t in it: fill[pos].append((t, None))
    for i, it in enumerate(xtra):
        sl = 2 + 6 * i
        for t in it: fill[(sl // 16, sl % 16)].append((t, None))
    seq = []
    for py in range(6):
        for idx in range(16):
            grp = []
            for t, tag in fill[(py, idx)]:
                grp.append((t, tag))
                glue = t.startswith(('s_mov_b64 exec, s[', 's_add_u32 m0', 's_nop', 'WAITL', 'v_cmp', 's_and_b64')) or (t.startswith('s_add_u32 s') )
                if t.startswith('ds_write_b128') and len(grp) >= 2 and grp[-2][0].startswith('s_mov_b64 exec, s['): glue = True
                if not glue:
                    seq.append((16 * py + idx, grp)); grp = []
            if grp: seq.append((16 * py + idx, grp))
    total = sum(len(g) for _, g in seq)
    qi = 0; done = 0
    for py in range(6):
        for idx in range(16):
            R, C = divmod(idx, 4)
            sl = 16 * py + idx
            if idx == 0 and py in (0, 2, 4): out.append(f';MARK{py}')
            if C == 0: need(('row', py + R))
            for px in range(2):
                aa = ACC + 8 * (py & 1) + 4 * px
                c = '0' if idx == 0 else v(aa, 4)
                out.append(f'{M4} {v(aa,4)}, {a(Wt(k,R,C),2)}, {v(blk(py+R, px+C),2)}, {c}')
            n0 = done
            while qi < len(seq) and seq[qi][0] <= sl and (done == n0 or seq[qi][0] <= sl - SPREAD[0] or sl == 95):
                for t, tag in seq[qi][1]:
                    if tag: emit_lds(t, tag)
                    else: out.append(t)
                done += len(seq[qi][1]); qi += 1
            if done == n0:
                nxt_has_wait = (idx % 4 == 3) and idx < 15 and any(x == ('row', py + R + 1) for x in fifo)
                if not nxt_has_wait: out.append('s_nop 0')
    assert qi == len(seq)
    out += [';MARK6', 's_nop 4'] + yout(5)
    return out

def resolve_l(stages):
    seq = []
    for si in range(3):
        for st in stages: seq.append(st)
    fifo = []
    need = {r: [] for r in range(4)}
    for si, st in enumerate(seq):
        for t in st:
            if t.startswith('WAITL:'):
                r = int(t[6:])
                if si >= 1:
                    idx = max(i for i, x in enumerate(fifo) if x == (si - 1, f'l{r}'))
                    need[r].append(len(fifo) - 1 - idx)
            elif ';@' in t: fifo.append((si, t.split(';@')[1].strip()))
    return {r: min(x) for r, x in need.items()}

def ln_block(cfg):
    NP = 3
    out = []
    t = ACC
    s1 = [t + p for p in range(NP)]; s2 = [t + 3 + p for p in range(NP)]
    for i in range(24):
        for p in range(NP):
            r = Y0 + 24 * p + i
            c1 = '0' if i == 0 else f'v{s1[p]}'; c2 = '0' if i == 0 else f'v{s2[p]}'
            out.append(f'v_dot2_f32_bf16 v{s1[p]}, v{r}, s{sOnes}, {c1}')
            out.append(f'v_dot2_f32_bf16 v{s2[p]}, v{r}, v{r}, {c2}')
    out.append('s_nop 2')
    allr = s1 + s2
    tm = [t + 12 + i for i in range(len(allr))]
    for sw in ('v_permlane16_swap_b32', 'v_permlane32_swap_b32'):
        for r, q in zip(allr, tm): out.append(f'v_mov_b32 v{q}, v{r}')
        out.append('s_nop 1')
        for r, q in zip(allr, tm): out.append(f'{sw} v{q}, v{r}')
        out.append('s_nop 1')
        for r, q in zip(allr, tm): out.append(f'v_add_f32 v{r}, v{r}, v{q}')
    rs = [t + 6 + 2 * p for p in range(NP)]; nb = [t + 18 + 2 * p for p in range(NP)]
    for p in range(NP): out.append(f'v_mul_f32 v{s1[p]}, s{sInv}, v{s1[p]}')
    for p in range(NP): out.append(f'v_mul_f32 v{s2[p]}, s{sInv}, v{s2[p]}')
    for p in range(NP): out.append(f'v_fma_f32 v{s2[p]}, -v{s1[p]}, v{s1[p]}, v{s2[p]}')
    for p in range(NP): out.append(f'v_max_f32 v{s2[p]}, 0, v{s2[p]}')
    for p in range(NP): out.append(f'v_add_f32 v{s2[p]}, s{sEps}, v{s2[p]}')
    for p in range(NP): out.append(f'v_rsq_f32 v{rs[p]}, v{s2[p]}')
    out.append('s_nop 0')
    for p in range(NP): out.append(f'v_mul_f32 v{rs[p]}, s{sAl}, v{rs[p]}')
    for p in range(NP): out.append(f'v_mul_f32 v{nb[p]}, -v{s1[p]}, v{rs[p]}')
    k = 0
    for p in range(NP):
        for s in range(6):
            for d in range(4):
                r = Y(p, s) + d
                x0 = t + 12 + 2 * (k % 3); x1 = x0 + 1; k += 1
                out.append(f'v_lshlrev_b32 v{x0}, 16, v{r}')
                out.append(f'v_and_b32 v{x1}, 0xffff0000, v{r}')
                if cfg.ln_pk:
                    out.append(f'v_pk_fma_f32 v[{x0}:{x1}], v[{x0}:{x1}], v[{rs[p]}:{rs[p]+1}], v[{nb[p]}:{nb[p]+1}] op_sel_hi:[1,0,0]')
                else:
                    out.append(f'v_fma_f32 v{x0}, v{x0}, v{rs[p]}, v{nb[p]}')
                    out.append(f'v_fma_f32 v{x1}, v{x1}, v{rs[p]}, v{nb[p]}')
                out.append(f'v_cvt_pk_bf16_f32 v{r}, v{x0}, v{x1}')
    return out

def pack_loads(lab, dst, t, lane):
    out = [f's_mul_hi_u32 s46, s{sPkF}, {(1 << 32) // 24 + 1}',
           f's_mul_i32 s47, s46, 24', f's_sub_u32 s{sPkf}, s{sPkF}, s47',
           f'v_and_b32 v{t}, 15, v{lane}', f'v_lshrrev_b32 v{t+1}, 4, v{lane}',
           f's_cmp_lt_u32 s{sPkf}, 12', f's_cbranch_scc0 {lab}_pk2']
    out += [f's_add_u32 s48, s46, 1', f's_cmp_eq_u32 s48, 24', f's_cselect_b32 s48, 0, s48',
            f's_lshr_b32 s49, s{sPkf}, 1', f's_and_b32 s50, s{sPkf}, 1',
            f's_lshl_b32 s48, s48, 6', f's_lshl_b32 s50, s50, 5', f's_add_u32 s48, s48, s50',
            f's_mul_i32 s49, s49, {32*1536}', f's_add_u32 s48, s48, s49',
            f'v_mul_u32_u24 v{t+2}, {8*1536}, v{t+1}', f'v_lshl_add_u32 v{t+2}, v{t}, 1, v{t+2}',
            f's_mov_b32 s{sM}, s52', f's_mov_b32 s{sM+1}, s53', f's_mov_b32 s{sM+2}, {192*768*2}', f's_mov_b32 s{sM+3}, 0x20000']
    for e in range(8):
        out.append(f's_add_u32 s49, s48, {e*1536}')
        out.append(f'buffer_load_ushort v{dst+e}, v{t+2}, s[{sM}:{sM+3}], s49 offen')
    out += [f's_branch {lab}_pk3', f'{lab}_pk2:']
    out += [f's_add_u32 s48, s46, 23', f's_cmp_ge_u32 s48, 24', f's_cselect_b32 s49, 24, 0', f's_sub_u32 s48, s48, s49',
            f's_sub_u32 s49, s{sPkf}, 12', f's_lshr_b32 s50, s49, 1', f's_and_b32 s49, s49, 1',
            f's_mul_i32 s48, s48, {32*384}', f's_lshl_b32 s50, s50, 6', f's_lshl_b32 s49, s49, 3',
            f's_add_u32 s48, s48, s50', f's_add_u32 s48, s48, s49',
            f'v_lshrrev_b32 v{t+3}, 2, v{t}', f'v_lshlrev_b32 v{t+3}, 4, v{t+3}',
            f'v_and_b32 v{t+4}, 3, v{t}', f'v_lshl_add_u32 v{t+3}, v{t+4}, 1, v{t+3}',
            f'v_mul_u32_u24 v{t+2}, {4*384}, v{t+1}', f'v_add_u32 v{t+2}, v{t+2}, v{t+3}',
            f's_mov_b32 s{sM}, s54', f's_mov_b32 s{sM+1}, s55', f's_mov_b32 s{sM+2}, {192*768*2}', f's_mov_b32 s{sM+3}, 0x20000']
    for e in range(8):
        out.append(f's_add_u32 s49, s48, {(16*(e>>2) + (e&3))*384}')
        out.append(f'buffer_load_ushort v{dst+e}, v{t+2}, s[{sM}:{sM+3}], s49 offen')
    out += [f'{lab}_pk3:']
    return out

def pack_store(lab, cfg, src, dst):
    out = []
    for d in range(4): out.append(f'v_lshl_or_b32 v{dst+d}, v{src+2*d+1}, 16, v{src+2*d}')
    if cfg.f16:
        out += [f's_cmp_lt_u32 s{sPkf}, 12', f's_cbranch_scc1 {lab}_pk5']
        for e in range(8): out.append(f'v_lshlrev_b32 v{src+e}, 16, v{src+e}')
        for d in range(4): out.append(f'v_cvt_pk_f16_f32 v{dst+d}, v{src+2*d}, v{src+2*d+1}')
        out.append(f'{lab}_pk5:')
    out += [f's_add_u32 s{sM}, s38, {WS_W}', f's_addc_u32 s{sM+1}, s39, 0', f's_mov_b32 s{sM+2}, {W_BYTES}', f's_mov_b32 s{sM+3}, 0x20000',
            f's_lshl_b32 s3, s{sPkF}, 10',
            f'buffer_store_dwordx4 {v(dst,4)}, v{vL16}, s[{sM}:{sM+3}], s3 offen sc1']
    return out

def gen(cfg, name='fused_kernel'):
    k2.MF2[0] = 'v_mfma_f32_16x16x32_f16' if cfg.f16 else k2.MF
    SPREAD[0] = cfg.spread
    P = []; TR = []
    n3 = [0]
    def st3():
        if cfg.light3 and n3[0] in cfg.l3sel:
            j = cfg.l3sel.index(n3[0])
            P.extend([f's_memtime s[{82+2*j}:{83+2*j}]'])
        n3[0] += 1
        if False:
            P.extend(['s_memtime s[102:103]' if False else 's_memtime s[98:99]', 's_waitcnt lgkmcnt(0)', f'v_writelane_b32 v253, s98, {n3[0]}']); n3[0] += 1
    def emit(l, tr=True):
        P.extend(l)
        if tr: TR.extend([x for x in l if not x.endswith(':')])
    emit(['s_cmp_ge_u32 s2, 256', f's_cbranch_scc1 {name}_done'])
    if cfg.light: P += ['s_memtime s[6:7]', 's_memrealtime s[8:9]', 's_waitcnt lgkmcnt(0)', 's_mov_b32 s82, s6', 's_mov_b32 s83, s8']
    st3()
    emit(['s_load_dwordx4 s[4:7], s[0:1], 0',
          's_load_dwordx2 s[38:39], s[0:1], 48',
          's_load_dwordx4 s[52:55], s[0:1], 16',
          'v_lshrrev_b32 v1, 6, v0', 'v_and_b32 v0, 63, v0', 's_nop 0',
          f'v_readfirstlane_b32 s{sWave}, v1',
          f's_mov_b32 s{sIMG}, {IMG_BYTES}', f's_mov_b32 s{sOnes}, 0x3f803f80',
          f's_mov_b32 s{sSelL}, 0x05040100', f's_mov_b32 s{sSelH}, 0x07060302',
          f's_mov_b32 s{sAl}, {hex(f2u(ALPHA))}', f's_mov_b32 s{sEps}, {hex(f2u(1e-5))}', f's_mov_b32 s{sInv}, {hex(f2u(1.0/192))}',
          f'v_lshlrev_b32 v{vL16}, 4, v0', f'v_mov_b32 v{vZ}, 0',
          's_waitcnt lgkmcnt(0)',
          f's_mov_b32 s{sX}, s4', f's_mov_b32 s{sX+1}, s5', f's_mov_b32 s{sX+2}, {IMG_BYTES}', f's_mov_b32 s{sX+3}, 0x20000',
          f's_mov_b32 s{sD}, s6', f's_mov_b32 s{sD+1}, s7', f's_mov_b32 s{sD+2}, {49*384}', f's_mov_b32 s{sD+3}, 0x20000',
          f's_add_u32 s{sH}, s38, {WS_H}', f's_addc_u32 s{sH+1}, s39, 0', f's_mov_b32 s{sH+2}, {IMG_BYTES}', f's_mov_b32 s{sH+3}, 0x20000',
          f's_load_dwordx2 s[{sDbg}:{sDbg+1}], s[0:1], 40', f's_mov_b32 s{sTI}, 0'])
    st3()
    t = Y0
    c = []
    for j in range(4):
        c += [f'v_add_u32 v{t}, {64*j}, v0', f'v_mul_u32_u24 v{t+1}, 2622, v{t}', f'v_lshrrev_b32 v{t+1}, 16, v{t+1}',
              f'v_mul_u32_u24 v{t+2}, 25, v{t+1}', f'v_sub_u32 v{t+2}, v{t}, v{t+2}',
              f'v_subrev_u32 v{t+1}, 1, v{t+1}', f'v_cmp_gt_u32 vcc, 7, v{t+1}', f'v_cmp_gt_u32 s[44:45], 24, v{t+2}',
              f'v_mul_u32_u24 v{t+1}, 384, v{t+1}', f'v_lshl_add_u32 v{t+1}, v{t+2}, 4, v{t+1}', f's_and_b64 vcc, vcc, s[44:45]',
              f'v_subrev_u32 v{t+1}, {1024*j}, v{t+1}' if False else 's_nop 0',
              f'v_cndmask_b32 v{t+8+j}, 2.0, v{t+1}, vcc']
    emit(c)
    c = []
    for m in range(3):
        blk_ = [f's_add_u32 s{sT}, s{sWave}, {4*m}', f's_sub_u32 s{sT2}, s{sT}, 1', f's_cmp_lt_u32 s{sT2}, 7', f's_mul_i32 s{sT2}, s{sT2}, {7*384}',
                f's_cselect_b32 s{sT2}, s{sT2}, 0x70000000', f's_mul_i32 s{sT}, s{sT}, {ROWS}', f's_add_u32 s{sT}, s{sT}, {DWB}']
        for j in range(4):
            blk_ += [f's_add_u32 m0, s{sT}, {1024*j}', 's_nop 0']
            if j == 3: blk_ += ['s_mov_b32 exec_hi, 3']
            blk_ += [f'buffer_load_dwordx4 v{t+8+j}, s[{sD}:{sD+3}], s{sT2} offen lds']
            if j == 3: blk_ += ['s_mov_b32 exec_hi, -1']
        if m < 2: c += blk_
        else: c += [f's_cmp_eq_u32 s{sWave}, 0', f's_cbranch_scc0 {name}_nor8'] + blk_ + [f'{name}_nor8:']
    emit(c)
    pk = [f's_mov_b32 s{sPkF}, -1', f's_cmp_lt_u32 s2, {NPKWG if not cfg.force_fb else 0}', f's_cbranch_scc0 {name}_nopk',
          f's_lshl_b32 s44, s2, 3', f's_lshl_b32 s45, s{sWave}, 1', f's_add_u32 s{sPkF}, s44, s45']
    pk += pack_loads(f'{name}_a', Y0 + 32, ACC, 0) + [f's_add_u32 s{sPkF}, s{sPkF}, 1'] + pack_loads(f'{name}_a2', Y0 + 41, ACC, 0) + [f'{name}_nopk:']
    st3()
    if not cfg.nosync: P += pk
    st3()
    c = [f'v_and_b32 v{t}, 7, v0', f'v_lshrrev_b32 v{t+1}, 3, v0']
    for r in range(4):
        if r < 3: c += [f's_lshl_b32 s{sT}, s{sWave}, 3', f's_add_u32 s{sT}, s{sT}, {32*r}', f'v_add_u32 v{t+2}, s{sT}, v{t+1}']
        else:
            c += [f'v_add_u32 v{t+2}, 96, v{t+1}', f'v_cmp_gt_u32 s[{sMk3}:{sMk3+1}], 24, v0']
        c += [f'v_mul_u32_u24 v{t+3}, 745, v{t+2}', f'v_lshrrev_b32 v{t+3}, 13, v{t+3}',
              f'v_mul_u32_u24 v{t+4}, 11, v{t+3}', f'v_sub_u32 v{t+4}, v{t+2}, v{t+4}',
              f'v_mul_u32_u24 v{t+5}, {2*384}, v{t+3}', f'v_lshl_add_u32 v{t+5}, v{t+4}, 1, v{t+5}',
              f'v_mul_u32_u24 v{t+5}, 384, v{t+5}',
              f'v_lshl_add_u32 v{vRel+r}, v{t}, 4, v{t+5}']
        for dx in range(2):
            mL = sMaskL + 2 * (2 * r + dx); mR = sMaskR + 2 * (2 * r + dx)
            c += [f'v_lshl_add_u32 v{t+6}, v{t+4}, 1, {dx}',
                  f'v_cmp_lt_u32 s[{mL}:{mL+1}], 2, v{t+6}', f'v_cmp_gt_u32 s[{mR}:{mR+1}], 19, v{t+6}']
            if r == 3:
                c += ['s_nop 1', f's_and_b64 s[{mL}:{mL+1}], s[{mL}:{mL+1}], s[{sMk3}:{sMk3+1}]', f's_and_b64 s[{mR}:{mR+1}], s[{mR}:{mR+1}], s[{sMk3}:{sMk3+1}]']
        if r == 0: c += [f'v_mul_u32_u24 v{vLw}, {REC}, v{t+2}']
        if r == 3:
            c += [f's_lshl_b32 s{sT}, s{sWave}, 2', f'v_add_u32 v{vRel+3}, s{sT}, v{vRel+3}',
                  f'v_cndmask_b32 v{vRel+3}, 2.0, v{vRel+3}, s[{sMk3}:{sMk3+1}]',
                  f'v_mul_u32_u24 v{vLw3}, {REC}, v{t+2}', f'v_xor_b32 v{t+6}, s{sWave}, v{t}', f'v_lshl_add_u32 v{vLw3}, v{t+6}, 4, v{vLw3}',
                  f's_lshl_b32 s{sT}, s{sWave}, 7', f'v_add_u32 v{vLw3}, s{sT}, v{vLw3}']
    c += [f'v_lshrrev_b32 v{t}, 2, v0', f'v_and_b32 v{t+1}, 3, v0', f'v_lshrrev_b32 v{t+2}, 3, v{t}',
          f's_lshl_b32 s{sT}, s{sWave}, 1',
          f'v_add_u32 v{t+2}, s{sT}, v{t+2}', f'v_bfe_u32 v{t+3}, v{t}, 1, 2', f'v_xor_b32 v{t+4}, v{t+2}, v{t+3}',
          f'v_lshlrev_b32 v{t+4}, 1, v{t+4}', f'v_lshl_add_u32 v{t+4}, v{t+3}, 4, v{t+4}',
          f'v_and_b32 v{t+5}, 1, v{t}', f'v_add_u32 v{t+4}, v{t+4}, v{t+5}', f'v_lshlrev_b32 v{t+4}, 3, v{t+4}',
          f'v_mul_u32_u24 v{t+5}, {2*REC}, v{t+1}', f'v_add_u32 v{vRd}, v{t+4}, v{t+5}']
    c += [f's_lshl_b32 s{sT2}, s{sWave}, 4', f'v_add_u32 v{t+7}, s{sT2}, v{t}',
          f'v_bfe_u32 v{t+8}, v{t+7}, 3, 1', f'v_lshlrev_b32 v{t+8}, 2, v{t+8}', f'v_xor_b32 v{t+7}, v{t+7}, v{t+8}',
          f'v_lshlrev_b32 v{t+7}, 5, v{t+7}', f'v_lshl_add_u32 v{t+7}, v{t+1}, 3, v{t+7}', f'v_add_u32 v{vY0}, {YB}, v{t+7}']
    c += [f'v_lshrrev_b32 v{t}, 4, v0', f'v_bfe_u32 v{t+1}, v0, 2, 2', f'v_and_b32 v{t+2}, 3, v0',
          f's_mul_i32 s{sT}, s{sWave}, {3*2048}', f's_add_u32 s{sT}, s{sT}, {YB}']
    for h, vr in ((0, vR0), (1, vR1)):
        c += [f'v_lshl_add_u32 v{t+3}, v{t}, 3, v{t+1}', f'v_add_u32 v{t+3}, {4*h}, v{t+3}',
              f'v_and_b32 v{t+4}, 1, v{t}', f'v_lshlrev_b32 v{t+4}, 2, v{t+4}', f'v_xor_b32 v{t+3}, v{t+3}, v{t+4}',
              f'v_lshlrev_b32 v{t+3}, 5, v{t+3}', f'v_lshl_add_u32 v{t+3}, v{t+2}, 3, v{t+3}', f'v_add_u32 v{vr}, s{sT}, v{t+3}']
    vb = VO + 15 + 1
    c += [f'v_lshrrev_b32 v{t}, 2, v0', f's_lshl_b32 s{sT}, s{sWave}, 5', f'v_lshlrev_b32 v{t}, 1, v{t}', f'v_add_u32 v{t}, s{sT}, v{t}',
          f'v_bfe_u32 v{t+1}, v0, 1, 1', f'v_mul_u32_u24 v{t+1}, {ROWS}, v{t+1}', f'v_and_b32 v{t+2}, 1, v0', f'v_mul_u32_u24 v{t+2}, {TAPS}, v{t+2}',
          f'v_add_u32 v{t+1}, v{t+1}, v{t+2}', f'v_sub_u32 v{t}, v{t}, v{t+1}', f'v_add_u32 v{vb}, {DWB}, v{t}',
          f'v_and_b32 v{vO16}, 7, v0', f'v_lshlrev_b32 v{vO16}, 4, v{vO16}']
    emit(c)
    tl = [0]
    def tile_setup(fetch):
        o = [f's_sub_u32 s24, 2, {fetch}',
             f's_lshr_b32 s25, s2, 3', f's_lshl_b32 s24, s24, 5', f's_add_u32 s25, s25, s24',
             f's_and_b32 s26, s2, 7', f's_lshl_b32 s26, s26, 2', f's_and_b32 s27, s25, 3', f's_add_u32 s26, s26, s27',
             f's_lshr_b32 s27, s25, 2',
             f's_mul_i32 s24, s26, {12*384}', f's_lshl_b32 s25, s27, 4', f's_add_u32 s24, s24, s25',
             f's_sub_u32 s24, s24, {3*384+3}', f's_mul_i32 s{sBase}, s24, 384',
             f's_cmp_eq_u32 {fetch}, 3', f's_cselect_b32 s{sBase}, 0x60000000, s{sBase}']
        if cfg.diag_nox: o += [f's_mov_b32 s{sBase}, 0x60000000']
        tl[0] += 1; lab = f'{name}_to{tl[0]}'
        fast = []
        for dy in range(2):
            for dx in range(2):
                fast += [f's_add_u32 s24, s{sBase}, {147456*dy + 384*dx}'] + [f'v_add_u32 v{vo(r,dy,dx)}, s24, v{vRel+r}' for r in range(4)]
        o += [f's_sub_u32 s25, s27, 1', f's_cmp_lt_u32 s25, 22', f's_cselect_b32 s25, 1, 0', f's_cmp_eq_u32 s26, 0', f's_cselect_b32 s25, 0, s25',
              f's_cmp_eq_u32 s{sBase}, 0x60000000', f's_cselect_b32 s25, 1, s25', f's_cmp_eq_u32 s25, 0', f's_cbranch_scc1 {lab}_slow']
        return o + fast + [f's_branch {lab}_done', f'{lab}_slow:'] + tile_offsets() + [f'{lab}_done:']
    strip = lambda l: [x.split(' ;@')[0] for x in l]
    def store_bases():
        o = [f's_mul_i32 s25, s2, 3', f's_add_u32 s25, s25, 2', f's_mul_i32 s25, s25, 12', f's_mul_i32 s26, s{sWave}, 3', f's_add_u32 s25, s25, s26',
             f's_mul_i32 s25, s25, 6144', f's_add_u32 s26, s25, 3072',
             f's_cmp_eq_u32 s{sTI}, {1 if not cfg.diag_nost else 9}', f's_cselect_b32 s{sSt3}, s25, 0x70000000',
             f's_cmp_eq_u32 s{sTI}, {2 if not cfg.diag_nost else 9}', f's_cselect_b32 s{sSt3+3}, s26, 0x70000000']
        for b in (sSt3, sSt3 + 3): o += [f's_add_u32 s{b+1}, s{b}, 6144', f's_add_u32 s{b+2}, s{b}, 12288']
        return o
    emit(tile_setup('0'))
    emit(strip(sum(load_items(cfg, 0, 0), [])))
    st3()
    emit(['s_waitcnt vmcnt(16) lgkmcnt(0)'])
    st3()
    emit(['s_barrier'])
    st3()
    if not cfg.nosync:
        P += [f's_cmp_eq_u32 s{sPkF}, -1', f's_cbranch_scc1 {name}_nops'] + pack_store(f'{name}_b', cfg, Y0 + 41, Y0)
        P += [f's_sub_u32 s{sPkF}, s{sPkF}, 1', f's_sub_u32 s{sPkf}, s{sPkf}, 1'] + pack_store(f'{name}_b2', cfg, Y0 + 32, Y0 + 4) + ['s_nop 1', f'{name}_nops:']
    emit(weights_gather(vb))
    st3()
    emit(['s_waitcnt vmcnt(0)'])
    st3()
    emit([f'v_add_u32 v{vLw}, {SLAB}, v{vLw}', f'v_add_u32 v{vLw3}, {SLAB}, v{vLw3}', f'v_add_u32 v{vRd}, {SLAB}, v{vRd}'])
    for r in range(4):
        for d in range(4): emit(transpose_unit(r, d, 0))
    emit(strip(sum(load_items(cfg, 1, 0), [])))
    raw = {k: conv_stage(k, 0, load_items(cfg, (k + 2) % 3, 0), store_items(cfg, k)) for k in range(3)}
    nw = resolve_l([raw[0], raw[1], raw[2]])
    fix = lambda l: [(f's_waitcnt vmcnt({nw[int(x[6:])]})' if x.startswith('WAITL:') else x.split(' ;@')[0]) for x in l]
    body = {key: fix(val) for key, val in raw.items()}
    tailst = 0
    for x in reversed(raw[0]):
        if ';@l' in x: break
        if ';@s' in x: tailst += 1
    emit([f's_mov_b32 s{sT}, 0x70000000'] + [f'buffer_store_dword v{vA}, v{vL16}, s[{sH}:{sH+3}], s{sT} offen'] * tailst)
    emit([f'v_subrev_u32 v{vLw}, {SLAB}, v{vLw}', f'v_subrev_u32 v{vLw3}, {SLAB}, v{vLw3}', f's_mov_b32 s{sDS}, {-SLAB & 0xffffffff}', f's_mov_b32 s{sDY}, 24576',
          's_waitcnt lgkmcnt(0)'])
    st3()
    emit(['s_barrier'])
    st3()
    if not cfg.nosync:
        P += [f's_cmp_eq_u32 s{sPkF}, -1', f's_cbranch_scc1 {name}_nopub', f's_cmp_eq_u32 s{sWave}, 0', f's_cbranch_scc0 {name}_nopub',
              f'v_mov_b32 v{vB}, 1', 's_mov_b32 exec_lo, 1', 's_mov_b32 exec_hi, 0',
              f'global_atomic_add v{vZ}, v{vB}, s[{sDbg}:{sDbg+1}]', 's_mov_b64 exec, -1', f'{name}_nopub:']
    def after(k):
        o = ['s_waitcnt lgkmcnt(0)', 's_barrier']
        for p in range(3):
            for sp in range(2):
                for h in range(2):
                    o.append(f'ds_read_b64_tr_b16 {v(Y(p,2*k+sp)+2*h,2)}, v{vR0 if h == 0 else vR1} offset:{p*2048 + sp*1024}')
        o += [f'v_add_u32 v{vRd}, s{sDS}, v{vRd}', f'v_subrev_u32 v{vLw}, s{sDS}, v{vLw}', f'v_subrev_u32 v{vLw3}, s{sDS}, v{vLw3}',
              f'v_add_u32 v{vY0}, s{sDY}, v{vY0}', f'v_add_u32 v{vR0}, s{sDY}, v{vR0}', f'v_add_u32 v{vR1}, s{sDY}, v{vR1}',
              f's_sub_u32 s{sDS}, 0, s{sDS}', f's_sub_u32 s{sDY}, 0, s{sDY}']
        return o
    sn = [0]
    def st2():
        if not cfg.light2: return []
        sn[0] += 1
        return [f's_cmp_eq_u32 s{sTI}, {cfg.l2tile}', f's_cbranch_scc0 {name}_s2_{sn[0]}', f's_memtime s[{STAMP0-2+2*((sn[0]-1)%5+1)}:{STAMP0-1+2*((sn[0]-1)%5+1)}]', f'{name}_s2_{sn[0]}:']
    lns = ln_block(cfg)
    K = k2
    emit([f's_mov_b32 s{sTI}, 0'])
    P += ['.p2align 6', f'{name}_tile:']
    P += st2()
    emit(store_bases())
    if not cfg.nosync:
        P += [f's_cmp_eq_u32 s{sTI}, 2', f's_cbranch_scc0 {name}_nopoll', f's_cmp_eq_u32 s{sWave}, 0', f's_cbranch_scc0 {name}_nopoll',
              f'global_load_dword v{vP}, v{vZ}, s[{sDbg}:{sDbg+1}] sc1', f'{name}_nopoll:']
    emit(body[0] + after(0))
    P += st2()
    emit([f's_add_u32 s3, s{sTI}, 1'] + tile_setup('s3'))
    if not cfg.nosync:
        ft = ACC
        fb = [f's_cmp_eq_u32 s{sTI}, 2', f's_cbranch_scc0 {name}_nochk', f's_cmp_eq_u32 s{sWave}, 0', f's_cbranch_scc0 {name}_nochk',
              f's_waitcnt vmcnt(22)', f'v_readfirstlane_b32 s44, v{vP}', 's_nop 3', f's_cmp_ge_u32 s44, {NPKWG + (1000 if cfg.force_fb else 0)}', f's_cbranch_scc1 {name}_acq',
              f's_mov_b32 s45, {cfg.spin}', f'{name}_spin:',
              f'global_load_dword v{vP}, v{vZ}, s[{sDbg}:{sDbg+1}] sc1', 's_waitcnt vmcnt(0)', f'v_readfirstlane_b32 s44, v{vP}', 's_nop 3',
              f's_cmp_ge_u32 s44, {NPKWG + (1000 if cfg.force_fb else 0)}', f's_cbranch_scc1 {name}_acq',
              's_sub_u32 s45, s45, 1', 's_cmp_lg_u32 s45, 0', f's_cbranch_scc1 {name}_spin',
              's_load_dwordx4 s[52:55], s[0:1], 16', f'v_lshrrev_b32 v{ft}, 4, v{vL16}', f's_mov_b32 s{sPkF}, 0', 's_waitcnt vmcnt(0) lgkmcnt(0)', f'{name}_self:']
        fb += pack_loads(f'{name}_c', ft + 8, ft + 1, ft) + ['s_waitcnt vmcnt(0)'] + pack_store(f'{name}_d', cfg, ft + 8, ft + 16)
        fb += ['s_waitcnt vmcnt(0)', f's_add_u32 s{sPkF}, s{sPkF}, 1', f's_cmp_lt_u32 s{sPkF}, {NPACK}', f's_cbranch_scc1 {name}_self',
               f'{name}_acq:', 'buffer_inv sc1', f'{name}_nochk:']
        P += fb
    if cfg.light4:
        b1 = []; n = [0]
        def stmp():
            n[0] += 1; j = n[0] - 1
            return [f's_cmp_eq_u32 s{sTI}, {cfg.l2tile}', f's_cbranch_scc0 {name}_l4_{j}', f's_memtime s[{82+2*j}:{83+2*j}]', f'{name}_l4_{j}:']
        b1 += stmp()
        for x in body[1]:
            if x.startswith(';MARK') and x[5] in cfg.l4sel: b1 += stmp()
            else: b1.append(x)
        af = after(1)
        if 'e' in cfg.l4sel: b1 += stmp() + af[:1] + stmp() + af[1:2] + stmp() + af[2:]
        else: b1 += af
        P += b1; TR += body[1] + after(1)
    else:
        emit(body[1] + after(1))
    P += st2()
    pre = [f's_add_u32 s{K.sW}, s38, {WS_W}', f's_addc_u32 s{K.sW+1}, s39, 0', f's_mov_b32 s{K.sW+2}, {W_BYTES}', f's_mov_b32 s{K.sW+3}, 0x20000',
           f's_mul_i32 s{K.sWoff}, s40, 12288', f's_cmp_eq_u32 s40, 1', f's_cselect_b32 s24, {23*24576}, s{K.sWoff}']
    its = []
    for i in range(12):
        it = []
        if i % 4 == 0: it += [f's_add_u32 m0, s{K.sWoff}, {4096*(i//4)}', f's_add_u32 s{sT}, s24, {4096*(i//4)}', 's_nop 0']
        it.append(f'buffer_load_dwordx4 v{vL16}, s[{K.sW}:{K.sW+3}], s{sT} offen offset:{1024*(i%4)} lds')
        its.append(it)
    xbase = [f's_lshr_b32 s24, s2, 3', f's_and_b32 s25, s2, 7', f's_lshl_b32 s25, s25, 2', f's_and_b32 s26, s24, 3', f's_add_u32 s25, s25, s26',
             f's_lshr_b32 s24, s24, 2', f's_mul_i32 s25, s25, 12', f's_mul_i32 s26, s40, 3', f's_add_u32 s25, s25, s26',
             f's_mul_i32 s25, s25, 24', f's_add_u32 s25, s25, s24', f's_mul_i32 s{K.sBX}, s25, 6144']
    vgs = [f'v_and_b32 v{vA}, 0xf0, v{vL16}', f'v_mul_u32_u24 v{K.vG}, 24, v{vA}', f'v_lshrrev_b32 v{vA}, 4, v{vL16}', f'v_and_b32 v{vA}, 0x30, v{vA}',
           f'v_add_u32 v{K.vG}, v{K.vG}, v{vA}']
    xl = lambda p, s_: f'buffer_load_dwordx4 {a(K.pxreg(p,s_), 4)}, v{K.vG}, s[{K.sX}:{K.sX+3}], s{48+p} offen offset:{64*s_}' + (' nt' if cfg.nt_x else '')
    pre = xbase + [f's_mov_b32 s48, s{K.sBX}', f's_add_u32 s49, s48, {cfg.xps}', f's_add_u32 s50, s49, {cfg.xps}'] + vgs + pre
    xearly = [(p, s_) for p in range(3) for s_ in range(6) if K.pxreg(p, s_) + 3 < Wt(2, 0, 0)]
    xlate = [(p, s_) for p in range(3) for s_ in range(6) if (p, s_) not in xearly]
    cl = strip(conv_stage(2, 0, its, store_items(cfg, 2), transp=False, xtra=[[xl(p, s_)] for p, s_ in xearly]))
    P += [f's_cmp_eq_u32 s{sTI}, 2', f's_cbranch_scc0 {name}_nl'] + pre + cl + after(2) + [f's_branch {name}_last', f'{name}_nl:']
    emit(body[2] + after(2) + ['s_waitcnt lgkmcnt(0)'])
    P += st2()
    P += [f's_call_b64 s[42:43], {name}_ln']; TR += lns
    wHold = [f'v_accvgpr_write_b32 a{HOLD+i}, v{Y0+i}' for i in range(72)]
    wP = [f'v_accvgpr_write_b32 a{K.PF0+i}, v{Y0+i}' for i in range(72)]
    P += [f's_cmp_eq_u32 s{sTI}, 1', f's_cbranch_scc1 {name}_ln1'] + wHold + [f's_branch {name}_lnd', f'{name}_ln1:'] + wP + [f'{name}_lnd:']
    TR += wHold + wP
    P += st2()
    P += [f's_add_u32 s{sTI}, s{sTI}, 1', f's_branch {name}_tile', f'{name}_last:']
    emit(['s_waitcnt vmcnt(0) lgkmcnt(0)', 's_barrier'])
    if cfg.light: P += ['s_memtime s[6:7]', 's_memrealtime s[24:25]', 's_waitcnt lgkmcnt(0)', 's_mov_b32 s84, s6', 's_mov_b32 s85, s24']
    emit(['s_load_dwordx2 s[6:7], s[0:1], 32',
          'v_mbcnt_lo_u32_b32 v0, -1, 0', 'v_mbcnt_hi_u32_b32 v0, -1, v0'])
    emit(K.gelu_consts(cfg) + K.ident_setup())
    emit([f's_add_u32 s{K.sW}, s38, {WS_W}', f's_addc_u32 s{K.sW+1}, s39, 0', f's_mov_b32 s{K.sW+2}, {W_BYTES}', f's_mov_b32 s{K.sW+3}, 0x20000',
          f's_mul_i32 s{K.sWoff}, s40, 12288',
          f's_mul_i32 s{K.sB}, s2, {36*6144}', f's_mul_i32 s41, s40, {3*6144}', f's_add_u32 s{K.sB}, s{K.sB}, s41',
          's_waitcnt lgkmcnt(0)',
          f's_mov_b32 s{K.sO}, s6', f's_mov_b32 s{K.sO+1}, s7', f's_mov_b32 s{K.sO+2}, {IMG_BYTES}', f's_mov_b32 s{K.sO+3}, 0x20000'])
    emit(xbase + [f's_mov_b32 s48, s{K.sBX}', f's_add_u32 s49, s48, {cfg.xps}', f's_add_u32 s50, s49, {cfg.xps}'])
    emit(K.m_second_dma(cfg, 240) + [xl(p, s_) for p, s_ in xlate])
    P += [f's_call_b64 s[42:43], {name}_ln']; TR += lns
    emit([f'v_accvgpr_write_b32 a{K.H0+i}, v{Y0+i}' for i in range(72)])
    emit(K.m_g1_first(cfg, early=True))
    if cfg.light: P += ['s_memtime s[6:7]', 's_memrealtime s[4:5]', 's_waitcnt lgkmcnt(0)', 's_mov_b32 s86, s6', 's_mov_b32 s87, s4']
    mp, sub, tr = K.m_main(cfg, name)
    P += mp; TR += tr
    P += K.dump_stamps2(cfg, 13)
    if cfg.light:
        P += ['s_waitcnt vmcnt(0)', 's_memtime s[6:7]', 's_memrealtime s[4:5]', 's_load_dwordx2 s[8:9], s[0:1], 40', 's_waitcnt lgkmcnt(0)', 's_mov_b32 s88, s6', 's_mov_b32 s89, s4'] + [f'v_writelane_b32 v255, s{82+i}, {i}' for i in range(8)] + [
              's_cmp_eq_u32 s2, 17', f's_cbranch_scc0 {name}_done', 's_cmp_eq_u32 s40, 0', f's_cbranch_scc0 {name}_done',
              'v_mbcnt_lo_u32_b32 v0, -1, 0', 'v_mbcnt_hi_u32_b32 v0, -1, v0', 'v_lshlrev_b32 v1, 2, v0', 'v_cmp_gt_u32 vcc, 8, v0', 's_and_saveexec_b64 s[10:11], vcc',
              'global_store_dword v1, v255, s[8:9] offset:16']
    if cfg.light2 or cfg.light3 or cfg.light4:
        P += ['s_waitcnt vmcnt(0)', 's_load_dwordx2 s[8:9], s[0:1], 40', 's_waitcnt lgkmcnt(0)',
              's_cmp_eq_u32 s2, 17', f's_cbranch_scc0 {name}_done', 's_cmp_eq_u32 s40, 0', f's_cbranch_scc0 {name}_done']
        P += [f'v_writelane_b32 v255, s{STAMP0+2*i}, {i}' for i in range(5)]
        P += ['v_mbcnt_lo_u32_b32 v0, -1, 0', 'v_mbcnt_hi_u32_b32 v0, -1, v0', 'v_lshlrev_b32 v1, 2, v0', 'v_cmp_gt_u32 vcc, 5, v0', 's_and_saveexec_b64 s[10:11], vcc',
              'global_store_dword v1, v255, s[8:9] offset:64']
    P += [f'{name}_done:', 's_endpgm']
    P += ['.p2align 6', f'{name}_ln:'] + lns + ['s_setpc_b64 s[42:43]']
    P += sub
    return P, TR

def kd(name):
    return k2.kd(name)

if __name__ == '__main__':
    import asmlib
    P, TR = gen(Cfg)
    asmlib.check(TR, 'kf')
    print(len(P))
```

```python
import k2
from k2 import f2u, ALPHA, WS_W, WS_H, W_BYTES, IMG_BYTES

REC = 544
NBLK = 99
SLAB = NBLK * REC
YB = 2 * SLAB
LDS_BYTES = YB + 2 * 24576
TAPS, ROWS = 400, 3616
DWB = YB

vO16 = 0
vP = 1
vL16 = 2
vZ = 3
vRel = 4
vLw, vLw3, vRd, vY0, vR0, vR1, vA, vB = 8, 9, 10, 11, 12, 13, 14, 15
STS = (16, 80)
BLK = 80
ACC = 120
TMP = 136
Y0 = 144
VO = 216
HOLD = 0
CW = 144
sM, sH, sX, sD = 8, 12, 16, 20
sBase, sIMG, sT, sT2, sSelL, sDS, sDY, sOutN, sTI = 28, 30, 31, 32, 33, 34, 35, 36, 37
sWave, sSelH, sPkF, sPkf = 40, 41, 42, 43
sMaskL, sMaskR = 44, 60
sSt3 = 76
sOnes, sAl, sEps, sInv, sOut = 92, 93, 94, 95, 96
sDbg = 4
sMk3 = 100
NPACK = 576
NPKWG = 72
STAMP0 = 82

def v(b, n=1): return f'v{b}' if n == 1 else f'v[{b}:{b+n-1}]'
def a(b, n=1): return f'a{b}' if n == 1 else f'a[{b}:{b+n-1}]'
def Wt(k, R, C): return CW + 32 * k + 2 * (4 * R + C)
def blk(row, bc): return BLK + 10 * (row % 4) + 2 * bc
def Y(p, s): return Y0 + 24 * p + 4 * s
M4 = 'v_mfma_f32_4x4x4_16b_bf16'
FULL = (1 << 64) - 1

class Cfg(k2.Cfg):
    f16 = True
    nt_h = True; nt_x = True; nt_o = True
    cx_nt = False
    st_flags = ' nt'
    xps = 147456
    xts = 49152
    light = False
    light2 = False
    light3 = False
    exact_vm = True
    touch = False
    l2tile = 0
    force_fb = False
    ln_pk = True
    light4 = False
    l4sel = '0246'
    spread = 0
    diag_nox = False
    htouch = False
    diag_nost = False
    l3sel = [0, 1, 2, 3, 4]
    early = True
    hskip = True
    spin = 1 << 14
    nosync = False

def setexec(out, cur, val):
    if cur[0] != val:
        out.append(f's_mov_b32 exec_lo, {hex(val & 0xffffffff)}')
        out.append(f's_mov_b32 exec_hi, {hex(val >> 32)}')
        cur[0] = val

def weights_gather(vb):
    out = []
    def reads(k):
        o = []
        for R in range(4):
            for dy in range(2):
                for c in range(4):
                    i = (R * 2 + dy) * 4 + c
                    for dx in range(2):
                        rho, gam = 2 * R + dy, 2 * c + dx
                        o.append(f'ds_read_u16 v{Y0+2*i+dx}, v{vb} offset:{(rho+1)*ROWS + (gam+1)*TAPS + 128*k}')
        return o
    for k in range(3):
        rd = reads(k)
        out += rd[:32] + rd[32:] + ['s_waitcnt lgkmcnt(15)']
        for half in range(2):
            if half == 1: out.append('s_waitcnt lgkmcnt(0)')
            for i in range(16 * half, 16 * half + 16):
                if half == 0 and i == 8: out.append('s_waitcnt lgkmcnt(15)')
                R, dy, c = i // 8, (i // 4) % 2, i % 4
                out.append(f'v_lshl_or_b32 v{Y0+2*i}, v{Y0+2*i+1}, 16, v{Y0+2*i}')
                out.append(f'v_accvgpr_write_b32 a{Wt(k,R,c)+dy}, v{Y0+2*i}')
    return out

def vo(r, dy, dx): return VO + 4 * r + 2 * dy + dx
def tile_offsets():
    out = []
    for dx in range(2):
        for r in range(4):
            l, rr = sMaskL + 2 * (2 * r + dx), sMaskR + 2 * (2 * r + dx)
            out += [f's_mov_b64 s[24:25], -1' if r < 3 else f's_or_b64 s[24:25], s[{l}:{l+1}], s[{rr}:{rr+1}]',
                    f's_cmp_eq_u32 s27, 0', f's_cselect_b64 s[24:25], s[{l}:{l+1}], s[24:25]',
                    f's_cmp_eq_u32 s27, 23', f's_cselect_b64 s[24:25], s[{rr}:{rr+1}], s[24:25]']
            for dy in range(2):
                t = vo(r, dy, dx)
                out += [f's_add_u32 s26, s{sBase}, {147456*dy + 384*dx}', f'v_add_u32 v{t}, s26, v{vRel+r}', f'v_cmp_gt_u32 vcc, s{sIMG}, v{t}',
                        f's_and_b64 vcc, vcc, s[24:25]', f'v_cndmask_b32 v{t}, 2.0, v{t}, vcc']
    return out
def load_items(cfg, stage, sset):
    nt = ' nt' if cfg.cx_nt else ''
    its = []
    for r in range(4):
        for dy in range(2):
            for dx in range(2):
                if r < 3: its.append([f'buffer_load_dwordx4 {v(STS[sset] + 16 * r + 4 * (2 * dy + dx), 4)}, v{vo(r,dy,dx)}, s[{sX}:{sX+3}], 0 offen offset:{128*stage}{nt} ;@l{r}'])
                else: its.append([f'buffer_load_dword v{STS[sset] + 48 + 2 * dy + dx}, v{vo(r,dy,dx)}, s[{sX}:{sX+3}], 0 offen offset:{128*stage}{nt} ;@l{r}'])
    return its
def store_items(cfg, k):
    its = []
    for s, sb in ((k, sSt3), (3 + k, sSt3 + 3)):
        for p in range(3):
            its.append([f'buffer_store_dwordx4 {a(HOLD + 24*p + 4*s, 4)}, v{vL16}, s[{sH}:{sH+3}], s{sb+p} offen offset:{1024*(s % 3)}{cfg.st_flags} ;@s'])
    return [its[0], its[3], its[1], its[4], its[2], its[5]]

def transpose_unit(r, d, sset):
    t = TMP
    if r == 3:
        if d > 0: return []
        L = lambda dy, dx: STS[sset] + 48 + 2 * dy + dx
        return [f'v_perm_b32 v{t}, v{L(0,1)}, v{L(0,0)}, s{sSelL}', f'v_perm_b32 v{t+1}, v{L(1,1)}, v{L(1,0)}, s{sSelL}',
                f'v_perm_b32 v{t+2}, v{L(0,1)}, v{L(0,0)}, s{sSelH}', f'v_perm_b32 v{t+3}, v{L(1,1)}, v{L(1,0)}, s{sSelH}',
                f's_mov_b64 exec, s[{sMk3}:{sMk3+1}]', f'ds_write_b128 v{vLw3}, {v(t,4)}', 's_mov_b64 exec, -1']
    L = lambda dy, dx: STS[sset] + 16 * r + 4 * (2 * dy + dx) + d
    return [f'v_xad_u32 v{vA}, v{vO16}, {16*d}, v{vLw}',
            f'v_perm_b32 v{t}, v{L(0,1)}, v{L(0,0)}, s{sSelL}',
            f'v_perm_b32 v{t+1}, v{L(1,1)}, v{L(1,0)}, s{sSelL}',
            f'v_perm_b32 v{t+2}, v{L(0,1)}, v{L(0,0)}, s{sSelH}',
            f'v_perm_b32 v{t+3}, v{L(1,1)}, v{L(1,0)}, s{sSelH}',
            f'ds_write_b128 v{vA}, {v(t,4)} offset:{32 * REC * r + 128*d}']

def yout(py):
    out = []
    a0 = ACC + 8 * (py & 1); a1 = a0 + 4
    t = TMP + 4
    for oy in range(2):
        out.append(f'v_cvt_pk_bf16_f32 v{t+2*oy}, v{a0+2*oy}, v{a0+2*oy+1}')
        out.append(f'v_cvt_pk_bf16_f32 v{t+2*oy+1}, v{a1+2*oy}, v{a1+2*oy+1}')
        out.append(f'ds_write_b64 v{vY0}, {v(t+2*oy,2)} offset:{(2*py+oy)*2048}')
    return out

def row_reads(br):
    return [f'ds_read_b64 {v(blk(br,bc),2)}, v{vRd} offset:{(br*11+bc)*REC}' for bc in range(5)]

SPREAD = [3]
def conv_stage(k, sset, items, stores, transp=True, xtra=()):
    out = []
    fifo = []
    def emit_lds(t, tag): out.append(t); fifo.append(tag)
    def need(tag):
        idx = [i for i, x in enumerate(fifo) if x == tag]
        if idx:
            n = len(fifo) - 1 - idx[-1]
            out.append(f's_waitcnt lgkmcnt({min(n,15)})')
            del fifo[:idx[-1] + 1]
    tagof = lambda t: ('w' if t.startswith('ds_') else None)
    for br in range(4):
        for t in row_reads(br): emit_lds(t, ('row', br))
    if transp:
        out.append('WAITL:0')
        for t in transpose_unit(0, 0, sset):
            if tagof(t): emit_lds(t, 'w')
            else: out.append(t)
    fill = {(py, i): [] for py in range(6) for i in range(16)}
    for py in range(6):
        if py > 0:
            for t, p_ in zip(yout(py - 1), [2, 2, 3, 4, 4, 5]): fill[(py, p_)].append((t, tagof(t)))
        if py + 4 <= 8:
            for i, t in enumerate(row_reads(py + 4)): fill[(py, 7 + i)].append((t, ('row', py + 4)))
    upos = {0: [None, (0, 1), (0, 3), (0, 5)], 1: [(1, 6), (1, 8), (1, 12), (1, 14)], 2: [(2, 6), (2, 8), (2, 12), (2, 14)], 3: [(3, 6), (3, 8), (3, 12), (3, 14)]}
    lpos = {0: [(0, 12), (0, 14), (1, 0), (1, 1)], 1: [(1, 15), (2, 0), (2, 1), (2, 5)], 2: [(2, 15), (3, 0), (3, 1), (3, 5)], 3: [(3, 15), (4, 0), (4, 1), (4, 6)]}
    spos = [(0, 7), (0, 10), (4, 8), (4, 12), (5, 0), (5, 6)]
    for r in range(4):
        if transp:
            if r > 0: fill[upos[r][0]].append((f'WAITL:{r}', None))
            for d in range(4):
                if upos[r][d] is None: continue
                for t in transpose_unit(r, d, sset): fill[upos[r][d]].append((t, tagof(t)))
        for i in range(4):
            if 4 * r + i < len(items):
                for t in items[4 * r + i]: fill[lpos[r][i]].append((t, None))
    for it, pos in zip(stores, spos):
        for t in it: fill[pos].append((t, None))
    for i, it in enumerate(xtra):
        sl = 2 + 6 * i
        for t in it: fill[(sl // 16, sl % 16)].append((t, None))
    seq = []
    for py in range(6):
        for idx in range(16):
            grp = []
            for t, tag in fill[(py, idx)]:
                grp.append((t, tag))
                glue = t.startswith(('s_mov_b64 exec, s[', 's_add_u32 m0', 's_nop', 'WAITL', 'v_cmp', 's_and_b64')) or (t.startswith('s_add_u32 s') )
                if t.startswith('ds_write_b128') and len(grp) >= 2 and grp[-2][0].startswith('s_mov_b64 exec, s['): glue = True
                if not glue:
                    seq.append((16 * py + idx, grp)); grp = []
            if grp: seq.append((16 * py + idx, grp))
    total = sum(len(g) for _, g in seq)
    qi = 0; done = 0
    for py in range(6):
        for idx in range(16):
            R, C = divmod(idx, 4)
            sl = 16 * py + idx
            if idx == 0 and py in (0, 2, 4): out.append(f';MARK{py}')
            if C == 0: need(('row', py + R))
            for px in range(2):
                aa = ACC + 8 * (py & 1) + 4 * px
                c = '0' if idx == 0 else v(aa, 4)
                out.append(f'{M4} {v(aa,4)}, {a(Wt(k,R,C),2)}, {v(blk(py+R, px+C),2)}, {c}')
            n0 = done
            while qi < len(seq) and seq[qi][0] <= sl and (done == n0 or seq[qi][0] <= sl - SPREAD[0] or sl == 95):
                for t, tag in seq[qi][1]:
                    if tag: emit_lds(t, tag)
                    else: out.append(t)
                done += len(seq[qi][1]); qi += 1
            if done == n0:
                nxt_has_wait = (idx % 4 == 3) and idx < 15 and any(x == ('row', py + R + 1) for x in fifo)
                if not nxt_has_wait: out.append('s_nop 0')
    assert qi == len(seq)
    out += [';MARK6', 's_nop 4'] + yout(5)
    return out

def resolve_l(stages):
    seq = []
    for si in range(3):
        for st in stages: seq.append(st)
    fifo = []
    need = {r: [] for r in range(4)}
    for si, st in enumerate(seq):
        for t in st:
            if t.startswith('WAITL:'):
                r = int(t[6:])
                if si >= 1:
                    idx = max(i for i, x in enumerate(fifo) if x == (si - 1, f'l{r}'))
                    need[r].append(len(fifo) - 1 - idx)
            elif ';@' in t: fifo.append((si, t.split(';@')[1].strip()))
    return {r: min(x) for r, x in need.items()}

def ln_block(cfg):
    NP = 3
    out = []
    t = ACC
    s1 = [t + p for p in range(NP)]; s2 = [t + 3 + p for p in range(NP)]
    for i in range(24):
        for p in range(NP):
            r = Y0 + 24 * p + i
            c1 = '0' if i == 0 else f'v{s1[p]}'; c2 = '0' if i == 0 else f'v{s2[p]}'
            out.append(f'v_dot2_f32_bf16 v{s1[p]}, v{r}, s{sOnes}, {c1}')
            out.append(f'v_dot2_f32_bf16 v{s2[p]}, v{r}, v{r}, {c2}')
    out.append('s_nop 2')
    allr = s1 + s2
    tm = [t + 12 + i for i in range(len(allr))]
    for sw in ('v_permlane16_swap_b32', 'v_permlane32_swap_b32'):
        for r, q in zip(allr, tm): out.append(f'v_mov_b32 v{q}, v{r}')
        out.append('s_nop 1')
        for r, q in zip(allr, tm): out.append(f'{sw} v{q}, v{r}')
        out.append('s_nop 1')
        for r, q in zip(allr, tm): out.append(f'v_add_f32 v{r}, v{r}, v{q}')
    rs = [t + 6 + 2 * p for p in range(NP)]; nb = [t + 18 + 2 * p for p in range(NP)]
    for p in range(NP): out.append(f'v_mul_f32 v{s1[p]}, s{sInv}, v{s1[p]}')
    for p in range(NP): out.append(f'v_mul_f32 v{s2[p]}, s{sInv}, v{s2[p]}')
    for p in range(NP): out.append(f'v_fma_f32 v{s2[p]}, -v{s1[p]}, v{s1[p]}, v{s2[p]}')
    for p in range(NP): out.append(f'v_max_f32 v{s2[p]}, 0, v{s2[p]}')
    for p in range(NP): out.append(f'v_add_f32 v{s2[p]}, s{sEps}, v{s2[p]}')
    for p in range(NP): out.append(f'v_rsq_f32 v{rs[p]}, v{s2[p]}')
    out.append('s_nop 0')
    for p in range(NP): out.append(f'v_mul_f32 v{rs[p]}, s{sAl}, v{rs[p]}')
    for p in range(NP): out.append(f'v_mul_f32 v{nb[p]}, -v{s1[p]}, v{rs[p]}')
    k = 0
    for p in range(NP):
        for s in range(6):
            for d in range(4):
                r = Y(p, s) + d
                x0 = t + 12 + 2 * (k % 3); x1 = x0 + 1; k += 1
                out.append(f'v_lshlrev_b32 v{x0}, 16, v{r}')
                out.append(f'v_and_b32 v{x1}, 0xffff0000, v{r}')
                if cfg.ln_pk:
                    out.append(f'v_pk_fma_f32 v[{x0}:{x1}], v[{x0}:{x1}], v[{rs[p]}:{rs[p]+1}], v[{nb[p]}:{nb[p]+1}] op_sel_hi:[1,0,0]')
                else:
                    out.append(f'v_fma_f32 v{x0}, v{x0}, v{rs[p]}, v{nb[p]}')
                    out.append(f'v_fma_f32 v{x1}, v{x1}, v{rs[p]}, v{nb[p]}')
                out.append(f'v_cvt_pk_bf16_f32 v{r}, v{x0}, v{x1}')
    return out

def pack_loads(lab, dst, t, lane):
    out = [f's_mul_hi_u32 s46, s{sPkF}, {(1 << 32) // 24 + 1}',
           f's_mul_i32 s47, s46, 24', f's_sub_u32 s{sPkf}, s{sPkF}, s47',
           f'v_and_b32 v{t}, 15, v{lane}', f'v_lshrrev_b32 v{t+1}, 4, v{lane}',
           f's_cmp_lt_u32 s{sPkf}, 12', f's_cbranch_scc0 {lab}_pk2']
    out += [f's_add_u32 s48, s46, 1', f's_cmp_eq_u32 s48, 24', f's_cselect_b32 s48, 0, s48',
            f's_lshr_b32 s49, s{sPkf}, 1', f's_and_b32 s50, s{sPkf}, 1',
            f's_lshl_b32 s48, s48, 6', f's_lshl_b32 s50, s50, 5', f's_add_u32 s48, s48, s50',
            f's_mul_i32 s49, s49, {32*1536}', f's_add_u32 s48, s48, s49',
            f'v_mul_u32_u24 v{t+2}, {8*1536}, v{t+1}', f'v_lshl_add_u32 v{t+2}, v{t}, 1, v{t+2}',
            f's_mov_b32 s{sM}, s52', f's_mov_b32 s{sM+1}, s53', f's_mov_b32 s{sM+2}, {192*768*2}', f's_mov_b32 s{sM+3}, 0x20000']
    for e in range(8):
        out.append(f's_add_u32 s49, s48, {e*1536}')
        out.append(f'buffer_load_ushort v{dst+e}, v{t+2}, s[{sM}:{sM+3}], s49 offen')
    out += [f's_branch {lab}_pk3', f'{lab}_pk2:']
    out += [f's_add_u32 s48, s46, 23', f's_cmp_ge_u32 s48, 24', f's_cselect_b32 s49, 24, 0', f's_sub_u32 s48, s48, s49',
            f's_sub_u32 s49, s{sPkf}, 12', f's_lshr_b32 s50, s49, 1', f's_and_b32 s49, s49, 1',
            f's_mul_i32 s48, s48, {32*384}', f's_lshl_b32 s50, s50, 6', f's_lshl_b32 s49, s49, 3',
            f's_add_u32 s48, s48, s50', f's_add_u32 s48, s48, s49',
            f'v_lshrrev_b32 v{t+3}, 2, v{t}', f'v_lshlrev_b32 v{t+3}, 4, v{t+3}',
            f'v_and_b32 v{t+4}, 3, v{t}', f'v_lshl_add_u32 v{t+3}, v{t+4}, 1, v{t+3}',
            f'v_mul_u32_u24 v{t+2}, {4*384}, v{t+1}', f'v_add_u32 v{t+2}, v{t+2}, v{t+3}',
            f's_mov_b32 s{sM}, s54', f's_mov_b32 s{sM+1}, s55', f's_mov_b32 s{sM+2}, {192*768*2}', f's_mov_b32 s{sM+3}, 0x20000']
    for e in range(8):
        out.append(f's_add_u32 s49, s48, {(16*(e>>2) + (e&3))*384}')
        out.append(f'buffer_load_ushort v{dst+e}, v{t+2}, s[{sM}:{sM+3}], s49 offen')
    out += [f'{lab}_pk3:']
    return out

def pack_store(lab, cfg, src, dst):
    out = []
    for d in range(4): out.append(f'v_lshl_or_b32 v{dst+d}, v{src+2*d+1}, 16, v{src+2*d}')
    if cfg.f16:
        out += [f's_cmp_lt_u32 s{sPkf}, 12', f's_cbranch_scc1 {lab}_pk5']
        for e in range(8): out.append(f'v_lshlrev_b32 v{src+e}, 16, v{src+e}')
        for d in range(4): out.append(f'v_cvt_pk_f16_f32 v{dst+d}, v{src+2*d}, v{src+2*d+1}')
        out.append(f'{lab}_pk5:')
    out += [f's_add_u32 s{sM}, s38, {WS_W}', f's_addc_u32 s{sM+1}, s39, 0', f's_mov_b32 s{sM+2}, {W_BYTES}', f's_mov_b32 s{sM+3}, 0x20000',
            f's_lshl_b32 s3, s{sPkF}, 10',
            f'buffer_store_dwordx4 {v(dst,4)}, v{vL16}, s[{sM}:{sM+3}], s3 offen sc1']
    return out

def gen(cfg, name='fused_kernel'):
    k2.MF2[0] = 'v_mfma_f32_16x16x32_f16' if cfg.f16 else k2.MF
    SPREAD[0] = cfg.spread
    P = []; TR = []
    n3 = [0]
    def st3():
        if cfg.light3 and n3[0] in cfg.l3sel:
            j = cfg.l3sel.index(n3[0])
            P.extend([f's_memtime s[{82+2*j}:{83+2*j}]'])
        n3[0] += 1
        if False:
            P.extend(['s_memtime s[102:103]' if False else 's_memtime s[98:99]', 's_waitcnt lgkmcnt(0)', f'v_writelane_b32 v253, s98, {n3[0]}']); n3[0] += 1
    def emit(l, tr=True):
        P.extend(l)
        if tr: TR.extend([x for x in l if not x.endswith(':')])
    emit(['s_cmp_ge_u32 s2, 256', f's_cbranch_scc1 {name}_done'])
    if cfg.light: P += ['s_memtime s[6:7]', 's_memrealtime s[8:9]', 's_waitcnt lgkmcnt(0)', 's_mov_b32 s82, s6', 's_mov_b32 s83, s8']
    st3()
    emit(['s_load_dwordx4 s[4:7], s[0:1], 0',
          's_load_dwordx2 s[38:39], s[0:1], 48',
          's_load_dwordx4 s[52:55], s[0:1], 16',
          'v_lshrrev_b32 v1, 6, v0', 'v_and_b32 v0, 63, v0', 's_nop 0',
          f'v_readfirstlane_b32 s{sWave}, v1',
          f's_mov_b32 s{sIMG}, {IMG_BYTES}', f's_mov_b32 s{sOnes}, 0x3f803f80',
          f's_mov_b32 s{sSelL}, 0x05040100', f's_mov_b32 s{sSelH}, 0x07060302',
          f's_mov_b32 s{sAl}, {hex(f2u(ALPHA))}', f's_mov_b32 s{sEps}, {hex(f2u(1e-5))}', f's_mov_b32 s{sInv}, {hex(f2u(1.0/192))}',
          f'v_lshlrev_b32 v{vL16}, 4, v0', f'v_mov_b32 v{vZ}, 0',
          's_waitcnt lgkmcnt(0)',
          f's_mov_b32 s{sX}, s4', f's_mov_b32 s{sX+1}, s5', f's_mov_b32 s{sX+2}, {IMG_BYTES}', f's_mov_b32 s{sX+3}, 0x20000',
          f's_mov_b32 s{sD}, s6', f's_mov_b32 s{sD+1}, s7', f's_mov_b32 s{sD+2}, {49*384}', f's_mov_b32 s{sD+3}, 0x20000',
          f's_add_u32 s{sH}, s38, {WS_H}', f's_addc_u32 s{sH+1}, s39, 0', f's_mov_b32 s{sH+2}, {IMG_BYTES}', f's_mov_b32 s{sH+3}, 0x20000',
          f's_load_dwordx2 s[{sDbg}:{sDbg+1}], s[0:1], 40', f's_mov_b32 s{sTI}, 0'])
    st3()
    t = Y0
    c = []
    for j in range(4):
        c += [f'v_add_u32 v{t}, {64*j}, v0', f'v_mul_u32_u24 v{t+1}, 2622, v{t}', f'v_lshrrev_b32 v{t+1}, 16, v{t+1}',
              f'v_mul_u32_u24 v{t+2}, 25, v{t+1}', f'v_sub_u32 v{t+2}, v{t}, v{t+2}',
              f'v_subrev_u32 v{t+1}, 1, v{t+1}', f'v_cmp_gt_u32 vcc, 7, v{t+1}', f'v_cmp_gt_u32 s[44:45], 24, v{t+2}',
              f'v_mul_u32_u24 v{t+1}, 384, v{t+1}', f'v_lshl_add_u32 v{t+1}, v{t+2}, 4, v{t+1}', f's_and_b64 vcc, vcc, s[44:45]',
              f'v_subrev_u32 v{t+1}, {1024*j}, v{t+1}' if False else 's_nop 0',
              f'v_cndmask_b32 v{t+8+j}, 2.0, v{t+1}, vcc']
    emit(c)
    c = []
    for m in range(3):
        blk_ = [f's_add_u32 s{sT}, s{sWave}, {4*m}', f's_sub_u32 s{sT2}, s{sT}, 1', f's_cmp_lt_u32 s{sT2}, 7', f's_mul_i32 s{sT2}, s{sT2}, {7*384}',
                f's_cselect_b32 s{sT2}, s{sT2}, 0x70000000', f's_mul_i32 s{sT}, s{sT}, {ROWS}', f's_add_u32 s{sT}, s{sT}, {DWB}']
        for j in range(4):
            blk_ += [f's_add_u32 m0, s{sT}, {1024*j}', 's_nop 0']
            if j == 3: blk_ += ['s_mov_b32 exec_hi, 3']
            blk_ += [f'buffer_load_dwordx4 v{t+8+j}, s[{sD}:{sD+3}], s{sT2} offen lds']
            if j == 3: blk_ += ['s_mov_b32 exec_hi, -1']
        if m < 2: c += blk_
        else: c += [f's_cmp_eq_u32 s{sWave}, 0', f's_cbranch_scc0 {name}_nor8'] + blk_ + [f'{name}_nor8:']
    emit(c)
    pk = [f's_mov_b32 s{sPkF}, -1', f's_cmp_lt_u32 s2, {NPKWG if not cfg.force_fb else 0}', f's_cbranch_scc0 {name}_nopk',
          f's_lshl_b32 s44, s2, 3', f's_lshl_b32 s45, s{sWave}, 1', f's_add_u32 s{sPkF}, s44, s45']
    pk += pack_loads(f'{name}_a', Y0 + 32, ACC, 0) + [f's_add_u32 s{sPkF}, s{sPkF}, 1'] + pack_loads(f'{name}_a2', Y0 + 41, ACC, 0) + [f'{name}_nopk:']
    st3()
    if not cfg.nosync: P += pk
    st3()
    c = [f'v_and_b32 v{t}, 7, v0', f'v_lshrrev_b32 v{t+1}, 3, v0']
    for r in range(4):
        if r < 3: c += [f's_lshl_b32 s{sT}, s{sWave}, 3', f's_add_u32 s{sT}, s{sT}, {32*r}', f'v_add_u32 v{t+2}, s{sT}, v{t+1}']
        else:
            c += [f'v_add_u32 v{t+2}, 96, v{t+1}', f'v_cmp_gt_u32 s[{sMk3}:{sMk3+1}], 24, v0']
        c += [f'v_mul_u32_u24 v{t+3}, 745, v{t+2}', f'v_lshrrev_b32 v{t+3}, 13, v{t+3}',
              f'v_mul_u32_u24 v{t+4}, 11, v{t+3}', f'v_sub_u32 v{t+4}, v{t+2}, v{t+4}',
              f'v_mul_u32_u24 v{t+5}, {2*384}, v{t+3}', f'v_lshl_add_u32 v{t+5}, v{t+4}, 1, v{t+5}',
              f'v_mul_u32_u24 v{t+5}, 384, v{t+5}',
              f'v_lshl_add_u32 v{vRel+r}, v{t}, 4, v{t+5}']
        for dx in range(2):
            mL = sMaskL + 2 * (2 * r + dx); mR = sMaskR + 2 * (2 * r + dx)
            c += [f'v_lshl_add_u32 v{t+6}, v{t+4}, 1, {dx}',
                  f'v_cmp_lt_u32 s[{mL}:{mL+1}], 2, v{t+6}', f'v_cmp_gt_u32 s[{mR}:{mR+1}], 19, v{t+6}']
            if r == 3:
                c += ['s_nop 1', f's_and_b64 s[{mL}:{mL+1}], s[{mL}:{mL+1}], s[{sMk3}:{sMk3+1}]', f's_and_b64 s[{mR}:{mR+1}], s[{mR}:{mR+1}], s[{sMk3}:{sMk3+1}]']
        if r == 0: c += [f'v_mul_u32_u24 v{vLw}, {REC}, v{t+2}']
        if r == 3:
            c += [f's_lshl_b32 s{sT}, s{sWave}, 2', f'v_add_u32 v{vRel+3}, s{sT}, v{vRel+3}',
                  f'v_cndmask_b32 v{vRel+3}, 2.0, v{vRel+3}, s[{sMk3}:{sMk3+1}]',
                  f'v_mul_u32_u24 v{vLw3}, {REC}, v{t+2}', f'v_xor_b32 v{t+6}, s{sWave}, v{t}', f'v_lshl_add_u32 v{vLw3}, v{t+6}, 4, v{vLw3}',
                  f's_lshl_b32 s{sT}, s{sWave}, 7', f'v_add_u32 v{vLw3}, s{sT}, v{vLw3}']
    c += [f'v_lshrrev_b32 v{t}, 2, v0', f'v_and_b32 v{t+1}, 3, v0', f'v_lshrrev_b32 v{t+2}, 3, v{t}',
          f's_lshl_b32 s{sT}, s{sWave}, 1',
          f'v_add_u32 v{t+2}, s{sT}, v{t+2}', f'v_bfe_u32 v{t+3}, v{t}, 1, 2', f'v_xor_b32 v{t+4}, v{t+2}, v{t+3}',
          f'v_lshlrev_b32 v{t+4}, 1, v{t+4}', f'v_lshl_add_u32 v{t+4}, v{t+3}, 4, v{t+4}',
          f'v_and_b32 v{t+5}, 1, v{t}', f'v_add_u32 v{t+4}, v{t+4}, v{t+5}', f'v_lshlrev_b32 v{t+4}, 3, v{t+4}',
          f'v_mul_u32_u24 v{t+5}, {2*REC}, v{t+1}', f'v_add_u32 v{vRd}, v{t+4}, v{t+5}']
    c += [f's_lshl_b32 s{sT2}, s{sWave}, 4', f'v_add_u32 v{t+7}, s{sT2}, v{t}',
          f'v_bfe_u32 v{t+8}, v{t+7}, 3, 1', f'v_lshlrev_b32 v{t+8}, 2, v{t+8}', f'v_xor_b32 v{t+7}, v{t+7}, v{t+8}',
          f'v_lshlrev_b32 v{t+7}, 5, v{t+7}', f'v_lshl_add_u32 v{t+7}, v{t+1}, 3, v{t+7}', f'v_add_u32 v{vY0}, {YB}, v{t+7}']
    c += [f'v_lshrrev_b32 v{t}, 4, v0', f'v_bfe_u32 v{t+1}, v0, 2, 2', f'v_and_b32 v{t+2}, 3, v0',
          f's_mul_i32 s{sT}, s{sWave}, {3*2048}', f's_add_u32 s{sT}, s{sT}, {YB}']
    for h, vr in ((0, vR0), (1, vR1)):
        c += [f'v_lshl_add_u32 v{t+3}, v{t}, 3, v{t+1}', f'v_add_u32 v{t+3}, {4*h}, v{t+3}',
              f'v_and_b32 v{t+4}, 1, v{t}', f'v_lshlrev_b32 v{t+4}, 2, v{t+4}', f'v_xor_b32 v{t+3}, v{t+3}, v{t+4}',
              f'v_lshlrev_b32 v{t+3}, 5, v{t+3}', f'v_lshl_add_u32 v{t+3}, v{t+2}, 3, v{t+3}', f'v_add_u32 v{vr}, s{sT}, v{t+3}']
    vb = VO + 15 + 1
    c += [f'v_lshrrev_b32 v{t}, 2, v0', f's_lshl_b32 s{sT}, s{sWave}, 5', f'v_lshlrev_b32 v{t}, 1, v{t}', f'v_add_u32 v{t}, s{sT}, v{t}',
          f'v_bfe_u32 v{t+1}, v0, 1, 1', f'v_mul_u32_u24 v{t+1}, {ROWS}, v{t+1}', f'v_and_b32 v{t+2}, 1, v0', f'v_mul_u32_u24 v{t+2}, {TAPS}, v{t+2}',
          f'v_add_u32 v{t+1}, v{t+1}, v{t+2}', f'v_sub_u32 v{t}, v{t}, v{t+1}', f'v_add_u32 v{vb}, {DWB}, v{t}',
          f'v_and_b32 v{vO16}, 7, v0', f'v_lshlrev_b32 v{vO16}, 4, v{vO16}']
    emit(c)
    tl = [0]
    def tile_setup(fetch):
        o = [f's_sub_u32 s24, 2, {fetch}',
             f's_lshr_b32 s25, s2, 3', f's_lshl_b32 s24, s24, 5', f's_add_u32 s25, s25, s24',
             f's_and_b32 s26, s2, 7', f's_lshl_b32 s26, s26, 2', f's_and_b32 s27, s25, 3', f's_add_u32 s26, s26, s27',
             f's_lshr_b32 s27, s25, 2',
             f's_mul_i32 s24, s26, {12*384}', f's_lshl_b32 s25, s27, 4', f's_add_u32 s24, s24, s25',
             f's_sub_u32 s24, s24, {3*384+3}', f's_mul_i32 s{sBase}, s24, 384',
             f's_cmp_eq_u32 {fetch}, 3', f's_cselect_b32 s{sBase}, 0x60000000, s{sBase}']
        if cfg.diag_nox: o += [f's_mov_b32 s{sBase}, 0x60000000']
        tl[0] += 1; lab = f'{name}_to{tl[0]}'
        fast = []
        for dy in range(2):
            for dx in range(2):
                fast += [f's_add_u32 s24, s{sBase}, {147456*dy + 384*dx}'] + [f'v_add_u32 v{vo(r,dy,dx)}, s24, v{vRel+r}' for r in range(4)]
        o += [f's_sub_u32 s25, s27, 1', f's_cmp_lt_u32 s25, 22', f's_cselect_b32 s25, 1, 0', f's_cmp_eq_u32 s26, 0', f's_cselect_b32 s25, 0, s25',
              f's_cmp_eq_u32 s{sBase}, 0x60000000', f's_cselect_b32 s25, 1, s25', f's_cmp_eq_u32 s25, 0', f's_cbranch_scc1 {lab}_slow']
        return o + fast + [f's_branch {lab}_done', f'{lab}_slow:'] + tile_offsets() + [f'{lab}_done:']
    strip = lambda l: [x.split(' ;@')[0] for x in l]
    def store_bases():
        o = [f's_mul_i32 s25, s2, 3', f's_add_u32 s25, s25, 2', f's_mul_i32 s25, s25, 12', f's_mul_i32 s26, s{sWave}, 3', f's_add_u32 s25, s25, s26',
             f's_mul_i32 s25, s25, 6144', f's_add_u32 s26, s25, 3072',
             f's_cmp_eq_u32 s{sTI}, {1 if not cfg.diag_nost else 9}', f's_cselect_b32 s{sSt3}, s25, 0x70000000',
             f's_cmp_eq_u32 s{sTI}, {2 if not cfg.diag_nost else 9}', f's_cselect_b32 s{sSt3+3}, s26, 0x70000000']
        for b in (sSt3, sSt3 + 3): o += [f's_add_u32 s{b+1}, s{b}, 6144', f's_add_u32 s{b+2}, s{b}, 12288']
        return o
    emit(tile_setup('0'))
    emit(strip(sum(load_items(cfg, 0, 0), [])))
    st3()
    emit(['s_waitcnt vmcnt(16) lgkmcnt(0)'])
    st3()
    emit(['s_barrier'])
    st3()
    if not cfg.nosync:
        P += [f's_cmp_eq_u32 s{sPkF}, -1', f's_cbranch_scc1 {name}_nops'] + pack_store(f'{name}_b', cfg, Y0 + 41, Y0)
        P += [f's_sub_u32 s{sPkF}, s{sPkF}, 1', f's_sub_u32 s{sPkf}, s{sPkf}, 1'] + pack_store(f'{name}_b2', cfg, Y0 + 32, Y0 + 4) + ['s_nop 1', f'{name}_nops:']
    emit(weights_gather(vb))
    st3()
    emit(['s_waitcnt vmcnt(0)'])
    st3()
    emit([f'v_add_u32 v{vLw}, {SLAB}, v{vLw}', f'v_add_u32 v{vLw3}, {SLAB}, v{vLw3}', f'v_add_u32 v{vRd}, {SLAB}, v{vRd}'])
    for r in range(4):
        for d in range(4): emit(transpose_unit(r, d, 0))
    emit(strip(sum(load_items(cfg, 1, 0), [])))
    raw = {k: conv_stage(k, 0, load_items(cfg, (k + 2) % 3, 0), store_items(cfg, k)) for k in range(3)}
    nw = resolve_l([raw[0], raw[1], raw[2]])
    fix = lambda l: [(f's_waitcnt vmcnt({nw[int(x[6:])]})' if x.startswith('WAITL:') else x.split(' ;@')[0]) for x in l]
    body = {key: fix(val) for key, val in raw.items()}
    tailst = 0
    for x in reversed(raw[0]):
        if ';@l' in x: break
        if ';@s' in x: tailst += 1
    emit([f's_mov_b32 s{sT}, 0x70000000'] + [f'buffer_store_dword v{vA}, v{vL16}, s[{sH}:{sH+3}], s{sT} offen'] * tailst)
    emit([f'v_subrev_u32 v{vLw}, {SLAB}, v{vLw}', f'v_subrev_u32 v{vLw3}, {SLAB}, v{vLw3}', f's_mov_b32 s{sDS}, {-SLAB & 0xffffffff}', f's_mov_b32 s{sDY}, 24576',
          's_waitcnt lgkmcnt(0)'])
    st3()
    emit(['s_barrier'])
    st3()
    if not cfg.nosync:
        P += [f's_cmp_eq_u32 s{sPkF}, -1', f's_cbranch_scc1 {name}_nopub', f's_cmp_eq_u32 s{sWave}, 0', f's_cbranch_scc0 {name}_nopub',
              f'v_mov_b32 v{vB}, 1', 's_mov_b32 exec_lo, 1', 's_mov_b32 exec_hi, 0',
              f'global_atomic_add v{vZ}, v{vB}, s[{sDbg}:{sDbg+1}]', 's_mov_b64 exec, -1', f'{name}_nopub:']
    def after(k, vm=None):
        o = ([f's_waitcnt vmcnt({vm})'] if vm is not None else []) + ['s_waitcnt lgkmcnt(0)', 's_barrier']
        for p in range(3):
            for sp in range(2):
                for h in range(2):
                    o.append(f'ds_read_b64_tr_b16 {v(Y(p,2*k+sp)+2*h,2)}, v{vR0 if h == 0 else vR1} offset:{p*2048 + sp*1024}')
        o += [f'v_add_u32 v{vRd}, s{sDS}, v{vRd}', f'v_subrev_u32 v{vLw}, s{sDS}, v{vLw}', f'v_subrev_u32 v{vLw3}, s{sDS}, v{vLw3}',
              f'v_add_u32 v{vY0}, s{sDY}, v{vY0}', f'v_add_u32 v{vR0}, s{sDY}, v{vR0}', f'v_add_u32 v{vR1}, s{sDY}, v{vR1}',
              f's_sub_u32 s{sDS}, 0, s{sDS}', f's_sub_u32 s{sDY}, 0, s{sDY}']
        return o
    sn = [0]
    def st2():
        if not cfg.light2: return []
        sn[0] += 1
        return [f's_cmp_eq_u32 s{sTI}, {cfg.l2tile}', f's_cbranch_scc0 {name}_s2_{sn[0]}', f's_memtime s[{STAMP0-2+2*((sn[0]-1)%5+1)}:{STAMP0-1+2*((sn[0]-1)%5+1)}]', f'{name}_s2_{sn[0]}:']
    lns = ln_block(cfg)
    K = k2
    emit([f's_mov_b32 s{sTI}, 0'])
    P += ['.p2align 6', f'{name}_tile:']
    P += st2()
    emit(store_bases())
    if not cfg.nosync:
        P += [f's_cmp_eq_u32 s{sTI}, 2', f's_cbranch_scc0 {name}_nopoll', f's_cmp_eq_u32 s{sWave}, 0', f's_cbranch_scc0 {name}_nopoll',
              f'global_load_dword v{vP}, v{vZ}, s[{sDbg}:{sDbg+1}] sc1', f'{name}_nopoll:']
    emit(body[0] + after(0))
    P += st2()
    emit([f's_add_u32 s3, s{sTI}, 1'] + tile_setup('s3'))
    if not cfg.nosync:
        ft = ACC
        fb = [f's_cmp_eq_u32 s{sTI}, 2', f's_cbranch_scc0 {name}_nochk', f's_cmp_eq_u32 s{sWave}, 0', f's_cbranch_scc0 {name}_nochk',
              f's_waitcnt vmcnt(22)', f'v_readfirstlane_b32 s44, v{vP}', 's_nop 3', f's_cmp_ge_u32 s44, {NPKWG + (1000 if cfg.force_fb else 0)}', f's_cbranch_scc1 {name}_acq',
              f's_mov_b32 s45, {cfg.spin}', f'{name}_spin:',
              f'global_load_dword v{vP}, v{vZ}, s[{sDbg}:{sDbg+1}] sc1', 's_waitcnt vmcnt(0)', f'v_readfirstlane_b32 s44, v{vP}', 's_nop 3',
              f's_cmp_ge_u32 s44, {NPKWG + (1000 if cfg.force_fb else 0)}', f's_cbranch_scc1 {name}_acq',
              's_sub_u32 s45, s45, 1', 's_cmp_lg_u32 s45, 0', f's_cbranch_scc1 {name}_spin',
              's_load_dwordx4 s[52:55], s[0:1], 16', f'v_lshrrev_b32 v{ft}, 4, v{vL16}', f's_mov_b32 s{sPkF}, 0', 's_waitcnt vmcnt(0) lgkmcnt(0)', f'{name}_self:']
        fb += pack_loads(f'{name}_c', ft + 8, ft + 1, ft) + ['s_waitcnt vmcnt(0)'] + pack_store(f'{name}_d', cfg, ft + 8, ft + 16)
        fb += ['s_waitcnt vmcnt(0)', f's_add_u32 s{sPkF}, s{sPkF}, 1', f's_cmp_lt_u32 s{sPkF}, {NPACK}', f's_cbranch_scc1 {name}_self',
               f'{name}_acq:', 'buffer_inv sc1', f'{name}_nochk:']
        P += fb
    if cfg.light4:
        b1 = []; n = [0]
        def stmp():
            n[0] += 1; j = n[0] - 1
            return [f's_cmp_eq_u32 s{sTI}, {cfg.l2tile}', f's_cbranch_scc0 {name}_l4_{j}', f's_memtime s[{82+2*j}:{83+2*j}]', f'{name}_l4_{j}:']
        b1 += stmp()
        for x in body[1]:
            if x.startswith(';MARK') and x[5] in cfg.l4sel: b1 += stmp()
            else: b1.append(x)
        af = after(1)
        if 'e' in cfg.l4sel: b1 += stmp() + af[:1] + stmp() + af[1:2] + stmp() + af[2:]
        else: b1 += af
        P += b1; TR += body[1] + after(1)
    else:
        nvm1 = sum(1 for x in body[1] if x.startswith('buffer_'))
        emit(body[1] + after(1, nvm1))
    P += st2()
    pre = [f's_add_u32 s{K.sW}, s38, {WS_W}', f's_addc_u32 s{K.sW+1}, s39, 0', f's_mov_b32 s{K.sW+2}, {W_BYTES}', f's_mov_b32 s{K.sW+3}, 0x20000',
           f's_mul_i32 s{K.sWoff}, s40, 12288', f's_cmp_eq_u32 s40, 1', f's_cselect_b32 s24, {23*24576}, s{K.sWoff}']
    its = []
    for i in range(12):
        it = []
        if i % 4 == 0: it += [f's_add_u32 m0, s{K.sWoff}, {4096*(i//4)}', f's_add_u32 s{sT}, s24, {4096*(i//4)}', 's_nop 0']
        it.append(f'buffer_load_dwordx4 v{vL16}, s[{K.sW}:{K.sW+3}], s{sT} offen offset:{1024*(i%4)} lds')
        its.append(it)
    xbase = [f's_lshr_b32 s24, s2, 3', f's_and_b32 s25, s2, 7', f's_lshl_b32 s25, s25, 2', f's_and_b32 s26, s24, 3', f's_add_u32 s25, s25, s26',
             f's_lshr_b32 s24, s24, 2', f's_mul_i32 s25, s25, 12', f's_mul_i32 s26, s40, 3', f's_add_u32 s25, s25, s26',
             f's_mul_i32 s25, s25, 24', f's_add_u32 s25, s25, s24', f's_mul_i32 s{K.sBX}, s25, 6144']
    vgs = [f'v_and_b32 v{vA}, 0xf0, v{vL16}', f'v_mul_u32_u24 v{K.vG}, 24, v{vA}', f'v_lshrrev_b32 v{vA}, 4, v{vL16}', f'v_and_b32 v{vA}, 0x30, v{vA}',
           f'v_add_u32 v{K.vG}, v{K.vG}, v{vA}']
    xl = lambda p, s_: f'buffer_load_dwordx4 {a(K.pxreg(p,s_), 4)}, v{K.vG}, s[{K.sX}:{K.sX+3}], s{48+p} offen offset:{64*s_}' + (' nt' if cfg.nt_x else '')
    pre = xbase + [f's_mov_b32 s48, s{K.sBX}', f's_add_u32 s49, s48, {cfg.xps}', f's_add_u32 s50, s49, {cfg.xps}'] + vgs + pre
    xearly = [(p, s_) for p in range(3) for s_ in range(6) if K.pxreg(p, s_) + 3 < Wt(2, 0, 0)]
    xlate = [(p, s_) for p in range(3) for s_ in range(6) if (p, s_) not in xearly]
    cl = strip(conv_stage(2, 0, its, store_items(cfg, 2), transp=False, xtra=[[xl(p, s_)] for p, s_ in xearly]))
    P += [f's_cmp_eq_u32 s{sTI}, 2', f's_cbranch_scc0 {name}_nl'] + pre + cl + after(2) + [f's_branch {name}_last', f'{name}_nl:']
    emit(body[2] + after(2) + ['s_waitcnt lgkmcnt(0)'])
    P += st2()
    P += [f's_call_b64 s[42:43], {name}_ln']; TR += lns
    wHold = [f'v_accvgpr_write_b32 a{HOLD+i}, v{Y0+i}' for i in range(72)]
    wP = [f'v_accvgpr_write_b32 a{K.PF0+i}, v{Y0+i}' for i in range(72)]
    P += [f's_cmp_eq_u32 s{sTI}, 1', f's_cbranch_scc1 {name}_ln1'] + wHold + [f's_branch {name}_lnd', f'{name}_ln1:'] + wP + [f'{name}_lnd:']
    TR += wHold + wP
    P += st2()
    P += [f's_add_u32 s{sTI}, s{sTI}, 1', f's_branch {name}_tile', f'{name}_last:']
    emit(['s_waitcnt vmcnt(0) lgkmcnt(0)', 's_barrier'])
    if cfg.light: P += ['s_memtime s[6:7]', 's_memrealtime s[24:25]', 's_waitcnt lgkmcnt(0)', 's_mov_b32 s84, s6', 's_mov_b32 s85, s24']
    emit(['s_load_dwordx2 s[6:7], s[0:1], 32',
          'v_mbcnt_lo_u32_b32 v0, -1, 0', 'v_mbcnt_hi_u32_b32 v0, -1, v0'])
    emit(K.gelu_consts(cfg) + K.ident_setup())
    emit([f's_add_u32 s{K.sW}, s38, {WS_W}', f's_addc_u32 s{K.sW+1}, s39, 0', f's_mov_b32 s{K.sW+2}, {W_BYTES}', f's_mov_b32 s{K.sW+3}, 0x20000',
          f's_mul_i32 s{K.sWoff}, s40, 12288',
          f's_mul_i32 s{K.sB}, s2, {36*6144}', f's_mul_i32 s41, s40, {3*6144}', f's_add_u32 s{K.sB}, s{K.sB}, s41',
          's_waitcnt lgkmcnt(0)',
          f's_mov_b32 s{K.sO}, s6', f's_mov_b32 s{K.sO+1}, s7', f's_mov_b32 s{K.sO+2}, {IMG_BYTES}', f's_mov_b32 s{K.sO+3}, 0x20000'])
    emit(xbase + [f's_mov_b32 s48, s{K.sBX}', f's_add_u32 s49, s48, {cfg.xps}', f's_add_u32 s50, s49, {cfg.xps}'])
    emit(K.m_second_dma(cfg, 240) + [xl(p, s_) for p, s_ in xlate])
    P += [f's_call_b64 s[42:43], {name}_ln']; TR += lns
    emit([f'v_accvgpr_write_b32 a{K.H0+i}, v{Y0+i}' for i in range(72)])
    emit(K.m_g1_first(cfg, early=True))
    if cfg.light: P += ['s_memtime s[6:7]', 's_memrealtime s[4:5]', 's_waitcnt lgkmcnt(0)', 's_mov_b32 s86, s6', 's_mov_b32 s87, s4']
    mp, sub, tr = K.m_main(cfg, name)
    P += mp; TR += tr
    P += K.dump_stamps2(cfg, 13)
    if cfg.light:
        P += ['s_waitcnt vmcnt(0)', 's_memtime s[6:7]', 's_memrealtime s[4:5]', 's_load_dwordx2 s[8:9], s[0:1], 40', 's_waitcnt lgkmcnt(0)', 's_mov_b32 s88, s6', 's_mov_b32 s89, s4'] + [f'v_writelane_b32 v255, s{82+i}, {i}' for i in range(8)] + [
              's_cmp_eq_u32 s2, 17', f's_cbranch_scc0 {name}_done', 's_cmp_eq_u32 s40, 0', f's_cbranch_scc0 {name}_done',
              'v_mbcnt_lo_u32_b32 v0, -1, 0', 'v_mbcnt_hi_u32_b32 v0, -1, v0', 'v_lshlrev_b32 v1, 2, v0', 'v_cmp_gt_u32 vcc, 8, v0', 's_and_saveexec_b64 s[10:11], vcc',
              'global_store_dword v1, v255, s[8:9] offset:16']
    if cfg.light2 or cfg.light3 or cfg.light4:
        P += ['s_waitcnt vmcnt(0)', 's_load_dwordx2 s[8:9], s[0:1], 40', 's_waitcnt lgkmcnt(0)',
              's_cmp_eq_u32 s2, 17', f's_cbranch_scc0 {name}_done', 's_cmp_eq_u32 s40, 0', f's_cbranch_scc0 {name}_done']
        P += [f'v_writelane_b32 v255, s{STAMP0+2*i}, {i}' for i in range(5)]
        P += ['v_mbcnt_lo_u32_b32 v0, -1, 0', 'v_mbcnt_hi_u32_b32 v0, -1, v0', 'v_lshlrev_b32 v1, 2, v0', 'v_cmp_gt_u32 vcc, 5, v0', 's_and_saveexec_b64 s[10:11], vcc',
              'global_store_dword v1, v255, s[8:9] offset:64']
    P += [f'{name}_done:', 's_endpgm']
    P += ['.p2align 6', f'{name}_ln:'] + lns + ['s_setpc_b64 s[42:43]']
    P += sub
    return P, TR

def kd(name):
    return k2.kd(name)

if __name__ == '__main__':
    import asmlib
    P, TR = gen(Cfg)
    asmlib.check(TR, 'kf')
    print(len(P))
```

```python
import k2
from k2 import f2u, ALPHA, WS_W, WS_H, W_BYTES, IMG_BYTES

REC = 544
NBLK = 99
SLAB = NBLK * REC
YB = 2 * SLAB
LDS_BYTES = YB + 2 * 24576
TAPS, ROWS = 400, 3616
DWB = YB

vO16 = 0
vP = 1
vL16 = 2
vZ = 3
vRel = 4
vLw, vLw3, vRd, vY0, vR0, vR1, vA, vB = 8, 9, 10, 11, 12, 13, 14, 15
STS = (16, 80)
BLK = 80
ACC = 120
TMP = 136
Y0 = 144
VO = 216
HOLD = 0
CW = 144
sM, sH, sX, sD = 8, 12, 16, 20
sBase, sIMG, sT, sT2, sSelL, sDS, sDY, sOutN, sTI = 28, 30, 31, 32, 33, 34, 35, 36, 37
sWave, sSelH, sPkF, sPkf = 40, 41, 42, 43
sMaskL, sMaskR = 44, 60
sSt3 = 76
sOnes, sAl, sEps, sInv, sOut = 92, 93, 94, 95, 96
sDbg = 4
sMk3 = 100
NPACK = 576
NPKWG = 72
STAMP0 = 82

def v(b, n=1): return f'v{b}' if n == 1 else f'v[{b}:{b+n-1}]'
def a(b, n=1): return f'a{b}' if n == 1 else f'a[{b}:{b+n-1}]'
def Wt(k, R, C): return CW + 32 * k + 2 * (4 * R + C)
def blk(row, bc): return BLK + 10 * (row % 4) + 2 * bc
def Y(p, s): return Y0 + 24 * p + 4 * s
M4 = 'v_mfma_f32_4x4x4_16b_bf16'
FULL = (1 << 64) - 1

class Cfg(k2.Cfg):
    f16 = True
    nt_h = True; nt_x = True; nt_o = True
    cx_nt = False
    st_flags = ' nt'
    xps = 147456
    xts = 49152
    light = False
    light2 = False
    light3 = False
    exact_vm = True
    touch = False
    l2tile = 0
    allwg = False
    force_fb = False
    ln_pk = True
    light4 = False
    l4sel = '0246'
    spread = 0
    diag_nox = False
    htouch = False
    diag_nost = False
    l3sel = [0, 1, 2, 3, 4]
    early = True
    hskip = True
    spin = 1 << 14
    nosync = False

def setexec(out, cur, val):
    if cur[0] != val:
        out.append(f's_mov_b32 exec_lo, {hex(val & 0xffffffff)}')
        out.append(f's_mov_b32 exec_hi, {hex(val >> 32)}')
        cur[0] = val

def weights_gather(vb):
    out = []
    def reads(k):
        o = []
        for R in range(4):
            for dy in range(2):
                for c in range(4):
                    i = (R * 2 + dy) * 4 + c
                    for dx in range(2):
                        rho, gam = 2 * R + dy, 2 * c + dx
                        o.append(f'ds_read_u16 v{Y0+2*i+dx}, v{vb} offset:{(rho+1)*ROWS + (gam+1)*TAPS + 128*k}')
        return o
    for k in range(3):
        rd = reads(k)
        out += rd[:32] + rd[32:] + ['s_waitcnt lgkmcnt(15)']
        for half in range(2):
            if half == 1: out.append('s_waitcnt lgkmcnt(0)')
            for i in range(16 * half, 16 * half + 16):
                if half == 0 and i == 8: out.append('s_waitcnt lgkmcnt(15)')
                R, dy, c = i // 8, (i // 4) % 2, i % 4
                out.append(f'v_lshl_or_b32 v{Y0+2*i}, v{Y0+2*i+1}, 16, v{Y0+2*i}')
                out.append(f'v_accvgpr_write_b32 a{Wt(k,R,c)+dy}, v{Y0+2*i}')
    return out

def vo(r, dy, dx): return VO + 4 * r + 2 * dy + dx
def tile_offsets():
    out = []
    for dx in range(2):
        for r in range(4):
            l, rr = sMaskL + 2 * (2 * r + dx), sMaskR + 2 * (2 * r + dx)
            out += [f's_mov_b64 s[24:25], -1' if r < 3 else f's_or_b64 s[24:25], s[{l}:{l+1}], s[{rr}:{rr+1}]',
                    f's_cmp_eq_u32 s27, 0', f's_cselect_b64 s[24:25], s[{l}:{l+1}], s[24:25]',
                    f's_cmp_eq_u32 s27, 23', f's_cselect_b64 s[24:25], s[{rr}:{rr+1}], s[24:25]']
            for dy in range(2):
                t = vo(r, dy, dx)
                out += [f's_add_u32 s26, s{sBase}, {147456*dy + 384*dx}', f'v_add_u32 v{t}, s26, v{vRel+r}', f'v_cmp_gt_u32 vcc, s{sIMG}, v{t}',
                        f's_and_b64 vcc, vcc, s[24:25]', f'v_cndmask_b32 v{t}, 2.0, v{t}, vcc']
    return out
def load_items(cfg, stage, sset):
    nt = ' nt' if cfg.cx_nt else ''
    its = []
    for r in range(4):
        for dy in range(2):
            for dx in range(2):
                if r < 3: its.append([f'buffer_load_dwordx4 {v(STS[sset] + 16 * r + 4 * (2 * dy + dx), 4)}, v{vo(r,dy,dx)}, s[{sX}:{sX+3}], 0 offen offset:{128*stage}{nt} ;@l{r}'])
                else: its.append([f'buffer_load_dword v{STS[sset] + 48 + 2 * dy + dx}, v{vo(r,dy,dx)}, s[{sX}:{sX+3}], 0 offen offset:{128*stage}{nt} ;@l{r}'])
    return its
def store_items(cfg, k):
    its = []
    for s, sb in ((k, sSt3), (3 + k, sSt3 + 3)):
        for p in range(3):
            its.append([f'buffer_store_dwordx4 {a(HOLD + 24*p + 4*s, 4)}, v{vL16}, s[{sH}:{sH+3}], s{sb+p} offen offset:{1024*(s % 3)}{cfg.st_flags} ;@s'])
    return [its[0], its[3], its[1], its[4], its[2], its[5]]

def transpose_unit(r, d, sset):
    t = TMP
    if r == 3:
        if d > 0: return []
        L = lambda dy, dx: STS[sset] + 48 + 2 * dy + dx
        return [f'v_perm_b32 v{t}, v{L(0,1)}, v{L(0,0)}, s{sSelL}', f'v_perm_b32 v{t+1}, v{L(1,1)}, v{L(1,0)}, s{sSelL}',
                f'v_perm_b32 v{t+2}, v{L(0,1)}, v{L(0,0)}, s{sSelH}', f'v_perm_b32 v{t+3}, v{L(1,1)}, v{L(1,0)}, s{sSelH}',
                f's_mov_b64 exec, s[{sMk3}:{sMk3+1}]', f'ds_write_b128 v{vLw3}, {v(t,4)}', 's_mov_b64 exec, -1']
    L = lambda dy, dx: STS[sset] + 16 * r + 4 * (2 * dy + dx) + d
    return [f'v_xad_u32 v{vA}, v{vO16}, {16*d}, v{vLw}',
            f'v_perm_b32 v{t}, v{L(0,1)}, v{L(0,0)}, s{sSelL}',
            f'v_perm_b32 v{t+1}, v{L(1,1)}, v{L(1,0)}, s{sSelL}',
            f'v_perm_b32 v{t+2}, v{L(0,1)}, v{L(0,0)}, s{sSelH}',
            f'v_perm_b32 v{t+3}, v{L(1,1)}, v{L(1,0)}, s{sSelH}',
            f'ds_write_b128 v{vA}, {v(t,4)} offset:{32 * REC * r + 128*d}']

def yout(py):
    out = []
    a0 = ACC + 8 * (py & 1); a1 = a0 + 4
    t = TMP + 4
    for oy in range(2):
        out.append(f'v_cvt_pk_bf16_f32 v{t+2*oy}, v{a0+2*oy}, v{a0+2*oy+1}')
        out.append(f'v_cvt_pk_bf16_f32 v{t+2*oy+1}, v{a1+2*oy}, v{a1+2*oy+1}')
        out.append(f'ds_write_b64 v{vY0}, {v(t+2*oy,2)} offset:{(2*py+oy)*2048}')
    return out

def row_reads(br):
    return [f'ds_read_b64 {v(blk(br,bc),2)}, v{vRd} offset:{(br*11+bc)*REC}' for bc in range(5)]

SPREAD = [3]
def conv_stage(k, sset, items, stores, transp=True, xtra=()):
    out = []
    fifo = []
    def emit_lds(t, tag): out.append(t); fifo.append(tag)
    def need(tag):
        idx = [i for i, x in enumerate(fifo) if x == tag]
        if idx:
            n = len(fifo) - 1 - idx[-1]
            out.append(f's_waitcnt lgkmcnt({min(n,15)})')
            del fifo[:idx[-1] + 1]
    tagof = lambda t: ('w' if t.startswith('ds_') else None)
    for br in range(4):
        for t in row_reads(br): emit_lds(t, ('row', br))
    if transp:
        out.append('WAITL:0')
        for t in transpose_unit(0, 0, sset):
            if tagof(t): emit_lds(t, 'w')
            else: out.append(t)
    fill = {(py, i): [] for py in range(6) for i in range(16)}
    for py in range(6):
        if py > 0:
            for t, p_ in zip(yout(py - 1), [2, 2, 3, 4, 4, 5]): fill[(py, p_)].append((t, tagof(t)))
        if py + 4 <= 8:
            for i, t in enumerate(row_reads(py + 4)): fill[(py, 7 + i)].append((t, ('row', py + 4)))
    upos = {0: [None, (0, 1), (0, 3), (0, 5)], 1: [(1, 6), (1, 8), (1, 12), (1, 14)], 2: [(2, 6), (2, 8), (2, 12), (2, 14)], 3: [(3, 6), (3, 8), (3, 12), (3, 14)]}
    lpos = {0: [(0, 12), (0, 14), (1, 0), (1, 1)], 1: [(1, 15), (2, 0), (2, 1), (2, 5)], 2: [(2, 15), (3, 0), (3, 1), (3, 5)], 3: [(3, 15), (4, 0), (4, 1), (4, 6)]}
    spos = [(0, 7), (0, 10), (4, 8), (4, 12), (5, 0), (5, 6)]
    for r in range(4):
        if transp:
            if r > 0: fill[upos[r][0]].append((f'WAITL:{r}', None))
            for d in range(4):
                if upos[r][d] is None: continue
                for t in transpose_unit(r, d, sset): fill[upos[r][d]].append((t, tagof(t)))
        for i in range(4):
            if 4 * r + i < len(items):
                for t in items[4 * r + i]: fill[lpos[r][i]].append((t, None))
    for it, pos in zip(stores, spos):
        for t in it: fill[pos].append((t, None))
    for i, it in enumerate(xtra):
        sl = 2 + 6 * i
        for t in it: fill[(sl // 16, sl % 16)].append((t, None))
    seq = []
    for py in range(6):
        for idx in range(16):
            grp = []
            for t, tag in fill[(py, idx)]:
                grp.append((t, tag))
                glue = t.startswith(('s_mov_b64 exec, s[', 's_add_u32 m0', 's_nop', 'WAITL', 'v_cmp', 's_and_b64')) or (t.startswith('s_add_u32 s') )
                if t.startswith('ds_write_b128') and len(grp) >= 2 and grp[-2][0].startswith('s_mov_b64 exec, s['): glue = True
                if not glue:
                    seq.append((16 * py + idx, grp)); grp = []
            if grp: seq.append((16 * py + idx, grp))
    total = sum(len(g) for _, g in seq)
    qi = 0; done = 0
    for py in range(6):
        for idx in range(16):
            R, C = divmod(idx, 4)
            sl = 16 * py + idx
            if idx == 0 and py in (0, 2, 4): out.append(f';MARK{py}')
            if C == 0: need(('row', py + R))
            for px in range(2):
                aa = ACC + 8 * (py & 1) + 4 * px
                c = '0' if idx == 0 else v(aa, 4)
                out.append(f'{M4} {v(aa,4)}, {a(Wt(k,R,C),2)}, {v(blk(py+R, px+C),2)}, {c}')
            n0 = done
            while qi < len(seq) and seq[qi][0] <= sl and (done == n0 or seq[qi][0] <= sl - SPREAD[0] or sl == 95):
                for t, tag in seq[qi][1]:
                    if tag: emit_lds(t, tag)
                    else: out.append(t)
                done += len(seq[qi][1]); qi += 1
            if done == n0:
                nxt_has_wait = (idx % 4 == 3) and idx < 15 and any(x == ('row', py + R + 1) for x in fifo)
                if not nxt_has_wait: out.append('s_nop 0')
    assert qi == len(seq)
    out += [';MARK6', 's_nop 4'] + yout(5)
    return out

def resolve_l(stages):
    seq = []
    for si in range(3):
        for st in stages: seq.append(st)
    fifo = []
    need = {r: [] for r in range(4)}
    for si, st in enumerate(seq):
        for t in st:
            if t.startswith('WAITL:'):
                r = int(t[6:])
                if si >= 1:
                    idx = max(i for i, x in enumerate(fifo) if x == (si - 1, f'l{r}'))
                    need[r].append(len(fifo) - 1 - idx)
            elif ';@' in t: fifo.append((si, t.split(';@')[1].strip()))
    return {r: min(x) for r, x in need.items()}

def ln_block(cfg):
    NP = 3
    out = []
    t = ACC
    s1 = [t + p for p in range(NP)]; s2 = [t + 3 + p for p in range(NP)]
    for i in range(24):
        for p in range(NP):
            r = Y0 + 24 * p + i
            c1 = '0' if i == 0 else f'v{s1[p]}'; c2 = '0' if i == 0 else f'v{s2[p]}'
            out.append(f'v_dot2_f32_bf16 v{s1[p]}, v{r}, s{sOnes}, {c1}')
            out.append(f'v_dot2_f32_bf16 v{s2[p]}, v{r}, v{r}, {c2}')
    out.append('s_nop 2')
    allr = s1 + s2
    tm = [t + 12 + i for i in range(len(allr))]
    for sw in ('v_permlane16_swap_b32', 'v_permlane32_swap_b32'):
        for r, q in zip(allr, tm): out.append(f'v_mov_b32 v{q}, v{r}')
        out.append('s_nop 1')
        for r, q in zip(allr, tm): out.append(f'{sw} v{q}, v{r}')
        out.append('s_nop 1')
        for r, q in zip(allr, tm): out.append(f'v_add_f32 v{r}, v{r}, v{q}')
    rs = [t + 6 + 2 * p for p in range(NP)]; nb = [t + 18 + 2 * p for p in range(NP)]
    for p in range(NP): out.append(f'v_mul_f32 v{s1[p]}, s{sInv}, v{s1[p]}')
    for p in range(NP): out.append(f'v_mul_f32 v{s2[p]}, s{sInv}, v{s2[p]}')
    for p in range(NP): out.append(f'v_fma_f32 v{s2[p]}, -v{s1[p]}, v{s1[p]}, v{s2[p]}')
    for p in range(NP): out.append(f'v_max_f32 v{s2[p]}, 0, v{s2[p]}')
    for p in range(NP): out.append(f'v_add_f32 v{s2[p]}, s{sEps}, v{s2[p]}')
    for p in range(NP): out.append(f'v_rsq_f32 v{rs[p]}, v{s2[p]}')
    out.append('s_nop 0')
    for p in range(NP): out.append(f'v_mul_f32 v{rs[p]}, s{sAl}, v{rs[p]}')
    for p in range(NP): out.append(f'v_mul_f32 v{nb[p]}, -v{s1[p]}, v{rs[p]}')
    k = 0
    for p in range(NP):
        for s in range(6):
            for d in range(4):
                r = Y(p, s) + d
                x0 = t + 12 + 2 * (k % 3); x1 = x0 + 1; k += 1
                out.append(f'v_lshlrev_b32 v{x0}, 16, v{r}')
                out.append(f'v_and_b32 v{x1}, 0xffff0000, v{r}')
                if cfg.ln_pk:
                    out.append(f'v_pk_fma_f32 v[{x0}:{x1}], v[{x0}:{x1}], v[{rs[p]}:{rs[p]+1}], v[{nb[p]}:{nb[p]+1}] op_sel_hi:[1,0,0]')
                else:
                    out.append(f'v_fma_f32 v{x0}, v{x0}, v{rs[p]}, v{nb[p]}')
                    out.append(f'v_fma_f32 v{x1}, v{x1}, v{rs[p]}, v{nb[p]}')
                out.append(f'v_cvt_pk_bf16_f32 v{r}, v{x0}, v{x1}')
    return out

def pack_loads(lab, dst, t, lane):
    out = [f's_mul_hi_u32 s46, s{sPkF}, {(1 << 32) // 24 + 1}',
           f's_mul_i32 s47, s46, 24', f's_sub_u32 s{sPkf}, s{sPkF}, s47',
           f'v_and_b32 v{t}, 15, v{lane}', f'v_lshrrev_b32 v{t+1}, 4, v{lane}',
           f's_cmp_lt_u32 s{sPkf}, 12', f's_cbranch_scc0 {lab}_pk2']
    out += [f's_add_u32 s48, s46, 1', f's_cmp_eq_u32 s48, 24', f's_cselect_b32 s48, 0, s48',
            f's_lshr_b32 s49, s{sPkf}, 1', f's_and_b32 s50, s{sPkf}, 1',
            f's_lshl_b32 s48, s48, 6', f's_lshl_b32 s50, s50, 5', f's_add_u32 s48, s48, s50',
            f's_mul_i32 s49, s49, {32*1536}', f's_add_u32 s48, s48, s49',
            f'v_mul_u32_u24 v{t+2}, {8*1536}, v{t+1}', f'v_lshl_add_u32 v{t+2}, v{t}, 1, v{t+2}',
            f's_mov_b32 s{sM}, s52', f's_mov_b32 s{sM+1}, s53', f's_mov_b32 s{sM+2}, {192*768*2}', f's_mov_b32 s{sM+3}, 0x20000']
    for e in range(8):
        out.append(f's_add_u32 s49, s48, {e*1536}')
        out.append(f'buffer_load_ushort v{dst+e}, v{t+2}, s[{sM}:{sM+3}], s49 offen')
    out += [f's_branch {lab}_pk3', f'{lab}_pk2:']
    out += [f's_add_u32 s48, s46, 23', f's_cmp_ge_u32 s48, 24', f's_cselect_b32 s49, 24, 0', f's_sub_u32 s48, s48, s49',
            f's_sub_u32 s49, s{sPkf}, 12', f's_lshr_b32 s50, s49, 1', f's_and_b32 s49, s49, 1',
            f's_mul_i32 s48, s48, {32*384}', f's_lshl_b32 s50, s50, 6', f's_lshl_b32 s49, s49, 3',
            f's_add_u32 s48, s48, s50', f's_add_u32 s48, s48, s49',
            f'v_lshrrev_b32 v{t+3}, 2, v{t}', f'v_lshlrev_b32 v{t+3}, 4, v{t+3}',
            f'v_and_b32 v{t+4}, 3, v{t}', f'v_lshl_add_u32 v{t+3}, v{t+4}, 1, v{t+3}',
            f'v_mul_u32_u24 v{t+2}, {4*384}, v{t+1}', f'v_add_u32 v{t+2}, v{t+2}, v{t+3}',
            f's_mov_b32 s{sM}, s54', f's_mov_b32 s{sM+1}, s55', f's_mov_b32 s{sM+2}, {192*768*2}', f's_mov_b32 s{sM+3}, 0x20000']
    for e in range(8):
        out.append(f's_add_u32 s49, s48, {(16*(e>>2) + (e&3))*384}')
        out.append(f'buffer_load_ushort v{dst+e}, v{t+2}, s[{sM}:{sM+3}], s49 offen')
    out += [f'{lab}_pk3:']
    return out

def pack_store(lab, cfg, src, dst):
    out = []
    for d in range(4): out.append(f'v_lshl_or_b32 v{dst+d}, v{src+2*d+1}, 16, v{src+2*d}')
    if cfg.f16:
        out += [f's_cmp_lt_u32 s{sPkf}, 12', f's_cbranch_scc1 {lab}_pk5']
        for e in range(8): out.append(f'v_lshlrev_b32 v{src+e}, 16, v{src+e}')
        for d in range(4): out.append(f'v_cvt_pk_f16_f32 v{dst+d}, v{src+2*d}, v{src+2*d+1}')
        out.append(f'{lab}_pk5:')
    out += [f's_add_u32 s{sM}, s38, {WS_W}', f's_addc_u32 s{sM+1}, s39, 0', f's_mov_b32 s{sM+2}, {W_BYTES}', f's_mov_b32 s{sM+3}, 0x20000',
            f's_lshl_b32 s3, s{sPkF}, 10',
            f'buffer_store_dwordx4 {v(dst,4)}, v{vL16}, s[{sM}:{sM+3}], s3 offen sc1']
    return out

def gen(cfg, name='fused_kernel'):
    k2.MF2[0] = 'v_mfma_f32_16x16x32_f16' if cfg.f16 else k2.MF
    SPREAD[0] = cfg.spread
    k2.SNAKE[0] = cfg.snake
    P = []; TR = []
    n3 = [0]
    def st3():
        if cfg.light3 and n3[0] in cfg.l3sel:
            j = cfg.l3sel.index(n3[0])
            P.extend([f's_memtime s[{82+2*j}:{83+2*j}]'])
        n3[0] += 1
        if False:
            P.extend(['s_memtime s[102:103]' if False else 's_memtime s[98:99]', 's_waitcnt lgkmcnt(0)', f'v_writelane_b32 v253, s98, {n3[0]}']); n3[0] += 1
    def emit(l, tr=True):
        P.extend(l)
        if tr: TR.extend([x for x in l if not x.endswith(':')])
    emit(['s_cmp_ge_u32 s2, 256', f's_cbranch_scc1 {name}_done'])
    if cfg.allwg: P += ['s_memrealtime s[82:83]']
    if cfg.light: P += ['s_memtime s[6:7]', 's_memrealtime s[8:9]', 's_waitcnt lgkmcnt(0)', 's_mov_b32 s82, s6', 's_mov_b32 s83, s8']
    st3()
    emit(['s_load_dwordx4 s[4:7], s[0:1], 0',
          's_load_dwordx2 s[38:39], s[0:1], 48',
          's_load_dwordx4 s[52:55], s[0:1], 16',
          'v_lshrrev_b32 v1, 6, v0', 'v_and_b32 v0, 63, v0', 's_nop 0',
          f'v_readfirstlane_b32 s{sWave}, v1',
          f's_mov_b32 s{sIMG}, {IMG_BYTES}', f's_mov_b32 s{sOnes}, 0x3f803f80',
          f's_mov_b32 s{sSelL}, 0x05040100', f's_mov_b32 s{sSelH}, 0x07060302',
          f's_mov_b32 s{sAl}, {hex(f2u(ALPHA))}', f's_mov_b32 s{sEps}, {hex(f2u(1e-5))}', f's_mov_b32 s{sInv}, {hex(f2u(1.0/192))}',
          f'v_lshlrev_b32 v{vL16}, 4, v0', f'v_mov_b32 v{vZ}, 0',
          's_waitcnt lgkmcnt(0)',
          f's_mov_b32 s{sX}, s4', f's_mov_b32 s{sX+1}, s5', f's_mov_b32 s{sX+2}, {IMG_BYTES}', f's_mov_b32 s{sX+3}, 0x20000',
          f's_mov_b32 s{sD}, s6', f's_mov_b32 s{sD+1}, s7', f's_mov_b32 s{sD+2}, {49*384}', f's_mov_b32 s{sD+3}, 0x20000',
          f's_add_u32 s{sH}, s38, {WS_H}', f's_addc_u32 s{sH+1}, s39, 0', f's_mov_b32 s{sH+2}, {IMG_BYTES}', f's_mov_b32 s{sH+3}, 0x20000',
          f's_load_dwordx2 s[{sDbg}:{sDbg+1}], s[0:1], 40', f's_mov_b32 s{sTI}, 0'])
    st3()
    t = Y0
    c = []
    for j in range(4):
        c += [f'v_add_u32 v{t}, {64*j}, v0', f'v_mul_u32_u24 v{t+1}, 2622, v{t}', f'v_lshrrev_b32 v{t+1}, 16, v{t+1}',
              f'v_mul_u32_u24 v{t+2}, 25, v{t+1}', f'v_sub_u32 v{t+2}, v{t}, v{t+2}',
              f'v_subrev_u32 v{t+1}, 1, v{t+1}', f'v_cmp_gt_u32 vcc, 7, v{t+1}', f'v_cmp_gt_u32 s[44:45], 24, v{t+2}',
              f'v_mul_u32_u24 v{t+1}, 384, v{t+1}', f'v_lshl_add_u32 v{t+1}, v{t+2}, 4, v{t+1}', f's_and_b64 vcc, vcc, s[44:45]',
              f'v_subrev_u32 v{t+1}, {1024*j}, v{t+1}' if False else 's_nop 0',
              f'v_cndmask_b32 v{t+8+j}, 2.0, v{t+1}, vcc']
    emit(c)
    c = []
    for m in range(3):
        blk_ = [f's_add_u32 s{sT}, s{sWave}, {4*m}', f's_sub_u32 s{sT2}, s{sT}, 1', f's_cmp_lt_u32 s{sT2}, 7', f's_mul_i32 s{sT2}, s{sT2}, {7*384}',
                f's_cselect_b32 s{sT2}, s{sT2}, 0x70000000', f's_mul_i32 s{sT}, s{sT}, {ROWS}', f's_add_u32 s{sT}, s{sT}, {DWB}']
        for j in range(4):
            blk_ += [f's_add_u32 m0, s{sT}, {1024*j}', 's_nop 0']
            if j == 3: blk_ += ['s_mov_b32 exec_hi, 3']
            blk_ += [f'buffer_load_dwordx4 v{t+8+j}, s[{sD}:{sD+3}], s{sT2} offen lds']
            if j == 3: blk_ += ['s_mov_b32 exec_hi, -1']
        if m < 2: c += blk_
        else: c += [f's_cmp_eq_u32 s{sWave}, 0', f's_cbranch_scc0 {name}_nor8'] + blk_ + [f'{name}_nor8:']
    emit(c)
    pk = [f's_mov_b32 s{sPkF}, -1', f's_cmp_lt_u32 s2, {NPKWG if not cfg.force_fb else 0}', f's_cbranch_scc0 {name}_nopk',
          f's_lshl_b32 s44, s2, 3', f's_lshl_b32 s45, s{sWave}, 1', f's_add_u32 s{sPkF}, s44, s45']
    pk += pack_loads(f'{name}_a', Y0 + 32, ACC, 0) + [f's_add_u32 s{sPkF}, s{sPkF}, 1'] + pack_loads(f'{name}_a2', Y0 + 41, ACC, 0) + [f'{name}_nopk:']
    st3()
    if not cfg.nosync: P += pk
    st3()
    c = [f'v_and_b32 v{t}, 7, v0', f'v_lshrrev_b32 v{t+1}, 3, v0']
    for r in range(4):
        if r < 3: c += [f's_lshl_b32 s{sT}, s{sWave}, 3', f's_add_u32 s{sT}, s{sT}, {32*r}', f'v_add_u32 v{t+2}, s{sT}, v{t+1}']
        else:
            c += [f'v_add_u32 v{t+2}, 96, v{t+1}', f'v_cmp_gt_u32 s[{sMk3}:{sMk3+1}], 24, v0']
        c += [f'v_mul_u32_u24 v{t+3}, 745, v{t+2}', f'v_lshrrev_b32 v{t+3}, 13, v{t+3}',
              f'v_mul_u32_u24 v{t+4}, 11, v{t+3}', f'v_sub_u32 v{t+4}, v{t+2}, v{t+4}',
              f'v_mul_u32_u24 v{t+5}, {2*384}, v{t+3}', f'v_lshl_add_u32 v{t+5}, v{t+4}, 1, v{t+5}',
              f'v_mul_u32_u24 v{t+5}, 384, v{t+5}',
              f'v_lshl_add_u32 v{vRel+r}, v{t}, 4, v{t+5}']
        for dx in range(2):
            mL = sMaskL + 2 * (2 * r + dx); mR = sMaskR + 2 * (2 * r + dx)
            c += [f'v_lshl_add_u32 v{t+6}, v{t+4}, 1, {dx}',
                  f'v_cmp_lt_u32 s[{mL}:{mL+1}], 2, v{t+6}', f'v_cmp_gt_u32 s[{mR}:{mR+1}], 19, v{t+6}']
            if r == 3:
                c += ['s_nop 1', f's_and_b64 s[{mL}:{mL+1}], s[{mL}:{mL+1}], s[{sMk3}:{sMk3+1}]', f's_and_b64 s[{mR}:{mR+1}], s[{mR}:{mR+1}], s[{sMk3}:{sMk3+1}]']
        if r == 0: c += [f'v_mul_u32_u24 v{vLw}, {REC}, v{t+2}']
        if r == 3:
            c += [f's_lshl_b32 s{sT}, s{sWave}, 2', f'v_add_u32 v{vRel+3}, s{sT}, v{vRel+3}',
                  f'v_cndmask_b32 v{vRel+3}, 2.0, v{vRel+3}, s[{sMk3}:{sMk3+1}]',
                  f'v_mul_u32_u24 v{vLw3}, {REC}, v{t+2}', f'v_xor_b32 v{t+6}, s{sWave}, v{t}', f'v_lshl_add_u32 v{vLw3}, v{t+6}, 4, v{vLw3}',
                  f's_lshl_b32 s{sT}, s{sWave}, 7', f'v_add_u32 v{vLw3}, s{sT}, v{vLw3}']
    c += [f'v_lshrrev_b32 v{t}, 2, v0', f'v_and_b32 v{t+1}, 3, v0', f'v_lshrrev_b32 v{t+2}, 3, v{t}',
          f's_lshl_b32 s{sT}, s{sWave}, 1',
          f'v_add_u32 v{t+2}, s{sT}, v{t+2}', f'v_bfe_u32 v{t+3}, v{t}, 1, 2', f'v_xor_b32 v{t+4}, v{t+2}, v{t+3}',
          f'v_lshlrev_b32 v{t+4}, 1, v{t+4}', f'v_lshl_add_u32 v{t+4}, v{t+3}, 4, v{t+4}',
          f'v_and_b32 v{t+5}, 1, v{t}', f'v_add_u32 v{t+4}, v{t+4}, v{t+5}', f'v_lshlrev_b32 v{t+4}, 3, v{t+4}',
          f'v_mul_u32_u24 v{t+5}, {2*REC}, v{t+1}', f'v_add_u32 v{vRd}, v{t+4}, v{t+5}']
    c += [f's_lshl_b32 s{sT2}, s{sWave}, 4', f'v_add_u32 v{t+7}, s{sT2}, v{t}',
          f'v_bfe_u32 v{t+8}, v{t+7}, 3, 1', f'v_lshlrev_b32 v{t+8}, 2, v{t+8}', f'v_xor_b32 v{t+7}, v{t+7}, v{t+8}',
          f'v_lshlrev_b32 v{t+7}, 5, v{t+7}', f'v_lshl_add_u32 v{t+7}, v{t+1}, 3, v{t+7}', f'v_add_u32 v{vY0}, {YB}, v{t+7}']
    c += [f'v_lshrrev_b32 v{t}, 4, v0', f'v_bfe_u32 v{t+1}, v0, 2, 2', f'v_and_b32 v{t+2}, 3, v0',
          f's_mul_i32 s{sT}, s{sWave}, {3*2048}', f's_add_u32 s{sT}, s{sT}, {YB}']
    for h, vr in ((0, vR0), (1, vR1)):
        c += [f'v_lshl_add_u32 v{t+3}, v{t}, 3, v{t+1}', f'v_add_u32 v{t+3}, {4*h}, v{t+3}',
              f'v_and_b32 v{t+4}, 1, v{t}', f'v_lshlrev_b32 v{t+4}, 2, v{t+4}', f'v_xor_b32 v{t+3}, v{t+3}, v{t+4}',
              f'v_lshlrev_b32 v{t+3}, 5, v{t+3}', f'v_lshl_add_u32 v{t+3}, v{t+2}, 3, v{t+3}', f'v_add_u32 v{vr}, s{sT}, v{t+3}']
    vb = VO + 15 + 1
    c += [f'v_lshrrev_b32 v{t}, 2, v0', f's_lshl_b32 s{sT}, s{sWave}, 5', f'v_lshlrev_b32 v{t}, 1, v{t}', f'v_add_u32 v{t}, s{sT}, v{t}',
          f'v_bfe_u32 v{t+1}, v0, 1, 1', f'v_mul_u32_u24 v{t+1}, {ROWS}, v{t+1}', f'v_and_b32 v{t+2}, 1, v0', f'v_mul_u32_u24 v{t+2}, {TAPS}, v{t+2}',
          f'v_add_u32 v{t+1}, v{t+1}, v{t+2}', f'v_sub_u32 v{t}, v{t}, v{t+1}', f'v_add_u32 v{vb}, {DWB}, v{t}',
          f'v_and_b32 v{vO16}, 7, v0', f'v_lshlrev_b32 v{vO16}, 4, v{vO16}']
    emit(c)
    tl = [0]
    def tile_setup(fetch):
        o = [f's_sub_u32 s24, 2, {fetch}',
             f's_lshr_b32 s25, s2, 3', f's_lshl_b32 s24, s24, 5', f's_add_u32 s25, s25, s24',
             f's_and_b32 s26, s2, 7', f's_lshl_b32 s26, s26, 2', f's_and_b32 s27, s25, 3', f's_add_u32 s26, s26, s27',
             f's_lshr_b32 s27, s25, 2',
             f's_mul_i32 s24, s26, {12*384}', f's_lshl_b32 s25, s27, 4', f's_add_u32 s24, s24, s25',
             f's_sub_u32 s24, s24, {3*384+3}', f's_mul_i32 s{sBase}, s24, 384',
             f's_cmp_eq_u32 {fetch}, 3', f's_cselect_b32 s{sBase}, 0x60000000, s{sBase}']
        if cfg.diag_nox: o += [f's_mov_b32 s{sBase}, 0x60000000']
        tl[0] += 1; lab = f'{name}_to{tl[0]}'
        fast = []
        for dy in range(2):
            for dx in range(2):
                fast += [f's_add_u32 s24, s{sBase}, {147456*dy + 384*dx}'] + [f'v_add_u32 v{vo(r,dy,dx)}, s24, v{vRel+r}' for r in range(4)]
        o += [f's_sub_u32 s25, s27, 1', f's_cmp_lt_u32 s25, 22', f's_cselect_b32 s25, 1, 0', f's_cmp_eq_u32 s26, 0', f's_cselect_b32 s25, 0, s25',
              f's_cmp_eq_u32 s{sBase}, 0x60000000', f's_cselect_b32 s25, 1, s25', f's_cmp_eq_u32 s25, 0', f's_cbranch_scc1 {lab}_slow']
        return o + fast + [f's_branch {lab}_done', f'{lab}_slow:'] + tile_offsets() + [f'{lab}_done:']
    strip = lambda l: [x.split(' ;@')[0] for x in l]
    def store_bases():
        o = [f's_mul_i32 s25, s2, 3', f's_add_u32 s25, s25, 2', f's_mul_i32 s25, s25, 12', f's_mul_i32 s26, s{sWave}, 3', f's_add_u32 s25, s25, s26',
             f's_mul_i32 s25, s25, 6144', f's_add_u32 s26, s25, 3072',
             f's_cmp_eq_u32 s{sTI}, {1 if not cfg.diag_nost else 9}', f's_cselect_b32 s{sSt3}, s25, 0x70000000',
             f's_cmp_eq_u32 s{sTI}, {2 if not cfg.diag_nost else 9}', f's_cselect_b32 s{sSt3+3}, s26, 0x70000000']
        for b in (sSt3, sSt3 + 3): o += [f's_add_u32 s{b+1}, s{b}, 6144', f's_add_u32 s{b+2}, s{b}, 12288']
        return o
    emit(tile_setup('0'))
    emit(strip(sum(load_items(cfg, 0, 0), [])))
    st3()
    emit(['s_waitcnt vmcnt(16) lgkmcnt(0)'])
    st3()
    emit(['s_barrier'])
    st3()
    if not cfg.nosync:
        P += [f's_cmp_eq_u32 s{sPkF}, -1', f's_cbranch_scc1 {name}_nops'] + pack_store(f'{name}_b', cfg, Y0 + 41, Y0)
        P += [f's_sub_u32 s{sPkF}, s{sPkF}, 1', f's_sub_u32 s{sPkf}, s{sPkf}, 1'] + pack_store(f'{name}_b2', cfg, Y0 + 32, Y0 + 4) + ['s_nop 1', f'{name}_nops:']
    emit(weights_gather(vb))
    st3()
    emit(['s_waitcnt vmcnt(0)'])
    st3()
    emit([f'v_add_u32 v{vLw}, {SLAB}, v{vLw}', f'v_add_u32 v{vLw3}, {SLAB}, v{vLw3}', f'v_add_u32 v{vRd}, {SLAB}, v{vRd}'])
    for r in range(4):
        for d in range(4): emit(transpose_unit(r, d, 0))
    emit(strip(sum(load_items(cfg, 1, 0), [])))
    raw = {k: conv_stage(k, 0, load_items(cfg, (k + 2) % 3, 0), store_items(cfg, k)) for k in range(3)}
    nw = resolve_l([raw[0], raw[1], raw[2]])
    fix = lambda l: [(f's_waitcnt vmcnt({nw[int(x[6:])]})' if x.startswith('WAITL:') else x.split(' ;@')[0]) for x in l]
    body = {key: fix(val) for key, val in raw.items()}
    tailst = 0
    for x in reversed(raw[0]):
        if ';@l' in x: break
        if ';@s' in x: tailst += 1
    emit([f's_mov_b32 s{sT}, 0x70000000'] + [f'buffer_store_dword v{vA}, v{vL16}, s[{sH}:{sH+3}], s{sT} offen'] * tailst)
    emit([f'v_subrev_u32 v{vLw}, {SLAB}, v{vLw}', f'v_subrev_u32 v{vLw3}, {SLAB}, v{vLw3}', f's_mov_b32 s{sDS}, {-SLAB & 0xffffffff}', f's_mov_b32 s{sDY}, 24576',
          's_waitcnt lgkmcnt(0)'])
    st3()
    emit(['s_barrier'])
    st3()
    if not cfg.nosync:
        P += [f's_cmp_eq_u32 s{sPkF}, -1', f's_cbranch_scc1 {name}_nopub', f's_cmp_eq_u32 s{sWave}, 0', f's_cbranch_scc0 {name}_nopub',
              f'v_mov_b32 v{vB}, 1', 's_mov_b32 exec_lo, 1', 's_mov_b32 exec_hi, 0',
              f'global_atomic_add v{vZ}, v{vB}, s[{sDbg}:{sDbg+1}]', 's_mov_b64 exec, -1', f'{name}_nopub:']
    def after(k, vm=None):
        o = ([f's_waitcnt vmcnt({vm})'] if vm is not None else []) + ['s_waitcnt lgkmcnt(0)', 's_barrier']
        for p in range(3):
            for sp in range(2):
                for h in range(2):
                    o.append(f'ds_read_b64_tr_b16 {v(Y(p,2*k+sp)+2*h,2)}, v{vR0 if h == 0 else vR1} offset:{p*2048 + sp*1024}')
        o += [f'v_add_u32 v{vRd}, s{sDS}, v{vRd}', f'v_subrev_u32 v{vLw}, s{sDS}, v{vLw}', f'v_subrev_u32 v{vLw3}, s{sDS}, v{vLw3}',
              f'v_add_u32 v{vY0}, s{sDY}, v{vY0}', f'v_add_u32 v{vR0}, s{sDY}, v{vR0}', f'v_add_u32 v{vR1}, s{sDY}, v{vR1}',
              f's_sub_u32 s{sDS}, 0, s{sDS}', f's_sub_u32 s{sDY}, 0, s{sDY}']
        return o
    sn = [0]
    def st2():
        if not cfg.light2: return []
        sn[0] += 1
        return [f's_cmp_eq_u32 s{sTI}, {cfg.l2tile}', f's_cbranch_scc0 {name}_s2_{sn[0]}', f's_memtime s[{STAMP0-2+2*((sn[0]-1)%5+1)}:{STAMP0-1+2*((sn[0]-1)%5+1)}]', f'{name}_s2_{sn[0]}:']
    lns = ln_block(cfg)
    K = k2
    emit([f's_mov_b32 s{sTI}, 0'])
    P += ['.p2align 6', f'{name}_tile:']
    P += st2()
    emit(store_bases())
    if not cfg.nosync:
        P += [f's_cmp_eq_u32 s{sTI}, 2', f's_cbranch_scc0 {name}_nopoll', f's_cmp_eq_u32 s{sWave}, 0', f's_cbranch_scc0 {name}_nopoll',
              f'global_load_dword v{vP}, v{vZ}, s[{sDbg}:{sDbg+1}] sc1', f'{name}_nopoll:']
    emit(body[0] + after(0))
    P += st2()
    emit([f's_add_u32 s3, s{sTI}, 1'] + tile_setup('s3'))
    if not cfg.nosync:
        ft = ACC
        fb = [f's_cmp_eq_u32 s{sTI}, 2', f's_cbranch_scc0 {name}_nochk', f's_cmp_eq_u32 s{sWave}, 0', f's_cbranch_scc0 {name}_nochk',
              f's_waitcnt vmcnt(22)', f'v_readfirstlane_b32 s44, v{vP}', 's_nop 3', f's_cmp_ge_u32 s44, {NPKWG + (1000 if cfg.force_fb else 0)}', f's_cbranch_scc1 {name}_acq',
              f's_mov_b32 s45, {cfg.spin}', f'{name}_spin:',
              f'global_load_dword v{vP}, v{vZ}, s[{sDbg}:{sDbg+1}] sc1', 's_waitcnt vmcnt(0)', f'v_readfirstlane_b32 s44, v{vP}', 's_nop 3',
              f's_cmp_ge_u32 s44, {NPKWG + (1000 if cfg.force_fb else 0)}', f's_cbranch_scc1 {name}_acq',
              's_sub_u32 s45, s45, 1', 's_cmp_lg_u32 s45, 0', f's_cbranch_scc1 {name}_spin',
              's_load_dwordx4 s[52:55], s[0:1], 16', f'v_lshrrev_b32 v{ft}, 4, v{vL16}', f's_mov_b32 s{sPkF}, 0', 's_waitcnt vmcnt(0) lgkmcnt(0)', f'{name}_self:']
        fb += pack_loads(f'{name}_c', ft + 8, ft + 1, ft) + ['s_waitcnt vmcnt(0)'] + pack_store(f'{name}_d', cfg, ft + 8, ft + 16)
        fb += ['s_waitcnt vmcnt(0)', f's_add_u32 s{sPkF}, s{sPkF}, 1', f's_cmp_lt_u32 s{sPkF}, {NPACK}', f's_cbranch_scc1 {name}_self',
               f'{name}_acq:', 'buffer_inv sc1', f'{name}_nochk:']
        P += fb
    if cfg.light4:
        b1 = []; n = [0]
        def stmp():
            n[0] += 1; j = n[0] - 1
            return [f's_cmp_eq_u32 s{sTI}, {cfg.l2tile}', f's_cbranch_scc0 {name}_l4_{j}', f's_memtime s[{82+2*j}:{83+2*j}]', f'{name}_l4_{j}:']
        b1 += stmp()
        for x in body[1]:
            if x.startswith(';MARK') and x[5] in cfg.l4sel: b1 += stmp()
            else: b1.append(x)
        af = after(1)
        if 'e' in cfg.l4sel: b1 += stmp() + af[:1] + stmp() + af[1:2] + stmp() + af[2:]
        else: b1 += af
        P += b1; TR += body[1] + after(1)
    else:
        nvm1 = sum(1 for x in body[1] if x.startswith('buffer_'))
        emit(body[1] + after(1, nvm1))
    P += st2()
    pre = [f's_add_u32 s{K.sW}, s38, {WS_W}', f's_addc_u32 s{K.sW+1}, s39, 0', f's_mov_b32 s{K.sW+2}, {W_BYTES}', f's_mov_b32 s{K.sW+3}, 0x20000',
           f's_mul_i32 s{K.sWoff}, s40, 12288', f's_cmp_eq_u32 s40, 1', f's_cselect_b32 s24, {23*24576}, s{K.sWoff}']
    its = []
    for i in range(12):
        it = []
        if i % 4 == 0: it += [f's_add_u32 m0, s{K.sWoff}, {4096*(i//4)}', f's_add_u32 s{sT}, s24, {4096*(i//4)}', 's_nop 0']
        it.append(f'buffer_load_dwordx4 v{vL16}, s[{K.sW}:{K.sW+3}], s{sT} offen offset:{1024*(i%4)} lds')
        its.append(it)
    xbase = [f's_lshr_b32 s24, s2, 3', f's_and_b32 s25, s2, 7', f's_lshl_b32 s25, s25, 2', f's_and_b32 s26, s24, 3', f's_add_u32 s25, s25, s26',
             f's_lshr_b32 s24, s24, 2', f's_mul_i32 s25, s25, 12', f's_mul_i32 s26, s40, 3', f's_add_u32 s25, s25, s26',
             f's_mul_i32 s25, s25, 24', f's_add_u32 s25, s25, s24', f's_mul_i32 s{K.sBX}, s25, 6144']
    vgs = [f'v_and_b32 v{vA}, 0xf0, v{vL16}', f'v_mul_u32_u24 v{K.vG}, 24, v{vA}', f'v_lshrrev_b32 v{vA}, 4, v{vL16}', f'v_and_b32 v{vA}, 0x30, v{vA}',
           f'v_add_u32 v{K.vG}, v{K.vG}, v{vA}']
    xl = lambda p, s_: f'buffer_load_dwordx4 {a(K.pxreg(p,s_), 4)}, v{K.vG}, s[{K.sX}:{K.sX+3}], s{48+p} offen offset:{64*s_}' + (' nt' if cfg.nt_x else '')
    pre = xbase + [f's_mov_b32 s48, s{K.sBX}', f's_add_u32 s49, s48, {cfg.xps}', f's_add_u32 s50, s49, {cfg.xps}'] + vgs + pre
    xearly = [(p, s_) for p in range(3) for s_ in range(6) if K.pxreg(p, s_) + 3 < Wt(2, 0, 0)]
    xlate = [(p, s_) for p in range(3) for s_ in range(6) if (p, s_) not in xearly]
    cl = strip(conv_stage(2, 0, its, store_items(cfg, 2), transp=False, xtra=[[xl(p, s_)] for p, s_ in xearly]))
    P += [f's_cmp_eq_u32 s{sTI}, 2', f's_cbranch_scc0 {name}_nl'] + pre + cl + after(2) + [f's_branch {name}_last', f'{name}_nl:']
    emit(body[2] + after(2) + ['s_waitcnt lgkmcnt(0)'])
    P += st2()
    P += [f's_call_b64 s[42:43], {name}_ln']; TR += lns
    wHold = [f'v_accvgpr_write_b32 a{HOLD+i}, v{Y0+i}' for i in range(72)]
    wP = [f'v_accvgpr_write_b32 a{K.PF0+i}, v{Y0+i}' for i in range(72)]
    P += [f's_cmp_eq_u32 s{sTI}, 1', f's_cbranch_scc1 {name}_ln1'] + wHold + [f's_branch {name}_lnd', f'{name}_ln1:'] + wP + [f'{name}_lnd:']
    TR += wHold + wP
    P += st2()
    P += [f's_add_u32 s{sTI}, s{sTI}, 1', f's_branch {name}_tile', f'{name}_last:']
    emit(['s_waitcnt vmcnt(0) lgkmcnt(0)', 's_barrier'])
    if cfg.allwg: P += ['s_memrealtime s[84:85]', 's_waitcnt lgkmcnt(0)']
    if cfg.light: P += ['s_memtime s[6:7]', 's_memrealtime s[24:25]', 's_waitcnt lgkmcnt(0)', 's_mov_b32 s84, s6', 's_mov_b32 s85, s24']
    emit(['s_load_dwordx2 s[6:7], s[0:1], 32',
          'v_mbcnt_lo_u32_b32 v0, -1, 0', 'v_mbcnt_hi_u32_b32 v0, -1, v0'])
    emit(K.gelu_consts(cfg) + K.ident_setup())
    emit([f's_add_u32 s{K.sW}, s38, {WS_W}', f's_addc_u32 s{K.sW+1}, s39, 0', f's_mov_b32 s{K.sW+2}, {W_BYTES}', f's_mov_b32 s{K.sW+3}, 0x20000',
          f's_mul_i32 s{K.sWoff}, s40, 12288',
          f's_mul_i32 s{K.sB}, s2, {36*6144}', f's_mul_i32 s41, s40, {3*6144}', f's_add_u32 s{K.sB}, s{K.sB}, s41',
          's_waitcnt lgkmcnt(0)',
          f's_mov_b32 s{K.sO}, s6', f's_mov_b32 s{K.sO+1}, s7', f's_mov_b32 s{K.sO+2}, {IMG_BYTES}', f's_mov_b32 s{K.sO+3}, 0x20000'])
    emit(xbase + [f's_mov_b32 s48, s{K.sBX}', f's_add_u32 s49, s48, {cfg.xps}', f's_add_u32 s50, s49, {cfg.xps}'])
    emit(K.m_second_dma(cfg, 240) + [xl(p, s_) for p, s_ in xlate])
    P += [f's_call_b64 s[42:43], {name}_ln']; TR += lns
    emit([f'v_accvgpr_write_b32 a{K.H0+i}, v{Y0+i}' for i in range(72)])
    emit(K.m_g1_first(cfg, early=True))
    if cfg.light: P += ['s_memtime s[6:7]', 's_memrealtime s[4:5]', 's_waitcnt lgkmcnt(0)', 's_mov_b32 s86, s6', 's_mov_b32 s87, s4']
    mp, sub, tr = K.m_main(cfg, name)
    P += mp; TR += tr
    P += K.dump_stamps2(cfg, 13)
    if cfg.light:
        P += ['s_waitcnt vmcnt(0)', 's_memtime s[6:7]', 's_memrealtime s[4:5]', 's_load_dwordx2 s[8:9], s[0:1], 40', 's_waitcnt lgkmcnt(0)', 's_mov_b32 s88, s6', 's_mov_b32 s89, s4'] + [f'v_writelane_b32 v255, s{82+i}, {i}' for i in range(8)] + [
              's_cmp_eq_u32 s2, 17', f's_cbranch_scc0 {name}_done', 's_cmp_eq_u32 s40, 0', f's_cbranch_scc0 {name}_done',
              'v_mbcnt_lo_u32_b32 v0, -1, 0', 'v_mbcnt_hi_u32_b32 v0, -1, v0', 'v_lshlrev_b32 v1, 2, v0', 'v_cmp_gt_u32 vcc, 8, v0', 's_and_saveexec_b64 s[10:11], vcc',
              'global_store_dword v1, v255, s[8:9] offset:16']
    if cfg.allwg:
        P += ['s_waitcnt vmcnt(0)', 's_memrealtime s[86:87]', 's_cmp_eq_u32 s40, 0', f's_cbranch_scc0 {name}_done', 's_waitcnt lgkmcnt(0)',
              's_lshl_b32 s3, s2, 4', f's_add_u32 s3, s3, {200 << 20}', 'v_mov_b32 v5, s3',
              'v_mov_b32 v4, s82', 's_nop 1', 'global_store_dword v5, v4, s[38:39]',
              'v_mov_b32 v4, s84', 's_nop 1', 'global_store_dword v5, v4, s[38:39] offset:4',
              'v_mov_b32 v4, s86', 's_nop 1', 'global_store_dword v5, v4, s[38:39] offset:8']
    if cfg.light2 or cfg.light3 or cfg.light4:
        P += ['s_waitcnt vmcnt(0)', 's_load_dwordx2 s[8:9], s[0:1], 40', 's_waitcnt lgkmcnt(0)',
              's_cmp_eq_u32 s2, 17', f's_cbranch_scc0 {name}_done', 's_cmp_eq_u32 s40, 0', f's_cbranch_scc0 {name}_done']
        P += [f'v_writelane_b32 v255, s{STAMP0+2*i}, {i}' for i in range(5)]
        P += ['v_mbcnt_lo_u32_b32 v0, -1, 0', 'v_mbcnt_hi_u32_b32 v0, -1, v0', 'v_lshlrev_b32 v1, 2, v0', 'v_cmp_gt_u32 vcc, 5, v0', 's_and_saveexec_b64 s[10:11], vcc',
              'global_store_dword v1, v255, s[8:9] offset:64']
    P += [f'{name}_done:', 's_endpgm']
    P += ['.p2align 6', f'{name}_ln:'] + lns + ['s_setpc_b64 s[42:43]']
    P += sub
    return P, TR

def kd(name):
    return k2.kd(name)

if __name__ == '__main__':
    import asmlib
    P, TR = gen(Cfg)
    asmlib.check(TR, 'kf')
    print(len(P))
```

```python
import struct, math

def f2u(f): return struct.unpack('<I', struct.pack('<f', f))[0]
LOG2E = 1.4426950408889634
A1 = 2.0 * math.sqrt(2.0 / math.pi) * LOG2E
B1 = A1 * 0.044715
ALPHA = B1 ** (1.0 / 3.0)
CC = A1 / ALPHA

WS_W = 0
W_BYTES = 24 * 24576
WS_H = 1 << 20
IMG_BYTES = 384 * 384 * 192 * 2

vLds, vDma, vG = 1, 2, 3
vLdsS = (1, 4, 5)
T0 = 8
G0 = 24
S0 = 48
ACC = 96
H0, PF0, PX0, W0, I0 = 0, 72, 144, 216, 248
NB = 8
sW, sH, sX, sO = 8, 12, 16, 20
sPass, sJ, sDst, sDstSum, sSrc, sWoff, sB, sT, sT2, sNegC, sAlpha = 24, 25, 26, 27, 28, 29, 30, 31, 32, 34, 35
sB1, sRd = 36, 37
sRet = 42
sHx = 90
sLdH = 96 - 4
sSt, sLd = 44, 47
sLx, sBX = 95, 51
OOB = 0x70000000

def v(b, n=1): return f'v{b}' if n == 1 else f'v[{b}:{b+n-1}]'
def a(b, n=1): return f'a{b}' if n == 1 else f'a[{b}:{b+n-1}]'
def Sreg(buf, aa, p): return S0 + 24 * buf + 4 * (aa * 3 + p)
def Greg(buf, p): return G0 + 12 * buf + 4 * p
def acc(t, p): return ACC + 4 * (t * 3 + p)
def hreg(p, s): return H0 + 24 * p + 4 * s
def pfreg(p, s): return PF0 + 24 * p + 4 * s
def pxreg(p, s): return PX0 + 24 * p + 4 * s
MF = 'v_mfma_f32_16x16x32_bf16'

class Cfg:
    prof = False
    prof2 = False
    allwg = False
    profpass = 1
    plan = ['ssss', 'sssss', 'sssss', 'ssssh', 'hhhhh', 'hhhhh', 'hhhhh', 'hhxxx', 'xxxxx', 'xxxxx', 'xxxxx', '']
    xpos = [26, 30, 34, 38, 41]
    D = 5
    gsz = 4
    f16 = False
    warm = True
    sub = True
    hskip = False
    snake = False
    tail_lds = False
    tail_flags = None
    out_flags = None
    static_ring = False
    wevery = 2
    mid_vm = 12
    diag_nodma = False
    xps = 6144
    xts = 73728
    nt_h = False; nt_x = False; nt_o = False

def f2h(f):
    import numpy as np
    return int(np.float16(f).view(np.uint16))

def gelu_list16(buf, cfg):
    out = []
    grp = [(aa, p) for aa in range(2) for p in range(3)]
    for i in range(0, 6, 2):
        dw = []
        for gi, (aa, p) in enumerate(grp[i:i+2]):
            for d in range(2):
                n = (i // 2 % 2) * 8 + gi * 4 + d * 2
                u = Sreg(buf, aa, p) + 2 * d
                dw.append((u, u + 1, T0 + n, T0 + n + 1, Greg(buf, p) + 2 * aa + d))
        SD = lambda w: f'dst_sel:WORD_{w} dst_unused:UNUSED_PRESERVE src0_sel:WORD_{w}'
        for u0, u1, h, t, g in dw: out.append(f'v_cvt_pk_f16_f32 v{h}, v{u0}, v{u1}')
        for u0, u1, h, t, g in dw: out.append(f'v_pk_fma_f16 v{t}, v{h}, v{h}, s{sNegC} neg_lo:[1,0,0] neg_hi:[1,0,0]')
        for u0, u1, h, t, g in dw: out.append(f'v_pk_mul_f16 v{t}, v{t}, v{h}')
        for w in range(2):
            for u0, u1, h, t, g in dw: out.append(f'v_exp_f16_sdwa v{t}, v{t} {SD(w)}')
        for u0, u1, h, t, g in dw: out.append(f'v_pk_fma_f16 v{t}, v{t}, s{sAlpha}, s{sAlpha}')
        for w in range(2):
            for u0, u1, h, t, g in dw: out.append(f'v_rcp_f16_sdwa v{t}, v{t} {SD(w)}')
        for u0, u1, h, t, g in dw: out.append(f'v_pk_mul_f16 v{g}, v{h}, v{t}')
    return out

def gelu_list(buf, cfg):
    if cfg.f16: return gelu_list16(buf, cfg)
    out = []
    k = 0
    for aa in range(2):
        for p in range(3):
            es = [Sreg(buf, aa, p) + i for i in range(4)]
            ts = [T0 + (k % 2) * 4 + i for i in range(4)]
            k += 1
            for u, t in zip(es, ts): out.append(f'v_fma_f32 v{t}, -v{u}, v{u}, s{sNegC}')
            for u, t in zip(es, ts): out.append(f'v_mul_f32 v{t}, v{t}, v{u}')
            for u, t in zip(es, ts): out.append(f'v_exp_f32 v{t}, v{t}')
            for u, t in zip(es, ts): out.append(f'v_fma_f32 v{t}, v{t}, s{sAlpha}, s{sAlpha}')
            for u, t in zip(es, ts): out.append(f'v_rcp_f32 v{t}, v{t}')
            for u, t in zip(es, ts): out.append(f'v_mul_f32 v{t}, v{u}, v{t}')
            g = Greg(buf, p) + 2 * aa
            out.append(f'v_cvt_pk_bf16_f32 v{g}, v{ts[0]}, v{ts[1]}')
            out.append(f'v_cvt_pk_bf16_f32 v{g+1}, v{ts[2]}, v{ts[3]}')
    return out

def g1_groups(j):
    buf = (j + 1) & 1
    base = (j & 1) * 24576
    gs = []
    for s in range(6):
        for aa in range(2):
            gs.append((base + (2 * s + aa) * 1024,
                       [(lambda w, p=p, s=s, aa=aa: f'{MF} {v(Sreg(buf,aa,p),4)}, {a(w,4)}, {a(hreg(p,s),4)}, ' + ('0' if s == 0 else v(Sreg(buf,aa,p),4))) for p in porder(aa)]))
    return gs

MF2 = [MF]
SNAKE = [False]
def porder(i): return (2, 1, 0) if (SNAKE[0] and i % 2) else (0, 1, 2)
def g2_groups(j):
    buf = (j - 1) & 1
    base = (j & 1) * 24576 + 12288
    gs = []
    for t in range(12):
        gs.append((base + t * 1024,
                   [(lambda w, p=p, t=t: f'{MF2[0]} {v(acc(t,p),4)}, {a(w,4)}, {v(Greg(buf,p),4)}, {v(acc(t,p),4)}') for p in porder(t)]))
    return gs

def cost(t):
    op = t.split()[0]
    if op.startswith(('v_exp', 'v_rcp')): return 8
    return 4

def wbuf(g): return W0 + 4 * (g % NB)

def dma_block(k):
    return [f's_add_u32 m0, s{sDst}, {4096*k}', f's_add_u32 s{sT}, s{sSrc}, {4096*k}']
DTAG = ['dma']
def dma(i):
    return f'buffer_load_dwordx4 v{vDma}, s[{sW}:{sW+3}], s{sT} offen offset:{(i%4)*1024} lds ;@{DTAG[0]}'

def superstep(cfg, j0, mid=None, extra_valu=None, extra_at=None, bar_wait=None, dma_on=True, pre=None):
    J = j0 // 2
    sr = cfg.static_ring
    vcur = vLdsS[J % 3] if sr else vLds
    vnxt = vLdsS[(J + 1) % 3] if sr else vLds
    D = cfg.D
    groups = g1_groups(j0) + g2_groups(j0) + g1_groups(j0 + 1) + g2_groups(j0 + 1)
    nxt = g1_groups(j0)
    out = list(pre or [])
    fifo = list(range(0, D))
    waited = cfg.wevery - 1
    fifo = [g for g in fifo if g > waited]
    vl = [gelu_list(j0 & 1, cfg), gelu_list((j0 + 1) & 1, cfg)]
    extra_at = extra_at or {}
    reads_at = {g: [] for g in range(48)}
    for g in range(48):
        r = g + D
        if r <= 46 - 0 and g < 47 - D - 1: reads_at[g].append(r)
    reads_at[47 - D - 1] = [46, 47]
    reads_at[47 - D] = []
    for k in range(D): reads_at[48 - D + k].append(48 + k)
    dma_at = {}
    if dma_on and not cfg.diag_nodma:
        for i in range(12): dma_at.setdefault(2 * i, []).append(i)
    for step in range(2):
        valu = list(vl[step])
        tot = sum(cost(t) for t in valu)
        done = 0; vi = 0
        ex = (extra_valu or {}).get(step)
        exi = 0
        for gl in range(24):
            g = step * 24 + gl
            ms = groups[g][1]
            for k, m in enumerate(ms):
                out.append(m(wbuf(g)))
                if k == 0:
                    if g == 48 - D:
                        out.append('s_waitcnt lgkmcnt(0)'); fifo = []; waited = 47
                        out += bar_wait or ['s_waitcnt vmcnt(0)']
                        out.append('s_barrier')
                        if not sr: out.append(f'v_add_u32 v{vLds}, s{sRd}, v{vDma}')
                    for r in reads_at[g]:
                        off = groups[r][0] if r < 48 else nxt[r - 48][0]
                        out.append(f'ds_read_b128 {a(wbuf(r),4)}, v{vcur if r < 48 else vnxt} offset:{off}')
                        fifo.append(r)
                    for i in dma_at.get(g, []):
                        if i % 4 == 0:
                            if sr: out += [f's_add_u32 m0, s{sWoff}, {((J + 2) % 3) * 49152 + 4096 * (i // 4)}', f's_add_u32 s{sT}, s{sWoff}, {((J + 2) % 12) * 49152 + 4096 * (i // 4)}']
                            else: out += dma_block(i // 4) + ['s_nop 0']
                        out.append(dma(i))
                    if g == 38 and not sr:
                        out += [f's_add_u32 s{sRd}, s{sRd}, 49152', f's_cmp_eq_u32 s{sRd}, 147456', f's_cselect_b32 s{sRd}, 0, s{sRd}']
                    out += extra_at.get(g, [])
                mi = gl * 3 + k + 1
                target = tot * mi / 72.0
                while vi < len(valu) and done + cost(valu[vi]) / 2 <= target:
                    out.append(valu[vi]); done += cost(valu[vi]); vi += 1
                if mi == 72:
                    while vi < len(valu): out.append(valu[vi]); vi += 1
                if ex and ex[0] <= gl < ex[1]:
                    n = len(ex[2]); span = (ex[1] - ex[0]) * 3
                    upto = ((gl - ex[0]) * 3 + k + 1) * n // span
                    while exi < upto: out.append(ex[2][exi]); exi += 1
            we = cfg.wevery
            if g % we == we - 1:
                needg = g + we
                if waited < needg:
                    pend = [r for r in fifo if r > needg]
                    if len(pend) < len(fifo):
                        out.append(f's_waitcnt lgkmcnt({len(pend)})')
                    fifo = pend; waited = needg
        if step == 0 and mid: out += mid
    return out

def mid_block(cfg):
    out = []
    k = 0
    for p in range(3):
        for s in range(6):
            t = T0 + 8 + (k % 2) * 4; k += 1
            r0, r1 = acc(2 * s, p), acc(2 * s + 1, p)
            out.append(f'v_cvt_pk_bf16_f32 v{t}, v{r0}, v{r0+1}')
            out.append(f'v_cvt_pk_bf16_f32 v{t+1}, v{r0+2}, v{r0+3}')
            out.append(f'v_cvt_pk_bf16_f32 v{t+2}, v{r1}, v{r1+1}')
            out.append(f'v_cvt_pk_bf16_f32 v{t+3}, v{r1+2}, v{r1+3}')
            out.append(f'{MF} {v(acc(2*s,p),4)}, {a(I0,4)}, {a(pxreg(p,s),4)}, 0')
            out.append(f'{MF} {v(acc(2*s+1,p),4)}, {a(I0+4,4)}, {a(pxreg(p,s),4)}, 0')
            for i in range(4): out.append(f'v_accvgpr_write_b32 a{pxreg(p,s)+i}, v{t+i}')
    return out

def tail_epilogue(cfg, sbase):
    out = []
    nt = ' nt' if cfg.nt_o else ''
    k = 0
    for p in range(3):
        out.append(f's_add_u32 s{sT2}, s{sbase}, {cfg.xps*p}')
        for s in range(6):
            t = T0 + (k % 4) * 4; k += 1
            r0, r1 = acc(2 * s, p), acc(2 * s + 1, p)
            out.append(f'v_cvt_pk_bf16_f32 v{t}, v{r0}, v{r0+1}')
            out.append(f'v_cvt_pk_bf16_f32 v{t+1}, v{r0+2}, v{r0+3}')
            out.append(f'v_cvt_pk_bf16_f32 v{t+2}, v{r1}, v{r1+1}')
            out.append(f'v_cvt_pk_bf16_f32 v{t+3}, v{r1+2}, v{r1+3}')
            out.append(f'buffer_store_dwordx4 {v(t,4)}, v{vG}, s[{sO}:{sO+3}], s{sT2} offen offset:{64*s}{nt}')
    return out

def tail_epilogue_lds(cfg, sbase):
    nt = cfg.tail_flags if cfg.tail_flags is not None else (' nt' if cfg.nt_o else '')
    vW, vR, vG2, t = 4, 5, 6, 7
    out = [f'v_lshrrev_b32 v{t}, 4, v{vDma}',
           f's_mul_i32 s{sT}, s40, 12288', f's_add_u32 s{sT}, s{sT}, 98304',
           f'v_and_b32 v{vW}, 15, v{t}', f'v_bfe_u32 v{vR}, v{t}, 1, 2', f'v_lshrrev_b32 v{vG2}, 4, v{t}', f'v_xor_b32 v{vR}, v{vR}, v{vG2}',
           f'v_lshlrev_b32 v{vW}, 6, v{vW}', f'v_lshl_add_u32 v{vW}, v{vR}, 4, v{vW}', f'v_add_u32 v{vW}, s{sT}, v{vW}',
           f'v_bfe_u32 v{vR}, v{t}, 3, 2', f'v_and_b32 v{vG2}, 3, v{t}', f'v_xor_b32 v{vR}, v{vR}, v{vG2}', f'v_lshlrev_b32 v{vR}, 4, v{vR}',
           f'v_lshrrev_b32 v{vG2}, 2, v{t}', f'v_lshl_add_u32 v{vR}, v{vG2}, 6, v{vR}', f'v_add_u32 v{vR}, s{sT}, v{vR}',
           f'v_mul_u32_u24 v{vG2}, 384, v{vG2}', f'v_and_b32 v{t}, 3, v{t}', f'v_lshl_add_u32 v{vG2}, v{t}, 4, v{vG2}']
    items = [(p, s) for p in range(3) for s in range(6)]
    LAG = 2
    def wr(i):
        p, s = items[i]; tt = T0 + 4 * (i % 2)
        r0, r1 = acc(2 * s, p), acc(2 * s + 1, p)
        return [f'v_cvt_pk_bf16_f32 v{tt}, v{r0}, v{r0+1}', f'v_cvt_pk_bf16_f32 v{tt+1}, v{r0+2}, v{r0+3}',
                f'v_cvt_pk_bf16_f32 v{tt+2}, v{r1}, v{r1+1}', f'v_cvt_pk_bf16_f32 v{tt+3}, v{r1+2}, v{r1+3}',
                f'ds_write_b128 v{vW}, {v(tt,4)} offset:{1024*(i % 12)}']
    rreg = lambda i: G0 + 4 * (i % 6)
    pend = []
    for i in range(18 + 2 * LAG):
        if i < 18: out += wr(i); pend.append(('w', i))
        j = i - LAG
        if 0 <= j < 18:
            out.append(f'ds_read_b128 {v(rreg(j),4)}, v{vR} offset:{1024*(j % 12)}'); pend.append(('r', j))
        m = i - 2 * LAG
        if 0 <= m < 18:
            idx = pend.index(('r', m)); n = len(pend) - 1 - idx
            out.append(f's_waitcnt lgkmcnt({n})'); pend = pend[idx + 1:]
            p, s = items[m]
            if s == 0: out.append(f's_add_u32 s{sT2}, s{sbase}, {cfg.xps*p}')
            out.append(f'buffer_store_dwordx4 {v(rreg(m),4)}, v{vG2}, s[{sO}:{sO+3}], s{sT2} offen offset:{64*s}{nt}')
    return out

def st_op(cfg, i):
    p, s = divmod(i, 6)
    return f'buffer_store_dwordx4 {a(pxreg(p,s),4)}, v{vG}, s[{sO}:{sO+3}], s{sSt+p} offen offset:{64*s}' + (cfg.out_flags if cfg.out_flags is not None else (' nt' if cfg.nt_o else '')) + ' ;@st'
def h_op(cfg, i):
    p, s = divmod(i, 6)
    so, im = (sLd + p, 1024 * s) if s < 4 else (sLdH + p, 1024 * (s - 4))
    ld = f'buffer_load_dwordx4 {a(pfreg(p,s),4)}, v{vDma}, s[{sH}:{sH+3}], s{so} offen offset:{im}' + (' nt' if cfg.nt_h else '') + ' ;@h'
    if cfg.hskip: return f's_mov_b64 exec, s[{sHx}:{sHx+1}]\n' + ld + '\ns_mov_b64 exec, -1'
    return ld
def x_op(cfg, i):
    p, s = divmod(i, 6)
    return f'buffer_load_dwordx4 {a(pxreg(p,s),4)}, v{vG}, s[{sX}:{sX+3}], s{sLx+p} offen offset:{64*s}' + (' nt' if cfg.nt_x else '') + ' ;@x'

def resolve_vm(seq_prev, seq, optional=()):
    def isvm(t):
        o = t.split()[0] if t.split() else ''
        return o.startswith(('buffer_load', 'buffer_store'))
    def tag(t):
        if ';@' in t: return t.split(';@')[1].strip()
        return 'dma' if ' lds' in t else '?'
    fifo = []
    res = None
    for rnd, sq in enumerate((seq_prev, seq)):
        out = []
        for t in sq:
            if t.startswith('WAITVM:'):
                tg = t.split(':')[1]
                idx = [i for i, x in enumerate(fifo) if x == tg]
                if idx:
                    younger = fifo[idx[-1] + 1:]
                    n = sum(1 for x in younger if x not in optional)
                    out.append(f's_waitcnt vmcnt({n})')
                    keep = []; c = 0
                    for x in reversed(fifo):
                        if c >= n: break
                        keep.append(x)
                        if x not in optional: c += 1
                    fifo = keep[::-1]
                continue
            if isvm(t): fifo.append(tag(t))
            assert len(fifo) <= 63, 'too many outstanding'
            out.append(t)
        res = out
    return res

def tile_loads(srd, dst0, soff_base_instrs, nt):
    out = []
    for p in range(3):
        out += soff_base_instrs(p)
        for s in range(6):
            out.append(f'buffer_load_dwordx4 {a(dst0 + 24*p + 4*s, 4)}, v{vG}, s[{srd}:{srd+3}], s{sT2} offen offset:{64*s}' + (' nt' if nt else ''))
    return out

def soff(base, add):
    def f(p):
        return [f's_add_u32 s{sT2}, s{base}, {add + 6144*p}']
    return f

def stamp(cfg, k):
    if not cfg.prof: return []
    b = 52 + 4 * k
    return [f's_memtime s[{b}:{b+1}]', f's_memrealtime s[{b+2}:{b+3}]']

_cs=[0]
def cstamp(cfg, k, cond=None):
    if not cfg.prof2: return []
    _cs[0]+=1; lab=f'mlp_cs{_cs[0]}'
    out=[f's_cmp_eq_u32 s{sPass}, {cfg.profpass}', f's_cbranch_scc0 {lab}']
    if cond: out+=[f's_cmp_eq_u32 s{cond[0]}, {cond[1]}', f's_cbranch_scc0 {lab}']
    out+=[f's_memtime s[{52+2*k}:{53+2*k}]', f'{lab}:']
    return out

def dump_stamps2(cfg, n):
    if not cfg.prof2: return []
    out = ['s_waitcnt lgkmcnt(0)', 's_load_dwordx2 s[42:43], s[0:1], 40', 's_waitcnt lgkmcnt(0)',
           's_mov_b32 s44, s42', 's_mov_b32 s45, s43', 's_mov_b32 s46, 256', 's_mov_b32 s47, 0x20000',
           's_cmp_lg_u32 s2, 17', 's_cbranch_scc1 mlp_nodump', 's_cmp_lg_u32 s40, 0', 's_cbranch_scc1 mlp_nodump',
           'v_mov_b32 v4, 0']
    for k in range(n):
        out += [f'v_mov_b32 v5, s{52+2*k}', f'buffer_store_dword v5, v4, s[44:47], 0 offen offset:{4*k}']
    out += ['mlp_nodump:']
    return out

def dump_stamps(cfg, n):
    if not cfg.prof: return []
    out = ['s_waitcnt lgkmcnt(0)', 's_load_dwordx2 s[42:43], s[0:1], 40', 's_waitcnt lgkmcnt(0)',
           's_mov_b32 s44, s42', 's_mov_b32 s45, s43', 's_mov_b32 s46, 256', 's_mov_b32 s47, 0x20000',
           's_cmp_lg_u32 s2, PROFWG', 's_cbranch_scc1 mlp_nodump', 's_cmp_lg_u32 s40, 0', 's_cbranch_scc1 mlp_nodump',
           'v_mov_b32 v4, 0']
    for k in range(n):
        b = 52 + 4 * k
        out += [f'v_mov_b32 v5, s{b}', f'buffer_store_dword v5, v4, s[44:47], 0 offen offset:{8*k}',
                f'v_mov_b32 v6, s{b+2}', f'buffer_store_dword v6, v4, s[44:47], 0 offen offset:{8*k+4}']
    out += ['mlp_nodump:']
    return [o.replace('PROFWG', '17') for o in out]

def ident_setup():
    return [
        f'v_lshlrev_b32 v{vDma}, 4, v0',
        f'v_mov_b32 v{vLds}, v{vDma}',
        f'v_and_b32 v4, 15, v0',
        f'v_lshrrev_b32 v5, 4, v0',
        f'v_mul_u32_u24 v{vG}, 384, v4',
        f'v_lshl_add_u32 v{vG}, v5, 4, v{vG}',
        f'v_lshrrev_b32 v6, 2, v4',
        f'v_cmp_eq_u32 vcc, v6, v5',
        f'v_and_b32 v6, 1, v4',
        f'v_lshlrev_b32 v6, 4, v6',
        f'v_mov_b32 v7, 0x3f80',
        f'v_lshlrev_b32 v7, v6, v7',
        f'v_cndmask_b32 v7, 0, v7, vcc',
        f'v_and_b32 v6, 2, v4',
        f'v_cmp_eq_u32 vcc, 0, v6',
        's_nop 1',
        f'v_cndmask_b32 v8, 0, v7, vcc',
        f'v_sub_u32 v9, v7, v8',
        f'v_mov_b32 v10, 0',
        f'v_accvgpr_write_b32 a{I0}, v8', f'v_accvgpr_write_b32 a{I0+1}, v9',
        f'v_accvgpr_write_b32 a{I0+2}, v10', f'v_accvgpr_write_b32 a{I0+3}, v10',
        f'v_accvgpr_write_b32 a{I0+4}, v10', f'v_accvgpr_write_b32 a{I0+5}, v10',
        f'v_accvgpr_write_b32 a{I0+6}, v8', f'v_accvgpr_write_b32 a{I0+7}, v9']

def gelu_consts(cfg):
    return [f's_mov_b32 s{sNegC}, {hex(f2u(-CC) if not cfg.f16 else f2h(-CC) * 0x10001)}',
            f's_mov_b32 s{sAlpha}, {hex(f2u(ALPHA) if not cfg.f16 else f2h(ALPHA) * 0x10001)}']

def m_first_dma(cfg):
    a1 = [f's_mul_i32 s41, s40, 3072', f's_add_u32 m0, s41, {98304+24576}', f's_add_u32 s{sT}, s41, {23*24576}']
    a1 += [f'buffer_load_dwordx4 v{vDma}, s[{sW}:{sW+3}], s{sT} offen offset:{i*1024} lds' for i in range(3)]
    a2 = []
    for sl in range(2):
        a2 += [f's_add_u32 s{sDst}, s{sWoff}, {49152*sl}', f's_add_u32 s{sSrc}, s{sWoff}, {49152*sl}']
        for k_ in range(3): a2 += dma_block(k_) + ['s_nop 0'] + [dma(4 * k_ + i).split(' ;@')[0] for i in range(4)]
    nwarm = 0
    if cfg.warm:
        a2 += [f's_lshr_b32 s41, s2, 3', f's_and_b32 s41, s41, 31', f's_mul_i32 s41, s41, 18432', f's_mul_i32 s3, s40, 5120', f's_add_u32 s41, s41, s3']
        for i in range(5):
            if i == 4: a2 += [f's_add_u32 s41, s41, 4096']
            a2 += [f'buffer_load_dwordx4 {a(PF0 + 4*i, 4)}, v{vDma}, s[{sW}:{sW+3}], s41 offen offset:{1024*(i%4)}']
        nwarm = 5
    a2 += [f's_add_u32 s{sDst}, s{sWoff}, 98304', f's_add_u32 s{sDstSum}, s{sWoff}, 147456',
           f's_add_u32 s{sSrc}, s{sWoff}, 98304', f's_mov_b32 s{sRd}, 0', f's_mov_b32 s{sPass}, 0']
    return a1, a2, 12 + nwarm

def m_second_dma(cfg, warm_dst):
    a2 = [f's_add_u32 s{sDst}, s{sWoff}, 49152', f's_add_u32 s{sSrc}, s{sWoff}, 49152']
    for k_ in range(3): a2 += dma_block(k_) + ['s_nop 0'] + [dma(4 * k_ + i).split(' ;@')[0] for i in range(4)]
    if cfg.warm:
        a2 += [f's_lshr_b32 s41, s2, 3', f's_and_b32 s41, s41, 31', f's_mul_i32 s41, s41, 18432', f's_mul_i32 s3, s40, 5120', f's_add_u32 s41, s41, s3']
        for i in range(5):
            if i == 4: a2 += [f's_add_u32 s41, s41, 4096']
            a2 += [f'buffer_load_dwordx4 {v(warm_dst + 4*(i%4), 4)}, v{vDma}, s[{sW}:{sW+3}], s41 offen offset:{1024*(i%4)}']
    a2 += [f's_add_u32 s{sDst}, s{sWoff}, 98304', f's_add_u32 s{sDstSum}, s{sWoff}, 147456',
           f's_add_u32 s{sSrc}, s{sWoff}, 98304', f's_mov_b32 s{sRd}, 0', f's_mov_b32 s{sPass}, 0']
    return a2

def x_first_loads(cfg):
    out = []
    for p in range(3):
        out.append(f's_add_u32 s{sT2}, s{sBX}, {cfg.xps*p}')
        for s in range(6):
            out.append(f'buffer_load_dwordx4 {a(pxreg(p,s), 4)}, v{vG}, s[{sX}:{sX+3}], s{sT2} offen offset:{64*s}' + (' nt' if cfg.nt_x else ''))
    return out

def m_g1_first(cfg, early=False):
    D = cfg.D
    g1 = g1_groups(-1)
    if early: g1 = [(off - 12288, ms) for off, ms in g1]
    lst = [f'v_add_u32 v4, {0 if early else 98304}, v{vLds}']
    for g in range(6):
        lst.append(f'ds_read_b128 {a(wbuf(g),4)}, v4 offset:{g1[g][0]}')
    for g in range(12):
        if g % 2 == 0: lst.append(f's_waitcnt lgkmcnt({min(4, 10 - g) if g < 10 else 0})' if g <= 6 else f's_waitcnt lgkmcnt({max(0, 10 - g)})')
        for m in g1[g][1]: lst.append(m(wbuf(g)))
        if g + 6 < 12: lst.append(f'ds_read_b128 {a(wbuf(g+6),4)}, v4 offset:{g1[g+6][0]}')
    lst += ['s_waitcnt lgkmcnt(0)'] + ([] if early else ['s_barrier'])
    nxt = g1_groups(0)
    for g in range(D): lst.append(f'ds_read_b128 {a(wbuf(g),4)}, v{vLds} offset:{nxt[g][0]}')
    lst.append(f's_waitcnt lgkmcnt({D-cfg.wevery})')
    if cfg.static_ring: lst += [f'v_add_u32 v{vLdsS[1]}, 49152, v{vDma}', f'v_add_u32 v{vLdsS[2]}, 98304, v{vDma}']
    return lst

def m_main(cfg, L):
    P = []
    adv = [f's_add_u32 s{sDst}, s{sDst}, 49152', f's_cmp_ge_u32 s{sDst}, s{sDstSum}', f's_cselect_b32 s{sT}, 147456, 0', f's_sub_u32 s{sDst}, s{sDst}, s{sT}',
           f's_add_u32 s{sSrc}, s{sSrc}, 49152',
           f's_cmp_ge_u32 s{sSrc}, {W_BYTES}',
           f's_cselect_b32 s{sT}, {W_BYTES}, 0',
           f's_sub_u32 s{sSrc}, s{sSrc}, s{sT}']
    st = [st_op(cfg, i) for i in range(18)]
    hl = [h_op(cfg, i) for i in range(18)]
    xl = [x_op(cfg, i) for i in range(18)]
    pools = {'s': st, 'h': hl, 'x': xl}
    extras = [[pools[ch].pop(0).split('\n') for ch in cfg.plan[J]] for J in range(12)]
    assert not st and not hl and not xl
    assert all(len(extras[J]) == 5 for J in range(1, 11)) and not extras[11]
    setup = [f's_cmp_eq_u32 s{sPass}, 0'] + ([f's_cselect_b64 s[{sHx}:{sHx+1}], 0, -1'] if cfg.hskip else []) + [
             f's_cselect_b32 s{sSt}, {hex(OOB)}, s{sB1}',
             f's_add_u32 s{sSt+1}, s{sSt}, {cfg.xps}', f's_add_u32 s{sSt+2}, s{sSt}, {2*cfg.xps}',
             f's_add_u32 s{sLd}, s{sB}, 73728', f's_add_u32 s{sLx}, s{sBX}, {cfg.xts}',
             f's_cmp_eq_u32 s{sPass}, 2',
             f's_cselect_b32 s{sLd}, {hex(OOB)}, s{sLd}', f's_cselect_b32 s{sLx}, {hex(OOB)}, s{sLx}',
             f's_add_u32 s{sLd+1}, s{sLd}, 6144', f's_add_u32 s{sLd+2}, s{sLd}, 12288',
             f's_add_u32 s{sLx+1}, s{sLx}, {cfg.xps}', f's_add_u32 s{sLx+2}, s{sLx}, {2*cfg.xps}',
             f's_add_u32 s{sLdH}, s{sLd}, 4096', f's_add_u32 s{sLdH+1}, s{sLd+1}, 4096', f's_add_u32 s{sLdH+2}, s{sLd+2}, 4096']
    moves = [f'v_accvgpr_mov_b32 a{H0+i}, a{PF0+i}' for i in range(72)]
    parts = []
    for J in range(12):
        DTAG[0] = f'd{J}'
        ea = {47: list(adv) if not cfg.static_ring else []}
        kw = dict(extra_at=ea, bar_wait=[f'WAITVM:d{(J-1)%12}'])
        pre = cstamp(cfg, J)
        if J == 0:
            for k_, op in enumerate(extras[0]): ea.setdefault(cfg.xpos[k_], []).extend(op)
            kw['mid'] = ['WAITVM:x', f's_waitcnt vmcnt({cfg.mid_vm})' if not cfg.diag_nodma else 's_waitcnt vmcnt(0)'] + mid_block(cfg)
            pre = pre + setup
        elif J <= 10:
            if cfg.sub: pre = pre + sum(extras[J], [])
            else:
                for k_, op in enumerate(extras[J]): ea.setdefault(cfg.xpos[k_], []).extend(op)
        if J == 11:
            kw['extra_valu'] = {0: (13, 24, moves)}
            ea.setdefault(12, []).append('WAITVM:h')
        parts.append((pre, superstep(cfg, 2 * J, **kw)))
    DTAG[0] = 'dma'
    endp = cstamp(cfg, 12) + [f's_mov_b32 s{sB1}, s{sBX}', f's_add_u32 s{sB}, s{sB}, 73728', f's_add_u32 s{sBX}, s{sBX}, {cfg.xts}', f's_add_u32 s{sPass}, s{sPass}, 1']
    seq = []
    for J, (pre, body) in enumerate(parts): seq += pre + [f';BEGIN{J}'] + body + [f';END{J}']
    seq += endp
    res = resolve_vm(seq, seq, ('h',) if cfg.hskip else ())
    def part(J):
        i0 = res.index(f';BEGIN{J}'); i1 = res.index(f';END{J}')
        return res[i0 + 1:i1]
    strip = lambda l: [x.split(' ;@')[0] for x in l]
    bodies = [strip(part(J)) for J in range(12)]
    def barwait(b):
        i = b.index('s_barrier'); return i - 1, int(b[i - 1].split('(')[1][:-1])
    if cfg.diag_nodma: assert not cfg.sub
    if cfg.sub:
        ns = [barwait(bodies[J])[1] for J in range(1, 11)]
        nmin = min(ns)
        gen_body = list(bodies[2]); gen_body[barwait(gen_body)[0]] = f's_waitcnt vmcnt({nmin})'
        for J in range(1, 11):
            b = list(bodies[J]); b[barwait(b)[0]] = f's_waitcnt vmcnt({nmin})'
            assert b == gen_body, J
    P += ['.p2align 6', f'{L}_pass:']
    trace = []
    for J in range(12):
        pre = strip(parts[J][0])
        if 1 <= J <= 10 and cfg.sub:
            P += pre + [f's_call_b64 s[{sRet}:{sRet+1}], {L}_body']
            trace += [x for x in pre if not x.endswith(':')] + gen_body
        else:
            b = bodies[J]
            P += pre + b
            trace += [x for x in pre if not x.endswith(':')] + b
    P += endp; trace += endp
    P += [f's_cmp_lt_u32 s{sPass}, 3', f's_cbranch_scc1 {L}_pass']
    tail = ['s_waitcnt lgkmcnt(0)']
    g2 = g2_groups(24)
    for g in range(6): tail.append(f'ds_read_b128 {a(wbuf(g),4)}, v{vLds} offset:{g2[g][0]}')
    for g in range(12):
        if g % 2 == 0: tail.append(f's_waitcnt lgkmcnt({4 if g <= 6 else max(0, 10 - g)})')
        for m in g2[g][1]: tail.append(m(wbuf(g)))
        if g + 6 < 12: tail.append(f'ds_read_b128 {a(wbuf(g+6),4)}, v{vLds} offset:{g2[g+6][0]}')
    tail += ['s_nop 7']
    tail += tail_epilogue_lds(cfg, sB1) if cfg.tail_lds else tail_epilogue(cfg, sB1)
    P += stamp(cfg, 4)
    P += tail
    P += stamp(cfg, 5)
    sub = (['.p2align 6', f'{L}_body:'] + gen_body + [f's_setpc_b64 s[{sRet}:{sRet+1}]']) if cfg.sub else []
    return P, sub, trace + trace + tail

def gen(cfg, name='mlp_kernel'):
    MF2[0] = 'v_mfma_f32_16x16x32_f16' if cfg.f16 else MF
    P = []; TR = []
    def emit(lst, trace=True):
        P.extend(lst)
        if trace: TR.extend(lst)
    emit(['s_cmp_ge_u32 s2, 256', f's_cbranch_scc1 {name}_done',
          's_load_dwordx2 s[4:5], s[0:1], 0',
          's_load_dwordx2 s[6:7], s[0:1], 32',
          's_load_dwordx2 s[38:39], s[0:1], 48',
          'v_lshrrev_b32 v4, 6, v0', 'v_and_b32 v0, 63, v0', 's_nop 0', 'v_readfirstlane_b32 s40, v4'])
    emit(gelu_consts(cfg) + ident_setup())
    emit(['s_waitcnt lgkmcnt(0)',
        f's_add_u32 s{sW}, s38, {WS_W}', f's_addc_u32 s{sW+1}, s39, 0', f's_mov_b32 s{sW+2}, {W_BYTES}', f's_mov_b32 s{sW+3}, 0x20000',
        f's_add_u32 s{sH}, s38, {WS_H}', f's_addc_u32 s{sH+1}, s39, 0', f's_mov_b32 s{sH+2}, {IMG_BYTES}', f's_mov_b32 s{sH+3}, 0x20000',
        f's_mov_b32 s{sX}, s4', f's_mov_b32 s{sX+1}, s5', f's_mov_b32 s{sX+2}, {IMG_BYTES}', f's_mov_b32 s{sX+3}, 0x20000',
        f's_mov_b32 s{sO}, s6', f's_mov_b32 s{sO+1}, s7', f's_mov_b32 s{sO+2}, {IMG_BYTES}', f's_mov_b32 s{sO+3}, 0x20000',
        f's_mul_i32 s{sB}, s2, {36*6144}', f's_mul_i32 s41, s40, {3*6144}', f's_add_u32 s{sB}, s{sB}, s41', f's_mov_b32 s{sBX}, s{sB}',
        f's_mul_i32 s{sWoff}, s40, 12288'])
    if cfg.prof or cfg.prof2: P.extend([f's_mov_b32 s{i}, 0' for i in range(52, 92)])
    P.extend(stamp(cfg, 0))
    a1, a2, nafter = m_first_dma(cfg)
    emit(a1)
    for p in range(3):
        emit([f's_add_u32 s{sT2}, s{sB}, {6144*p}'])
        for s_ in range(6):
            if s_ == 4: emit([f's_add_u32 s{sT2}, s{sT2}, 4096'])
            emit([f'buffer_load_dwordx4 {a(H0 + 24*p + 4*s_, 4)}, v{vDma}, s[{sH}:{sH+3}], s{sT2} offen offset:{1024*(s_ % 4)}' + (' nt' if cfg.nt_h else '')])
    emit(a2)
    emit([f's_waitcnt vmcnt({nafter})', 's_barrier'])
    emit(x_first_loads(cfg))
    emit(m_g1_first(cfg))
    P.extend(stamp(cfg, 1))
    mp, sub, tr = m_main(cfg, name)
    P += mp; TR += tr
    P += dump_stamps(cfg, 6)
    P += dump_stamps2(cfg, 13)
    if cfg.allwg:
        P = P[:2] + ['s_memrealtime s[98:99]'] + P[2:]
        P += ['s_waitcnt vmcnt(0)', 's_memrealtime s[82:83]', 's_cmp_eq_u32 s40, 0', f's_cbranch_scc0 {name}_done',
              's_waitcnt lgkmcnt(0)', 's_lshl_b32 s3, s2, 3', f's_add_u32 s3, s3, {(200 << 20) + 4096}',
              'v_mov_b32 v4, s98', 'v_mov_b32 v5, s3', 's_nop 1', 'global_store_dword v5, v4, s[38:39]',
              'v_mov_b32 v4, s82', 's_nop 1', 'global_store_dword v5, v4, s[38:39] offset:4']
    P += [f'{name}_done:', 's_endpgm']
    P += sub
    return P, TR

def kd(name, lds=0):
    return f'''.amdhsa_kernel {name}
  .amdhsa_next_free_vgpr 512
  .amdhsa_next_free_sgpr 102
  .amdhsa_accum_offset 256
  .amdhsa_group_segment_fixed_size 0
  .amdhsa_kernarg_size 56
  .amdhsa_user_sgpr_count 2
  .amdhsa_user_sgpr_kernarg_segment_ptr 1
  .amdhsa_system_sgpr_workgroup_id_x 1
  .amdhsa_float_denorm_mode_32 3
.end_amdhsa_kernel
'''
if __name__ == '__main__':
    import asmlib
    P, TR = gen(Cfg)
    asmlib.check(TR, 'k2')
    print(len(P), 'lines', 'alpha', ALPHA, 'c', CC)
```

```python
import struct, math

def f2u(f): return struct.unpack('<I', struct.pack('<f', f))[0]
LOG2E = 1.4426950408889634
A1 = 2.0 * math.sqrt(2.0 / math.pi) * LOG2E
B1 = A1 * 0.044715
ALPHA = B1 ** (1.0 / 3.0)
CC = A1 / ALPHA

WS_W = 0
W_BYTES = 24 * 24576
WS_H = 1 << 20
IMG_BYTES = 384 * 384 * 192 * 2

vLds, vDma, vG = 1, 2, 3
vLdsS = (1, 4, 5)
T0 = 8
G0 = 24
S0 = 48
ACC = 96
H0, PF0, PX0, W0, I0 = 0, 72, 144, 216, 248
NB = 8
sW, sH, sX, sO = 8, 12, 16, 20
sPass, sJ, sDst, sDstSum, sSrc, sWoff, sB, sT, sT2, sNegC, sAlpha = 24, 25, 26, 27, 28, 29, 30, 31, 32, 34, 35
sB1, sRd = 36, 37
sRet = 42
sHx = 90
sLdH = 96 - 4
sSt, sLd = 44, 47
sLx, sBX = 95, 51
OOB = 0x70000000

def v(b, n=1): return f'v{b}' if n == 1 else f'v[{b}:{b+n-1}]'
def a(b, n=1): return f'a{b}' if n == 1 else f'a[{b}:{b+n-1}]'
def Sreg(buf, aa, p): return S0 + 24 * buf + 4 * (aa * 3 + p)
def Greg(buf, p): return G0 + 12 * buf + 4 * p
def acc(t, p): return ACC + 4 * (t * 3 + p)
def hreg(p, s): return H0 + 24 * p + 4 * s
def pfreg(p, s): return PF0 + 24 * p + 4 * s
def pxreg(p, s): return PX0 + 24 * p + 4 * s
MF = 'v_mfma_f32_16x16x32_bf16'

class Cfg:
    prof = False
    prof2 = False
    allwg = False
    profpass = 1
    plan = ['ssss', 'sssss', 'sssss', 'ssssh', 'hhhhh', 'hhhhh', 'hhhhh', 'hhxxx', 'xxxxx', 'xxxxx', 'xxxxx', '']
    xpos = [26, 30, 34, 38, 41]
    D = 5
    gsz = 4
    f16 = False
    warm = True
    sub = True
    hskip = False
    freeslot = False
    snake = False
    tail_lds = False
    tail_flags = None
    out_flags = None
    static_ring = False
    wevery = 2
    mid_vm = 12
    diag_nodma = False
    xps = 6144
    xts = 73728
    nt_h = False; nt_x = False; nt_o = False

def f2h(f):
    import numpy as np
    return int(np.float16(f).view(np.uint16))

def gelu_list16(buf, cfg):
    out = []
    grp = [(aa, p) for aa in range(2) for p in range(3)]
    for i in range(0, 6, 2):
        dw = []
        for gi, (aa, p) in enumerate(grp[i:i+2]):
            for d in range(2):
                n = (i // 2 % 2) * 8 + gi * 4 + d * 2
                u = Sreg(buf, aa, p) + 2 * d
                dw.append((u, u + 1, T0 + n, T0 + n + 1, Greg(buf, p) + 2 * aa + d))
        SD = lambda w: f'dst_sel:WORD_{w} dst_unused:UNUSED_PRESERVE src0_sel:WORD_{w}'
        for u0, u1, h, t, g in dw: out.append(f'v_cvt_pk_f16_f32 v{h}, v{u0}, v{u1}')
        for u0, u1, h, t, g in dw: out.append(f'v_pk_fma_f16 v{t}, v{h}, v{h}, s{sNegC} neg_lo:[1,0,0] neg_hi:[1,0,0]')
        for u0, u1, h, t, g in dw: out.append(f'v_pk_mul_f16 v{t}, v{t}, v{h}')
        for w in range(2):
            for u0, u1, h, t, g in dw: out.append(f'v_exp_f16_sdwa v{t}, v{t} {SD(w)}')
        for u0, u1, h, t, g in dw: out.append(f'v_pk_fma_f16 v{t}, v{t}, s{sAlpha}, s{sAlpha}')
        for w in range(2):
            for u0, u1, h, t, g in dw: out.append(f'v_rcp_f16_sdwa v{t}, v{t} {SD(w)}')
        for u0, u1, h, t, g in dw: out.append(f'v_pk_mul_f16 v{g}, v{h}, v{t}')
    return out

def gelu_list(buf, cfg):
    if cfg.f16: return gelu_list16(buf, cfg)
    out = []
    k = 0
    for aa in range(2):
        for p in range(3):
            es = [Sreg(buf, aa, p) + i for i in range(4)]
            ts = [T0 + (k % 2) * 4 + i for i in range(4)]
            k += 1
            for u, t in zip(es, ts): out.append(f'v_fma_f32 v{t}, -v{u}, v{u}, s{sNegC}')
            for u, t in zip(es, ts): out.append(f'v_mul_f32 v{t}, v{t}, v{u}')
            for u, t in zip(es, ts): out.append(f'v_exp_f32 v{t}, v{t}')
            for u, t in zip(es, ts): out.append(f'v_fma_f32 v{t}, v{t}, s{sAlpha}, s{sAlpha}')
            for u, t in zip(es, ts): out.append(f'v_rcp_f32 v{t}, v{t}')
            for u, t in zip(es, ts): out.append(f'v_mul_f32 v{t}, v{u}, v{t}')
            g = Greg(buf, p) + 2 * aa
            out.append(f'v_cvt_pk_bf16_f32 v{g}, v{ts[0]}, v{ts[1]}')
            out.append(f'v_cvt_pk_bf16_f32 v{g+1}, v{ts[2]}, v{ts[3]}')
    return out

def g1_groups(j):
    buf = (j + 1) & 1
    base = (j & 1) * 24576
    gs = []
    for s in range(6):
        for aa in range(2):
            gs.append((base + (2 * s + aa) * 1024,
                       [(lambda w, p=p, s=s, aa=aa: f'{MF} {v(Sreg(buf,aa,p),4)}, {a(w,4)}, {a(hreg(p,s),4)}, ' + ('0' if s == 0 else v(Sreg(buf,aa,p),4))) for p in porder(aa)]))
    return gs

MF2 = [MF]
SNAKE = [False]
def porder(i): return (2, 1, 0) if (SNAKE[0] and i % 2) else (0, 1, 2)
def g2_groups(j):
    buf = (j - 1) & 1
    base = (j & 1) * 24576 + 12288
    gs = []
    for t in range(12):
        gs.append((base + t * 1024,
                   [(lambda w, p=p, t=t: f'{MF2[0]} {v(acc(t,p),4)}, {a(w,4)}, {v(Greg(buf,p),4)}, {v(acc(t,p),4)}') for p in porder(t)]))
    return gs

def cost(t):
    op = t.split()[0]
    if op.startswith(('v_exp', 'v_rcp')): return 8
    return 4

def wbuf(g): return W0 + 4 * (g % NB)

def dma_block(k):
    return [f's_add_u32 m0, s{sDst}, {4096*k}', f's_add_u32 s{sT}, s{sSrc}, {4096*k}']
DTAG = ['dma']
def dma(i):
    return f'buffer_load_dwordx4 v{vDma}, s[{sW}:{sW+3}], s{sT} offen offset:{(i%4)*1024} lds ;@{DTAG[0]}'

def superstep(cfg, j0, mid=None, extra_valu=None, extra_at=None, bar_wait=None, dma_on=True, pre=None):
    J = j0 // 2
    sr = cfg.static_ring
    vcur = vLdsS[J % 3] if sr else vLds
    vnxt = vLdsS[(J + 1) % 3] if sr else vLds
    D = cfg.D
    groups = g1_groups(j0) + g2_groups(j0) + g1_groups(j0 + 1) + g2_groups(j0 + 1)
    nxt = g1_groups(j0)
    out = list(pre or [])
    fifo = list(range(0, D))
    waited = cfg.wevery - 1
    fifo = [g for g in fifo if g > waited]
    vl = [gelu_list(j0 & 1, cfg), gelu_list((j0 + 1) & 1, cfg)]
    extra_at = extra_at or {}
    reads_at = {g: [] for g in range(48)}
    for g in range(48):
        r = g + D
        if r <= 46 - 0 and g < 47 - D - 1: reads_at[g].append(r)
    reads_at[47 - D - 1] = [46, 47]
    reads_at[47 - D] = []
    for k in range(D): reads_at[48 - D + k].append(48 + k)
    fs = cfg.freeslot and sr
    dma_salu = lambda i: [f's_add_u32 m0, s{sWoff}, {((J + 2) % 3) * 49152 + 4096 * (i // 4)}', f's_add_u32 s{sT}, s{sWoff}, {((J + 2) % 12) * 49152 + 4096 * (i // 4)}']
    dma_at = {}
    if dma_on and not cfg.diag_nodma:
        for i in range(12): dma_at.setdefault(2 * i, []).append(i)
    for step in range(2):
        valu = list(vl[step])
        tot = sum(cost(t) for t in valu)
        done = 0; vi = 0
        ex = (extra_valu or {}).get(step)
        exi = 0
        for gl in range(24):
            g = step * 24 + gl
            ms = groups[g][1]
            for k, m in enumerate(ms):
                out.append(m(wbuf(g)))
                if k == 0:
                    if g == 48 - D:
                        out.append('s_waitcnt lgkmcnt(0)'); fifo = []; waited = 47
                        out += bar_wait or ['s_waitcnt vmcnt(0)']
                        out.append('s_barrier')
                        if not sr: out.append(f'v_add_u32 v{vLds}, s{sRd}, v{vDma}')
                    for r in reads_at[g]:
                        off = groups[r][0] if r < 48 else nxt[r - 48][0]
                        out.append(f'ds_read_b128 {a(wbuf(r),4)}, v{vcur if r < 48 else vnxt} offset:{off}')
                        fifo.append(r)
                    for i in dma_at.get(g, []):
                        if i % 4 == 0 and not (fs and g > 0):
                            if sr: out += dma_salu(i)
                            else: out += dma_block(i // 4) + ['s_nop 0']
                        out.append(dma(i))
                    if g == 38 and not sr:
                        out += [f's_add_u32 s{sRd}, s{sRd}, 49152', f's_cmp_eq_u32 s{sRd}, 147456', f's_cselect_b32 s{sRd}, 0, s{sRd}']
                    if not fs: out += extra_at.get(g, [])
                if fs:
                    nxt_dma = [i for i in dma_at.get(g + 1, []) if i % 4 == 0]
                    if k == 1:
                        if nxt_dma: out.append(dma_salu(nxt_dma[0])[0])
                        out += extra_at.get(g, [])
                    if k == 2:
                        we = cfg.wevery
                        if g % we == we - 1 and waited < g + we:
                            needg = g + we
                            pend = [r for r in fifo if r > needg]
                            if len(pend) < len(fifo): out.append(f's_waitcnt lgkmcnt({len(pend)})')
                            fifo = pend; waited = needg
                        if nxt_dma: out.append(dma_salu(nxt_dma[0])[1])
                mi = gl * 3 + k + 1
                target = tot * mi / 72.0
                while vi < len(valu) and done + cost(valu[vi]) / 2 <= target:
                    out.append(valu[vi]); done += cost(valu[vi]); vi += 1
                if mi == 72:
                    while vi < len(valu): out.append(valu[vi]); vi += 1
                if ex and ex[0] <= gl < ex[1]:
                    n = len(ex[2]); span = (ex[1] - ex[0]) * 3
                    upto = ((gl - ex[0]) * 3 + k + 1) * n // span
                    while exi < upto: out.append(ex[2][exi]); exi += 1
            we = cfg.wevery
            if g % we == we - 1:
                needg = g + we
                if waited < needg:
                    pend = [r for r in fifo if r > needg]
                    if len(pend) < len(fifo):
                        out.append(f's_waitcnt lgkmcnt({len(pend)})')
                    fifo = pend; waited = needg
        if step == 0 and mid: out += mid
    return out

def mid_block(cfg):
    out = []
    k = 0
    for p in range(3):
        for s in range(6):
            t = T0 + 8 + (k % 2) * 4; k += 1
            r0, r1 = acc(2 * s, p), acc(2 * s + 1, p)
            out.append(f'v_cvt_pk_bf16_f32 v{t}, v{r0}, v{r0+1}')
            out.append(f'v_cvt_pk_bf16_f32 v{t+1}, v{r0+2}, v{r0+3}')
            out.append(f'v_cvt_pk_bf16_f32 v{t+2}, v{r1}, v{r1+1}')
            out.append(f'v_cvt_pk_bf16_f32 v{t+3}, v{r1+2}, v{r1+3}')
            out.append(f'{MF} {v(acc(2*s,p),4)}, {a(I0,4)}, {a(pxreg(p,s),4)}, 0')
            out.append(f'{MF} {v(acc(2*s+1,p),4)}, {a(I0+4,4)}, {a(pxreg(p,s),4)}, 0')
            for i in range(4): out.append(f'v_accvgpr_write_b32 a{pxreg(p,s)+i}, v{t+i}')
    return out

def tail_epilogue(cfg, sbase):
    out = []
    nt = ' nt' if cfg.nt_o else ''
    k = 0
    for p in range(3):
        out.append(f's_add_u32 s{sT2}, s{sbase}, {cfg.xps*p}')
        for s in range(6):
            t = T0 + (k % 4) * 4; k += 1
            r0, r1 = acc(2 * s, p), acc(2 * s + 1, p)
            out.append(f'v_cvt_pk_bf16_f32 v{t}, v{r0}, v{r0+1}')
            out.append(f'v_cvt_pk_bf16_f32 v{t+1}, v{r0+2}, v{r0+3}')
            out.append(f'v_cvt_pk_bf16_f32 v{t+2}, v{r1}, v{r1+1}')
            out.append(f'v_cvt_pk_bf16_f32 v{t+3}, v{r1+2}, v{r1+3}')
            out.append(f'buffer_store_dwordx4 {v(t,4)}, v{vG}, s[{sO}:{sO+3}], s{sT2} offen offset:{64*s}{nt}')
    return out

def tail_epilogue_lds(cfg, sbase):
    nt = cfg.tail_flags if cfg.tail_flags is not None else (' nt' if cfg.nt_o else '')
    vW, vR, vG2, t = 4, 5, 6, 7
    out = [f'v_lshrrev_b32 v{t}, 4, v{vDma}',
           f's_mul_i32 s{sT}, s40, 12288', f's_add_u32 s{sT}, s{sT}, 98304',
           f'v_and_b32 v{vW}, 15, v{t}', f'v_bfe_u32 v{vR}, v{t}, 1, 2', f'v_lshrrev_b32 v{vG2}, 4, v{t}', f'v_xor_b32 v{vR}, v{vR}, v{vG2}',
           f'v_lshlrev_b32 v{vW}, 6, v{vW}', f'v_lshl_add_u32 v{vW}, v{vR}, 4, v{vW}', f'v_add_u32 v{vW}, s{sT}, v{vW}',
           f'v_bfe_u32 v{vR}, v{t}, 3, 2', f'v_and_b32 v{vG2}, 3, v{t}', f'v_xor_b32 v{vR}, v{vR}, v{vG2}', f'v_lshlrev_b32 v{vR}, 4, v{vR}',
           f'v_lshrrev_b32 v{vG2}, 2, v{t}', f'v_lshl_add_u32 v{vR}, v{vG2}, 6, v{vR}', f'v_add_u32 v{vR}, s{sT}, v{vR}',
           f'v_mul_u32_u24 v{vG2}, 384, v{vG2}', f'v_and_b32 v{t}, 3, v{t}', f'v_lshl_add_u32 v{vG2}, v{t}, 4, v{vG2}']
    items = [(p, s) for p in range(3) for s in range(6)]
    LAG = 2
    def wr(i):
        p, s = items[i]; tt = T0 + 4 * (i % 2)
        r0, r1 = acc(2 * s, p), acc(2 * s + 1, p)
        return [f'v_cvt_pk_bf16_f32 v{tt}, v{r0}, v{r0+1}', f'v_cvt_pk_bf16_f32 v{tt+1}, v{r0+2}, v{r0+3}',
                f'v_cvt_pk_bf16_f32 v{tt+2}, v{r1}, v{r1+1}', f'v_cvt_pk_bf16_f32 v{tt+3}, v{r1+2}, v{r1+3}',
                f'ds_write_b128 v{vW}, {v(tt,4)} offset:{1024*(i % 12)}']
    rreg = lambda i: G0 + 4 * (i % 6)
    pend = []
    for i in range(18 + 2 * LAG):
        if i < 18: out += wr(i); pend.append(('w', i))
        j = i - LAG
        if 0 <= j < 18:
            out.append(f'ds_read_b128 {v(rreg(j),4)}, v{vR} offset:{1024*(j % 12)}'); pend.append(('r', j))
        m = i - 2 * LAG
        if 0 <= m < 18:
            idx = pend.index(('r', m)); n = len(pend) - 1 - idx
            out.append(f's_waitcnt lgkmcnt({n})'); pend = pend[idx + 1:]
            p, s = items[m]
            if s == 0: out.append(f's_add_u32 s{sT2}, s{sbase}, {cfg.xps*p}')
            out.append(f'buffer_store_dwordx4 {v(rreg(m),4)}, v{vG2}, s[{sO}:{sO+3}], s{sT2} offen offset:{64*s}{nt}')
    return out

def st_op(cfg, i):
    p, s = divmod(i, 6)
    return f'buffer_store_dwordx4 {a(pxreg(p,s),4)}, v{vG}, s[{sO}:{sO+3}], s{sSt+p} offen offset:{64*s}' + (cfg.out_flags if cfg.out_flags is not None else (' nt' if cfg.nt_o else '')) + ' ;@st'
def h_op(cfg, i):
    p, s = divmod(i, 6)
    so, im = (sLd + p, 1024 * s) if s < 4 else (sLdH + p, 1024 * (s - 4))
    ld = f'buffer_load_dwordx4 {a(pfreg(p,s),4)}, v{vDma}, s[{sH}:{sH+3}], s{so} offen offset:{im}' + (' nt' if cfg.nt_h else '') + ' ;@h'
    if cfg.hskip: return f's_mov_b64 exec, s[{sHx}:{sHx+1}]\n' + ld + '\ns_mov_b64 exec, -1'
    return ld
def x_op(cfg, i):
    p, s = divmod(i, 6)
    return f'buffer_load_dwordx4 {a(pxreg(p,s),4)}, v{vG}, s[{sX}:{sX+3}], s{sLx+p} offen offset:{64*s}' + (' nt' if cfg.nt_x else '') + ' ;@x'

def resolve_vm(seq_prev, seq, optional=()):
    def isvm(t):
        o = t.split()[0] if t.split() else ''
        return o.startswith(('buffer_load', 'buffer_store'))
    def tag(t):
        if ';@' in t: return t.split(';@')[1].strip()
        return 'dma' if ' lds' in t else '?'
    fifo = []
    res = None
    for rnd, sq in enumerate((seq_prev, seq)):
        out = []
        for t in sq:
            if t.startswith('WAITVM:'):
                tg = t.split(':')[1]
                idx = [i for i, x in enumerate(fifo) if x == tg]
                if idx:
                    younger = fifo[idx[-1] + 1:]
                    n = sum(1 for x in younger if x not in optional)
                    out.append(f's_waitcnt vmcnt({n})')
                    keep = []; c = 0
                    for x in reversed(fifo):
                        if c >= n: break
                        keep.append(x)
                        if x not in optional: c += 1
                    fifo = keep[::-1]
                continue
            if isvm(t): fifo.append(tag(t))
            assert len(fifo) <= 63, 'too many outstanding'
            out.append(t)
        res = out
    return res

def tile_loads(srd, dst0, soff_base_instrs, nt):
    out = []
    for p in range(3):
        out += soff_base_instrs(p)
        for s in range(6):
            out.append(f'buffer_load_dwordx4 {a(dst0 + 24*p + 4*s, 4)}, v{vG}, s[{srd}:{srd+3}], s{sT2} offen offset:{64*s}' + (' nt' if nt else ''))
    return out

def soff(base, add):
    def f(p):
        return [f's_add_u32 s{sT2}, s{base}, {add + 6144*p}']
    return f

def stamp(cfg, k):
    if not cfg.prof: return []
    b = 52 + 4 * k
    return [f's_memtime s[{b}:{b+1}]', f's_memrealtime s[{b+2}:{b+3}]']

_cs=[0]
def cstamp(cfg, k, cond=None):
    if not cfg.prof2: return []
    _cs[0]+=1; lab=f'mlp_cs{_cs[0]}'
    out=[f's_cmp_eq_u32 s{sPass}, {cfg.profpass}', f's_cbranch_scc0 {lab}']
    if cond: out+=[f's_cmp_eq_u32 s{cond[0]}, {cond[1]}', f's_cbranch_scc0 {lab}']
    out+=[f's_memtime s[{52+2*k}:{53+2*k}]', f'{lab}:']
    return out

def dump_stamps2(cfg, n):
    if not cfg.prof2: return []
    out = ['s_waitcnt lgkmcnt(0)', 's_load_dwordx2 s[42:43], s[0:1], 40', 's_waitcnt lgkmcnt(0)',
           's_mov_b32 s44, s42', 's_mov_b32 s45, s43', 's_mov_b32 s46, 256', 's_mov_b32 s47, 0x20000',
           's_cmp_lg_u32 s2, 17', 's_cbranch_scc1 mlp_nodump', 's_cmp_lg_u32 s40, 0', 's_cbranch_scc1 mlp_nodump',
           'v_mov_b32 v4, 0']
    for k in range(n):
        out += [f'v_mov_b32 v5, s{52+2*k}', f'buffer_store_dword v5, v4, s[44:47], 0 offen offset:{4*k}']
    out += ['mlp_nodump:']
    return out

def dump_stamps(cfg, n):
    if not cfg.prof: return []
    out = ['s_waitcnt lgkmcnt(0)', 's_load_dwordx2 s[42:43], s[0:1], 40', 's_waitcnt lgkmcnt(0)',
           's_mov_b32 s44, s42', 's_mov_b32 s45, s43', 's_mov_b32 s46, 256', 's_mov_b32 s47, 0x20000',
           's_cmp_lg_u32 s2, PROFWG', 's_cbranch_scc1 mlp_nodump', 's_cmp_lg_u32 s40, 0', 's_cbranch_scc1 mlp_nodump',
           'v_mov_b32 v4, 0']
    for k in range(n):
        b = 52 + 4 * k
        out += [f'v_mov_b32 v5, s{b}', f'buffer_store_dword v5, v4, s[44:47], 0 offen offset:{8*k}',
                f'v_mov_b32 v6, s{b+2}', f'buffer_store_dword v6, v4, s[44:47], 0 offen offset:{8*k+4}']
    out += ['mlp_nodump:']
    return [o.replace('PROFWG', '17') for o in out]

def ident_setup():
    return [
        f'v_lshlrev_b32 v{vDma}, 4, v0',
        f'v_mov_b32 v{vLds}, v{vDma}',
        f'v_and_b32 v4, 15, v0',
        f'v_lshrrev_b32 v5, 4, v0',
        f'v_mul_u32_u24 v{vG}, 384, v4',
        f'v_lshl_add_u32 v{vG}, v5, 4, v{vG}',
        f'v_lshrrev_b32 v6, 2, v4',
        f'v_cmp_eq_u32 vcc, v6, v5',
        f'v_and_b32 v6, 1, v4',
        f'v_lshlrev_b32 v6, 4, v6',
        f'v_mov_b32 v7, 0x3f80',
        f'v_lshlrev_b32 v7, v6, v7',
        f'v_cndmask_b32 v7, 0, v7, vcc',
        f'v_and_b32 v6, 2, v4',
        f'v_cmp_eq_u32 vcc, 0, v6',
        's_nop 1',
        f'v_cndmask_b32 v8, 0, v7, vcc',
        f'v_sub_u32 v9, v7, v8',
        f'v_mov_b32 v10, 0',
        f'v_accvgpr_write_b32 a{I0}, v8', f'v_accvgpr_write_b32 a{I0+1}, v9',
        f'v_accvgpr_write_b32 a{I0+2}, v10', f'v_accvgpr_write_b32 a{I0+3}, v10',
        f'v_accvgpr_write_b32 a{I0+4}, v10', f'v_accvgpr_write_b32 a{I0+5}, v10',
        f'v_accvgpr_write_b32 a{I0+6}, v8', f'v_accvgpr_write_b32 a{I0+7}, v9']

def gelu_consts(cfg):
    return [f's_mov_b32 s{sNegC}, {hex(f2u(-CC) if not cfg.f16 else f2h(-CC) * 0x10001)}',
            f's_mov_b32 s{sAlpha}, {hex(f2u(ALPHA) if not cfg.f16 else f2h(ALPHA) * 0x10001)}']

def m_first_dma(cfg):
    a1 = [f's_mul_i32 s41, s40, 3072', f's_add_u32 m0, s41, {98304+24576}', f's_add_u32 s{sT}, s41, {23*24576}']
    a1 += [f'buffer_load_dwordx4 v{vDma}, s[{sW}:{sW+3}], s{sT} offen offset:{i*1024} lds' for i in range(3)]
    a2 = []
    for sl in range(2):
        a2 += [f's_add_u32 s{sDst}, s{sWoff}, {49152*sl}', f's_add_u32 s{sSrc}, s{sWoff}, {49152*sl}']
        for k_ in range(3): a2 += dma_block(k_) + ['s_nop 0'] + [dma(4 * k_ + i).split(' ;@')[0] for i in range(4)]
    nwarm = 0
    if cfg.warm:
        a2 += [f's_lshr_b32 s41, s2, 3', f's_and_b32 s41, s41, 31', f's_mul_i32 s41, s41, 18432', f's_mul_i32 s3, s40, 5120', f's_add_u32 s41, s41, s3']
        for i in range(5):
            if i == 4: a2 += [f's_add_u32 s41, s41, 4096']
            a2 += [f'buffer_load_dwordx4 {a(PF0 + 4*i, 4)}, v{vDma}, s[{sW}:{sW+3}], s41 offen offset:{1024*(i%4)}']
        nwarm = 5
    a2 += [f's_add_u32 s{sDst}, s{sWoff}, 98304', f's_add_u32 s{sDstSum}, s{sWoff}, 147456',
           f's_add_u32 s{sSrc}, s{sWoff}, 98304', f's_mov_b32 s{sRd}, 0', f's_mov_b32 s{sPass}, 0']
    return a1, a2, 12 + nwarm

def m_second_dma(cfg, warm_dst):
    a2 = [f's_add_u32 s{sDst}, s{sWoff}, 49152', f's_add_u32 s{sSrc}, s{sWoff}, 49152']
    for k_ in range(3): a2 += dma_block(k_) + ['s_nop 0'] + [dma(4 * k_ + i).split(' ;@')[0] for i in range(4)]
    if cfg.warm:
        a2 += [f's_lshr_b32 s41, s2, 3', f's_and_b32 s41, s41, 31', f's_mul_i32 s41, s41, 18432', f's_mul_i32 s3, s40, 5120', f's_add_u32 s41, s41, s3']
        for i in range(5):
            if i == 4: a2 += [f's_add_u32 s41, s41, 4096']
            a2 += [f'buffer_load_dwordx4 {v(warm_dst + 4*(i%4), 4)}, v{vDma}, s[{sW}:{sW+3}], s41 offen offset:{1024*(i%4)}']
    a2 += [f's_add_u32 s{sDst}, s{sWoff}, 98304', f's_add_u32 s{sDstSum}, s{sWoff}, 147456',
           f's_add_u32 s{sSrc}, s{sWoff}, 98304', f's_mov_b32 s{sRd}, 0', f's_mov_b32 s{sPass}, 0']
    return a2

def x_first_loads(cfg):
    out = []
    for p in range(3):
        out.append(f's_add_u32 s{sT2}, s{sBX}, {cfg.xps*p}')
        for s in range(6):
            out.append(f'buffer_load_dwordx4 {a(pxreg(p,s), 4)}, v{vG}, s[{sX}:{sX+3}], s{sT2} offen offset:{64*s}' + (' nt' if cfg.nt_x else ''))
    return out

def m_g1_first(cfg, early=False):
    D = cfg.D
    g1 = g1_groups(-1)
    if early: g1 = [(off - 12288, ms) for off, ms in g1]
    lst = [f'v_add_u32 v4, {0 if early else 98304}, v{vLds}']
    for g in range(6):
        lst.append(f'ds_read_b128 {a(wbuf(g),4)}, v4 offset:{g1[g][0]}')
    for g in range(12):
        if g % 2 == 0: lst.append(f's_waitcnt lgkmcnt({min(4, 10 - g) if g < 10 else 0})' if g <= 6 else f's_waitcnt lgkmcnt({max(0, 10 - g)})')
        for m in g1[g][1]: lst.append(m(wbuf(g)))
        if g + 6 < 12: lst.append(f'ds_read_b128 {a(wbuf(g+6),4)}, v4 offset:{g1[g+6][0]}')
    lst += ['s_waitcnt lgkmcnt(0)'] + ([] if early else ['s_barrier'])
    nxt = g1_groups(0)
    for g in range(D): lst.append(f'ds_read_b128 {a(wbuf(g),4)}, v{vLds} offset:{nxt[g][0]}')
    lst.append(f's_waitcnt lgkmcnt({D-cfg.wevery})')
    if cfg.static_ring: lst += [f'v_add_u32 v{vLdsS[1]}, 49152, v{vDma}', f'v_add_u32 v{vLdsS[2]}, 98304, v{vDma}']
    return lst

def m_main(cfg, L):
    P = []
    adv = [f's_add_u32 s{sDst}, s{sDst}, 49152', f's_cmp_ge_u32 s{sDst}, s{sDstSum}', f's_cselect_b32 s{sT}, 147456, 0', f's_sub_u32 s{sDst}, s{sDst}, s{sT}',
           f's_add_u32 s{sSrc}, s{sSrc}, 49152',
           f's_cmp_ge_u32 s{sSrc}, {W_BYTES}',
           f's_cselect_b32 s{sT}, {W_BYTES}, 0',
           f's_sub_u32 s{sSrc}, s{sSrc}, s{sT}']
    st = [st_op(cfg, i) for i in range(18)]
    hl = [h_op(cfg, i) for i in range(18)]
    xl = [x_op(cfg, i) for i in range(18)]
    pools = {'s': st, 'h': hl, 'x': xl}
    extras = [[pools[ch].pop(0).split('\n') for ch in cfg.plan[J]] for J in range(12)]
    assert not st and not hl and not xl
    assert all(len(extras[J]) == 5 for J in range(1, 11)) and not extras[11]
    setup = [f's_cmp_eq_u32 s{sPass}, 0'] + ([f's_cselect_b64 s[{sHx}:{sHx+1}], 0, -1'] if cfg.hskip else []) + [
             f's_cselect_b32 s{sSt}, {hex(OOB)}, s{sB1}',
             f's_add_u32 s{sSt+1}, s{sSt}, {cfg.xps}', f's_add_u32 s{sSt+2}, s{sSt}, {2*cfg.xps}',
             f's_add_u32 s{sLd}, s{sB}, 73728', f's_add_u32 s{sLx}, s{sBX}, {cfg.xts}',
             f's_cmp_eq_u32 s{sPass}, 2',
             f's_cselect_b32 s{sLd}, {hex(OOB)}, s{sLd}', f's_cselect_b32 s{sLx}, {hex(OOB)}, s{sLx}',
             f's_add_u32 s{sLd+1}, s{sLd}, 6144', f's_add_u32 s{sLd+2}, s{sLd}, 12288',
             f's_add_u32 s{sLx+1}, s{sLx}, {cfg.xps}', f's_add_u32 s{sLx+2}, s{sLx}, {2*cfg.xps}',
             f's_add_u32 s{sLdH}, s{sLd}, 4096', f's_add_u32 s{sLdH+1}, s{sLd+1}, 4096', f's_add_u32 s{sLdH+2}, s{sLd+2}, 4096']
    moves = [f'v_accvgpr_mov_b32 a{H0+i}, a{PF0+i}' for i in range(72)]
    parts = []
    for J in range(12):
        DTAG[0] = f'd{J}'
        ea = {47: list(adv) if not cfg.static_ring else []}
        kw = dict(extra_at=ea, bar_wait=[f'WAITVM:d{(J-1)%12}'])
        pre = cstamp(cfg, J)
        if J == 0:
            for k_, op in enumerate(extras[0]): ea.setdefault(cfg.xpos[k_], []).extend(op)
            kw['mid'] = ['WAITVM:x', f's_waitcnt vmcnt({cfg.mid_vm})' if not cfg.diag_nodma else 's_waitcnt vmcnt(0)'] + mid_block(cfg)
            pre = pre + setup
        elif J <= 10:
            if cfg.sub: pre = pre + sum(extras[J], [])
            else:
                for k_, op in enumerate(extras[J]): ea.setdefault(cfg.xpos[k_], []).extend(op)
        if J == 11:
            kw['extra_valu'] = {0: (13, 24, moves)}
            ea.setdefault(12, []).append('WAITVM:h')
        parts.append((pre, superstep(cfg, 2 * J, **kw)))
    DTAG[0] = 'dma'
    endp = cstamp(cfg, 12) + [f's_mov_b32 s{sB1}, s{sBX}', f's_add_u32 s{sB}, s{sB}, 73728', f's_add_u32 s{sBX}, s{sBX}, {cfg.xts}', f's_add_u32 s{sPass}, s{sPass}, 1']
    seq = []
    for J, (pre, body) in enumerate(parts): seq += pre + [f';BEGIN{J}'] + body + [f';END{J}']
    seq += endp
    res = resolve_vm(seq, seq, ('h',) if cfg.hskip else ())
    def part(J):
        i0 = res.index(f';BEGIN{J}'); i1 = res.index(f';END{J}')
        return res[i0 + 1:i1]
    strip = lambda l: [x.split(' ;@')[0] for x in l]
    bodies = [strip(part(J)) for J in range(12)]
    def barwait(b):
        i = b.index('s_barrier'); return i - 1, int(b[i - 1].split('(')[1][:-1])
    if cfg.diag_nodma: assert not cfg.sub
    if cfg.sub:
        ns = [barwait(bodies[J])[1] for J in range(1, 11)]
        nmin = min(ns)
        gen_body = list(bodies[2]); gen_body[barwait(gen_body)[0]] = f's_waitcnt vmcnt({nmin})'
        for J in range(1, 11):
            b = list(bodies[J]); b[barwait(b)[0]] = f's_waitcnt vmcnt({nmin})'
            assert b == gen_body, J
    P += ['.p2align 6', f'{L}_pass:']
    trace = []
    for J in range(12):
        pre = strip(parts[J][0])
        if 1 <= J <= 10 and cfg.sub:
            P += pre + [f's_call_b64 s[{sRet}:{sRet+1}], {L}_body']
            trace += [x for x in pre if not x.endswith(':')] + gen_body
        else:
            b = bodies[J]
            P += pre + b
            trace += [x for x in pre if not x.endswith(':')] + b
    P += endp; trace += endp
    P += [f's_cmp_lt_u32 s{sPass}, 3', f's_cbranch_scc1 {L}_pass']
    tail = ['s_waitcnt lgkmcnt(0)']
    g2 = g2_groups(24)
    for g in range(6): tail.append(f'ds_read_b128 {a(wbuf(g),4)}, v{vLds} offset:{g2[g][0]}')
    for g in range(12):
        if g % 2 == 0: tail.append(f's_waitcnt lgkmcnt({4 if g <= 6 else max(0, 10 - g)})')
        for m in g2[g][1]: tail.append(m(wbuf(g)))
        if g + 6 < 12: tail.append(f'ds_read_b128 {a(wbuf(g+6),4)}, v{vLds} offset:{g2[g+6][0]}')
    tail += ['s_nop 7']
    tail += tail_epilogue_lds(cfg, sB1) if cfg.tail_lds else tail_epilogue(cfg, sB1)
    P += stamp(cfg, 4)
    P += tail
    P += stamp(cfg, 5)
    sub = (['.p2align 6', f'{L}_body:'] + gen_body + [f's_setpc_b64 s[{sRet}:{sRet+1}]']) if cfg.sub else []
    return P, sub, trace + trace + tail

def gen(cfg, name='mlp_kernel'):
    MF2[0] = 'v_mfma_f32_16x16x32_f16' if cfg.f16 else MF
    P = []; TR = []
    def emit(lst, trace=True):
        P.extend(lst)
        if trace: TR.extend(lst)
    emit(['s_cmp_ge_u32 s2, 256', f's_cbranch_scc1 {name}_done',
          's_load_dwordx2 s[4:5], s[0:1], 0',
          's_load_dwordx2 s[6:7], s[0:1], 32',
          's_load_dwordx2 s[38:39], s[0:1], 48',
          'v_lshrrev_b32 v4, 6, v0', 'v_and_b32 v0, 63, v0', 's_nop 0', 'v_readfirstlane_b32 s40, v4'])
    emit(gelu_consts(cfg) + ident_setup())
    emit(['s_waitcnt lgkmcnt(0)',
        f's_add_u32 s{sW}, s38, {WS_W}', f's_addc_u32 s{sW+1}, s39, 0', f's_mov_b32 s{sW+2}, {W_BYTES}', f's_mov_b32 s{sW+3}, 0x20000',
        f's_add_u32 s{sH}, s38, {WS_H}', f's_addc_u32 s{sH+1}, s39, 0', f's_mov_b32 s{sH+2}, {IMG_BYTES}', f's_mov_b32 s{sH+3}, 0x20000',
        f's_mov_b32 s{sX}, s4', f's_mov_b32 s{sX+1}, s5', f's_mov_b32 s{sX+2}, {IMG_BYTES}', f's_mov_b32 s{sX+3}, 0x20000',
        f's_mov_b32 s{sO}, s6', f's_mov_b32 s{sO+1}, s7', f's_mov_b32 s{sO+2}, {IMG_BYTES}', f's_mov_b32 s{sO+3}, 0x20000',
        f's_mul_i32 s{sB}, s2, {36*6144}', f's_mul_i32 s41, s40, {3*6144}', f's_add_u32 s{sB}, s{sB}, s41', f's_mov_b32 s{sBX}, s{sB}',
        f's_mul_i32 s{sWoff}, s40, 12288'])
    if cfg.prof or cfg.prof2: P.extend([f's_mov_b32 s{i}, 0' for i in range(52, 92)])
    P.extend(stamp(cfg, 0))
    a1, a2, nafter = m_first_dma(cfg)
    emit(a1)
    for p in range(3):
        emit([f's_add_u32 s{sT2}, s{sB}, {6144*p}'])
        for s_ in range(6):
            if s_ == 4: emit([f's_add_u32 s{sT2}, s{sT2}, 4096'])
            emit([f'buffer_load_dwordx4 {a(H0 + 24*p + 4*s_, 4)}, v{vDma}, s[{sH}:{sH+3}], s{sT2} offen offset:{1024*(s_ % 4)}' + (' nt' if cfg.nt_h else '')])
    emit(a2)
    emit([f's_waitcnt vmcnt({nafter})', 's_barrier'])
    emit(x_first_loads(cfg))
    emit(m_g1_first(cfg))
    P.extend(stamp(cfg, 1))
    mp, sub, tr = m_main(cfg, name)
    P += mp; TR += tr
    P += dump_stamps(cfg, 6)
    P += dump_stamps2(cfg, 13)
    if cfg.allwg:
        P = P[:2] + ['s_memrealtime s[98:99]'] + P[2:]
        P += ['s_waitcnt vmcnt(0)', 's_memrealtime s[82:83]', 's_cmp_eq_u32 s40, 0', f's_cbranch_scc0 {name}_done',
              's_waitcnt lgkmcnt(0)', 's_lshl_b32 s3, s2, 3', f's_add_u32 s3, s3, {(200 << 20) + 4096}',
              'v_mov_b32 v4, s98', 'v_mov_b32 v5, s3', 's_nop 1', 'global_store_dword v5, v4, s[38:39]',
              'v_mov_b32 v4, s82', 's_nop 1', 'global_store_dword v5, v4, s[38:39] offset:4']
    P += [f'{name}_done:', 's_endpgm']
    P += sub
    return P, TR

def kd(name, lds=0):
    return f'''.amdhsa_kernel {name}
  .amdhsa_next_free_vgpr 512
  .amdhsa_next_free_sgpr 102
  .amdhsa_accum_offset 256
  .amdhsa_group_segment_fixed_size 0
  .amdhsa_kernarg_size 56
  .amdhsa_user_sgpr_count 2
  .amdhsa_user_sgpr_kernarg_segment_ptr 1
  .amdhsa_system_sgpr_workgroup_id_x 1
  .amdhsa_float_denorm_mode_32 3
.end_amdhsa_kernel
'''
if __name__ == '__main__':
    import asmlib
    P, TR = gen(Cfg)
    asmlib.check(TR, 'k2')
    print(len(P), 'lines', 'alpha', ALPHA, 'c', CC)
```

```python
import k2
from k2 import f2u, ALPHA, WS_W, WS_H, W_BYTES, IMG_BYTES

REC = 544
NBLK = 99
SLAB = NBLK * REC
YB = 2 * SLAB
LDS_BYTES = YB + 2 * 24576
TAPS, ROWS = 400, 3616
DWB = YB

vO16 = 0
vP = 1
vL16 = 2
vZ = 3
vRel = 4
vLw, vLw3, vRd, vY0, vR0, vR1, vA, vB = 8, 9, 10, 11, 12, 13, 14, 15
STS = (16, 80)
BLK = 80
ACC = 120
TMP = 136
Y0 = 144
VO = 216
HOLD = 0
CW = 144
sM, sH, sX, sD = 8, 12, 16, 20
sBase, sIMG, sT, sT2, sSelL, sDS, sDY, sOutN, sTI = 28, 30, 31, 32, 33, 34, 35, 36, 37
sWave, sSelH, sPkF, sPkf = 40, 41, 42, 43
sMaskL, sMaskR = 44, 60
sSt3 = 76
sOnes, sAl, sEps, sInv, sOut, sDR = 92, 93, 94, 95, 96, 97
sDbg = 4
sMk3 = 100
NPACK = 576
NPKWG = 72
STAMP0 = 82

def v(b, n=1): return f'v{b}' if n == 1 else f'v[{b}:{b+n-1}]'
def a(b, n=1): return f'a{b}' if n == 1 else f'a[{b}:{b+n-1}]'
def Wt(k, R, C): return CW + 32 * k + 2 * (4 * R + C)
def blk(row, bc): return BLK + 10 * (row % 4) + 2 * bc
def Y(p, s): return Y0 + 24 * p + 4 * s
M4 = 'v_mfma_f32_4x4x4_16b_bf16'
FULL = (1 << 64) - 1

class Cfg(k2.Cfg):
    f16 = True
    nt_h = True; nt_x = True; nt_o = True
    cx_nt = False
    st_flags = ' nt'
    xps = 147456
    xts = 49152
    light = False
    light2 = False
    light3 = False
    exact_vm = True
    touch = False
    l2tile = 0
    inter = False
    prog = False
    defer_y = False
    even = None
    allwg = False
    force_fb = False
    ln_pk = True
    light4 = False
    l4sel = '0246'
    spread = 0
    diag_nox = False
    htouch = False
    diag_nost = False
    l3sel = [0, 1, 2, 3, 4]
    early = True
    hskip = True
    spin = 1 << 14
    nosync = False

def setexec(out, cur, val):
    if cur[0] != val:
        out.append(f's_mov_b32 exec_lo, {hex(val & 0xffffffff)}')
        out.append(f's_mov_b32 exec_hi, {hex(val >> 32)}')
        cur[0] = val

def weights_gather(vb):
    out = []
    def reads(k):
        o = []
        for R in range(4):
            for dy in range(2):
                for c in range(4):
                    i = (R * 2 + dy) * 4 + c
                    for dx in range(2):
                        rho, gam = 2 * R + dy, 2 * c + dx
                        o.append(f'ds_read_u16 v{Y0+2*i+dx}, v{vb} offset:{(rho+1)*ROWS + (gam+1)*TAPS + 128*k}')
        return o
    for k in range(3):
        rd = reads(k)
        out += rd[:32] + rd[32:] + ['s_waitcnt lgkmcnt(15)']
        for half in range(2):
            if half == 1: out.append('s_waitcnt lgkmcnt(0)')
            for i in range(16 * half, 16 * half + 16):
                if half == 0 and i == 8: out.append('s_waitcnt lgkmcnt(15)')
                R, dy, c = i // 8, (i // 4) % 2, i % 4
                out.append(f'v_lshl_or_b32 v{Y0+2*i}, v{Y0+2*i+1}, 16, v{Y0+2*i}')
                out.append(f'v_accvgpr_write_b32 a{Wt(k,R,c)+dy}, v{Y0+2*i}')
    return out

def vo(r, dy, dx): return VO + 4 * r + 2 * dy + dx
def tile_offsets():
    out = []
    for dx in range(2):
        for r in range(4):
            l, rr = sMaskL + 2 * (2 * r + dx), sMaskR + 2 * (2 * r + dx)
            out += [f's_mov_b64 s[24:25], -1' if r < 3 else f's_or_b64 s[24:25], s[{l}:{l+1}], s[{rr}:{rr+1}]',
                    f's_cmp_eq_u32 s27, 0', f's_cselect_b64 s[24:25], s[{l}:{l+1}], s[24:25]',
                    f's_cmp_eq_u32 s27, 23', f's_cselect_b64 s[24:25], s[{rr}:{rr+1}], s[24:25]']
            for dy in range(2):
                t = vo(r, dy, dx)
                out += [f's_add_u32 s26, s{sBase}, {147456*dy + 384*dx}', f'v_add_u32 v{t}, s26, v{vRel+r}', f'v_cmp_gt_u32 vcc, s{sIMG}, v{t}',
                        f's_and_b64 vcc, vcc, s[24:25]', f'v_cndmask_b32 v{t}, 2.0, v{t}, vcc']
    return out
def load_items(cfg, stage, sset):
    nt = ' nt' if cfg.cx_nt else ''
    its = []
    for r in range(4):
        for dy in range(2):
            for dx in range(2):
                if r < 3: its.append([f'buffer_load_dwordx4 {v(STS[sset] + 16 * r + 4 * (2 * dy + dx), 4)}, v{vo(r,dy,dx)}, s[{sX}:{sX+3}], 0 offen offset:{128*stage}{nt} ;@l{r}'])
                else: its.append([f'buffer_load_dword v{STS[sset] + 48 + 2 * dy + dx}, v{vo(r,dy,dx)}, s[{sX}:{sX+3}], 0 offen offset:{128*stage}{nt} ;@l{r}'])
    return its
def store_items(cfg, k):
    its = []
    for s, sb in ((k, sSt3), (3 + k, sSt3 + 3)):
        for p in range(3):
            its.append([f'buffer_store_dwordx4 {a(HOLD + 24*p + 4*s, 4)}, v{vL16}, s[{sH}:{sH+3}], s{sb+p} offen offset:{1024*(s % 3)}{cfg.st_flags} ;@s'])
    return [its[0], its[3], its[1], its[4], its[2], its[5]]

def transpose_unit(r, d, sset):
    t = TMP
    if r == 3:
        if d > 0: return []
        L = lambda dy, dx: STS[sset] + 48 + 2 * dy + dx
        return [f'v_perm_b32 v{t}, v{L(0,1)}, v{L(0,0)}, s{sSelL}', f'v_perm_b32 v{t+1}, v{L(1,1)}, v{L(1,0)}, s{sSelL}',
                f'v_perm_b32 v{t+2}, v{L(0,1)}, v{L(0,0)}, s{sSelH}', f'v_perm_b32 v{t+3}, v{L(1,1)}, v{L(1,0)}, s{sSelH}',
                f's_mov_b64 exec, s[{sMk3}:{sMk3+1}]', f'ds_write_b128 v{vLw3}, {v(t,4)}', 's_mov_b64 exec, -1']
    L = lambda dy, dx: STS[sset] + 16 * r + 4 * (2 * dy + dx) + d
    return [f'v_xad_u32 v{vA}, v{vO16}, {16*d}, v{vLw}',
            f'v_perm_b32 v{t}, v{L(0,1)}, v{L(0,0)}, s{sSelL}',
            f'v_perm_b32 v{t+1}, v{L(1,1)}, v{L(1,0)}, s{sSelL}',
            f'v_perm_b32 v{t+2}, v{L(0,1)}, v{L(0,0)}, s{sSelH}',
            f'v_perm_b32 v{t+3}, v{L(1,1)}, v{L(1,0)}, s{sSelH}',
            f'ds_write_b128 v{vA}, {v(t,4)} offset:{32 * REC * r + 128*d}']

def yout(py):
    out = []
    a0 = ACC + 8 * (py & 1); a1 = a0 + 4
    t = TMP + 4
    for oy in range(2):
        out.append(f'v_cvt_pk_bf16_f32 v{t+2*oy}, v{a0+2*oy}, v{a0+2*oy+1}')
        out.append(f'v_cvt_pk_bf16_f32 v{t+2*oy+1}, v{a1+2*oy}, v{a1+2*oy+1}')
        out.append(f'ds_write_b64 v{vY0}, {v(t+2*oy,2)} offset:{(2*py+oy)*2048}')
    return out

def row_reads(br):
    return [f'ds_read_b64 {v(blk(br,bc),2)}, v{vRd} offset:{(br*11+bc)*REC}' for bc in range(5)]

SPREAD = [3]
INTER = [False]
PROG = [False]
DEFPOS = [66]
sl2x = lambda n: (n // 16, n % 16)
EVEN = [None]
EVENS = {
 'a': dict(u0=[4, 12, 18], l0=[22, 24, 26, 28], u1=[30, 36, 41, 46], l1=[50, 52, 54, 56], u2=[58, 62, 67, 72], l2=[75, 77, 79, 81], u3=83, l3=[86, 87, 88, 89], s=[14, 33, 44, 65, 70, 91]),
 'b': dict(u0=[1, 5, 13], l0=[16, 17, 22, 24], u1=[28, 30, 32, 38], l1=[44, 46, 48, 49], u2=[54, 60, 62, 64], l2=[70, 74, 76, 78], u3=80, l3=[82, 83, 84, 85], s=[14, 40, 66, 87, 89, 91]),
}
def yin(k):
    o = []
    for p in range(3):
        for sp in range(2):
            for h in range(2):
                o.append(f'ds_read_b64_tr_b16 {v(Y(p,2*k+sp)+2*h,2)}, v{vR0 if h == 0 else vR1} offset:{p*2048 + sp*1024}')
    return o, [f'v_add_u32 v{vR0}, s{sDR}, v{vR0}', f'v_add_u32 v{vR1}, s{sDR}, v{vR1}', f's_sub_u32 s{sDR}, 0, s{sDR}']

def conv_stage(k, sset, items, stores, transp=True, xtra=(), defer=None):
    out = []
    fifo = []
    issued = {}
    def emit_lds(t, tag):
        out.append(t); fifo.append(tag); issued[tag] = issued.get(tag, 0) + 1
    def need(tag):
        assert issued.get(tag, 0) == 5, ('row not fully requested before use', tag)
        idx = [i for i, x in enumerate(fifo) if x == tag]
        if idx:
            n = len(fifo) - 1 - idx[-1]
            out.append(f's_waitcnt lgkmcnt({min(n,15)})')
            del fifo[:idx[-1] + 1]
    tagof = lambda t: ('w' if t.startswith('ds_') else None)
    NUP = 2 if PROG[0] else 4
    for br in range(NUP):
        for t in row_reads(br): emit_lds(t, ('row', br))
    if transp:
        out.append('WAITL:0')
        for t in transpose_unit(0, 0, sset):
            if tagof(t): emit_lds(t, 'w')
            else: out.append(t)
    fill = {(py, i): [] for py in range(6) for i in range(16)}
    for br in range(NUP, 4):
        for i, t in enumerate(row_reads(br)): fill[(0, 3 * (br - NUP) + i // 2)].append((t, ('row', br)))
    if defer is not None:
        rd, tg = yin(defer)
        for i, t in enumerate(rd): fill[sl2x(DEFPOS[0] + 2 * i)].append((t, 'w'))
        for t in tg: fill[sl2x(DEFPOS[0] + 2 * len(rd))].append((t, None))
    for py in range(6):
        if py > 0:
            for t, p_ in zip(yout(py - 1), [2, 2, 3, 4, 4, 5]): fill[(py, p_)].append((t, tagof(t)))
        if py + 4 <= 8:
            for i, t in enumerate(row_reads(py + 4)): fill[(py, 7 + i)].append((t, ('row', py + 4)))
    sl2 = lambda n: (n // 16, n % 16)
    if EVEN[0]:
        upos = {0: [None] + [sl2(n) for n in EVEN[0]['u0']], 1: [sl2(n) for n in EVEN[0]['u1']], 2: [sl2(n) for n in EVEN[0]['u2']], 3: [sl2(EVEN[0]['u3'])] * 4}
        lpos = {r: [sl2(n) for n in EVEN[0][f'l{r}']] for r in range(4)}
        spos = [sl2(n) for n in EVEN[0]['s']]
    else:
        upos = {0: [None, (0, 1), (0, 3), (0, 5)], 1: [(1, 6), (1, 8), (1, 12), (1, 14)], 2: [(2, 6), (2, 8), (2, 12), (2, 14)], 3: [(3, 6), (3, 8), (3, 12), (3, 14)]}
        lpos = {0: [(0, 12), (0, 14), (1, 0), (1, 1)], 1: [(1, 15), (2, 0), (2, 1), (2, 5)], 2: [(2, 15), (3, 0), (3, 1), (3, 5)], 3: [(3, 15), (4, 0), (4, 1), (4, 6)]}
        spos = [(0, 7), (0, 10), (4, 8), (4, 12), (5, 0), (5, 6)]
    for r in range(4):
        if transp:
            if r > 0: fill[upos[r][0]].append((f'WAITL:{r}', None))
            for d in range(4):
                if upos[r][d] is None: continue
                for t in transpose_unit(r, d, sset): fill[upos[r][d]].append((t, tagof(t)))
        for i in range(4):
            if 4 * r + i < len(items):
                for t in items[4 * r + i]: fill[lpos[r][i]].append((t, None))
    for it, pos in zip(stores, spos):
        for t in it: fill[pos].append((t, None))
    for i, it in enumerate(xtra):
        sl = 2 + 6 * i
        for t in it: fill[(sl // 16, sl % 16)].append((t, None))
    seq = []
    for py in range(6):
        for idx in range(16):
            grp = []
            for t, tag in fill[(py, idx)]:
                grp.append((t, tag))
                glue = t.startswith(('s_mov_b64 exec, s[', 's_add_u32 m0', 's_nop', 'WAITL', 'v_cmp', 's_and_b64')) or (t.startswith('s_add_u32 s') )
                if t.startswith('ds_write_b128') and len(grp) >= 2 and grp[-2][0].startswith('s_mov_b64 exec, s['): glue = True
                if not glue:
                    seq.append((16 * py + idx, grp)); grp = []
            if grp: seq.append((16 * py + idx, grp))
    qi = 0
    ismem = lambda t: t.startswith(('ds_', 'buffer_'))
    isvalu = lambda t: t.startswith('v_') and not t.startswith('v_mfma')
    real = lambda: [t for t in out if not t.startswith(';')]
    lastpos = {}
    nis = [0]
    def put(t, tag=None):
        if tag: emit_lds(t, tag)
        else: out.append(t)
        if not t.startswith(';'): nis[0] += 1
    def emit_group():
        nonlocal qi
        for t, tag in seq[qi][1]: put(t, tag)
        qi += 1
    def first_real(grp):
        for t, _ in grp:
            if not t.startswith(('s_', 'WAITL')): return t
        return grp[0][0]
    for py in range(6):
        for idx in range(16):
            R, C = divmod(idx, 4)
            sl = 16 * py + idx
            if idx == 0 and py in (0, 2, 4): out.append(f';MARK{py}')
            if C == 0:
                n0 = len(out); need(('row', py + R)); nis[0] += len(out) - n0
            for px in range(2):
                aa = ACC + 8 * (py & 1) + 4 * px
                c = '0' if idx == 0 else v(aa, 4)
                if idx == 0 and py >= 2:
                    pendcvt = [t for _, g in seq[qi:] for t, _ in g if t.startswith('v_cvt_pk_bf16') and f'v{aa},' in t + ',' and False]
                    assert not any(t.startswith('v_cvt_pk_bf16') and any(f' v{aa+j},' in t or t.endswith(f' v{aa+j}') for j in range(4)) and e <= 16 * (py - 1) + 15 for e, g in seq[qi:] for t, _ in g), 'yout too late'
                if idx > 0 and nis[0] - lastpos[aa] - 1 < 2: put('s_nop 0')
                if idx > 0 and nis[0] - lastpos[aa] - 1 < 2: put('s_nop 0')
                lastpos[aa] = nis[0]
                put(f'{M4} {v(aa,4)}, {a(Wt(k,R,C),2)}, {v(blk(py+R, px+C),2)}, {c}')
                if not INTER[0] and px == 0: continue
                prev_valu = False
                if qi < len(seq) and seq[qi][0] <= sl:
                    g0 = seq[qi][1]; emit_group(); prev_valu = isvalu(g0[-1][0])
                if px == 1:
                    while qi < len(seq) and seq[qi][0] <= sl and (seq[qi][0] <= sl - SPREAD[0] or sl == 95):
                        late = seq[qi][0] <= sl - SPREAD[0] - 3 or sl == 95
                        if INTER[0] and prev_valu and ismem(first_real(seq[qi][1])) and not late: break
                        g0 = seq[qi][1]; emit_group(); prev_valu = isvalu(g0[-1][0])
    assert qi == len(seq)
    out += [';MARK6', 's_nop 4'] + yout(5)
    return out

def resolve_l(stages):
    seq = []
    for si in range(3):
        for st in stages: seq.append(st)
    fifo = []
    need = {r: [] for r in range(4)}
    for si, st in enumerate(seq):
        for t in st:
            if t.startswith('WAITL:'):
                r = int(t[6:])
                if si >= 1:
                    idx = max(i for i, x in enumerate(fifo) if x == (si - 1, f'l{r}'))
                    need[r].append(len(fifo) - 1 - idx)
            elif ';@' in t: fifo.append((si, t.split(';@')[1].strip()))
    return {r: min(x) for r, x in need.items()}

def ln_block(cfg):
    NP = 3
    out = []
    t = ACC
    s1 = [t + p for p in range(NP)]; s2 = [t + 3 + p for p in range(NP)]
    for i in range(24):
        for p in range(NP):
            r = Y0 + 24 * p + i
            c1 = '0' if i == 0 else f'v{s1[p]}'; c2 = '0' if i == 0 else f'v{s2[p]}'
            out.append(f'v_dot2_f32_bf16 v{s1[p]}, v{r}, s{sOnes}, {c1}')
            out.append(f'v_dot2_f32_bf16 v{s2[p]}, v{r}, v{r}, {c2}')
    out.append('s_nop 2')
    allr = s1 + s2
    tm = [t + 12 + i for i in range(len(allr))]
    for sw in ('v_permlane16_swap_b32', 'v_permlane32_swap_b32'):
        for r, q in zip(allr, tm): out.append(f'v_mov_b32 v{q}, v{r}')
        out.append('s_nop 1')
        for r, q in zip(allr, tm): out.append(f'{sw} v{q}, v{r}')
        out.append('s_nop 1')
        for r, q in zip(allr, tm): out.append(f'v_add_f32 v{r}, v{r}, v{q}')
    rs = [t + 6 + 2 * p for p in range(NP)]; nb = [t + 18 + 2 * p for p in range(NP)]
    for p in range(NP): out.append(f'v_mul_f32 v{s1[p]}, s{sInv}, v{s1[p]}')
    for p in range(NP): out.append(f'v_mul_f32 v{s2[p]}, s{sInv}, v{s2[p]}')
    for p in range(NP): out.append(f'v_fma_f32 v{s2[p]}, -v{s1[p]}, v{s1[p]}, v{s2[p]}')
    for p in range(NP): out.append(f'v_max_f32 v{s2[p]}, 0, v{s2[p]}')
    for p in range(NP): out.append(f'v_add_f32 v{s2[p]}, s{sEps}, v{s2[p]}')
    for p in range(NP): out.append(f'v_rsq_f32 v{rs[p]}, v{s2[p]}')
    out.append('s_nop 0')
    for p in range(NP): out.append(f'v_mul_f32 v{rs[p]}, s{sAl}, v{rs[p]}')
    for p in range(NP): out.append(f'v_mul_f32 v{nb[p]}, -v{s1[p]}, v{rs[p]}')
    k = 0
    for p in range(NP):
        for s in range(6):
            for d in range(4):
                r = Y(p, s) + d
                x0 = t + 12 + 2 * (k % 3); x1 = x0 + 1; k += 1
                out.append(f'v_lshlrev_b32 v{x0}, 16, v{r}')
                out.append(f'v_and_b32 v{x1}, 0xffff0000, v{r}')
                if cfg.ln_pk:
                    out.append(f'v_pk_fma_f32 v[{x0}:{x1}], v[{x0}:{x1}], v[{rs[p]}:{rs[p]+1}], v[{nb[p]}:{nb[p]+1}] op_sel_hi:[1,0,0]')
                else:
                    out.append(f'v_fma_f32 v{x0}, v{x0}, v{rs[p]}, v{nb[p]}')
                    out.append(f'v_fma_f32 v{x1}, v{x1}, v{rs[p]}, v{nb[p]}')
                out.append(f'v_cvt_pk_bf16_f32 v{r}, v{x0}, v{x1}')
    return out

def pack_loads(lab, dst, t, lane):
    out = [f's_mul_hi_u32 s46, s{sPkF}, {(1 << 32) // 24 + 1}',
           f's_mul_i32 s47, s46, 24', f's_sub_u32 s{sPkf}, s{sPkF}, s47',
           f'v_and_b32 v{t}, 15, v{lane}', f'v_lshrrev_b32 v{t+1}, 4, v{lane}',
           f's_cmp_lt_u32 s{sPkf}, 12', f's_cbranch_scc0 {lab}_pk2']
    out += [f's_add_u32 s48, s46, 1', f's_cmp_eq_u32 s48, 24', f's_cselect_b32 s48, 0, s48',
            f's_lshr_b32 s49, s{sPkf}, 1', f's_and_b32 s50, s{sPkf}, 1',
            f's_lshl_b32 s48, s48, 6', f's_lshl_b32 s50, s50, 5', f's_add_u32 s48, s48, s50',
            f's_mul_i32 s49, s49, {32*1536}', f's_add_u32 s48, s48, s49',
            f'v_mul_u32_u24 v{t+2}, {8*1536}, v{t+1}', f'v_lshl_add_u32 v{t+2}, v{t}, 1, v{t+2}',
            f's_mov_b32 s{sM}, s52', f's_mov_b32 s{sM+1}, s53', f's_mov_b32 s{sM+2}, {192*768*2}', f's_mov_b32 s{sM+3}, 0x20000']
    for e in range(8):
        out.append(f's_add_u32 s49, s48, {e*1536}')
        out.append(f'buffer_load_ushort v{dst+e}, v{t+2}, s[{sM}:{sM+3}], s49 offen')
    out += [f's_branch {lab}_pk3', f'{lab}_pk2:']
    out += [f's_add_u32 s48, s46, 23', f's_cmp_ge_u32 s48, 24', f's_cselect_b32 s49, 24, 0', f's_sub_u32 s48, s48, s49',
            f's_sub_u32 s49, s{sPkf}, 12', f's_lshr_b32 s50, s49, 1', f's_and_b32 s49, s49, 1',
            f's_mul_i32 s48, s48, {32*384}', f's_lshl_b32 s50, s50, 6', f's_lshl_b32 s49, s49, 3',
            f's_add_u32 s48, s48, s50', f's_add_u32 s48, s48, s49',
            f'v_lshrrev_b32 v{t+3}, 2, v{t}', f'v_lshlrev_b32 v{t+3}, 4, v{t+3}',
            f'v_and_b32 v{t+4}, 3, v{t}', f'v_lshl_add_u32 v{t+3}, v{t+4}, 1, v{t+3}',
            f'v_mul_u32_u24 v{t+2}, {4*384}, v{t+1}', f'v_add_u32 v{t+2}, v{t+2}, v{t+3}',
            f's_mov_b32 s{sM}, s54', f's_mov_b32 s{sM+1}, s55', f's_mov_b32 s{sM+2}, {192*768*2}', f's_mov_b32 s{sM+3}, 0x20000']
    for e in range(8):
        out.append(f's_add_u32 s49, s48, {(16*(e>>2) + (e&3))*384}')
        out.append(f'buffer_load_ushort v{dst+e}, v{t+2}, s[{sM}:{sM+3}], s49 offen')
    out += [f'{lab}_pk3:']
    return out

def pack_store(lab, cfg, src, dst):
    out = []
    for d in range(4): out.append(f'v_lshl_or_b32 v{dst+d}, v{src+2*d+1}, 16, v{src+2*d}')
    if cfg.f16:
        out += [f's_cmp_lt_u32 s{sPkf}, 12', f's_cbranch_scc1 {lab}_pk5']
        for e in range(8): out.append(f'v_lshlrev_b32 v{src+e}, 16, v{src+e}')
        for d in range(4): out.append(f'v_cvt_pk_f16_f32 v{dst+d}, v{src+2*d}, v{src+2*d+1}')
        out.append(f'{lab}_pk5:')
    out += [f's_add_u32 s{sM}, s38, {WS_W}', f's_addc_u32 s{sM+1}, s39, 0', f's_mov_b32 s{sM+2}, {W_BYTES}', f's_mov_b32 s{sM+3}, 0x20000',
            f's_lshl_b32 s3, s{sPkF}, 10',
            f'buffer_store_dwordx4 {v(dst,4)}, v{vL16}, s[{sM}:{sM+3}], s3 offen sc1']
    return out

def gen(cfg, name='fused_kernel'):
    k2.MF2[0] = 'v_mfma_f32_16x16x32_f16' if cfg.f16 else k2.MF
    SPREAD[0] = cfg.spread
    INTER[0] = cfg.inter
    PROG[0] = cfg.prog
    EVEN[0] = EVENS.get(cfg.even)
    k2.SNAKE[0] = cfg.snake
    P = []; TR = []
    n3 = [0]
    def st3():
        if cfg.light3 and n3[0] in cfg.l3sel:
            j = cfg.l3sel.index(n3[0])
            P.extend([f's_memtime s[{82+2*j}:{83+2*j}]'])
        n3[0] += 1
        if False:
            P.extend(['s_memtime s[102:103]' if False else 's_memtime s[98:99]', 's_waitcnt lgkmcnt(0)', f'v_writelane_b32 v253, s98, {n3[0]}']); n3[0] += 1
    def emit(l, tr=True):
        P.extend(l)
        if tr: TR.extend([x for x in l if not x.endswith(':')])
    emit(['s_cmp_ge_u32 s2, 256', f's_cbranch_scc1 {name}_done'])
    if cfg.allwg: P += ['s_memrealtime s[82:83]']
    if cfg.light: P += ['s_memtime s[6:7]', 's_memrealtime s[8:9]', 's_waitcnt lgkmcnt(0)', 's_mov_b32 s82, s6', 's_mov_b32 s83, s8']
    st3()
    emit(['s_load_dwordx4 s[4:7], s[0:1], 0',
          's_load_dwordx2 s[38:39], s[0:1], 48',
          's_load_dwordx4 s[52:55], s[0:1], 16',
          'v_lshrrev_b32 v1, 6, v0', 'v_and_b32 v0, 63, v0', 's_nop 0',
          f'v_readfirstlane_b32 s{sWave}, v1',
          f's_mov_b32 s{sIMG}, {IMG_BYTES}', f's_mov_b32 s{sOnes}, 0x3f803f80',
          f's_mov_b32 s{sSelL}, 0x05040100', f's_mov_b32 s{sSelH}, 0x07060302',
          f's_mov_b32 s{sAl}, {hex(f2u(ALPHA))}', f's_mov_b32 s{sEps}, {hex(f2u(1e-5))}', f's_mov_b32 s{sInv}, {hex(f2u(1.0/192))}',
          f'v_lshlrev_b32 v{vL16}, 4, v0', f'v_mov_b32 v{vZ}, 0',
          's_waitcnt lgkmcnt(0)',
          f's_mov_b32 s{sX}, s4', f's_mov_b32 s{sX+1}, s5', f's_mov_b32 s{sX+2}, {IMG_BYTES}', f's_mov_b32 s{sX+3}, 0x20000',
          f's_mov_b32 s{sD}, s6', f's_mov_b32 s{sD+1}, s7', f's_mov_b32 s{sD+2}, {49*384}', f's_mov_b32 s{sD+3}, 0x20000',
          f's_add_u32 s{sH}, s38, {WS_H}', f's_addc_u32 s{sH+1}, s39, 0', f's_mov_b32 s{sH+2}, {IMG_BYTES}', f's_mov_b32 s{sH+3}, 0x20000',
          f's_load_dwordx2 s[{sDbg}:{sDbg+1}], s[0:1], 40', f's_mov_b32 s{sTI}, 0'])
    st3()
    t = Y0
    c = []
    for j in range(4):
        c += [f'v_add_u32 v{t}, {64*j}, v0', f'v_mul_u32_u24 v{t+1}, 2622, v{t}', f'v_lshrrev_b32 v{t+1}, 16, v{t+1}',
              f'v_mul_u32_u24 v{t+2}, 25, v{t+1}', f'v_sub_u32 v{t+2}, v{t}, v{t+2}',
              f'v_subrev_u32 v{t+1}, 1, v{t+1}', f'v_cmp_gt_u32 vcc, 7, v{t+1}', f'v_cmp_gt_u32 s[44:45], 24, v{t+2}',
              f'v_mul_u32_u24 v{t+1}, 384, v{t+1}', f'v_lshl_add_u32 v{t+1}, v{t+2}, 4, v{t+1}', f's_and_b64 vcc, vcc, s[44:45]',
              f'v_subrev_u32 v{t+1}, {1024*j}, v{t+1}' if False else 's_nop 0',
              f'v_cndmask_b32 v{t+8+j}, 2.0, v{t+1}, vcc']
    emit(c)
    c = []
    for m in range(3):
        blk_ = [f's_add_u32 s{sT}, s{sWave}, {4*m}', f's_sub_u32 s{sT2}, s{sT}, 1', f's_cmp_lt_u32 s{sT2}, 7', f's_mul_i32 s{sT2}, s{sT2}, {7*384}',
                f's_cselect_b32 s{sT2}, s{sT2}, 0x70000000', f's_mul_i32 s{sT}, s{sT}, {ROWS}', f's_add_u32 s{sT}, s{sT}, {DWB}']
        for j in range(4):
            blk_ += [f's_add_u32 m0, s{sT}, {1024*j}', 's_nop 0']
            if j == 3: blk_ += ['s_mov_b32 exec_hi, 3']
            blk_ += [f'buffer_load_dwordx4 v{t+8+j}, s[{sD}:{sD+3}], s{sT2} offen lds']
            if j == 3: blk_ += ['s_mov_b32 exec_hi, -1']
        if m < 2: c += blk_
        else: c += [f's_cmp_eq_u32 s{sWave}, 0', f's_cbranch_scc0 {name}_nor8'] + blk_ + [f'{name}_nor8:']
    emit(c)
    pk = [f's_mov_b32 s{sPkF}, -1', f's_cmp_lt_u32 s2, {NPKWG if not cfg.force_fb else 0}', f's_cbranch_scc0 {name}_nopk',
          f's_lshl_b32 s44, s2, 3', f's_lshl_b32 s45, s{sWave}, 1', f's_add_u32 s{sPkF}, s44, s45']
    pk += pack_loads(f'{name}_a', Y0 + 32, ACC, 0) + [f's_add_u32 s{sPkF}, s{sPkF}, 1'] + pack_loads(f'{name}_a2', Y0 + 41, ACC, 0) + [f'{name}_nopk:']
    st3()
    if not cfg.nosync: P += pk
    st3()
    c = [f'v_and_b32 v{t}, 7, v0', f'v_lshrrev_b32 v{t+1}, 3, v0']
    for r in range(4):
        if r < 3: c += [f's_lshl_b32 s{sT}, s{sWave}, 3', f's_add_u32 s{sT}, s{sT}, {32*r}', f'v_add_u32 v{t+2}, s{sT}, v{t+1}']
        else:
            c += [f'v_add_u32 v{t+2}, 96, v{t+1}', f'v_cmp_gt_u32 s[{sMk3}:{sMk3+1}], 24, v0']
        c += [f'v_mul_u32_u24 v{t+3}, 745, v{t+2}', f'v_lshrrev_b32 v{t+3}, 13, v{t+3}',
              f'v_mul_u32_u24 v{t+4}, 11, v{t+3}', f'v_sub_u32 v{t+4}, v{t+2}, v{t+4}',
              f'v_mul_u32_u24 v{t+5}, {2*384}, v{t+3}', f'v_lshl_add_u32 v{t+5}, v{t+4}, 1, v{t+5}',
              f'v_mul_u32_u24 v{t+5}, 384, v{t+5}',
              f'v_lshl_add_u32 v{vRel+r}, v{t}, 4, v{t+5}']
        for dx in range(2):
            mL = sMaskL + 2 * (2 * r + dx); mR = sMaskR + 2 * (2 * r + dx)
            c += [f'v_lshl_add_u32 v{t+6}, v{t+4}, 1, {dx}',
                  f'v_cmp_lt_u32 s[{mL}:{mL+1}], 2, v{t+6}', f'v_cmp_gt_u32 s[{mR}:{mR+1}], 19, v{t+6}']
            if r == 3:
                c += ['s_nop 1', f's_and_b64 s[{mL}:{mL+1}], s[{mL}:{mL+1}], s[{sMk3}:{sMk3+1}]', f's_and_b64 s[{mR}:{mR+1}], s[{mR}:{mR+1}], s[{sMk3}:{sMk3+1}]']
        if r == 0: c += [f'v_mul_u32_u24 v{vLw}, {REC}, v{t+2}']
        if r == 3:
            c += [f's_lshl_b32 s{sT}, s{sWave}, 2', f'v_add_u32 v{vRel+3}, s{sT}, v{vRel+3}',
                  f'v_cndmask_b32 v{vRel+3}, 2.0, v{vRel+3}, s[{sMk3}:{sMk3+1}]',
                  f'v_mul_u32_u24 v{vLw3}, {REC}, v{t+2}', f'v_xor_b32 v{t+6}, s{sWave}, v{t}', f'v_lshl_add_u32 v{vLw3}, v{t+6}, 4, v{vLw3}',
                  f's_lshl_b32 s{sT}, s{sWave}, 7', f'v_add_u32 v{vLw3}, s{sT}, v{vLw3}']
    c += [f'v_lshrrev_b32 v{t}, 2, v0', f'v_and_b32 v{t+1}, 3, v0', f'v_lshrrev_b32 v{t+2}, 3, v{t}',
          f's_lshl_b32 s{sT}, s{sWave}, 1',
          f'v_add_u32 v{t+2}, s{sT}, v{t+2}', f'v_bfe_u32 v{t+3}, v{t}, 1, 2', f'v_xor_b32 v{t+4}, v{t+2}, v{t+3}',
          f'v_lshlrev_b32 v{t+4}, 1, v{t+4}', f'v_lshl_add_u32 v{t+4}, v{t+3}, 4, v{t+4}',
          f'v_and_b32 v{t+5}, 1, v{t}', f'v_add_u32 v{t+4}, v{t+4}, v{t+5}', f'v_lshlrev_b32 v{t+4}, 3, v{t+4}',
          f'v_mul_u32_u24 v{t+5}, {2*REC}, v{t+1}', f'v_add_u32 v{vRd}, v{t+4}, v{t+5}']
    c += [f's_lshl_b32 s{sT2}, s{sWave}, 4', f'v_add_u32 v{t+7}, s{sT2}, v{t}',
          f'v_bfe_u32 v{t+8}, v{t+7}, 3, 1', f'v_lshlrev_b32 v{t+8}, 2, v{t+8}', f'v_xor_b32 v{t+7}, v{t+7}, v{t+8}',
          f'v_lshlrev_b32 v{t+7}, 5, v{t+7}', f'v_lshl_add_u32 v{t+7}, v{t+1}, 3, v{t+7}', f'v_add_u32 v{vY0}, {YB}, v{t+7}']
    c += [f'v_lshrrev_b32 v{t}, 4, v0', f'v_bfe_u32 v{t+1}, v0, 2, 2', f'v_and_b32 v{t+2}, 3, v0',
          f's_mul_i32 s{sT}, s{sWave}, {3*2048}', f's_add_u32 s{sT}, s{sT}, {YB}']
    for h, vr in ((0, vR0), (1, vR1)):
        c += [f'v_lshl_add_u32 v{t+3}, v{t}, 3, v{t+1}', f'v_add_u32 v{t+3}, {4*h}, v{t+3}',
              f'v_and_b32 v{t+4}, 1, v{t}', f'v_lshlrev_b32 v{t+4}, 2, v{t+4}', f'v_xor_b32 v{t+3}, v{t+3}, v{t+4}',
              f'v_lshlrev_b32 v{t+3}, 5, v{t+3}', f'v_lshl_add_u32 v{t+3}, v{t+2}, 3, v{t+3}', f'v_add_u32 v{vr}, s{sT}, v{t+3}']
    vb = VO + 15 + 1
    c += [f'v_lshrrev_b32 v{t}, 2, v0', f's_lshl_b32 s{sT}, s{sWave}, 5', f'v_lshlrev_b32 v{t}, 1, v{t}', f'v_add_u32 v{t}, s{sT}, v{t}',
          f'v_bfe_u32 v{t+1}, v0, 1, 1', f'v_mul_u32_u24 v{t+1}, {ROWS}, v{t+1}', f'v_and_b32 v{t+2}, 1, v0', f'v_mul_u32_u24 v{t+2}, {TAPS}, v{t+2}',
          f'v_add_u32 v{t+1}, v{t+1}, v{t+2}', f'v_sub_u32 v{t}, v{t}, v{t+1}', f'v_add_u32 v{vb}, {DWB}, v{t}',
          f'v_and_b32 v{vO16}, 7, v0', f'v_lshlrev_b32 v{vO16}, 4, v{vO16}']
    emit(c)
    tl = [0]
    def tile_setup(fetch):
        o = [f's_sub_u32 s24, 2, {fetch}',
             f's_lshr_b32 s25, s2, 3', f's_lshl_b32 s24, s24, 5', f's_add_u32 s25, s25, s24',
             f's_and_b32 s26, s2, 7', f's_lshl_b32 s26, s26, 2', f's_and_b32 s27, s25, 3', f's_add_u32 s26, s26, s27',
             f's_lshr_b32 s27, s25, 2',
             f's_mul_i32 s24, s26, {12*384}', f's_lshl_b32 s25, s27, 4', f's_add_u32 s24, s24, s25',
             f's_sub_u32 s24, s24, {3*384+3}', f's_mul_i32 s{sBase}, s24, 384',
             f's_cmp_eq_u32 {fetch}, 3', f's_cselect_b32 s{sBase}, 0x60000000, s{sBase}']
        if cfg.diag_nox: o += [f's_mov_b32 s{sBase}, 0x60000000']
        tl[0] += 1; lab = f'{name}_to{tl[0]}'
        fast = []
        for dy in range(2):
            for dx in range(2):
                fast += [f's_add_u32 s24, s{sBase}, {147456*dy + 384*dx}'] + [f'v_add_u32 v{vo(r,dy,dx)}, s24, v{vRel+r}' for r in range(4)]
        o += [f's_sub_u32 s25, s27, 1', f's_cmp_lt_u32 s25, 22', f's_cselect_b32 s25, 1, 0', f's_cmp_eq_u32 s26, 0', f's_cselect_b32 s25, 0, s25',
              f's_cmp_eq_u32 s{sBase}, 0x60000000', f's_cselect_b32 s25, 1, s25', f's_cmp_eq_u32 s25, 0', f's_cbranch_scc1 {lab}_slow']
        return o + fast + [f's_branch {lab}_done', f'{lab}_slow:'] + tile_offsets() + [f'{lab}_done:']
    strip = lambda l: [x.split(' ;@')[0] for x in l]
    def store_bases():
        o = [f's_mul_i32 s25, s2, 3', f's_add_u32 s25, s25, 2', f's_mul_i32 s25, s25, 12', f's_mul_i32 s26, s{sWave}, 3', f's_add_u32 s25, s25, s26',
             f's_mul_i32 s25, s25, 6144', f's_add_u32 s26, s25, 3072',
             f's_cmp_eq_u32 s{sTI}, {1 if not cfg.diag_nost else 9}', f's_cselect_b32 s{sSt3}, s25, 0x70000000',
             f's_cmp_eq_u32 s{sTI}, {2 if not cfg.diag_nost else 9}', f's_cselect_b32 s{sSt3+3}, s26, 0x70000000']
        for b in (sSt3, sSt3 + 3): o += [f's_add_u32 s{b+1}, s{b}, 6144', f's_add_u32 s{b+2}, s{b}, 12288']
        return o
    emit(tile_setup('0'))
    emit(strip(sum(load_items(cfg, 0, 0), [])))
    st3()
    emit(['s_waitcnt vmcnt(16) lgkmcnt(0)'])
    st3()
    emit(['s_barrier'])
    st3()
    if not cfg.nosync:
        P += [f's_cmp_eq_u32 s{sPkF}, -1', f's_cbranch_scc1 {name}_nops'] + pack_store(f'{name}_b', cfg, Y0 + 41, Y0)
        P += [f's_sub_u32 s{sPkF}, s{sPkF}, 1', f's_sub_u32 s{sPkf}, s{sPkf}, 1'] + pack_store(f'{name}_b2', cfg, Y0 + 32, Y0 + 4) + ['s_nop 1', f'{name}_nops:']
    emit(weights_gather(vb))
    st3()
    emit(['s_waitcnt vmcnt(0)'])
    st3()
    emit([f'v_add_u32 v{vLw}, {SLAB}, v{vLw}', f'v_add_u32 v{vLw3}, {SLAB}, v{vLw3}', f'v_add_u32 v{vRd}, {SLAB}, v{vRd}'])
    for r in range(4):
        for d in range(4): emit(transpose_unit(r, d, 0))
    dfr = lambda k: (k - 1 if (cfg.defer_y and k > 0) else None)
    raw = {k: conv_stage(k, 0, load_items(cfg, (k + 2) % 3, 0), store_items(cfg, k), defer=dfr(k)) for k in range(3)}
    nw = resolve_l([raw[0], raw[1], raw[2]])
    fix = lambda l: [(f's_waitcnt vmcnt({nw[int(x[6:])]})' if x.startswith('WAITL:') else x.split(' ;@')[0]) for x in l]
    body = {key: fix(val) for key, val in raw.items()}
    tags = [x.split(';@')[1].strip() for x in raw[0] if ';@' in x]
    tags = tags[[i for i, x in enumerate(tags) if x.startswith('l')][0]:]
    l1 = strip(sum(load_items(cfg, 1, 0), []))
    emit([f's_mov_b32 s{sT}, 0x70000000'])
    for tg in tags:
        emit([l1.pop(0)] if tg.startswith('l') else [f'buffer_store_dword v{vA}, v{vL16}, s[{sH}:{sH+3}], s{sT} offen'])
    assert not l1
    emit([f'v_subrev_u32 v{vLw}, {SLAB}, v{vLw}', f'v_subrev_u32 v{vLw3}, {SLAB}, v{vLw3}', f's_mov_b32 s{sDS}, {-SLAB & 0xffffffff}', f's_mov_b32 s{sDY}, 24576', f's_mov_b32 s{sDR}, 24576',
          's_waitcnt lgkmcnt(0)'])
    st3()
    emit(['s_barrier'])
    st3()
    if not cfg.nosync:
        P += [f's_cmp_eq_u32 s{sPkF}, -1', f's_cbranch_scc1 {name}_nopub', f's_cmp_eq_u32 s{sWave}, 0', f's_cbranch_scc0 {name}_nopub',
              f'v_mov_b32 v{vB}, 1', 's_mov_b32 exec_lo, 1', 's_mov_b32 exec_hi, 0',
              f'global_atomic_add v{vZ}, v{vB}, s[{sDbg}:{sDbg+1}]', 's_mov_b64 exec, -1', f'{name}_nopub:']
    def after(k, vm=None):
        o = ([f's_waitcnt vmcnt({vm})'] if vm is not None else []) + ['s_waitcnt lgkmcnt(0)', 's_barrier']
        if k == 2 or not cfg.defer_y:
            rd, tg = yin(k)
            o += rd + tg
        o += [f'v_add_u32 v{vRd}, s{sDS}, v{vRd}', f'v_subrev_u32 v{vLw}, s{sDS}, v{vLw}', f'v_subrev_u32 v{vLw3}, s{sDS}, v{vLw3}',
              f'v_add_u32 v{vY0}, s{sDY}, v{vY0}',
              f's_sub_u32 s{sDS}, 0, s{sDS}', f's_sub_u32 s{sDY}, 0, s{sDY}']
        return o
    sn = [0]
    def st2():
        if not cfg.light2: return []
        sn[0] += 1
        return [f's_cmp_eq_u32 s{sTI}, {cfg.l2tile}', f's_cbranch_scc0 {name}_s2_{sn[0]}', f's_memtime s[{STAMP0-2+2*((sn[0]-1)%5+1)}:{STAMP0-1+2*((sn[0]-1)%5+1)}]', f'{name}_s2_{sn[0]}:']
    lns = ln_block(cfg)
    K = k2
    emit([f's_mov_b32 s{sTI}, 0'])
    P += ['.p2align 6', f'{name}_tile:']
    P += st2()
    emit(store_bases())
    if not cfg.nosync:
        P += [f's_cmp_eq_u32 s{sTI}, 2', f's_cbranch_scc0 {name}_nopoll', f's_cmp_eq_u32 s{sWave}, 0', f's_cbranch_scc0 {name}_nopoll',
              f'global_load_dword v{vP}, v{vZ}, s[{sDbg}:{sDbg+1}] sc1', f'{name}_nopoll:']
    emit(body[0] + after(0))
    P += st2()
    emit([f's_add_u32 s3, s{sTI}, 1'] + tile_setup('s3'))
    if not cfg.nosync:
        ft = ACC
        fb = [f's_cmp_eq_u32 s{sTI}, 2', f's_cbranch_scc0 {name}_nochk', f's_cmp_eq_u32 s{sWave}, 0', f's_cbranch_scc0 {name}_nochk',
              f's_waitcnt vmcnt(22)', f'v_readfirstlane_b32 s44, v{vP}', 's_nop 3', f's_cmp_ge_u32 s44, {NPKWG + (1000 if cfg.force_fb else 0)}', f's_cbranch_scc1 {name}_acq',
              f's_mov_b32 s45, {cfg.spin}', f'{name}_spin:',
              f'global_load_dword v{vP}, v{vZ}, s[{sDbg}:{sDbg+1}] sc1', 's_waitcnt vmcnt(0)', f'v_readfirstlane_b32 s44, v{vP}', 's_nop 3',
              f's_cmp_ge_u32 s44, {NPKWG + (1000 if cfg.force_fb else 0)}', f's_cbranch_scc1 {name}_acq',
              's_sub_u32 s45, s45, 1', 's_cmp_lg_u32 s45, 0', f's_cbranch_scc1 {name}_spin',
              's_load_dwordx4 s[52:55], s[0:1], 16', f'v_lshrrev_b32 v{ft}, 4, v{vL16}', f's_mov_b32 s{sPkF}, 0', 's_waitcnt vmcnt(0) lgkmcnt(0)', f'{name}_self:']
        fb += pack_loads(f'{name}_c', ft + 8, ft + 1, ft) + ['s_waitcnt vmcnt(0)'] + pack_store(f'{name}_d', cfg, ft + 8, ft + 16)
        fb += ['s_waitcnt vmcnt(0)', f's_add_u32 s{sPkF}, s{sPkF}, 1', f's_cmp_lt_u32 s{sPkF}, {NPACK}', f's_cbranch_scc1 {name}_self',
               f'{name}_acq:', 'buffer_inv sc1', f'{name}_nochk:']
        P += fb
    if cfg.light4:
        b1 = []; n = [0]
        def stmp():
            n[0] += 1; j = n[0] - 1
            return [f's_cmp_eq_u32 s{sTI}, {cfg.l2tile}', f's_cbranch_scc0 {name}_l4_{j}', f's_memtime s[{82+2*j}:{83+2*j}]', f'{name}_l4_{j}:']
        b1 += stmp()
        for x in body[1]:
            if x.startswith(';MARK') and x[5] in cfg.l4sel: b1 += stmp()
            else: b1.append(x)
        af = after(1)
        if 'e' in cfg.l4sel: b1 += stmp() + af[:1] + stmp() + af[1:2] + stmp() + af[2:]
        else: b1 += af
        P += b1; TR += body[1] + after(1)
    else:
        nvm1 = sum(1 for x in body[1] if x.startswith('buffer_'))
        emit(body[1] + after(1, nvm1))
    P += st2()
    pre = [f's_add_u32 s{K.sW}, s38, {WS_W}', f's_addc_u32 s{K.sW+1}, s39, 0', f's_mov_b32 s{K.sW+2}, {W_BYTES}', f's_mov_b32 s{K.sW+3}, 0x20000',
           f's_mul_i32 s{K.sWoff}, s40, 12288', f's_cmp_eq_u32 s40, 1', f's_cselect_b32 s24, {23*24576}, s{K.sWoff}']
    its = []
    for i in range(12):
        it = []
        if i % 4 == 0: it += [f's_add_u32 m0, s{K.sWoff}, {4096*(i//4)}', f's_add_u32 s{sT}, s24, {4096*(i//4)}', 's_nop 0']
        it.append(f'buffer_load_dwordx4 v{vL16}, s[{K.sW}:{K.sW+3}], s{sT} offen offset:{1024*(i%4)} lds')
        its.append(it)
    xbase = [f's_lshr_b32 s24, s2, 3', f's_and_b32 s25, s2, 7', f's_lshl_b32 s25, s25, 2', f's_and_b32 s26, s24, 3', f's_add_u32 s25, s25, s26',
             f's_lshr_b32 s24, s24, 2', f's_mul_i32 s25, s25, 12', f's_mul_i32 s26, s40, 3', f's_add_u32 s25, s25, s26',
             f's_mul_i32 s25, s25, 24', f's_add_u32 s25, s25, s24', f's_mul_i32 s{K.sBX}, s25, 6144']
    vgs = [f'v_and_b32 v{vA}, 0xf0, v{vL16}', f'v_mul_u32_u24 v{K.vG}, 24, v{vA}', f'v_lshrrev_b32 v{vA}, 4, v{vL16}', f'v_and_b32 v{vA}, 0x30, v{vA}',
           f'v_add_u32 v{K.vG}, v{K.vG}, v{vA}']
    xl = lambda p, s_: f'buffer_load_dwordx4 {a(K.pxreg(p,s_), 4)}, v{K.vG}, s[{K.sX}:{K.sX+3}], s{48+p} offen offset:{64*s_}' + (' nt' if cfg.nt_x else '')
    pre = xbase + [f's_mov_b32 s48, s{K.sBX}', f's_add_u32 s49, s48, {cfg.xps}', f's_add_u32 s50, s49, {cfg.xps}'] + vgs + pre
    xearly = [(p, s_) for p in range(3) for s_ in range(6) if K.pxreg(p, s_) + 3 < Wt(2, 0, 0)]
    xlate = [(p, s_) for p in range(3) for s_ in range(6) if (p, s_) not in xearly]
    cl = strip(conv_stage(2, 0, its, store_items(cfg, 2), transp=False, xtra=[[xl(p, s_)] for p, s_ in xearly], defer=dfr(2)))
    P += [f's_cmp_eq_u32 s{sTI}, 2', f's_cbranch_scc0 {name}_nl'] + pre + cl + after(2) + [f's_branch {name}_last', f'{name}_nl:']
    emit(body[2] + after(2) + ['s_waitcnt lgkmcnt(0)'])
    P += st2()
    P += [f's_call_b64 s[42:43], {name}_ln']; TR += lns
    wHold = [f'v_accvgpr_write_b32 a{HOLD+i}, v{Y0+i}' for i in range(72)]
    wP = [f'v_accvgpr_write_b32 a{K.PF0+i}, v{Y0+i}' for i in range(72)]
    P += [f's_cmp_eq_u32 s{sTI}, 1', f's_cbranch_scc1 {name}_ln1'] + wHold + [f's_branch {name}_lnd', f'{name}_ln1:'] + wP + [f'{name}_lnd:']
    TR += wHold + wP
    P += st2()
    P += [f's_add_u32 s{sTI}, s{sTI}, 1', f's_branch {name}_tile', f'{name}_last:']
    emit(['s_waitcnt vmcnt(0) lgkmcnt(0)', 's_barrier'])
    if cfg.allwg: P += ['s_memrealtime s[84:85]', 's_waitcnt lgkmcnt(0)']
    if cfg.light: P += ['s_memtime s[6:7]', 's_memrealtime s[24:25]', 's_waitcnt lgkmcnt(0)', 's_mov_b32 s84, s6', 's_mov_b32 s85, s24']
    emit(['s_load_dwordx2 s[6:7], s[0:1], 32',
          'v_mbcnt_lo_u32_b32 v0, -1, 0', 'v_mbcnt_hi_u32_b32 v0, -1, v0'])
    emit(K.gelu_consts(cfg) + K.ident_setup())
    emit([f's_add_u32 s{K.sW}, s38, {WS_W}', f's_addc_u32 s{K.sW+1}, s39, 0', f's_mov_b32 s{K.sW+2}, {W_BYTES}', f's_mov_b32 s{K.sW+3}, 0x20000',
          f's_mul_i32 s{K.sWoff}, s40, 12288',
          f's_mul_i32 s{K.sB}, s2, {36*6144}', f's_mul_i32 s41, s40, {3*6144}', f's_add_u32 s{K.sB}, s{K.sB}, s41',
          's_waitcnt lgkmcnt(0)',
          f's_mov_b32 s{K.sO}, s6', f's_mov_b32 s{K.sO+1}, s7', f's_mov_b32 s{K.sO+2}, {IMG_BYTES}', f's_mov_b32 s{K.sO+3}, 0x20000'])
    emit(xbase + [f's_mov_b32 s48, s{K.sBX}', f's_add_u32 s49, s48, {cfg.xps}', f's_add_u32 s50, s49, {cfg.xps}'])
    emit(K.m_second_dma(cfg, 240) + [xl(p, s_) for p, s_ in xlate])
    P += [f's_call_b64 s[42:43], {name}_ln']; TR += lns
    emit([f'v_accvgpr_write_b32 a{K.H0+i}, v{Y0+i}' for i in range(72)])
    emit(K.m_g1_first(cfg, early=True))
    if cfg.light: P += ['s_memtime s[6:7]', 's_memrealtime s[4:5]', 's_waitcnt lgkmcnt(0)', 's_mov_b32 s86, s6', 's_mov_b32 s87, s4']
    mp, sub, tr = K.m_main(cfg, name)
    P += mp; TR += tr
    P += K.dump_stamps2(cfg, 13)
    if cfg.light:
        P += ['s_waitcnt vmcnt(0)', 's_memtime s[6:7]', 's_memrealtime s[4:5]', 's_load_dwordx2 s[8:9], s[0:1], 40', 's_waitcnt lgkmcnt(0)', 's_mov_b32 s88, s6', 's_mov_b32 s89, s4'] + [f'v_writelane_b32 v255, s{82+i}, {i}' for i in range(8)] + [
              's_cmp_eq_u32 s2, 17', f's_cbranch_scc0 {name}_done', 's_cmp_eq_u32 s40, 0', f's_cbranch_scc0 {name}_done',
              'v_mbcnt_lo_u32_b32 v0, -1, 0', 'v_mbcnt_hi_u32_b32 v0, -1, v0', 'v_lshlrev_b32 v1, 2, v0', 'v_cmp_gt_u32 vcc, 8, v0', 's_and_saveexec_b64 s[10:11], vcc',
              'global_store_dword v1, v255, s[8:9] offset:16']
    if cfg.allwg:
        P += ['s_waitcnt vmcnt(0)', 's_memrealtime s[86:87]', 's_cmp_eq_u32 s40, 0', f's_cbranch_scc0 {name}_done', 's_waitcnt lgkmcnt(0)',
              's_lshl_b32 s3, s2, 4', f's_add_u32 s3, s3, {200 << 20}', 'v_mov_b32 v5, s3',
              'v_mov_b32 v4, s82', 's_nop 1', 'global_store_dword v5, v4, s[38:39]',
              'v_mov_b32 v4, s84', 's_nop 1', 'global_store_dword v5, v4, s[38:39] offset:4',
              'v_mov_b32 v4, s86', 's_nop 1', 'global_store_dword v5, v4, s[38:39] offset:8']
    if cfg.light2 or cfg.light3 or cfg.light4:
        P += ['s_waitcnt vmcnt(0)', 's_load_dwordx2 s[8:9], s[0:1], 40', 's_waitcnt lgkmcnt(0)',
              's_cmp_eq_u32 s2, 17', f's_cbranch_scc0 {name}_done', 's_cmp_eq_u32 s40, 0', f's_cbranch_scc0 {name}_done']
        P += [f'v_writelane_b32 v255, s{STAMP0+2*i}, {i}' for i in range(5)]
        P += ['v_mbcnt_lo_u32_b32 v0, -1, 0', 'v_mbcnt_hi_u32_b32 v0, -1, v0', 'v_lshlrev_b32 v1, 2, v0', 'v_cmp_gt_u32 vcc, 5, v0', 's_and_saveexec_b64 s[10:11], vcc',
              'global_store_dword v1, v255, s[8:9] offset:64']
    P += [f'{name}_done:', 's_endpgm']
    P += ['.p2align 6', f'{name}_ln:'] + lns + ['s_setpc_b64 s[42:43]']
    P += sub
    return P, TR

def kd(name):
    return k2.kd(name)

if __name__ == '__main__':
    import asmlib
    P, TR = gen(Cfg)
    asmlib.check(TR, 'kf')
    print(len(P))
```

```python
import k2
from k2 import f2u, ALPHA, WS_W, WS_H, W_BYTES, IMG_BYTES

REC = 544
NBLK = 99
SLAB = NBLK * REC
YB = 2 * SLAB
LDS_BYTES = YB + 2 * 24576
TAPS, ROWS = 400, 3616
DWB = YB

vO16 = 0
vP = 1
vL16 = 2
vZ = 3
vRel = 4
vLw, vLw3, vRd, vY0, vR0, vR1, vA, vB = 8, 9, 10, 11, 12, 13, 14, 15
STS = (16, 80)
BLK = 80
ACC = 120
TMP = 136
Y0 = 144
VO = 216
HOLD = 0
CW = 144
sM, sH, sX, sD = 8, 12, 16, 20
sBase, sIMG, sT, sT2, sSelL, sDS, sDY, sOutN, sTI = 28, 30, 31, 32, 33, 34, 35, 36, 37
sWave, sSelH, sPkF, sPkf = 40, 41, 42, 43
sMaskL, sMaskR = 44, 60
sSt3 = 76
sOnes, sAl, sEps, sInv, sOut, sDR = 92, 93, 94, 95, 96, 97
sDbg = 4
sMk3 = 100
NPACK = 576
NPKWG = 72
STAMP0 = 82

def v(b, n=1): return f'v{b}' if n == 1 else f'v[{b}:{b+n-1}]'
def a(b, n=1): return f'a{b}' if n == 1 else f'a[{b}:{b+n-1}]'
def Wt(k, R, C): return CW + 32 * k + 2 * (4 * R + C)
def blk(row, bc): return BLK + 10 * (row % 4) + 2 * bc
def Y(p, s): return Y0 + 24 * p + 4 * s
M4 = 'v_mfma_f32_4x4x4_16b_bf16'
FULL = (1 << 64) - 1

class Cfg(k2.Cfg):
    f16 = True
    nt_h = True; nt_x = True; nt_o = True
    cx_nt = False
    st_flags = ' nt'
    xps = 147456
    xts = 49152
    light = False
    light2 = False
    light3 = False
    exact_vm = True
    touch = False
    l2tile = 0
    inter = False
    prog = False
    defer_y = False
    even = None
    allwg = False
    force_fb = False
    ln_pk = True
    light4 = False
    l4sel = '0246'
    spread = 0
    diag_nox = False
    htouch = False
    diag_nost = False
    l3sel = [0, 1, 2, 3, 4]
    early = True
    hskip = True
    spin = 1 << 14
    nosync = False

def setexec(out, cur, val):
    if cur[0] != val:
        out.append(f's_mov_b32 exec_lo, {hex(val & 0xffffffff)}')
        out.append(f's_mov_b32 exec_hi, {hex(val >> 32)}')
        cur[0] = val

def weights_gather(vb):
    out = []
    def reads(k):
        o = []
        for R in range(4):
            for dy in range(2):
                for c in range(4):
                    i = (R * 2 + dy) * 4 + c
                    for dx in range(2):
                        rho, gam = 2 * R + dy, 2 * c + dx
                        o.append(f'ds_read_u16 v{Y0+2*i+dx}, v{vb} offset:{(rho+1)*ROWS + (gam+1)*TAPS + 128*k}')
        return o
    for k in range(3):
        rd = reads(k)
        out += rd[:32] + rd[32:] + ['s_waitcnt lgkmcnt(15)']
        for half in range(2):
            if half == 1: out.append('s_waitcnt lgkmcnt(0)')
            for i in range(16 * half, 16 * half + 16):
                if half == 0 and i == 8: out.append('s_waitcnt lgkmcnt(15)')
                R, dy, c = i // 8, (i // 4) % 2, i % 4
                out.append(f'v_lshl_or_b32 v{Y0+2*i}, v{Y0+2*i+1}, 16, v{Y0+2*i}')
                out.append(f'v_accvgpr_write_b32 a{Wt(k,R,c)+dy}, v{Y0+2*i}')
    return out

def vo(r, dy, dx): return VO + 4 * r + 2 * dy + dx
def tile_offsets():
    out = []
    for dx in range(2):
        for r in range(4):
            l, rr = sMaskL + 2 * (2 * r + dx), sMaskR + 2 * (2 * r + dx)
            out += [f's_mov_b64 s[24:25], -1' if r < 3 else f's_or_b64 s[24:25], s[{l}:{l+1}], s[{rr}:{rr+1}]',
                    f's_cmp_eq_u32 s27, 0', f's_cselect_b64 s[24:25], s[{l}:{l+1}], s[24:25]',
                    f's_cmp_eq_u32 s27, 23', f's_cselect_b64 s[24:25], s[{rr}:{rr+1}], s[24:25]']
            for dy in range(2):
                t = vo(r, dy, dx)
                out += [f's_add_u32 s26, s{sBase}, {147456*dy + 384*dx}', f'v_add_u32 v{t}, s26, v{vRel+r}', f'v_cmp_gt_u32 vcc, s{sIMG}, v{t}',
                        f's_and_b64 vcc, vcc, s[24:25]', f'v_cndmask_b32 v{t}, 2.0, v{t}, vcc']
    return out
def load_items(cfg, stage, sset):
    nt = ' nt' if cfg.cx_nt else ''
    its = []
    for r in range(4):
        for dy in range(2):
            for dx in range(2):
                if r < 3: its.append([f'buffer_load_dwordx4 {v(STS[sset] + 16 * r + 4 * (2 * dy + dx), 4)}, v{vo(r,dy,dx)}, s[{sX}:{sX+3}], 0 offen offset:{128*stage}{nt} ;@l{r}'])
                else: its.append([f'buffer_load_dword v{STS[sset] + 48 + 2 * dy + dx}, v{vo(r,dy,dx)}, s[{sX}:{sX+3}], 0 offen offset:{128*stage}{nt} ;@l{r}'])
    return its
def store_items(cfg, k):
    its = []
    for s, sb in ((k, sSt3), (3 + k, sSt3 + 3)):
        for p in range(3):
            its.append([f'buffer_store_dwordx4 {a(HOLD + 24*p + 4*s, 4)}, v{vL16}, s[{sH}:{sH+3}], s{sb+p} offen offset:{1024*(s % 3)}{cfg.st_flags} ;@s'])
    return [its[0], its[3], its[1], its[4], its[2], its[5]]

def transpose_unit(r, d, sset):
    t = TMP
    if r == 3:
        if d > 0: return []
        L = lambda dy, dx: STS[sset] + 48 + 2 * dy + dx
        return [f'v_perm_b32 v{t}, v{L(0,1)}, v{L(0,0)}, s{sSelL}', f'v_perm_b32 v{t+1}, v{L(1,1)}, v{L(1,0)}, s{sSelL}',
                f'v_perm_b32 v{t+2}, v{L(0,1)}, v{L(0,0)}, s{sSelH}', f'v_perm_b32 v{t+3}, v{L(1,1)}, v{L(1,0)}, s{sSelH}',
                f's_mov_b64 exec, s[{sMk3}:{sMk3+1}]', f'ds_write_b128 v{vLw3}, {v(t,4)}', 's_mov_b64 exec, -1']
    L = lambda dy, dx: STS[sset] + 16 * r + 4 * (2 * dy + dx) + d
    return [f'v_xad_u32 v{vA}, v{vO16}, {16*d}, v{vLw}',
            f'v_perm_b32 v{t}, v{L(0,1)}, v{L(0,0)}, s{sSelL}',
            f'v_perm_b32 v{t+1}, v{L(1,1)}, v{L(1,0)}, s{sSelL}',
            f'v_perm_b32 v{t+2}, v{L(0,1)}, v{L(0,0)}, s{sSelH}',
            f'v_perm_b32 v{t+3}, v{L(1,1)}, v{L(1,0)}, s{sSelH}',
            f'ds_write_b128 v{vA}, {v(t,4)} offset:{32 * REC * r + 128*d}']

def yout(py):
    out = []
    a0 = ACC + 8 * (py & 1); a1 = a0 + 4
    t = TMP + 4
    for oy in range(2):
        out.append(f'v_cvt_pk_bf16_f32 v{t+2*oy}, v{a0+2*oy}, v{a0+2*oy+1}')
        out.append(f'v_cvt_pk_bf16_f32 v{t+2*oy+1}, v{a1+2*oy}, v{a1+2*oy+1}')
        out.append(f'ds_write_b64 v{vY0}, {v(t+2*oy,2)} offset:{(2*py+oy)*2048}')
    return out

def row_reads(br):
    return [f'ds_read_b64 {v(blk(br,bc),2)}, v{vRd} offset:{(br*11+bc)*REC}' for bc in range(5)]

SPREAD = [3]
INTER = [False]
PROG = [False]
DEFPOS = [66]
sl2x = lambda n: (n // 16, n % 16)
EVEN = [None]
EVENS = {
 'a': dict(u0=[4, 12, 18], l0=[22, 24, 26, 28], u1=[30, 36, 41, 46], l1=[50, 52, 54, 56], u2=[58, 62, 67, 72], l2=[75, 77, 79, 81], u3=83, l3=[86, 87, 88, 89], s=[14, 33, 44, 65, 70, 91]),
 'b': dict(u0=[1, 5, 13], l0=[16, 17, 22, 24], u1=[28, 30, 32, 38], l1=[44, 46, 48, 49], u2=[54, 60, 62, 64], l2=[70, 74, 76, 78], u3=80, l3=[82, 83, 84, 85], s=[14, 40, 66, 87, 89, 91]),
}
def yin(k):
    o = []
    for p in range(3):
        for sp in range(2):
            for h in range(2):
                o.append(f'ds_read_b64_tr_b16 {v(Y(p,2*k+sp)+2*h,2)}, v{vR0 if h == 0 else vR1} offset:{p*2048 + sp*1024}')
    return o, [f'v_add_u32 v{vR0}, s{sDR}, v{vR0}', f'v_add_u32 v{vR1}, s{sDR}, v{vR1}', f's_sub_u32 s{sDR}, 0, s{sDR}']

def conv_stage(k, sset, items, stores, transp=True, xtra=(), defer=None):
    out = []
    fifo = []
    issued = {}
    def emit_lds(t, tag):
        out.append(t); fifo.append(tag); issued[tag] = issued.get(tag, 0) + 1
    def need(tag):
        assert issued.get(tag, 0) == 5, ('row not fully requested before use', tag)
        idx = [i for i, x in enumerate(fifo) if x == tag]
        if idx:
            n = len(fifo) - 1 - idx[-1]
            out.append(f's_waitcnt lgkmcnt({min(n,15)})')
            del fifo[:idx[-1] + 1]
    tagof = lambda t: ('w' if t.startswith('ds_') else None)
    NUP = 2 if PROG[0] else 4
    for br in range(NUP):
        for t in row_reads(br): emit_lds(t, ('row', br))
    if transp:
        out.append('WAITL:0')
        for t in transpose_unit(0, 0, sset):
            if tagof(t): emit_lds(t, 'w')
            else: out.append(t)
    fill = {(py, i): [] for py in range(6) for i in range(16)}
    for br in range(NUP, 4):
        for i, t in enumerate(row_reads(br)): fill[(0, 3 * (br - NUP) + i // 2)].append((t, ('row', br)))
    if defer is not None:
        rd, tg = yin(defer)
        for i, t in enumerate(rd): fill[sl2x(DEFPOS[0] + 2 * i)].append((t, 'w'))
        for t in tg: fill[sl2x(DEFPOS[0] + 2 * len(rd))].append((t, None))
    for py in range(6):
        if py > 0:
            for t, p_ in zip(yout(py - 1), [2, 2, 3, 4, 4, 5]): fill[(py, p_)].append((t, tagof(t)))
        if py + 4 <= 8:
            for i, t in enumerate(row_reads(py + 4)): fill[(py, 7 + i)].append((t, ('row', py + 4)))
    sl2 = lambda n: (n // 16, n % 16)
    if EVEN[0]:
        upos = {0: [None] + [sl2(n) for n in EVEN[0]['u0']], 1: [sl2(n) for n in EVEN[0]['u1']], 2: [sl2(n) for n in EVEN[0]['u2']], 3: [sl2(EVEN[0]['u3'])] * 4}
        lpos = {r: [sl2(n) for n in EVEN[0][f'l{r}']] for r in range(4)}
        spos = [sl2(n) for n in EVEN[0]['s']]
    else:
        upos = {0: [None, (0, 1), (0, 3), (0, 5)], 1: [(1, 6), (1, 8), (1, 12), (1, 14)], 2: [(2, 6), (2, 8), (2, 12), (2, 14)], 3: [(3, 6), (3, 8), (3, 12), (3, 14)]}
        lpos = {0: [(0, 12), (0, 14), (1, 0), (1, 1)], 1: [(1, 15), (2, 0), (2, 1), (2, 5)], 2: [(2, 15), (3, 0), (3, 1), (3, 5)], 3: [(3, 15), (4, 0), (4, 1), (4, 6)]}
        spos = [(0, 7), (0, 10), (4, 8), (4, 12), (5, 0), (5, 6)]
    for r in range(4):
        if transp:
            if r > 0: fill[upos[r][0]].append((f'WAITL:{r}', None))
            for d in range(4):
                if upos[r][d] is None: continue
                for t in transpose_unit(r, d, sset): fill[upos[r][d]].append((t, tagof(t)))
        for i in range(4):
            if 4 * r + i < len(items):
                for t in items[4 * r + i]: fill[lpos[r][i]].append((t, None))
    for it, pos in zip(stores, spos):
        for t in it: fill[pos].append((t, None))
    for i, it in enumerate(xtra):
        sl = 2 + 6 * i
        for t in it: fill[(sl // 16, sl % 16)].append((t, None))
    seq = []
    for py in range(6):
        for idx in range(16):
            grp = []
            for t, tag in fill[(py, idx)]:
                grp.append((t, tag))
                glue = t.startswith(('s_mov_b64 exec, s[', 's_add_u32 m0', 's_nop', 'WAITL', 'v_cmp', 's_and_b64')) or (t.startswith('s_add_u32 s') )
                if t.startswith('ds_write_b128') and len(grp) >= 2 and grp[-2][0].startswith('s_mov_b64 exec, s['): glue = True
                if not glue:
                    seq.append((16 * py + idx, grp)); grp = []
            if grp: seq.append((16 * py + idx, grp))
    qi = 0
    ismem = lambda t: t.startswith(('ds_', 'buffer_'))
    isvalu = lambda t: t.startswith('v_') and not t.startswith('v_mfma')
    real = lambda: [t for t in out if not t.startswith(';')]
    lastpos = {}
    nis = [0]
    def put(t, tag=None):
        if tag: emit_lds(t, tag)
        else: out.append(t)
        if not t.startswith(';'): nis[0] += 1
    def emit_group():
        nonlocal qi
        for t, tag in seq[qi][1]: put(t, tag)
        qi += 1
    def first_real(grp):
        for t, _ in grp:
            if not t.startswith(('s_', 'WAITL')): return t
        return grp[0][0]
    for py in range(6):
        for idx in range(16):
            R, C = divmod(idx, 4)
            sl = 16 * py + idx
            if idx == 0 and py in (0, 2, 4): out.append(f';MARK{py}')
            if C == 0:
                n0 = len(out); need(('row', py + R)); nis[0] += len(out) - n0
            for px in range(2):
                aa = ACC + 8 * (py & 1) + 4 * px
                c = '0' if idx == 0 else v(aa, 4)
                if idx == 0 and py >= 2:
                    pendcvt = [t for _, g in seq[qi:] for t, _ in g if t.startswith('v_cvt_pk_bf16') and f'v{aa},' in t + ',' and False]
                    assert not any(t.startswith('v_cvt_pk_bf16') and any(f' v{aa+j},' in t or t.endswith(f' v{aa+j}') for j in range(4)) and e <= 16 * (py - 1) + 15 for e, g in seq[qi:] for t, _ in g), 'yout too late'
                if idx > 0 and nis[0] - lastpos[aa] - 1 < 2: put('s_nop 0')
                if idx > 0 and nis[0] - lastpos[aa] - 1 < 2: put('s_nop 0')
                lastpos[aa] = nis[0]
                put(f'{M4} {v(aa,4)}, {a(Wt(k,R,C),2)}, {v(blk(py+R, px+C),2)}, {c}')
                if not INTER[0] and px == 0: continue
                prev_valu = False
                if qi < len(seq) and seq[qi][0] <= sl:
                    g0 = seq[qi][1]; emit_group(); prev_valu = isvalu(g0[-1][0])
                if px == 1:
                    while qi < len(seq) and seq[qi][0] <= sl and (seq[qi][0] <= sl - SPREAD[0] or sl == 95):
                        late = seq[qi][0] <= sl - SPREAD[0] - 3 or sl == 95
                        if INTER[0] and prev_valu and ismem(first_real(seq[qi][1])) and not late: break
                        g0 = seq[qi][1]; emit_group(); prev_valu = isvalu(g0[-1][0])
    assert qi == len(seq)
    out += [';MARK6', 's_nop 4'] + yout(5)
    return out

def resolve_l(stages):
    seq = []
    for si in range(3):
        for st in stages: seq.append(st)
    fifo = []
    need = {r: [] for r in range(4)}
    for si, st in enumerate(seq):
        for t in st:
            if t.startswith('WAITL:'):
                r = int(t[6:])
                if si >= 1:
                    idx = max(i for i, x in enumerate(fifo) if x == (si - 1, f'l{r}'))
                    need[r].append(len(fifo) - 1 - idx)
            elif ';@' in t: fifo.append((si, t.split(';@')[1].strip()))
    return {r: min(x) for r, x in need.items()}

def ln_block(cfg):
    NP = 3
    out = []
    t = ACC
    s1 = [t + p for p in range(NP)]; s2 = [t + 3 + p for p in range(NP)]
    for i in range(24):
        for p in range(NP):
            r = Y0 + 24 * p + i
            c1 = '0' if i == 0 else f'v{s1[p]}'; c2 = '0' if i == 0 else f'v{s2[p]}'
            out.append(f'v_dot2_f32_bf16 v{s1[p]}, v{r}, s{sOnes}, {c1}')
            out.append(f'v_dot2_f32_bf16 v{s2[p]}, v{r}, v{r}, {c2}')
    out.append('s_nop 2')
    allr = s1 + s2
    tm = [t + 12 + i for i in range(len(allr))]
    for sw in ('v_permlane16_swap_b32', 'v_permlane32_swap_b32'):
        for r, q in zip(allr, tm): out.append(f'v_mov_b32 v{q}, v{r}')
        out.append('s_nop 1')
        for r, q in zip(allr, tm): out.append(f'{sw} v{q}, v{r}')
        out.append('s_nop 1')
        for r, q in zip(allr, tm): out.append(f'v_add_f32 v{r}, v{r}, v{q}')
    rs = [t + 6 + 2 * p for p in range(NP)]; nb = [t + 18 + 2 * p for p in range(NP)]
    for p in range(NP): out.append(f'v_mul_f32 v{s1[p]}, s{sInv}, v{s1[p]}')
    for p in range(NP): out.append(f'v_mul_f32 v{s2[p]}, s{sInv}, v{s2[p]}')
    for p in range(NP): out.append(f'v_fma_f32 v{s2[p]}, -v{s1[p]}, v{s1[p]}, v{s2[p]}')
    for p in range(NP): out.append(f'v_max_f32 v{s2[p]}, 0, v{s2[p]}')
    for p in range(NP): out.append(f'v_add_f32 v{s2[p]}, s{sEps}, v{s2[p]}')
    for p in range(NP): out.append(f'v_rsq_f32 v{rs[p]}, v{s2[p]}')
    out.append('s_nop 0')
    for p in range(NP): out.append(f'v_mul_f32 v{rs[p]}, s{sAl}, v{rs[p]}')
    for p in range(NP): out.append(f'v_mul_f32 v{nb[p]}, -v{s1[p]}, v{rs[p]}')
    k = 0
    for p in range(NP):
        for s in range(6):
            for d in range(4):
                r = Y(p, s) + d
                x0 = t + 12 + 2 * (k % 3); x1 = x0 + 1; k += 1
                out.append(f'v_lshlrev_b32 v{x0}, 16, v{r}')
                out.append(f'v_and_b32 v{x1}, 0xffff0000, v{r}')
                if cfg.ln_pk:
                    out.append(f'v_pk_fma_f32 v[{x0}:{x1}], v[{x0}:{x1}], v[{rs[p]}:{rs[p]+1}], v[{nb[p]}:{nb[p]+1}] op_sel_hi:[1,0,0]')
                else:
                    out.append(f'v_fma_f32 v{x0}, v{x0}, v{rs[p]}, v{nb[p]}')
                    out.append(f'v_fma_f32 v{x1}, v{x1}, v{rs[p]}, v{nb[p]}')
                out.append(f'v_cvt_pk_bf16_f32 v{r}, v{x0}, v{x1}')
    return out

def pack_loads(lab, dst, t, lane):
    out = [f's_mul_hi_u32 s46, s{sPkF}, {(1 << 32) // 24 + 1}',
           f's_mul_i32 s47, s46, 24', f's_sub_u32 s{sPkf}, s{sPkF}, s47',
           f'v_and_b32 v{t}, 15, v{lane}', f'v_lshrrev_b32 v{t+1}, 4, v{lane}',
           f's_cmp_lt_u32 s{sPkf}, 12', f's_cbranch_scc0 {lab}_pk2']
    out += [f's_add_u32 s48, s46, 1', f's_cmp_eq_u32 s48, 24', f's_cselect_b32 s48, 0, s48',
            f's_lshr_b32 s49, s{sPkf}, 1', f's_and_b32 s50, s{sPkf}, 1',
            f's_lshl_b32 s48, s48, 6', f's_lshl_b32 s50, s50, 5', f's_add_u32 s48, s48, s50',
            f's_mul_i32 s49, s49, {32*1536}', f's_add_u32 s48, s48, s49',
            f'v_mul_u32_u24 v{t+2}, {8*1536}, v{t+1}', f'v_lshl_add_u32 v{t+2}, v{t}, 1, v{t+2}',
            f's_mov_b32 s{sM}, s52', f's_mov_b32 s{sM+1}, s53', f's_mov_b32 s{sM+2}, {192*768*2}', f's_mov_b32 s{sM+3}, 0x20000']
    for e in range(8):
        out.append(f's_add_u32 s49, s48, {e*1536}')
        out.append(f'buffer_load_ushort v{dst+e}, v{t+2}, s[{sM}:{sM+3}], s49 offen')
    out += [f's_branch {lab}_pk3', f'{lab}_pk2:']
    out += [f's_add_u32 s48, s46, 23', f's_cmp_ge_u32 s48, 24', f's_cselect_b32 s49, 24, 0', f's_sub_u32 s48, s48, s49',
            f's_sub_u32 s49, s{sPkf}, 12', f's_lshr_b32 s50, s49, 1', f's_and_b32 s49, s49, 1',
            f's_mul_i32 s48, s48, {32*384}', f's_lshl_b32 s50, s50, 6', f's_lshl_b32 s49, s49, 3',
            f's_add_u32 s48, s48, s50', f's_add_u32 s48, s48, s49',
            f'v_lshrrev_b32 v{t+3}, 2, v{t}', f'v_lshlrev_b32 v{t+3}, 4, v{t+3}',
            f'v_and_b32 v{t+4}, 3, v{t}', f'v_lshl_add_u32 v{t+3}, v{t+4}, 1, v{t+3}',
            f'v_mul_u32_u24 v{t+2}, {4*384}, v{t+1}', f'v_add_u32 v{t+2}, v{t+2}, v{t+3}',
            f's_mov_b32 s{sM}, s54', f's_mov_b32 s{sM+1}, s55', f's_mov_b32 s{sM+2}, {192*768*2}', f's_mov_b32 s{sM+3}, 0x20000']
    for e in range(8):
        out.append(f's_add_u32 s49, s48, {(16*(e>>2) + (e&3))*384}')
        out.append(f'buffer_load_ushort v{dst+e}, v{t+2}, s[{sM}:{sM+3}], s49 offen')
    out += [f'{lab}_pk3:']
    return out

def pack_store(lab, cfg, src, dst):
    out = []
    for d in range(4): out.append(f'v_lshl_or_b32 v{dst+d}, v{src+2*d+1}, 16, v{src+2*d}')
    if cfg.f16:
        out += [f's_cmp_lt_u32 s{sPkf}, 12', f's_cbranch_scc1 {lab}_pk5']
        for e in range(8): out.append(f'v_lshlrev_b32 v{src+e}, 16, v{src+e}')
        for d in range(4): out.append(f'v_cvt_pk_f16_f32 v{dst+d}, v{src+2*d}, v{src+2*d+1}')
        out.append(f'{lab}_pk5:')
    out += [f's_add_u32 s{sM}, s38, {WS_W}', f's_addc_u32 s{sM+1}, s39, 0', f's_mov_b32 s{sM+2}, {W_BYTES}', f's_mov_b32 s{sM+3}, 0x20000',
            f's_lshl_b32 s3, s{sPkF}, 10',
            f'buffer_store_dwordx4 {v(dst,4)}, v{vL16}, s[{sM}:{sM+3}], s3 offen sc1']
    return out

def gen(cfg, name='fused_kernel'):
    k2.MF2[0] = 'v_mfma_f32_16x16x32_f16' if cfg.f16 else k2.MF
    SPREAD[0] = cfg.spread
    INTER[0] = cfg.inter
    PROG[0] = cfg.prog
    EVEN[0] = EVENS.get(cfg.even)
    k2.SNAKE[0] = cfg.snake
    P = []; TR = []
    n3 = [0]
    def st3():
        if cfg.light3 and n3[0] in cfg.l3sel:
            j = cfg.l3sel.index(n3[0])
            P.extend([f's_memtime s[{82+2*j}:{83+2*j}]'])
        n3[0] += 1
        if False:
            P.extend(['s_memtime s[102:103]' if False else 's_memtime s[98:99]', 's_waitcnt lgkmcnt(0)', f'v_writelane_b32 v253, s98, {n3[0]}']); n3[0] += 1
    def emit(l, tr=True):
        P.extend(l)
        if tr: TR.extend([x for x in l if not x.endswith(':')])
    emit(['s_cmp_ge_u32 s2, 256', f's_cbranch_scc1 {name}_done'])
    if cfg.allwg: P += ['s_memrealtime s[82:83]']
    if cfg.light: P += ['s_memtime s[6:7]', 's_memrealtime s[8:9]', 's_waitcnt lgkmcnt(0)', 's_mov_b32 s82, s6', 's_mov_b32 s83, s8']
    st3()
    emit(['s_load_dwordx4 s[4:7], s[0:1], 0',
          's_load_dwordx2 s[38:39], s[0:1], 48',
          's_load_dwordx4 s[52:55], s[0:1], 16',
          'v_lshrrev_b32 v1, 6, v0', 'v_and_b32 v0, 63, v0', 's_nop 0',
          f'v_readfirstlane_b32 s{sWave}, v1',
          f's_mov_b32 s{sIMG}, {IMG_BYTES}', f's_mov_b32 s{sOnes}, 0x3f803f80',
          f's_mov_b32 s{sSelL}, 0x05040100', f's_mov_b32 s{sSelH}, 0x07060302',
          f's_mov_b32 s{sAl}, {hex(f2u(ALPHA))}', f's_mov_b32 s{sEps}, {hex(f2u(1e-5))}', f's_mov_b32 s{sInv}, {hex(f2u(1.0/192))}',
          f'v_lshlrev_b32 v{vL16}, 4, v0', f'v_mov_b32 v{vZ}, 0',
          's_waitcnt lgkmcnt(0)',
          f's_mov_b32 s{sX}, s4', f's_mov_b32 s{sX+1}, s5', f's_mov_b32 s{sX+2}, {IMG_BYTES}', f's_mov_b32 s{sX+3}, 0x20000',
          f's_mov_b32 s{sD}, s6', f's_mov_b32 s{sD+1}, s7', f's_mov_b32 s{sD+2}, {49*384}', f's_mov_b32 s{sD+3}, 0x20000',
          f's_add_u32 s{sH}, s38, {WS_H}', f's_addc_u32 s{sH+1}, s39, 0', f's_mov_b32 s{sH+2}, {IMG_BYTES}', f's_mov_b32 s{sH+3}, 0x20000',
          f's_load_dwordx2 s[{sDbg}:{sDbg+1}], s[0:1], 40', f's_mov_b32 s{sTI}, 0'])
    st3()
    t = Y0
    c = []
    for j in range(4):
        c += [f'v_add_u32 v{t}, {64*j}, v0', f'v_mul_u32_u24 v{t+1}, 2622, v{t}', f'v_lshrrev_b32 v{t+1}, 16, v{t+1}',
              f'v_mul_u32_u24 v{t+2}, 25, v{t+1}', f'v_sub_u32 v{t+2}, v{t}, v{t+2}',
              f'v_subrev_u32 v{t+1}, 1, v{t+1}', f'v_cmp_gt_u32 vcc, 7, v{t+1}', f'v_cmp_gt_u32 s[44:45], 24, v{t+2}',
              f'v_mul_u32_u24 v{t+1}, 384, v{t+1}', f'v_lshl_add_u32 v{t+1}, v{t+2}, 4, v{t+1}', f's_and_b64 vcc, vcc, s[44:45]',
              f'v_subrev_u32 v{t+1}, {1024*j}, v{t+1}' if False else 's_nop 0',
              f'v_cndmask_b32 v{t+8+j}, 2.0, v{t+1}, vcc']
    emit(c)
    c = []
    for m in range(3):
        blk_ = [f's_add_u32 s{sT}, s{sWave}, {4*m}', f's_sub_u32 s{sT2}, s{sT}, 1', f's_cmp_lt_u32 s{sT2}, 7', f's_mul_i32 s{sT2}, s{sT2}, {7*384}',
                f's_cselect_b32 s{sT2}, s{sT2}, 0x70000000', f's_mul_i32 s{sT}, s{sT}, {ROWS}', f's_add_u32 s{sT}, s{sT}, {DWB}']
        for j in range(4):
            blk_ += [f's_add_u32 m0, s{sT}, {1024*j}', 's_nop 0']
            if j == 3: blk_ += ['s_mov_b32 exec_hi, 3']
            blk_ += [f'buffer_load_dwordx4 v{t+8+j}, s[{sD}:{sD+3}], s{sT2} offen lds']
            if j == 3: blk_ += ['s_mov_b32 exec_hi, -1']
        if m < 2: c += blk_
        else: c += [f's_cmp_eq_u32 s{sWave}, 0', f's_cbranch_scc0 {name}_nor8'] + blk_ + [f'{name}_nor8:']
    emit(c)
    pk = [f's_mov_b32 s{sPkF}, -1', f's_cmp_lt_u32 s2, {NPKWG if not cfg.force_fb else 0}', f's_cbranch_scc0 {name}_nopk',
          f's_lshl_b32 s44, s2, 3', f's_lshl_b32 s45, s{sWave}, 1', f's_add_u32 s{sPkF}, s44, s45']
    pk += pack_loads(f'{name}_a', Y0 + 32, ACC, 0) + [f's_add_u32 s{sPkF}, s{sPkF}, 1'] + pack_loads(f'{name}_a2', Y0 + 41, ACC, 0) + [f'{name}_nopk:']
    st3()
    if not cfg.nosync: P += pk
    st3()
    c = [f'v_and_b32 v{t}, 7, v0', f'v_lshrrev_b32 v{t+1}, 3, v0']
    for r in range(4):
        if r < 3: c += [f's_lshl_b32 s{sT}, s{sWave}, 3', f's_add_u32 s{sT}, s{sT}, {32*r}', f'v_add_u32 v{t+2}, s{sT}, v{t+1}']
        else:
            c += [f'v_add_u32 v{t+2}, 96, v{t+1}', f'v_cmp_gt_u32 s[{sMk3}:{sMk3+1}], 24, v0']
        c += [f'v_mul_u32_u24 v{t+3}, 745, v{t+2}', f'v_lshrrev_b32 v{t+3}, 13, v{t+3}',
              f'v_mul_u32_u24 v{t+4}, 11, v{t+3}', f'v_sub_u32 v{t+4}, v{t+2}, v{t+4}',
              f'v_mul_u32_u24 v{t+5}, {2*384}, v{t+3}', f'v_lshl_add_u32 v{t+5}, v{t+4}, 1, v{t+5}',
              f'v_mul_u32_u24 v{t+5}, 384, v{t+5}',
              f'v_lshl_add_u32 v{vRel+r}, v{t}, 4, v{t+5}']
        for dx in range(2):
            mL = sMaskL + 2 * (2 * r + dx); mR = sMaskR + 2 * (2 * r + dx)
            c += [f'v_lshl_add_u32 v{t+6}, v{t+4}, 1, {dx}',
                  f'v_cmp_lt_u32 s[{mL}:{mL+1}], 2, v{t+6}', f'v_cmp_gt_u32 s[{mR}:{mR+1}], 19, v{t+6}']
            if r == 3:
                c += ['s_nop 1', f's_and_b64 s[{mL}:{mL+1}], s[{mL}:{mL+1}], s[{sMk3}:{sMk3+1}]', f's_and_b64 s[{mR}:{mR+1}], s[{mR}:{mR+1}], s[{sMk3}:{sMk3+1}]']
        if r == 0: c += [f'v_mul_u32_u24 v{vLw}, {REC}, v{t+2}']
        if r == 3:
            c += [f's_lshl_b32 s{sT}, s{sWave}, 2', f'v_add_u32 v{vRel+3}, s{sT}, v{vRel+3}',
                  f'v_cndmask_b32 v{vRel+3}, 2.0, v{vRel+3}, s[{sMk3}:{sMk3+1}]',
                  f'v_mul_u32_u24 v{vLw3}, {REC}, v{t+2}', f'v_xor_b32 v{t+6}, s{sWave}, v{t}', f'v_lshl_add_u32 v{vLw3}, v{t+6}, 4, v{vLw3}',
                  f's_lshl_b32 s{sT}, s{sWave}, 7', f'v_add_u32 v{vLw3}, s{sT}, v{vLw3}']
    c += [f'v_lshrrev_b32 v{t}, 2, v0', f'v_and_b32 v{t+1}, 3, v0', f'v_lshrrev_b32 v{t+2}, 3, v{t}',
          f's_lshl_b32 s{sT}, s{sWave}, 1',
          f'v_add_u32 v{t+2}, s{sT}, v{t+2}', f'v_bfe_u32 v{t+3}, v{t}, 1, 2', f'v_xor_b32 v{t+4}, v{t+2}, v{t+3}',
          f'v_lshlrev_b32 v{t+4}, 1, v{t+4}', f'v_lshl_add_u32 v{t+4}, v{t+3}, 4, v{t+4}',
          f'v_and_b32 v{t+5}, 1, v{t}', f'v_add_u32 v{t+4}, v{t+4}, v{t+5}', f'v_lshlrev_b32 v{t+4}, 3, v{t+4}',
          f'v_mul_u32_u24 v{t+5}, {2*REC}, v{t+1}', f'v_add_u32 v{vRd}, v{t+4}, v{t+5}']
    c += [f's_lshl_b32 s{sT2}, s{sWave}, 4', f'v_add_u32 v{t+7}, s{sT2}, v{t}',
          f'v_bfe_u32 v{t+8}, v{t+7}, 3, 1', f'v_lshlrev_b32 v{t+8}, 2, v{t+8}', f'v_xor_b32 v{t+7}, v{t+7}, v{t+8}',
          f'v_lshlrev_b32 v{t+7}, 5, v{t+7}', f'v_lshl_add_u32 v{t+7}, v{t+1}, 3, v{t+7}', f'v_add_u32 v{vY0}, {YB}, v{t+7}']
    c += [f'v_lshrrev_b32 v{t}, 4, v0', f'v_bfe_u32 v{t+1}, v0, 2, 2', f'v_and_b32 v{t+2}, 3, v0',
          f's_mul_i32 s{sT}, s{sWave}, {3*2048}', f's_add_u32 s{sT}, s{sT}, {YB}']
    for h, vr in ((0, vR0), (1, vR1)):
        c += [f'v_lshl_add_u32 v{t+3}, v{t}, 3, v{t+1}', f'v_add_u32 v{t+3}, {4*h}, v{t+3}',
              f'v_and_b32 v{t+4}, 1, v{t}', f'v_lshlrev_b32 v{t+4}, 2, v{t+4}', f'v_xor_b32 v{t+3}, v{t+3}, v{t+4}',
              f'v_lshlrev_b32 v{t+3}, 5, v{t+3}', f'v_lshl_add_u32 v{t+3}, v{t+2}, 3, v{t+3}', f'v_add_u32 v{vr}, s{sT}, v{t+3}']
    vb = VO + 15 + 1
    c += [f'v_lshrrev_b32 v{t}, 2, v0', f's_lshl_b32 s{sT}, s{sWave}, 5', f'v_lshlrev_b32 v{t}, 1, v{t}', f'v_add_u32 v{t}, s{sT}, v{t}',
          f'v_bfe_u32 v{t+1}, v0, 1, 1', f'v_mul_u32_u24 v{t+1}, {ROWS}, v{t+1}', f'v_and_b32 v{t+2}, 1, v0', f'v_mul_u32_u24 v{t+2}, {TAPS}, v{t+2}',
          f'v_add_u32 v{t+1}, v{t+1}, v{t+2}', f'v_sub_u32 v{t}, v{t}, v{t+1}', f'v_add_u32 v{vb}, {DWB}, v{t}',
          f'v_and_b32 v{vO16}, 7, v0', f'v_lshlrev_b32 v{vO16}, 4, v{vO16}']
    emit(c)
    tl = [0]
    def tile_setup(fetch):
        o = [f's_sub_u32 s24, 2, {fetch}',
             f's_lshr_b32 s25, s2, 3', f's_lshl_b32 s24, s24, 5', f's_add_u32 s25, s25, s24',
             f's_and_b32 s26, s2, 7', f's_lshl_b32 s26, s26, 2', f's_and_b32 s27, s25, 3', f's_add_u32 s26, s26, s27',
             f's_lshr_b32 s27, s25, 2',
             f's_mul_i32 s24, s26, {12*384}', f's_lshl_b32 s25, s27, 4', f's_add_u32 s24, s24, s25',
             f's_sub_u32 s24, s24, {3*384+3}', f's_mul_i32 s{sBase}, s24, 384',
             f's_cmp_eq_u32 {fetch}, 3', f's_cselect_b32 s{sBase}, 0x60000000, s{sBase}']
        if cfg.diag_nox: o += [f's_mov_b32 s{sBase}, 0x60000000']
        tl[0] += 1; lab = f'{name}_to{tl[0]}'
        fast = []
        for dy in range(2):
            for dx in range(2):
                fast += [f's_add_u32 s24, s{sBase}, {147456*dy + 384*dx}'] + [f'v_add_u32 v{vo(r,dy,dx)}, s24, v{vRel+r}' for r in range(4)]
        o += [f's_sub_u32 s25, s27, 1', f's_cmp_lt_u32 s25, 22', f's_cselect_b32 s25, 1, 0', f's_cmp_eq_u32 s26, 0', f's_cselect_b32 s25, 0, s25',
              f's_cmp_eq_u32 s{sBase}, 0x60000000', f's_cselect_b32 s25, 1, s25', f's_cmp_eq_u32 s25, 0', f's_cbranch_scc1 {lab}_slow']
        return o + fast + [f's_branch {lab}_done', f'{lab}_slow:'] + tile_offsets() + [f'{lab}_done:']
    strip = lambda l: [x.split(' ;@')[0] for x in l]
    def store_bases():
        o = [f's_mul_i32 s25, s2, 3', f's_add_u32 s25, s25, 2', f's_mul_i32 s25, s25, 12', f's_mul_i32 s26, s{sWave}, 3', f's_add_u32 s25, s25, s26',
             f's_mul_i32 s25, s25, 6144', f's_add_u32 s26, s25, 3072',
             f's_cmp_eq_u32 s{sTI}, {1 if not cfg.diag_nost else 9}', f's_cselect_b32 s{sSt3}, s25, 0x70000000',
             f's_cmp_eq_u32 s{sTI}, {2 if not cfg.diag_nost else 9}', f's_cselect_b32 s{sSt3+3}, s26, 0x70000000']
        for b in (sSt3, sSt3 + 3): o += [f's_add_u32 s{b+1}, s{b}, 6144', f's_add_u32 s{b+2}, s{b}, 12288']
        return o
    emit(tile_setup('0'))
    emit(strip(sum(load_items(cfg, 0, 0), [])))
    st3()
    emit(['s_waitcnt vmcnt(16) lgkmcnt(0)'])
    st3()
    emit(['s_barrier'])
    st3()
    if not cfg.nosync:
        P += [f's_cmp_eq_u32 s{sPkF}, -1', f's_cbranch_scc1 {name}_nops'] + pack_store(f'{name}_b', cfg, Y0 + 41, Y0)
        P += [f's_sub_u32 s{sPkF}, s{sPkF}, 1', f's_sub_u32 s{sPkf}, s{sPkf}, 1'] + pack_store(f'{name}_b2', cfg, Y0 + 32, Y0 + 4) + ['s_nop 1', f'{name}_nops:']
    emit(weights_gather(vb))
    st3()
    emit(['s_waitcnt vmcnt(0)'])
    st3()
    emit([f'v_add_u32 v{vLw}, {SLAB}, v{vLw}', f'v_add_u32 v{vLw3}, {SLAB}, v{vLw3}', f'v_add_u32 v{vRd}, {SLAB}, v{vRd}'])
    for r in range(4):
        for d in range(4): emit(transpose_unit(r, d, 0))
    dfr = lambda k: (k - 1 if (cfg.defer_y and k > 0) else None)
    raw = {k: conv_stage(k, 0, load_items(cfg, (k + 2) % 3, 0), store_items(cfg, k), defer=dfr(k)) for k in range(3)}
    nw = resolve_l([raw[0], raw[1], raw[2]])
    fix = lambda l: [(f's_waitcnt vmcnt({nw[int(x[6:])]})' if x.startswith('WAITL:') else x.split(' ;@')[0]) for x in l]
    body = {key: fix(val) for key, val in raw.items()}
    tags = [x.split(';@')[1].strip() for x in raw[0] if ';@' in x]
    tags = tags[[i for i, x in enumerate(tags) if x.startswith('l')][0]:]
    l1 = strip(sum(load_items(cfg, 1, 0), []))
    emit([f's_mov_b32 s{sT}, 0x70000000'])
    for tg in tags:
        emit([l1.pop(0)] if tg.startswith('l') else [f'buffer_store_dword v{vA}, v{vL16}, s[{sH}:{sH+3}], s{sT} offen'])
    assert not l1
    emit([f'v_subrev_u32 v{vLw}, {SLAB}, v{vLw}', f'v_subrev_u32 v{vLw3}, {SLAB}, v{vLw3}', f's_mov_b32 s{sDS}, {-SLAB & 0xffffffff}', f's_mov_b32 s{sDY}, 24576', f's_mov_b32 s{sDR}, 24576',
          's_waitcnt lgkmcnt(0)'])
    st3()
    emit(['s_barrier'])
    st3()
    if not cfg.nosync:
        P += [f's_cmp_eq_u32 s{sPkF}, -1', f's_cbranch_scc1 {name}_nopub', f's_cmp_eq_u32 s{sWave}, 0', f's_cbranch_scc0 {name}_nopub',
              f'v_mov_b32 v{vB}, 1', 's_mov_b32 exec_lo, 1', 's_mov_b32 exec_hi, 0',
              f'global_atomic_add v{vZ}, v{vB}, s[{sDbg}:{sDbg+1}]', 's_mov_b64 exec, -1', f'{name}_nopub:']
    def after(k, vm=None):
        o = ([f's_waitcnt vmcnt({vm})'] if vm is not None else []) + ['s_waitcnt lgkmcnt(0)', 's_barrier']
        if k == 2 or not cfg.defer_y:
            rd, tg = yin(k)
            o += rd + tg
        o += [f'v_add_u32 v{vRd}, s{sDS}, v{vRd}', f'v_subrev_u32 v{vLw}, s{sDS}, v{vLw}', f'v_subrev_u32 v{vLw3}, s{sDS}, v{vLw3}',
              f'v_add_u32 v{vY0}, s{sDY}, v{vY0}',
              f's_sub_u32 s{sDS}, 0, s{sDS}', f's_sub_u32 s{sDY}, 0, s{sDY}']
        return o
    sn = [0]
    def st2():
        if not cfg.light2: return []
        sn[0] += 1
        return [f's_cmp_eq_u32 s{sTI}, {cfg.l2tile}', f's_cbranch_scc0 {name}_s2_{sn[0]}', f's_memtime s[{STAMP0-2+2*((sn[0]-1)%5+1)}:{STAMP0-1+2*((sn[0]-1)%5+1)}]', f'{name}_s2_{sn[0]}:']
    lns = ln_block(cfg)
    K = k2
    emit([f's_mov_b32 s{sTI}, 0'])
    P += ['.p2align 6', f'{name}_tile:']
    P += st2()
    emit(store_bases())
    emit(body[0] + after(0))
    P += st2()
    emit([f's_add_u32 s3, s{sTI}, 1'] + tile_setup('s3'))
    if cfg.light4:
        b1 = []; n = [0]
        def stmp():
            n[0] += 1; j = n[0] - 1
            return [f's_cmp_eq_u32 s{sTI}, {cfg.l2tile}', f's_cbranch_scc0 {name}_l4_{j}', f's_memtime s[{82+2*j}:{83+2*j}]', f'{name}_l4_{j}:']
        b1 += stmp()
        for x in body[1]:
            if x.startswith(';MARK') and x[5] in cfg.l4sel: b1 += stmp()
            else: b1.append(x)
        af = after(1)
        if 'e' in cfg.l4sel: b1 += stmp() + af[:1] + stmp() + af[1:2] + stmp() + af[2:]
        else: b1 += af
        P += b1; TR += body[1] + after(1)
    else:
        nvm1 = sum(1 for x in body[1] if x.startswith('buffer_'))
        emit(body[1] + after(1, nvm1))
    P += st2()
    pre = [f's_add_u32 s{K.sW}, s38, {WS_W}', f's_addc_u32 s{K.sW+1}, s39, 0', f's_mov_b32 s{K.sW+2}, {W_BYTES}', f's_mov_b32 s{K.sW+3}, 0x20000',
           f's_mul_i32 s{K.sWoff}, s40, 12288', f's_cmp_eq_u32 s40, 1', f's_cselect_b32 s24, {23*24576}, s{K.sWoff}']
    its = []
    for i in range(12):
        it = []
        if i % 4 == 0: it += [f's_add_u32 m0, s{K.sWoff}, {4096*(i//4)}', f's_add_u32 s{sT}, s24, {4096*(i//4)}', 's_nop 0']
        it.append(f'buffer_load_dwordx4 v{vL16}, s[{K.sW}:{K.sW+3}], s{sT} offen offset:{1024*(i%4)} lds')
        its.append(it)
    xbase = [f's_lshr_b32 s24, s2, 3', f's_and_b32 s25, s2, 7', f's_lshl_b32 s25, s25, 2', f's_and_b32 s26, s24, 3', f's_add_u32 s25, s25, s26',
             f's_lshr_b32 s24, s24, 2', f's_mul_i32 s25, s25, 12', f's_mul_i32 s26, s40, 3', f's_add_u32 s25, s25, s26',
             f's_mul_i32 s25, s25, 24', f's_add_u32 s25, s25, s24', f's_mul_i32 s{K.sBX}, s25, 6144']
    vgs = [f'v_and_b32 v{vA}, 0xf0, v{vL16}', f'v_mul_u32_u24 v{K.vG}, 24, v{vA}', f'v_lshrrev_b32 v{vA}, 4, v{vL16}', f'v_and_b32 v{vA}, 0x30, v{vA}',
           f'v_add_u32 v{K.vG}, v{K.vG}, v{vA}']
    xl = lambda p, s_: f'buffer_load_dwordx4 {a(K.pxreg(p,s_), 4)}, v{K.vG}, s[{K.sX}:{K.sX+3}], s{48+p} offen offset:{64*s_}' + (' nt' if cfg.nt_x else '')
    pre = xbase + [f's_mov_b32 s48, s{K.sBX}', f's_add_u32 s49, s48, {cfg.xps}', f's_add_u32 s50, s49, {cfg.xps}'] + vgs + pre
    xearly = [(p, s_) for p in range(3) for s_ in range(6) if K.pxreg(p, s_) + 3 < Wt(2, 0, 0)]
    xlate = [(p, s_) for p in range(3) for s_ in range(6) if (p, s_) not in xearly]
    cl = strip(conv_stage(2, 0, its, store_items(cfg, 2), transp=False, xtra=[[xl(p, s_)] for p, s_ in xearly], defer=dfr(2)))
    P += [f's_cmp_eq_u32 s{sTI}, 2', f's_cbranch_scc0 {name}_nl'] + pre + cl + after(2) + [f's_branch {name}_last', f'{name}_nl:']
    if not cfg.nosync:
        P += [f's_cmp_eq_u32 s{sTI}, 1', f's_cbranch_scc0 {name}_nopoll', f's_cmp_eq_u32 s{sWave}, 0', f's_cbranch_scc0 {name}_nopoll',
              f'global_load_dword v{vP}, v{vZ}, s[{sDbg}:{sDbg+1}] sc1', f'{name}_nopoll:']
    emit(body[2] + after(2) + ['s_waitcnt lgkmcnt(0)'])
    P += st2()
    if not cfg.nosync:
        ft = ACC
        fb = [f's_cmp_eq_u32 s{sTI}, 1', f's_cbranch_scc0 {name}_nochk', f's_cmp_eq_u32 s{sWave}, 0', f's_cbranch_scc0 {name}_nochk',
              f's_waitcnt vmcnt(22)', f'v_readfirstlane_b32 s44, v{vP}', 's_nop 3', f's_cmp_ge_u32 s44, {NPKWG + (1000 if cfg.force_fb else 0)}', f's_cbranch_scc1 {name}_acq',
              f's_mov_b32 s45, {cfg.spin}', f'{name}_spin:',
              f'global_load_dword v{vP}, v{vZ}, s[{sDbg}:{sDbg+1}] sc1', 's_waitcnt vmcnt(0)', f'v_readfirstlane_b32 s44, v{vP}', 's_nop 3',
              f's_cmp_ge_u32 s44, {NPKWG + (1000 if cfg.force_fb else 0)}', f's_cbranch_scc1 {name}_acq',
              's_sub_u32 s45, s45, 1', 's_cmp_lg_u32 s45, 0', f's_cbranch_scc1 {name}_spin',
              's_load_dwordx4 s[52:55], s[0:1], 16', f'v_lshrrev_b32 v{ft}, 4, v{vL16}', f's_mov_b32 s{sPkF}, 0', 's_waitcnt vmcnt(0) lgkmcnt(0)', f'{name}_self:']
        fb += pack_loads(f'{name}_c', ft + 8, ft + 1, ft) + ['s_waitcnt vmcnt(0)'] + pack_store(f'{name}_d', cfg, ft + 8, ft + 16)
        fb += ['s_waitcnt vmcnt(0)', f's_add_u32 s{sPkF}, s{sPkF}, 1', f's_cmp_lt_u32 s{sPkF}, {NPACK}', f's_cbranch_scc1 {name}_self',
               f'{name}_acq:', 'buffer_inv sc1', f'{name}_nochk:']
        P += fb
    P += [f's_call_b64 s[42:43], {name}_ln']; TR += lns
    wHold = [f'v_accvgpr_write_b32 a{HOLD+i}, v{Y0+i}' for i in range(72)]
    wP = [f'v_accvgpr_write_b32 a{K.PF0+i}, v{Y0+i}' for i in range(72)]
    P += [f's_cmp_eq_u32 s{sTI}, 1', f's_cbranch_scc1 {name}_ln1'] + wHold + [f's_branch {name}_lnd', f'{name}_ln1:'] + wP + [f'{name}_lnd:']
    TR += wHold + wP
    P += st2()
    P += [f's_add_u32 s{sTI}, s{sTI}, 1', f's_branch {name}_tile', f'{name}_last:']
    emit(['s_waitcnt vmcnt(0) lgkmcnt(0)', 's_barrier'])
    if cfg.allwg: P += ['s_memrealtime s[84:85]', 's_waitcnt lgkmcnt(0)']
    if cfg.light: P += ['s_memtime s[6:7]', 's_memrealtime s[24:25]', 's_waitcnt lgkmcnt(0)', 's_mov_b32 s84, s6', 's_mov_b32 s85, s24']
    emit(['s_load_dwordx2 s[6:7], s[0:1], 32',
          'v_mbcnt_lo_u32_b32 v0, -1, 0', 'v_mbcnt_hi_u32_b32 v0, -1, v0'])
    emit(K.gelu_consts(cfg) + K.ident_setup())
    emit([f's_add_u32 s{K.sW}, s38, {WS_W}', f's_addc_u32 s{K.sW+1}, s39, 0', f's_mov_b32 s{K.sW+2}, {W_BYTES}', f's_mov_b32 s{K.sW+3}, 0x20000',
          f's_mul_i32 s{K.sWoff}, s40, 12288',
          f's_mul_i32 s{K.sB}, s2, {36*6144}', f's_mul_i32 s41, s40, {3*6144}', f's_add_u32 s{K.sB}, s{K.sB}, s41',
          's_waitcnt lgkmcnt(0)',
          f's_mov_b32 s{K.sO}, s6', f's_mov_b32 s{K.sO+1}, s7', f's_mov_b32 s{K.sO+2}, {IMG_BYTES}', f's_mov_b32 s{K.sO+3}, 0x20000'])
    emit(xbase + [f's_mov_b32 s48, s{K.sBX}', f's_add_u32 s49, s48, {cfg.xps}', f's_add_u32 s50, s49, {cfg.xps}'])
    emit(K.m_second_dma(cfg, 240) + [xl(p, s_) for p, s_ in xlate])
    P += [f's_call_b64 s[42:43], {name}_ln']; TR += lns
    emit([f'v_accvgpr_write_b32 a{K.H0+i}, v{Y0+i}' for i in range(72)])
    emit(K.m_g1_first(cfg, early=True))
    if cfg.light: P += ['s_memtime s[6:7]', 's_memrealtime s[4:5]', 's_waitcnt lgkmcnt(0)', 's_mov_b32 s86, s6', 's_mov_b32 s87, s4']
    mp, sub, tr = K.m_main(cfg, name)
    P += mp; TR += tr
    P += K.dump_stamps2(cfg, 13)
    if cfg.light:
        P += ['s_waitcnt vmcnt(0)', 's_memtime s[6:7]', 's_memrealtime s[4:5]', 's_load_dwordx2 s[8:9], s[0:1], 40', 's_waitcnt lgkmcnt(0)', 's_mov_b32 s88, s6', 's_mov_b32 s89, s4'] + [f'v_writelane_b32 v255, s{82+i}, {i}' for i in range(8)] + [
              's_cmp_eq_u32 s2, 17', f's_cbranch_scc0 {name}_done', 's_cmp_eq_u32 s40, 0', f's_cbranch_scc0 {name}_done',
              'v_mbcnt_lo_u32_b32 v0, -1, 0', 'v_mbcnt_hi_u32_b32 v0, -1, v0', 'v_lshlrev_b32 v1, 2, v0', 'v_cmp_gt_u32 vcc, 8, v0', 's_and_saveexec_b64 s[10:11], vcc',
              'global_store_dword v1, v255, s[8:9] offset:16']
    if cfg.allwg:
        P += ['s_waitcnt vmcnt(0)', 's_memrealtime s[86:87]', 's_cmp_eq_u32 s40, 0', f's_cbranch_scc0 {name}_done', 's_waitcnt lgkmcnt(0)',
              's_lshl_b32 s3, s2, 4', f's_add_u32 s3, s3, {200 << 20}', 'v_mov_b32 v5, s3',
              'v_mov_b32 v4, s82', 's_nop 1', 'global_store_dword v5, v4, s[38:39]',
              'v_mov_b32 v4, s84', 's_nop 1', 'global_store_dword v5, v4, s[38:39] offset:4',
              'v_mov_b32 v4, s86', 's_nop 1', 'global_store_dword v5, v4, s[38:39] offset:8']
    if cfg.light2 or cfg.light3 or cfg.light4:
        P += ['s_waitcnt vmcnt(0)', 's_load_dwordx2 s[8:9], s[0:1], 40', 's_waitcnt lgkmcnt(0)',
              's_cmp_eq_u32 s2, 17', f's_cbranch_scc0 {name}_done', 's_cmp_eq_u32 s40, 0', f's_cbranch_scc0 {name}_done']
        P += [f'v_writelane_b32 v255, s{STAMP0+2*i}, {i}' for i in range(5)]
        P += ['v_mbcnt_lo_u32_b32 v0, -1, 0', 'v_mbcnt_hi_u32_b32 v0, -1, v0', 'v_lshlrev_b32 v1, 2, v0', 'v_cmp_gt_u32 vcc, 5, v0', 's_and_saveexec_b64 s[10:11], vcc',
              'global_store_dword v1, v255, s[8:9] offset:64']
    P += [f'{name}_done:', 's_endpgm']
    P += ['.p2align 6', f'{name}_ln:'] + lns + ['s_setpc_b64 s[42:43]']
    P += sub
    return P, TR

def kd(name):
    return k2.kd(name)

if __name__ == '__main__':
    import asmlib
    P, TR = gen(Cfg)
    asmlib.check(TR, 'kf')
    print(len(P))
```

```python
import struct, math

def f2u(f): return struct.unpack('<I', struct.pack('<f', f))[0]
LOG2E = 1.4426950408889634
A1 = 2.0 * math.sqrt(2.0 / math.pi) * LOG2E
B1 = A1 * 0.044715
ALPHA = B1 ** (1.0 / 3.0)
CC = A1 / ALPHA

WS_W = 0
W_BYTES = 24 * 24576
WS_H = 1 << 20
IMG_BYTES = 384 * 384 * 192 * 2

vLds, vDma, vG = 1, 2, 3
vLdsS = (1, 4, 5)
T0 = 8
G0 = 24
S0 = 48
ACC = 96
H0, PF0, PX0, W0, I0 = 0, 72, 144, 216, 248
NB = 8
sW, sH, sX, sO = 8, 12, 16, 20
sPass, sJ, sDst, sDstSum, sSrc, sWoff, sB, sT, sT2, sNegC, sAlpha = 24, 25, 26, 27, 28, 29, 30, 31, 32, 34, 35
sB1, sRd = 36, 37
sRet = 42
sHx = 90
sLdH = 96 - 4
sSt, sLd = 44, 47
sLx, sBX = 95, 51
OOB = 0x70000000

def v(b, n=1): return f'v{b}' if n == 1 else f'v[{b}:{b+n-1}]'
def a(b, n=1): return f'a{b}' if n == 1 else f'a[{b}:{b+n-1}]'
def Sreg(buf, aa, p): return S0 + 24 * buf + 4 * (aa * 3 + p)
def Greg(buf, p): return G0 + 12 * buf + 4 * p
def acc(t, p): return ACC + 4 * (t * 3 + p)
def hreg(p, s): return H0 + 24 * p + 4 * s
def pfreg(p, s): return PF0 + 24 * p + 4 * s
def pxreg(p, s): return PX0 + 24 * p + 4 * s
MF = 'v_mfma_f32_16x16x32_bf16'

class Cfg:
    prof = False
    prof2 = False
    allwg = False
    profpass = 1
    plan = ['ssss', 'sssss', 'sssss', 'ssssh', 'hhhhh', 'hhhhh', 'hhhhh', 'hhxxx', 'xxxxx', 'xxxxx', 'xxxxx', '']
    xpos = [26, 30, 34, 38, 41]
    D = 5
    gsz = 4
    f16 = False
    warm = True
    sub = True
    hskip = False
    hout = False
    rend = False
    freeslot = False
    snake = False
    tail_lds = False
    tail_flags = None
    out_flags = None
    static_ring = False
    wevery = 2
    mid_vm = 12
    diag_nodma = False
    xps = 6144
    xts = 73728
    nt_h = False; nt_x = False; nt_o = False

def f2h(f):
    import numpy as np
    return int(np.float16(f).view(np.uint16))

def gelu_list16(buf, cfg):
    out = []
    grp = [(aa, p) for aa in range(2) for p in range(3)]
    for i in range(0, 6, 2):
        dw = []
        for gi, (aa, p) in enumerate(grp[i:i+2]):
            for d in range(2):
                n = (i // 2 % 2) * 8 + gi * 4 + d * 2
                u = Sreg(buf, aa, p) + 2 * d
                dw.append((u, u + 1, T0 + n, T0 + n + 1, Greg(buf, p) + 2 * aa + d))
        SD = lambda w: f'dst_sel:WORD_{w} dst_unused:UNUSED_PRESERVE src0_sel:WORD_{w}'
        for u0, u1, h, t, g in dw: out.append(f'v_cvt_pk_f16_f32 v{h}, v{u0}, v{u1}')
        for u0, u1, h, t, g in dw: out.append(f'v_pk_fma_f16 v{t}, v{h}, v{h}, s{sNegC} neg_lo:[1,0,0] neg_hi:[1,0,0]')
        for u0, u1, h, t, g in dw: out.append(f'v_pk_mul_f16 v{t}, v{t}, v{h}')
        for w in range(2):
            for u0, u1, h, t, g in dw: out.append(f'v_exp_f16_sdwa v{t}, v{t} {SD(w)}')
        for u0, u1, h, t, g in dw: out.append(f'v_pk_fma_f16 v{t}, v{t}, s{sAlpha}, s{sAlpha}')
        for w in range(2):
            for u0, u1, h, t, g in dw: out.append(f'v_rcp_f16_sdwa v{t}, v{t} {SD(w)}')
        for u0, u1, h, t, g in dw: out.append(f'v_pk_mul_f16 v{g}, v{h}, v{t}')
    return out

def gelu_list(buf, cfg):
    if cfg.f16: return gelu_list16(buf, cfg)
    out = []
    k = 0
    for aa in range(2):
        for p in range(3):
            es = [Sreg(buf, aa, p) + i for i in range(4)]
            ts = [T0 + (k % 2) * 4 + i for i in range(4)]
            k += 1
            for u, t in zip(es, ts): out.append(f'v_fma_f32 v{t}, -v{u}, v{u}, s{sNegC}')
            for u, t in zip(es, ts): out.append(f'v_mul_f32 v{t}, v{t}, v{u}')
            for u, t in zip(es, ts): out.append(f'v_exp_f32 v{t}, v{t}')
            for u, t in zip(es, ts): out.append(f'v_fma_f32 v{t}, v{t}, s{sAlpha}, s{sAlpha}')
            for u, t in zip(es, ts): out.append(f'v_rcp_f32 v{t}, v{t}')
            for u, t in zip(es, ts): out.append(f'v_mul_f32 v{t}, v{u}, v{t}')
            g = Greg(buf, p) + 2 * aa
            out.append(f'v_cvt_pk_bf16_f32 v{g}, v{ts[0]}, v{ts[1]}')
            out.append(f'v_cvt_pk_bf16_f32 v{g+1}, v{ts[2]}, v{ts[3]}')
    return out

def g1_groups(j):
    buf = (j + 1) & 1
    base = (j & 1) * 24576
    gs = []
    for s in range(6):
        for aa in range(2):
            gs.append((base + (2 * s + aa) * 1024,
                       [(lambda w, p=p, s=s, aa=aa: f'{MF} {v(Sreg(buf,aa,p),4)}, {a(w,4)}, {a(hreg(p,s),4)}, ' + ('0' if s == 0 else v(Sreg(buf,aa,p),4))) for p in porder(aa)]))
    return gs

MF2 = [MF]
SNAKE = [False]
def porder(i): return (2, 1, 0) if (SNAKE[0] and i % 2) else (0, 1, 2)
def g2_groups(j, zero=False):
    buf = (j - 1) & 1
    base = (j & 1) * 24576 + 12288
    gs = []
    for t in range(12):
        gs.append((base + t * 1024,
                   [(lambda w, p=p, t=t: f'{MF2[0]} {v(acc(t,p),4)}, {a(w,4)}, {v(Greg(buf,p),4)}, ' + ('0' if zero else v(acc(t,p),4))) for p in porder(t)]))
    return gs

def cost(t):
    op = t.split()[0]
    if op.startswith(('v_exp', 'v_rcp')): return 8
    return 4

def wbuf(g): return W0 + 4 * (g % NB)

def dma_block(k):
    return [f's_add_u32 m0, s{sDst}, {4096*k}', f's_add_u32 s{sT}, s{sSrc}, {4096*k}']
DTAG = ['dma']
def dma(i):
    return f'buffer_load_dwordx4 v{vDma}, s[{sW}:{sW+3}], s{sT} offen offset:{(i%4)*1024} lds ;@{DTAG[0]}'

def superstep(cfg, j0, mid=None, extra_valu=None, extra_at=None, bar_wait=None, dma_on=True, pre=None):
    J = j0 // 2
    sr = cfg.static_ring
    vcur = vLdsS[J % 3] if sr else vLds
    vnxt = vLdsS[(J + 1) % 3] if sr else vLds
    D = cfg.D
    groups = g1_groups(j0) + g2_groups(j0) + g1_groups(j0 + 1) + g2_groups(j0 + 1, zero=(cfg.rend and j0 == 0))
    nxt = g1_groups(j0)
    out = list(pre or [])
    fifo = list(range(0, D))
    waited = cfg.wevery - 1
    fifo = [g for g in fifo if g > waited]
    vl = [gelu_list(j0 & 1, cfg), gelu_list((j0 + 1) & 1, cfg)]
    extra_at = extra_at or {}
    reads_at = {g: [] for g in range(48)}
    for g in range(48):
        r = g + D
        if r <= 46 - 0 and g < 47 - D - 1: reads_at[g].append(r)
    reads_at[47 - D - 1] = [46, 47]
    reads_at[47 - D] = []
    for k in range(D): reads_at[48 - D + k].append(48 + k)
    fs = cfg.freeslot and sr
    dma_salu = lambda i: [f's_add_u32 m0, s{sWoff}, {((J + 2) % 3) * 49152 + 4096 * (i // 4)}', f's_add_u32 s{sT}, s{sWoff}, {((J + 2) % 12) * 49152 + 4096 * (i // 4)}']
    dma_at = {}
    if dma_on and not cfg.diag_nodma:
        for i in range(12): dma_at.setdefault(2 * i, []).append(i)
    for step in range(2):
        valu = list(vl[step])
        tot = sum(cost(t) for t in valu)
        done = 0; vi = 0
        ex = (extra_valu or {}).get(step)
        exi = 0
        for gl in range(24):
            g = step * 24 + gl
            ms = groups[g][1]
            for k, m in enumerate(ms):
                out.append(m(wbuf(g)))
                if k == 0:
                    if g == 48 - D:
                        out.append('s_waitcnt lgkmcnt(0)'); fifo = []; waited = 47
                        out += bar_wait or ['s_waitcnt vmcnt(0)']
                        out.append('s_barrier')
                        if not sr: out.append(f'v_add_u32 v{vLds}, s{sRd}, v{vDma}')
                    for r in reads_at[g]:
                        off = groups[r][0] if r < 48 else nxt[r - 48][0]
                        out.append(f'ds_read_b128 {a(wbuf(r),4)}, v{vcur if r < 48 else vnxt} offset:{off}')
                        fifo.append(r)
                    for i in dma_at.get(g, []):
                        if i % 4 == 0 and not (fs and g > 0):
                            if sr: out += dma_salu(i)
                            else: out += dma_block(i // 4) + ['s_nop 0']
                        out.append(dma(i))
                    if g == 38 and not sr:
                        out += [f's_add_u32 s{sRd}, s{sRd}, 49152', f's_cmp_eq_u32 s{sRd}, 147456', f's_cselect_b32 s{sRd}, 0, s{sRd}']
                    if not fs: out += extra_at.get(g, [])
                if fs:
                    nxt_dma = [i for i in dma_at.get(g + 1, []) if i % 4 == 0]
                    if k == 1:
                        if nxt_dma: out.append(dma_salu(nxt_dma[0])[0])
                        out += extra_at.get(g, [])
                    if k == 2:
                        we = cfg.wevery
                        if g % we == we - 1 and waited < g + we:
                            needg = g + we
                            pend = [r for r in fifo if r > needg]
                            if len(pend) < len(fifo): out.append(f's_waitcnt lgkmcnt({len(pend)})')
                            fifo = pend; waited = needg
                        if nxt_dma: out.append(dma_salu(nxt_dma[0])[1])
                mi = gl * 3 + k + 1
                target = tot * mi / 72.0
                while vi < len(valu) and done + cost(valu[vi]) / 2 <= target:
                    out.append(valu[vi]); done += cost(valu[vi]); vi += 1
                if mi == 72:
                    while vi < len(valu): out.append(valu[vi]); vi += 1
                if ex and ex[0] <= gl < ex[1]:
                    n = len(ex[2]); span = (ex[1] - ex[0]) * 3
                    upto = ((gl - ex[0]) * 3 + k + 1) * n // span
                    while exi < upto: out.append(ex[2][exi]); exi += 1
            we = cfg.wevery
            if g % we == we - 1:
                needg = g + we
                if waited < needg:
                    pend = [r for r in fifo if r > needg]
                    if len(pend) < len(fifo):
                        out.append(f's_waitcnt lgkmcnt({len(pend)})')
                    fifo = pend; waited = needg
        if step == 0 and mid: out += mid
    return out

def mid_block(cfg):
    out = []
    k = 0
    for p in range(3):
        for s in range(6):
            t = T0 + 8 + (k % 2) * 4; k += 1
            r0, r1 = acc(2 * s, p), acc(2 * s + 1, p)
            out.append(f'v_cvt_pk_bf16_f32 v{t}, v{r0}, v{r0+1}')
            out.append(f'v_cvt_pk_bf16_f32 v{t+1}, v{r0+2}, v{r0+3}')
            out.append(f'v_cvt_pk_bf16_f32 v{t+2}, v{r1}, v{r1+1}')
            out.append(f'v_cvt_pk_bf16_f32 v{t+3}, v{r1+2}, v{r1+3}')
            out.append(f'{MF} {v(acc(2*s,p),4)}, {a(I0,4)}, {a(pxreg(p,s),4)}, 0')
            out.append(f'{MF} {v(acc(2*s+1,p),4)}, {a(I0+4,4)}, {a(pxreg(p,s),4)}, 0')
            for i in range(4): out.append(f'v_accvgpr_write_b32 a{pxreg(p,s)+i}, v{t+i}')
    return out

def resid_mfmas(p, s):
    return [f'{MF} {v(acc(2*s,p),4)}, {a(I0,4)}, {a(pxreg(p,s),4)}, {v(acc(2*s,p),4)}',
            f'{MF} {v(acc(2*s+1,p),4)}, {a(I0+4,4)}, {a(pxreg(p,s),4)}, {v(acc(2*s+1,p),4)}']

def mid_block_rend(cfg):
    out = []
    items = [(p, s) for p in range(3) for s in range(6)]
    LAG = 2
    for i in range(18 + LAG):
        m = resid_mfmas(*items[i]) if i < 18 else []
        c = []; w = []
        j = i - LAG
        if j >= 0:
            p, s = items[j]; t = T0 + 8 + (j % 2) * 4
            r0, r1 = acc(2 * s, p), acc(2 * s + 1, p)
            c = [f'v_cvt_pk_bf16_f32 v{t}, v{r0}, v{r0+1}', f'v_cvt_pk_bf16_f32 v{t+1}, v{r0+2}, v{r0+3}',
                 f'v_cvt_pk_bf16_f32 v{t+2}, v{r1}, v{r1+1}', f'v_cvt_pk_bf16_f32 v{t+3}, v{r1+2}, v{r1+3}']
            w = [f'v_accvgpr_write_b32 a{pxreg(p,s)+q}, v{t+q}' for q in range(4)]
        if m: out += [m[0]] + c[:2] + [m[1]] + c[2:] + w
        else: out += c + w
        if i == 0 or i == 1: out += ['s_nop 3']
    return out

def tail_epilogue(cfg, sbase):
    out = []
    nt = ' nt' if cfg.nt_o else ''
    k = 0
    for p in range(3):
        out.append(f's_add_u32 s{sT2}, s{sbase}, {cfg.xps*p}')
        for s in range(6):
            t = T0 + (k % 4) * 4; k += 1
            r0, r1 = acc(2 * s, p), acc(2 * s + 1, p)
            out.append(f'v_cvt_pk_bf16_f32 v{t}, v{r0}, v{r0+1}')
            out.append(f'v_cvt_pk_bf16_f32 v{t+1}, v{r0+2}, v{r0+3}')
            out.append(f'v_cvt_pk_bf16_f32 v{t+2}, v{r1}, v{r1+1}')
            out.append(f'v_cvt_pk_bf16_f32 v{t+3}, v{r1+2}, v{r1+3}')
            out.append(f'buffer_store_dwordx4 {v(t,4)}, v{vG}, s[{sO}:{sO+3}], s{sT2} offen offset:{64*s}{nt}')
    return out

def tail_epilogue_lds(cfg, sbase):
    nt = cfg.tail_flags if cfg.tail_flags is not None else (' nt' if cfg.nt_o else '')
    vW, vR, vG2, t = 4, 5, 6, 7
    out = [f'v_lshrrev_b32 v{t}, 4, v{vDma}',
           f's_mul_i32 s{sT}, s40, 12288', f's_add_u32 s{sT}, s{sT}, 98304',
           f'v_and_b32 v{vW}, 15, v{t}', f'v_bfe_u32 v{vR}, v{t}, 1, 2', f'v_lshrrev_b32 v{vG2}, 4, v{t}', f'v_xor_b32 v{vR}, v{vR}, v{vG2}',
           f'v_lshlrev_b32 v{vW}, 6, v{vW}', f'v_lshl_add_u32 v{vW}, v{vR}, 4, v{vW}', f'v_add_u32 v{vW}, s{sT}, v{vW}',
           f'v_bfe_u32 v{vR}, v{t}, 3, 2', f'v_and_b32 v{vG2}, 3, v{t}', f'v_xor_b32 v{vR}, v{vR}, v{vG2}', f'v_lshlrev_b32 v{vR}, 4, v{vR}',
           f'v_lshrrev_b32 v{vG2}, 2, v{t}', f'v_lshl_add_u32 v{vR}, v{vG2}, 6, v{vR}', f'v_add_u32 v{vR}, s{sT}, v{vR}',
           f'v_mul_u32_u24 v{vG2}, 384, v{vG2}', f'v_and_b32 v{t}, 3, v{t}', f'v_lshl_add_u32 v{vG2}, v{t}, 4, v{vG2}']
    items = [(p, s) for p in range(3) for s in range(6)]
    LAG = 2
    def wr(i):
        p, s = items[i]; tt = T0 + 4 * (i % 2)
        r0, r1 = acc(2 * s, p), acc(2 * s + 1, p)
        return [f'v_cvt_pk_bf16_f32 v{tt}, v{r0}, v{r0+1}', f'v_cvt_pk_bf16_f32 v{tt+1}, v{r0+2}, v{r0+3}',
                f'v_cvt_pk_bf16_f32 v{tt+2}, v{r1}, v{r1+1}', f'v_cvt_pk_bf16_f32 v{tt+3}, v{r1+2}, v{r1+3}',
                f'ds_write_b128 v{vW}, {v(tt,4)} offset:{1024*(i % 12)}']
    rreg = lambda i: G0 + 4 * (i % 6)
    pend = []
    for i in range(18 + 2 * LAG):
        if i < 18: out += wr(i); pend.append(('w', i))
        j = i - LAG
        if 0 <= j < 18:
            out.append(f'ds_read_b128 {v(rreg(j),4)}, v{vR} offset:{1024*(j % 12)}'); pend.append(('r', j))
        m = i - 2 * LAG
        if 0 <= m < 18:
            idx = pend.index(('r', m)); n = len(pend) - 1 - idx
            out.append(f's_waitcnt lgkmcnt({n})'); pend = pend[idx + 1:]
            p, s = items[m]
            if s == 0: out.append(f's_add_u32 s{sT2}, s{sbase}, {cfg.xps*p}')
            out.append(f'buffer_store_dwordx4 {v(rreg(m),4)}, v{vG2}, s[{sO}:{sO+3}], s{sT2} offen offset:{64*s}{nt}')
    return out

def st_op(cfg, i):
    p, s = divmod(i, 6)
    return f'buffer_store_dwordx4 {a(pxreg(p,s),4)}, v{vG}, s[{sO}:{sO+3}], s{sSt+p} offen offset:{64*s}' + (cfg.out_flags if cfg.out_flags is not None else (' nt' if cfg.nt_o else '')) + ' ;@st'
def h_op(cfg, i):
    p, s = divmod(i, 6)
    so, im = (sLd + p, 1024 * s) if s < 4 else (sLdH + p, 1024 * (s - 4))
    va = vDma
    srd = sH
    if cfg.rend: so, im, va = sLd + p, 64 * s, vG
    if cfg.rend and cfg.hout: srd = sO
    ld = f'buffer_load_dwordx4 {a(pfreg(p,s),4)}, v{va}, s[{srd}:{srd+3}], s{so} offen offset:{im}' + (' nt' if cfg.nt_h else '') + ' ;@h'
    if cfg.hskip: return f's_mov_b64 exec, s[{sHx}:{sHx+1}]\n' + ld + '\ns_mov_b64 exec, -1'
    return ld
def x_op(cfg, i):
    p, s = divmod(i, 6)
    return f'buffer_load_dwordx4 {a(pxreg(p,s),4)}, v{vG}, s[{sX}:{sX+3}], s{sLx+p} offen offset:{64*s}' + (' nt' if cfg.nt_x else '') + ' ;@x'

def resolve_vm(seq_prev, seq, optional=()):
    def isvm(t):
        o = t.split()[0] if t.split() else ''
        return o.startswith(('buffer_load', 'buffer_store'))
    def tag(t):
        if ';@' in t: return t.split(';@')[1].strip()
        return 'dma' if ' lds' in t else '?'
    fifo = []
    res = None
    for rnd, sq in enumerate((seq_prev, seq)):
        out = []
        for t in sq:
            if t.startswith('WAITVM:'):
                tg = t.split(':')[1]
                idx = [i for i, x in enumerate(fifo) if x == tg]
                if idx:
                    younger = fifo[idx[-1] + 1:]
                    n = sum(1 for x in younger if x not in optional)
                    out.append(f's_waitcnt vmcnt({n})')
                    keep = []; c = 0
                    for x in reversed(fifo):
                        if c >= n: break
                        keep.append(x)
                        if x not in optional: c += 1
                    fifo = keep[::-1]
                continue
            if isvm(t): fifo.append(tag(t))
            assert len(fifo) <= 63, 'too many outstanding'
            out.append(t)
        res = out
    return res

def tile_loads(srd, dst0, soff_base_instrs, nt):
    out = []
    for p in range(3):
        out += soff_base_instrs(p)
        for s in range(6):
            out.append(f'buffer_load_dwordx4 {a(dst0 + 24*p + 4*s, 4)}, v{vG}, s[{srd}:{srd+3}], s{sT2} offen offset:{64*s}' + (' nt' if nt else ''))
    return out

def soff(base, add):
    def f(p):
        return [f's_add_u32 s{sT2}, s{base}, {add + 6144*p}']
    return f

def stamp(cfg, k):
    if not cfg.prof: return []
    b = 52 + 4 * k
    return [f's_memtime s[{b}:{b+1}]', f's_memrealtime s[{b+2}:{b+3}]']

_cs=[0]
def cstamp(cfg, k, cond=None):
    if not cfg.prof2: return []
    _cs[0]+=1; lab=f'mlp_cs{_cs[0]}'
    out=[f's_cmp_eq_u32 s{sPass}, {cfg.profpass}', f's_cbranch_scc0 {lab}']
    if cond: out+=[f's_cmp_eq_u32 s{cond[0]}, {cond[1]}', f's_cbranch_scc0 {lab}']
    out+=[f's_memtime s[{52+2*k}:{53+2*k}]', f'{lab}:']
    return out

def dump_stamps2(cfg, n):
    if not cfg.prof2: return []
    out = ['s_waitcnt lgkmcnt(0)', 's_load_dwordx2 s[42:43], s[0:1], 40', 's_waitcnt lgkmcnt(0)',
           's_mov_b32 s44, s42', 's_mov_b32 s45, s43', 's_mov_b32 s46, 256', 's_mov_b32 s47, 0x20000',
           's_cmp_lg_u32 s2, 17', 's_cbranch_scc1 mlp_nodump', 's_cmp_lg_u32 s40, 0', 's_cbranch_scc1 mlp_nodump',
           'v_mov_b32 v4, 0']
    for k in range(n):
        out += [f'v_mov_b32 v5, s{52+2*k}', f'buffer_store_dword v5, v4, s[44:47], 0 offen offset:{4*k}']
    out += ['mlp_nodump:']
    return out

def dump_stamps(cfg, n):
    if not cfg.prof: return []
    out = ['s_waitcnt lgkmcnt(0)', 's_load_dwordx2 s[42:43], s[0:1], 40', 's_waitcnt lgkmcnt(0)',
           's_mov_b32 s44, s42', 's_mov_b32 s45, s43', 's_mov_b32 s46, 256', 's_mov_b32 s47, 0x20000',
           's_cmp_lg_u32 s2, PROFWG', 's_cbranch_scc1 mlp_nodump', 's_cmp_lg_u32 s40, 0', 's_cbranch_scc1 mlp_nodump',
           'v_mov_b32 v4, 0']
    for k in range(n):
        b = 52 + 4 * k
        out += [f'v_mov_b32 v5, s{b}', f'buffer_store_dword v5, v4, s[44:47], 0 offen offset:{8*k}',
                f'v_mov_b32 v6, s{b+2}', f'buffer_store_dword v6, v4, s[44:47], 0 offen offset:{8*k+4}']
    out += ['mlp_nodump:']
    return [o.replace('PROFWG', '17') for o in out]

def ident_setup():
    return [
        f'v_lshlrev_b32 v{vDma}, 4, v0',
        f'v_mov_b32 v{vLds}, v{vDma}',
        f'v_and_b32 v4, 15, v0',
        f'v_lshrrev_b32 v5, 4, v0',
        f'v_mul_u32_u24 v{vG}, 384, v4',
        f'v_lshl_add_u32 v{vG}, v5, 4, v{vG}',
        f'v_lshrrev_b32 v6, 2, v4',
        f'v_cmp_eq_u32 vcc, v6, v5',
        f'v_and_b32 v6, 1, v4',
        f'v_lshlrev_b32 v6, 4, v6',
        f'v_mov_b32 v7, 0x3f80',
        f'v_lshlrev_b32 v7, v6, v7',
        f'v_cndmask_b32 v7, 0, v7, vcc',
        f'v_and_b32 v6, 2, v4',
        f'v_cmp_eq_u32 vcc, 0, v6',
        's_nop 1',
        f'v_cndmask_b32 v8, 0, v7, vcc',
        f'v_sub_u32 v9, v7, v8',
        f'v_mov_b32 v10, 0',
        f'v_accvgpr_write_b32 a{I0}, v8', f'v_accvgpr_write_b32 a{I0+1}, v9',
        f'v_accvgpr_write_b32 a{I0+2}, v10', f'v_accvgpr_write_b32 a{I0+3}, v10',
        f'v_accvgpr_write_b32 a{I0+4}, v10', f'v_accvgpr_write_b32 a{I0+5}, v10',
        f'v_accvgpr_write_b32 a{I0+6}, v8', f'v_accvgpr_write_b32 a{I0+7}, v9']

def gelu_consts(cfg):
    return [f's_mov_b32 s{sNegC}, {hex(f2u(-CC) if not cfg.f16 else f2h(-CC) * 0x10001)}',
            f's_mov_b32 s{sAlpha}, {hex(f2u(ALPHA) if not cfg.f16 else f2h(ALPHA) * 0x10001)}']

def m_first_dma(cfg):
    a1 = [f's_mul_i32 s41, s40, 3072', f's_add_u32 m0, s41, {98304+24576}', f's_add_u32 s{sT}, s41, {23*24576}']
    a1 += [f'buffer_load_dwordx4 v{vDma}, s[{sW}:{sW+3}], s{sT} offen offset:{i*1024} lds' for i in range(3)]
    a2 = []
    for sl in range(2):
        a2 += [f's_add_u32 s{sDst}, s{sWoff}, {49152*sl}', f's_add_u32 s{sSrc}, s{sWoff}, {49152*sl}']
        for k_ in range(3): a2 += dma_block(k_) + ['s_nop 0'] + [dma(4 * k_ + i).split(' ;@')[0] for i in range(4)]
    nwarm = 0
    if cfg.warm:
        a2 += [f's_lshr_b32 s41, s2, 3', f's_and_b32 s41, s41, 31', f's_mul_i32 s41, s41, 18432', f's_mul_i32 s3, s40, 5120', f's_add_u32 s41, s41, s3']
        for i in range(5):
            if i == 4: a2 += [f's_add_u32 s41, s41, 4096']
            a2 += [f'buffer_load_dwordx4 {a(PF0 + 4*i, 4)}, v{vDma}, s[{sW}:{sW+3}], s41 offen offset:{1024*(i%4)}']
        nwarm = 5
    a2 += [f's_add_u32 s{sDst}, s{sWoff}, 98304', f's_add_u32 s{sDstSum}, s{sWoff}, 147456',
           f's_add_u32 s{sSrc}, s{sWoff}, 98304', f's_mov_b32 s{sRd}, 0', f's_mov_b32 s{sPass}, 0']
    return a1, a2, 12 + nwarm

def m_second_dma(cfg, warm_dst):
    a2 = [f's_add_u32 s{sDst}, s{sWoff}, 49152', f's_add_u32 s{sSrc}, s{sWoff}, 49152']
    for k_ in range(3): a2 += dma_block(k_) + ['s_nop 0'] + [dma(4 * k_ + i).split(' ;@')[0] for i in range(4)]
    if cfg.warm:
        a2 += [f's_lshr_b32 s41, s2, 3', f's_and_b32 s41, s41, 31', f's_mul_i32 s41, s41, 18432', f's_mul_i32 s3, s40, 5120', f's_add_u32 s41, s41, s3']
        for i in range(5):
            if i == 4: a2 += [f's_add_u32 s41, s41, 4096']
            a2 += [f'buffer_load_dwordx4 {v(warm_dst + 4*(i%4), 4)}, v{vDma}, s[{sW}:{sW+3}], s41 offen offset:{1024*(i%4)}']
    a2 += [f's_add_u32 s{sDst}, s{sWoff}, 98304', f's_add_u32 s{sDstSum}, s{sWoff}, 147456',
           f's_add_u32 s{sSrc}, s{sWoff}, 98304', f's_mov_b32 s{sRd}, 0', f's_mov_b32 s{sPass}, 0']
    return a2

def x_first_loads(cfg):
    out = []
    for p in range(3):
        out.append(f's_add_u32 s{sT2}, s{sBX}, {cfg.xps*p}')
        for s in range(6):
            out.append(f'buffer_load_dwordx4 {a(pxreg(p,s), 4)}, v{vG}, s[{sX}:{sX+3}], s{sT2} offen offset:{64*s}' + (' nt' if cfg.nt_x else ''))
    return out

def m_g1_first(cfg, early=False):
    D = cfg.D
    g1 = g1_groups(-1)
    if early: g1 = [(off - 12288, ms) for off, ms in g1]
    lst = [f'v_add_u32 v4, {0 if early else 98304}, v{vLds}']
    for g in range(6):
        lst.append(f'ds_read_b128 {a(wbuf(g),4)}, v4 offset:{g1[g][0]}')
    for g in range(12):
        if g % 2 == 0: lst.append(f's_waitcnt lgkmcnt({min(4, 10 - g) if g < 10 else 0})' if g <= 6 else f's_waitcnt lgkmcnt({max(0, 10 - g)})')
        for m in g1[g][1]: lst.append(m(wbuf(g)))
        if g + 6 < 12: lst.append(f'ds_read_b128 {a(wbuf(g+6),4)}, v4 offset:{g1[g+6][0]}')
    lst += ['s_waitcnt lgkmcnt(0)'] + ([] if early else ['s_barrier'])
    nxt = g1_groups(0)
    for g in range(D): lst.append(f'ds_read_b128 {a(wbuf(g),4)}, v{vLds} offset:{nxt[g][0]}')
    lst.append(f's_waitcnt lgkmcnt({D-cfg.wevery})')
    if cfg.static_ring: lst += [f'v_add_u32 v{vLdsS[1]}, 49152, v{vDma}', f'v_add_u32 v{vLdsS[2]}, 98304, v{vDma}']
    return lst

def m_main(cfg, L):
    P = []
    adv = [f's_add_u32 s{sDst}, s{sDst}, 49152', f's_cmp_ge_u32 s{sDst}, s{sDstSum}', f's_cselect_b32 s{sT}, 147456, 0', f's_sub_u32 s{sDst}, s{sDst}, s{sT}',
           f's_add_u32 s{sSrc}, s{sSrc}, 49152',
           f's_cmp_ge_u32 s{sSrc}, {W_BYTES}',
           f's_cselect_b32 s{sT}, {W_BYTES}, 0',
           f's_sub_u32 s{sSrc}, s{sSrc}, s{sT}']
    st = [st_op(cfg, i) for i in range(18)]
    hl = [h_op(cfg, i) for i in range(18)]
    xl = [x_op(cfg, i) for i in range(18)]
    pools = {'s': st, 'h': hl, 'x': xl}
    extras = [[pools[ch].pop(0).split('\n') for ch in cfg.plan[J]] for J in range(12)]
    assert not st and not hl and not xl
    assert (not cfg.sub) or all(len(extras[J]) == 5 for J in range(1, 11))
    assert not extras[11] and all(len(e) <= len(cfg.xpos) for e in extras)
    setup = [f's_cmp_eq_u32 s{sPass}, 0'] + ([f's_cselect_b64 s[{sHx}:{sHx+1}], 0, -1'] if cfg.hskip else []) + [
             f's_cselect_b32 s{sSt}, {hex(OOB)}, s{sB1}',
             f's_add_u32 s{sSt+1}, s{sSt}, {cfg.xps}', f's_add_u32 s{sSt+2}, s{sSt}, {2*cfg.xps}',
             f's_add_u32 s{sLd}, s{sB}, 73728', f's_add_u32 s{sLx}, s{sBX}, {cfg.xts}',
             f's_cmp_eq_u32 s{sPass}, 2',
             f's_cselect_b32 s{sLd}, {hex(OOB)}, s{sLd}', f's_cselect_b32 s{sLx}, {hex(OOB)}, s{sLx}',
             f's_add_u32 s{sLd+1}, s{sLd}, 6144', f's_add_u32 s{sLd+2}, s{sLd}, 12288',
             f's_add_u32 s{sLx+1}, s{sLx}, {cfg.xps}', f's_add_u32 s{sLx+2}, s{sLx}, {2*cfg.xps}',
             f's_add_u32 s{sLdH}, s{sLd}, 4096', f's_add_u32 s{sLdH+1}, s{sLd+1}, 4096', f's_add_u32 s{sLdH+2}, s{sLd+2}, 4096']
    if cfg.rend:
        setup = [f's_add_u32 s{sT2}, s{sB}, {2*73728}', f's_cmp_eq_u32 s{sPass}, 0', f's_cselect_b64 s[{sHx}:{sHx+1}], 0, -1',
                 f's_cselect_b32 s{sSt}, s{sT2}, s{sB1}', f's_mov_b32 s{sT2}, {cfg.xps}', f's_cselect_b32 s{sT2}, 6144, s{sT2}',
                 f's_cselect_b32 s{sO}, s{sH}, s98', f's_cselect_b32 s{sO+1}, s{sH+1}, s99',
                 f's_add_u32 s{sSt+1}, s{sSt}, s{sT2}', f's_add_u32 s{sSt+2}, s{sSt+1}, s{sT2}',
                 f's_add_u32 s{sLd}, s{sB}, 73728', f's_cmp_eq_u32 s{sPass}, 2', f's_cselect_b32 s{sLd}, {hex(OOB)}, s{sLd}',
                 f's_add_u32 s{sLd+1}, s{sLd}, 6144', f's_add_u32 s{sLd+2}, s{sLd}, 12288',
                 f's_mov_b32 s{sLx}, s{sBX}', f's_add_u32 s{sLx+1}, s{sLx}, {cfg.xps}', f's_add_u32 s{sLx+2}, s{sLx}, {2*cfg.xps}']
        if cfg.hout:
            setup = [f's_add_u32 s{sT2}, s{sBX}, {2*cfg.xts}', f's_cmp_eq_u32 s{sPass}, 0', f's_cselect_b64 s[{sHx}:{sHx+1}], 0, -1',
                     f's_cselect_b32 s{sSt}, s{sT2}, s{sB1}',
                     f's_add_u32 s{sSt+1}, s{sSt}, {cfg.xps}', f's_add_u32 s{sSt+2}, s{sSt}, {2*cfg.xps}',
                     f's_add_u32 s{sLd}, s{sBX}, {cfg.xts}', f's_cmp_eq_u32 s{sPass}, 2', f's_cselect_b32 s{sLd}, {hex(OOB)}, s{sLd}',
                     f's_add_u32 s{sLd+1}, s{sLd}, {cfg.xps}', f's_add_u32 s{sLd+2}, s{sLd}, {2*cfg.xps}',
                     f's_mov_b32 s{sLx}, s{sBX}', f's_add_u32 s{sLx+1}, s{sLx}, {cfg.xps}', f's_add_u32 s{sLx+2}, s{sLx}, {2*cfg.xps}']
    moves = [f'v_accvgpr_mov_b32 a{H0+i}, a{PF0+i}' for i in range(72)]
    parts = []
    for J in range(12):
        DTAG[0] = f'd{J}'
        ea = {47: list(adv) if not cfg.static_ring else []}
        kw = dict(extra_at=ea, bar_wait=[f'WAITVM:d{(J-1)%12}'])
        pre = cstamp(cfg, J)
        if J == 0:
            for k_, op in enumerate(extras[0]): ea.setdefault(cfg.xpos[k_], []).extend(op)
            if cfg.rend:
                kw['mid'] = [f's_cmp_eq_u32 s{sPass}, 0', f's_cbranch_scc1 {L}_nomid', 'WAITVM:x'] + mid_block_rend(cfg) + [f'{L}_nomid:']
            else:
                kw['mid'] = ['WAITVM:x', f's_waitcnt vmcnt({cfg.mid_vm})' if not cfg.diag_nodma else 's_waitcnt vmcnt(0)'] + mid_block(cfg)
            pre = pre + setup
        elif J <= 10:
            if cfg.sub: pre = pre + sum(extras[J], [])
            else:
                for k_, op in enumerate(extras[J]): ea.setdefault(cfg.xpos[k_], []).extend(op)
        if J == 11:
            kw['extra_valu'] = {0: (13, 24, moves)}
            ea.setdefault(12, []).append('WAITVM:h')
        parts.append((pre, superstep(cfg, 2 * J, **kw)))
    DTAG[0] = 'dma'
    endp = cstamp(cfg, 12) + [f's_mov_b32 s{sB1}, s{sBX}', f's_add_u32 s{sB}, s{sB}, 73728', f's_add_u32 s{sBX}, s{sBX}, {cfg.xts}', f's_add_u32 s{sPass}, s{sPass}, 1']
    seq = []
    for J, (pre, body) in enumerate(parts): seq += pre + [f';BEGIN{J}'] + body + [f';END{J}']
    seq += endp
    res = resolve_vm(seq, seq, ('h',) if cfg.hskip else ())
    def part(J):
        i0 = res.index(f';BEGIN{J}'); i1 = res.index(f';END{J}')
        return res[i0 + 1:i1]
    strip = lambda l: [x.split(' ;@')[0] for x in l]
    bodies = [strip(part(J)) for J in range(12)]
    def barwait(b):
        i = b.index('s_barrier'); return i - 1, int(b[i - 1].split('(')[1][:-1])
    if cfg.diag_nodma: assert not cfg.sub
    if cfg.sub:
        ns = [barwait(bodies[J])[1] for J in range(1, 11)]
        nmin = min(ns)
        gen_body = list(bodies[2]); gen_body[barwait(gen_body)[0]] = f's_waitcnt vmcnt({nmin})'
        for J in range(1, 11):
            b = list(bodies[J]); b[barwait(b)[0]] = f's_waitcnt vmcnt({nmin})'
            assert b == gen_body, J
    P += ['.p2align 6', f'{L}_pass:']
    trace = []
    for J in range(12):
        pre = strip(parts[J][0])
        if 1 <= J <= 10 and cfg.sub:
            P += pre + [f's_call_b64 s[{sRet}:{sRet+1}], {L}_body']
            trace += [x for x in pre if not x.endswith(':')] + gen_body
        else:
            b = bodies[J]
            P += pre + b
            trace += [x for x in pre + b if not x.endswith(':')]
    P += endp; trace += endp
    P += [f's_cmp_lt_u32 s{sPass}, 3', f's_cbranch_scc1 {L}_pass']
    tail = ['s_waitcnt lgkmcnt(0)']
    g2 = g2_groups(24)
    for g in range(6): tail.append(f'ds_read_b128 {a(wbuf(g),4)}, v{vLds} offset:{g2[g][0]}')
    for g in range(12):
        if g % 2 == 0: tail.append(f's_waitcnt lgkmcnt({4 if g <= 6 else max(0, 10 - g)})')
        for m in g2[g][1]: tail.append(m(wbuf(g)))
        if g + 6 < 12: tail.append(f'ds_read_b128 {a(wbuf(g+6),4)}, v{vLds} offset:{g2[g+6][0]}')
    if cfg.rend:
        assert cfg.tail_lds
        tail += ['s_waitcnt vmcnt(12)']
        for p in range(3):
            for s_ in range(6): tail += resid_mfmas(p, s_)
    tail += ['s_nop 7']
    tail += tail_epilogue_lds(cfg, sB1) if cfg.tail_lds else tail_epilogue(cfg, sB1)
    P += stamp(cfg, 4)
    P += tail
    P += stamp(cfg, 5)
    sub = (['.p2align 6', f'{L}_body:'] + gen_body + [f's_setpc_b64 s[{sRet}:{sRet+1}]']) if cfg.sub else []
    return P, sub, trace + trace + tail

def gen(cfg, name='mlp_kernel'):
    MF2[0] = 'v_mfma_f32_16x16x32_f16' if cfg.f16 else MF
    P = []; TR = []
    def emit(lst, trace=True):
        P.extend(lst)
        if trace: TR.extend(lst)
    emit(['s_cmp_ge_u32 s2, 256', f's_cbranch_scc1 {name}_done',
          's_load_dwordx2 s[4:5], s[0:1], 0',
          's_load_dwordx2 s[6:7], s[0:1], 32',
          's_load_dwordx2 s[38:39], s[0:1], 48',
          'v_lshrrev_b32 v4, 6, v0', 'v_and_b32 v0, 63, v0', 's_nop 0', 'v_readfirstlane_b32 s40, v4'])
    emit(gelu_consts(cfg) + ident_setup())
    emit(['s_waitcnt lgkmcnt(0)',
        f's_add_u32 s{sW}, s38, {WS_W}', f's_addc_u32 s{sW+1}, s39, 0', f's_mov_b32 s{sW+2}, {W_BYTES}', f's_mov_b32 s{sW+3}, 0x20000',
        f's_add_u32 s{sH}, s38, {WS_H}', f's_addc_u32 s{sH+1}, s39, 0', f's_mov_b32 s{sH+2}, {IMG_BYTES}', f's_mov_b32 s{sH+3}, 0x20000',
        f's_mov_b32 s{sX}, s4', f's_mov_b32 s{sX+1}, s5', f's_mov_b32 s{sX+2}, {IMG_BYTES}', f's_mov_b32 s{sX+3}, 0x20000',
        f's_mov_b32 s{sO}, s6', f's_mov_b32 s{sO+1}, s7', f's_mov_b32 s{sO+2}, {IMG_BYTES}', f's_mov_b32 s{sO+3}, 0x20000',
        f's_mul_i32 s{sB}, s2, {36*6144}', f's_mul_i32 s41, s40, {3*6144}', f's_add_u32 s{sB}, s{sB}, s41', f's_mov_b32 s{sBX}, s{sB}',
        f's_mul_i32 s{sWoff}, s40, 12288'])
    if cfg.prof or cfg.prof2: P.extend([f's_mov_b32 s{i}, 0' for i in range(52, 92)])
    P.extend(stamp(cfg, 0))
    a1, a2, nafter = m_first_dma(cfg)
    emit(a1)
    for p in range(3):
        emit([f's_add_u32 s{sT2}, s{sB}, {6144*p}'])
        for s_ in range(6):
            if s_ == 4: emit([f's_add_u32 s{sT2}, s{sT2}, 4096'])
            emit([f'buffer_load_dwordx4 {a(H0 + 24*p + 4*s_, 4)}, v{vDma}, s[{sH}:{sH+3}], s{sT2} offen offset:{1024*(s_ % 4)}' + (' nt' if cfg.nt_h else '')])
    emit(a2)
    emit([f's_waitcnt vmcnt({nafter})', 's_barrier'])
    emit(x_first_loads(cfg))
    emit(m_g1_first(cfg))
    P.extend(stamp(cfg, 1))
    mp, sub, tr = m_main(cfg, name)
    P += mp; TR += tr
    P += dump_stamps(cfg, 6)
    P += dump_stamps2(cfg, 13)
    if cfg.allwg:
        P = P[:2] + ['s_memrealtime s[98:99]'] + P[2:]
        P += ['s_waitcnt vmcnt(0)', 's_memrealtime s[82:83]', 's_cmp_eq_u32 s40, 0', f's_cbranch_scc0 {name}_done',
              's_waitcnt lgkmcnt(0)', 's_lshl_b32 s3, s2, 3', f's_add_u32 s3, s3, {(200 << 20) + 4096}',
              'v_mov_b32 v4, s98', 'v_mov_b32 v5, s3', 's_nop 1', 'global_store_dword v5, v4, s[38:39]',
              'v_mov_b32 v4, s82', 's_nop 1', 'global_store_dword v5, v4, s[38:39] offset:4']
    P += [f'{name}_done:', 's_endpgm']
    P += sub
    return P, TR

def kd(name, lds=0):
    return f'''.amdhsa_kernel {name}
  .amdhsa_next_free_vgpr 512
  .amdhsa_next_free_sgpr 102
  .amdhsa_accum_offset 256
  .amdhsa_group_segment_fixed_size 0
  .amdhsa_kernarg_size 56
  .amdhsa_user_sgpr_count 2
  .amdhsa_user_sgpr_kernarg_segment_ptr 1
  .amdhsa_system_sgpr_workgroup_id_x 1
  .amdhsa_float_denorm_mode_32 3
.end_amdhsa_kernel
'''
if __name__ == '__main__':
    import asmlib
    P, TR = gen(Cfg)
    asmlib.check(TR, 'k2')
    print(len(P), 'lines', 'alpha', ALPHA, 'c', CC)
```

```python
import k2
from k2 import f2u, ALPHA, WS_W, WS_H, W_BYTES, IMG_BYTES

REC = 544
NBLK = 99
SLAB = NBLK * REC
YB = 2 * SLAB
LDS_BYTES = YB + 2 * 24576
TAPS, ROWS = 400, 3616
DWB = YB

vO16 = 0
vP = 1
vL16 = 2
vZ = 3
vRel = 4
vLw, vLw3, vRd, vY0, vR0, vR1, vA, vB = 8, 9, 10, 11, 12, 13, 14, 15
STS = (16, 80)
BLK = 80
ACC = 120
TMP = 136
Y0 = 144
VO = 216
HOLD = 0
CW = 144
sM, sH, sX, sD = 8, 12, 16, 20
sBase, sIMG, sT, sT2, sSelL, sDS, sDY, sOutN, sTI = 28, 30, 31, 32, 33, 34, 35, 36, 37
sWave, sSelH, sPkF, sPkf = 40, 41, 42, 43
sMaskL, sMaskR = 44, 60
sSt3 = 76
sOnes, sAl, sEps, sInv, sOut, sDR = 92, 93, 94, 95, 96, 97
sDbg = 4
sMk3 = 100
NPACK = 576
NPKWG = 72
STAMP0 = 82

def v(b, n=1): return f'v{b}' if n == 1 else f'v[{b}:{b+n-1}]'
def a(b, n=1): return f'a{b}' if n == 1 else f'a[{b}:{b+n-1}]'
def Wt(k, R, C): return CW + 32 * k + 2 * (4 * R + C)
def blk(row, bc): return BLK + 10 * (row % 4) + 2 * bc
def Y(p, s): return Y0 + 24 * p + 4 * s
M4 = 'v_mfma_f32_4x4x4_16b_bf16'
FULL = (1 << 64) - 1

class Cfg(k2.Cfg):
    f16 = True
    nt_h = True; nt_x = True; nt_o = True
    cx_nt = False
    st_flags = ' nt'
    xps = 147456
    xts = 49152
    light = False
    light2 = False
    light3 = False
    exact_vm = True
    touch = False
    l2tile = 0
    inter = False
    rend = False
    prog = False
    defer_y = False
    even = None
    allwg = False
    force_fb = False
    ln_pk = True
    light4 = False
    l4sel = '0246'
    spread = 0
    diag_nox = False
    htouch = False
    diag_nost = False
    l3sel = [0, 1, 2, 3, 4]
    early = True
    hskip = True
    spin = 1 << 14
    nosync = False

def setexec(out, cur, val):
    if cur[0] != val:
        out.append(f's_mov_b32 exec_lo, {hex(val & 0xffffffff)}')
        out.append(f's_mov_b32 exec_hi, {hex(val >> 32)}')
        cur[0] = val

def weights_gather(vb):
    out = []
    def reads(k):
        o = []
        for R in range(4):
            for dy in range(2):
                for c in range(4):
                    i = (R * 2 + dy) * 4 + c
                    for dx in range(2):
                        rho, gam = 2 * R + dy, 2 * c + dx
                        o.append(f'ds_read_u16 v{Y0+2*i+dx}, v{vb} offset:{(rho+1)*ROWS + (gam+1)*TAPS + 128*k}')
        return o
    for k in range(3):
        rd = reads(k)
        out += rd[:32] + rd[32:] + ['s_waitcnt lgkmcnt(15)']
        for half in range(2):
            if half == 1: out.append('s_waitcnt lgkmcnt(0)')
            for i in range(16 * half, 16 * half + 16):
                if half == 0 and i == 8: out.append('s_waitcnt lgkmcnt(15)')
                R, dy, c = i // 8, (i // 4) % 2, i % 4
                out.append(f'v_lshl_or_b32 v{Y0+2*i}, v{Y0+2*i+1}, 16, v{Y0+2*i}')
                out.append(f'v_accvgpr_write_b32 a{Wt(k,R,c)+dy}, v{Y0+2*i}')
    return out

def vo(r, dy, dx): return VO + 4 * r + 2 * dy + dx
def tile_offsets():
    out = []
    for dx in range(2):
        for r in range(4):
            l, rr = sMaskL + 2 * (2 * r + dx), sMaskR + 2 * (2 * r + dx)
            out += [f's_mov_b64 s[24:25], -1' if r < 3 else f's_or_b64 s[24:25], s[{l}:{l+1}], s[{rr}:{rr+1}]',
                    f's_cmp_eq_u32 s27, 0', f's_cselect_b64 s[24:25], s[{l}:{l+1}], s[24:25]',
                    f's_cmp_eq_u32 s27, 23', f's_cselect_b64 s[24:25], s[{rr}:{rr+1}], s[24:25]']
            for dy in range(2):
                t = vo(r, dy, dx)
                out += [f's_add_u32 s26, s{sBase}, {147456*dy + 384*dx}', f'v_add_u32 v{t}, s26, v{vRel+r}', f'v_cmp_gt_u32 vcc, s{sIMG}, v{t}',
                        f's_and_b64 vcc, vcc, s[24:25]', f'v_cndmask_b32 v{t}, 2.0, v{t}, vcc']
    return out
def load_items(cfg, stage, sset):
    nt = ' nt' if cfg.cx_nt else ''
    its = []
    for r in range(4):
        for dy in range(2):
            for dx in range(2):
                if r < 3: its.append([f'buffer_load_dwordx4 {v(STS[sset] + 16 * r + 4 * (2 * dy + dx), 4)}, v{vo(r,dy,dx)}, s[{sX}:{sX+3}], 0 offen offset:{128*stage}{nt} ;@l{r}'])
                else: its.append([f'buffer_load_dword v{STS[sset] + 48 + 2 * dy + dx}, v{vo(r,dy,dx)}, s[{sX}:{sX+3}], 0 offen offset:{128*stage}{nt} ;@l{r}'])
    return its
def store_items(cfg, k):
    if cfg.rend: return []
    its = []
    for s, sb in ((k, sSt3), (3 + k, sSt3 + 3)):
        for p in range(3):
            its.append([f'buffer_store_dwordx4 {a(HOLD + 24*p + 4*s, 4)}, v{vL16}, s[{sH}:{sH+3}], s{sb+p} offen offset:{1024*(s % 3)}{cfg.st_flags} ;@s'])
    return [its[0], its[3], its[1], its[4], its[2], its[5]]

def transpose_unit(r, d, sset):
    t = TMP
    if r == 3:
        if d > 0: return []
        L = lambda dy, dx: STS[sset] + 48 + 2 * dy + dx
        return [f'v_perm_b32 v{t}, v{L(0,1)}, v{L(0,0)}, s{sSelL}', f'v_perm_b32 v{t+1}, v{L(1,1)}, v{L(1,0)}, s{sSelL}',
                f'v_perm_b32 v{t+2}, v{L(0,1)}, v{L(0,0)}, s{sSelH}', f'v_perm_b32 v{t+3}, v{L(1,1)}, v{L(1,0)}, s{sSelH}',
                f's_mov_b64 exec, s[{sMk3}:{sMk3+1}]', f'ds_write_b128 v{vLw3}, {v(t,4)}', 's_mov_b64 exec, -1']
    L = lambda dy, dx: STS[sset] + 16 * r + 4 * (2 * dy + dx) + d
    return [f'v_xad_u32 v{vA}, v{vO16}, {16*d}, v{vLw}',
            f'v_perm_b32 v{t}, v{L(0,1)}, v{L(0,0)}, s{sSelL}',
            f'v_perm_b32 v{t+1}, v{L(1,1)}, v{L(1,0)}, s{sSelL}',
            f'v_perm_b32 v{t+2}, v{L(0,1)}, v{L(0,0)}, s{sSelH}',
            f'v_perm_b32 v{t+3}, v{L(1,1)}, v{L(1,0)}, s{sSelH}',
            f'ds_write_b128 v{vA}, {v(t,4)} offset:{32 * REC * r + 128*d}']

def yout(py):
    out = []
    a0 = ACC + 8 * (py & 1); a1 = a0 + 4
    t = TMP + 4
    for oy in range(2):
        out.append(f'v_cvt_pk_bf16_f32 v{t+2*oy}, v{a0+2*oy}, v{a0+2*oy+1}')
        out.append(f'v_cvt_pk_bf16_f32 v{t+2*oy+1}, v{a1+2*oy}, v{a1+2*oy+1}')
        out.append(f'ds_write_b64 v{vY0}, {v(t+2*oy,2)} offset:{(2*py+oy)*2048}')
    return out

def row_reads(br):
    return [f'ds_read_b64 {v(blk(br,bc),2)}, v{vRd} offset:{(br*11+bc)*REC}' for bc in range(5)]

SPREAD = [3]
INTER = [False]
PROG = [False]
DEFPOS = [66]
sl2x = lambda n: (n // 16, n % 16)
EVEN = [None]
EVENS = {
 'a': dict(u0=[4, 12, 18], l0=[22, 24, 26, 28], u1=[30, 36, 41, 46], l1=[50, 52, 54, 56], u2=[58, 62, 67, 72], l2=[75, 77, 79, 81], u3=83, l3=[86, 87, 88, 89], s=[14, 33, 44, 65, 70, 91]),
 'b': dict(u0=[1, 5, 13], l0=[16, 17, 22, 24], u1=[28, 30, 32, 38], l1=[44, 46, 48, 49], u2=[54, 60, 62, 64], l2=[70, 74, 76, 78], u3=80, l3=[82, 83, 84, 85], s=[14, 40, 66, 87, 89, 91]),
}
def yin(k):
    o = []
    for p in range(3):
        for sp in range(2):
            for h in range(2):
                o.append(f'ds_read_b64_tr_b16 {v(Y(p,2*k+sp)+2*h,2)}, v{vR0 if h == 0 else vR1} offset:{p*2048 + sp*1024}')
    return o, [f'v_add_u32 v{vR0}, s{sDR}, v{vR0}', f'v_add_u32 v{vR1}, s{sDR}, v{vR1}', f's_sub_u32 s{sDR}, 0, s{sDR}']

def conv_stage(k, sset, items, stores, transp=True, xtra=(), defer=None):
    out = []
    fifo = []
    issued = {}
    def emit_lds(t, tag):
        out.append(t); fifo.append(tag); issued[tag] = issued.get(tag, 0) + 1
    def need(tag):
        assert issued.get(tag, 0) == 5, ('row not fully requested before use', tag)
        idx = [i for i, x in enumerate(fifo) if x == tag]
        if idx:
            n = len(fifo) - 1 - idx[-1]
            out.append(f's_waitcnt lgkmcnt({min(n,15)})')
            del fifo[:idx[-1] + 1]
    tagof = lambda t: ('w' if t.startswith('ds_') else None)
    NUP = 2 if PROG[0] else 4
    for br in range(NUP):
        for t in row_reads(br): emit_lds(t, ('row', br))
    if transp:
        out.append('WAITL:0')
        for t in transpose_unit(0, 0, sset):
            if tagof(t): emit_lds(t, 'w')
            else: out.append(t)
    fill = {(py, i): [] for py in range(6) for i in range(16)}
    for br in range(NUP, 4):
        for i, t in enumerate(row_reads(br)): fill[(0, 3 * (br - NUP) + i // 2)].append((t, ('row', br)))
    if defer is not None:
        rd, tg = yin(defer)
        for i, t in enumerate(rd): fill[sl2x(DEFPOS[0] + 2 * i)].append((t, 'w'))
        for t in tg: fill[sl2x(DEFPOS[0] + 2 * len(rd))].append((t, None))
    for py in range(6):
        if py > 0:
            for t, p_ in zip(yout(py - 1), [2, 2, 3, 4, 4, 5]): fill[(py, p_)].append((t, tagof(t)))
        if py + 4 <= 8:
            for i, t in enumerate(row_reads(py + 4)): fill[(py, 7 + i)].append((t, ('row', py + 4)))
    sl2 = lambda n: (n // 16, n % 16)
    if EVEN[0]:
        upos = {0: [None] + [sl2(n) for n in EVEN[0]['u0']], 1: [sl2(n) for n in EVEN[0]['u1']], 2: [sl2(n) for n in EVEN[0]['u2']], 3: [sl2(EVEN[0]['u3'])] * 4}
        lpos = {r: [sl2(n) for n in EVEN[0][f'l{r}']] for r in range(4)}
        spos = [sl2(n) for n in EVEN[0]['s']]
    else:
        upos = {0: [None, (0, 1), (0, 3), (0, 5)], 1: [(1, 6), (1, 8), (1, 12), (1, 14)], 2: [(2, 6), (2, 8), (2, 12), (2, 14)], 3: [(3, 6), (3, 8), (3, 12), (3, 14)]}
        lpos = {0: [(0, 12), (0, 14), (1, 0), (1, 1)], 1: [(1, 15), (2, 0), (2, 1), (2, 5)], 2: [(2, 15), (3, 0), (3, 1), (3, 5)], 3: [(3, 15), (4, 0), (4, 1), (4, 6)]}
        spos = [(0, 7), (0, 10), (4, 8), (4, 12), (5, 0), (5, 6)]
    for r in range(4):
        if transp:
            if r > 0: fill[upos[r][0]].append((f'WAITL:{r}', None))
            for d in range(4):
                if upos[r][d] is None: continue
                for t in transpose_unit(r, d, sset): fill[upos[r][d]].append((t, tagof(t)))
        for i in range(4):
            if 4 * r + i < len(items):
                for t in items[4 * r + i]: fill[lpos[r][i]].append((t, None))
    for it, pos in zip(stores, spos):
        for t in it: fill[pos].append((t, None))
    for i, it in enumerate(xtra):
        sl = 2 + 6 * i
        for t in it: fill[(sl // 16, sl % 16)].append((t, None))
    seq = []
    for py in range(6):
        for idx in range(16):
            grp = []
            for t, tag in fill[(py, idx)]:
                grp.append((t, tag))
                glue = t.startswith(('s_mov_b64 exec, s[', 's_add_u32 m0', 's_nop', 'WAITL', 'v_cmp', 's_and_b64')) or (t.startswith('s_add_u32 s') )
                if t.startswith('ds_write_b128') and len(grp) >= 2 and grp[-2][0].startswith('s_mov_b64 exec, s['): glue = True
                if not glue:
                    seq.append((16 * py + idx, grp)); grp = []
            if grp: seq.append((16 * py + idx, grp))
    qi = 0
    ismem = lambda t: t.startswith(('ds_', 'buffer_'))
    isvalu = lambda t: t.startswith('v_') and not t.startswith('v_mfma')
    real = lambda: [t for t in out if not t.startswith(';')]
    lastpos = {}
    nis = [0]
    def put(t, tag=None):
        if tag: emit_lds(t, tag)
        else: out.append(t)
        if not t.startswith(';'): nis[0] += 1
    def emit_group():
        nonlocal qi
        for t, tag in seq[qi][1]: put(t, tag)
        qi += 1
    def first_real(grp):
        for t, _ in grp:
            if not t.startswith(('s_', 'WAITL')): return t
        return grp[0][0]
    for py in range(6):
        for idx in range(16):
            R, C = divmod(idx, 4)
            sl = 16 * py + idx
            if idx == 0 and py in (0, 2, 4): out.append(f';MARK{py}')
            if C == 0:
                n0 = len(out); need(('row', py + R)); nis[0] += len(out) - n0
            for px in range(2):
                aa = ACC + 8 * (py & 1) + 4 * px
                c = '0' if idx == 0 else v(aa, 4)
                if idx == 0 and py >= 2:
                    pendcvt = [t for _, g in seq[qi:] for t, _ in g if t.startswith('v_cvt_pk_bf16') and f'v{aa},' in t + ',' and False]
                    assert not any(t.startswith('v_cvt_pk_bf16') and any(f' v{aa+j},' in t or t.endswith(f' v{aa+j}') for j in range(4)) and e <= 16 * (py - 1) + 15 for e, g in seq[qi:] for t, _ in g), 'yout too late'
                if idx > 0 and nis[0] - lastpos[aa] - 1 < 2: put('s_nop 0')
                if idx > 0 and nis[0] - lastpos[aa] - 1 < 2: put('s_nop 0')
                lastpos[aa] = nis[0]
                put(f'{M4} {v(aa,4)}, {a(Wt(k,R,C),2)}, {v(blk(py+R, px+C),2)}, {c}')
                if not INTER[0] and px == 0: continue
                prev_valu = False
                if qi < len(seq) and seq[qi][0] <= sl:
                    g0 = seq[qi][1]; emit_group(); prev_valu = isvalu(g0[-1][0])
                if px == 1:
                    while qi < len(seq) and seq[qi][0] <= sl and (seq[qi][0] <= sl - SPREAD[0] or sl == 95):
                        late = seq[qi][0] <= sl - SPREAD[0] - 3 or sl == 95
                        if INTER[0] and prev_valu and ismem(first_real(seq[qi][1])) and not late: break
                        g0 = seq[qi][1]; emit_group(); prev_valu = isvalu(g0[-1][0])
    assert qi == len(seq)
    out += [';MARK6', 's_nop 4'] + yout(5)
    return out

def resolve_l(stages):
    seq = []
    for si in range(3):
        for st in stages: seq.append(st)
    fifo = []
    need = {r: [] for r in range(4)}
    for si, st in enumerate(seq):
        for t in st:
            if t.startswith('WAITL:'):
                r = int(t[6:])
                if si >= 1:
                    idx = max(i for i, x in enumerate(fifo) if x == (si - 1, f'l{r}'))
                    need[r].append(len(fifo) - 1 - idx)
            elif ';@' in t: fifo.append((si, t.split(';@')[1].strip()))
    return {r: min(x) for r, x in need.items()}

def ln_block(cfg):
    NP = 3
    out = []
    t = ACC
    s1 = [t + p for p in range(NP)]; s2 = [t + 3 + p for p in range(NP)]
    for i in range(24):
        for p in range(NP):
            r = Y0 + 24 * p + i
            c1 = '0' if i == 0 else f'v{s1[p]}'; c2 = '0' if i == 0 else f'v{s2[p]}'
            out.append(f'v_dot2_f32_bf16 v{s1[p]}, v{r}, s{sOnes}, {c1}')
            out.append(f'v_dot2_f32_bf16 v{s2[p]}, v{r}, v{r}, {c2}')
    out.append('s_nop 2')
    allr = s1 + s2
    tm = [t + 12 + i for i in range(len(allr))]
    for sw in ('v_permlane16_swap_b32', 'v_permlane32_swap_b32'):
        for r, q in zip(allr, tm): out.append(f'v_mov_b32 v{q}, v{r}')
        out.append('s_nop 1')
        for r, q in zip(allr, tm): out.append(f'{sw} v{q}, v{r}')
        out.append('s_nop 1')
        for r, q in zip(allr, tm): out.append(f'v_add_f32 v{r}, v{r}, v{q}')
    rs = [t + 6 + 2 * p for p in range(NP)]; nb = [t + 18 + 2 * p for p in range(NP)]
    for p in range(NP): out.append(f'v_mul_f32 v{s1[p]}, s{sInv}, v{s1[p]}')
    for p in range(NP): out.append(f'v_mul_f32 v{s2[p]}, s{sInv}, v{s2[p]}')
    for p in range(NP): out.append(f'v_fma_f32 v{s2[p]}, -v{s1[p]}, v{s1[p]}, v{s2[p]}')
    for p in range(NP): out.append(f'v_max_f32 v{s2[p]}, 0, v{s2[p]}')
    for p in range(NP): out.append(f'v_add_f32 v{s2[p]}, s{sEps}, v{s2[p]}')
    for p in range(NP): out.append(f'v_rsq_f32 v{rs[p]}, v{s2[p]}')
    out.append('s_nop 0')
    for p in range(NP): out.append(f'v_mul_f32 v{rs[p]}, s{sAl}, v{rs[p]}')
    for p in range(NP): out.append(f'v_mul_f32 v{nb[p]}, -v{s1[p]}, v{rs[p]}')
    k = 0
    for p in range(NP):
        for s in range(6):
            for d in range(4):
                r = Y(p, s) + d
                x0 = t + 12 + 2 * (k % 3); x1 = x0 + 1; k += 1
                out.append(f'v_lshlrev_b32 v{x0}, 16, v{r}')
                out.append(f'v_and_b32 v{x1}, 0xffff0000, v{r}')
                if cfg.ln_pk:
                    out.append(f'v_pk_fma_f32 v[{x0}:{x1}], v[{x0}:{x1}], v[{rs[p]}:{rs[p]+1}], v[{nb[p]}:{nb[p]+1}] op_sel_hi:[1,0,0]')
                else:
                    out.append(f'v_fma_f32 v{x0}, v{x0}, v{rs[p]}, v{nb[p]}')
                    out.append(f'v_fma_f32 v{x1}, v{x1}, v{rs[p]}, v{nb[p]}')
                out.append(f'v_cvt_pk_bf16_f32 v{r}, v{x0}, v{x1}')
    return out

def pack_loads(lab, dst, t, lane):
    out = [f's_mul_hi_u32 s46, s{sPkF}, {(1 << 32) // 24 + 1}',
           f's_mul_i32 s47, s46, 24', f's_sub_u32 s{sPkf}, s{sPkF}, s47',
           f'v_and_b32 v{t}, 15, v{lane}', f'v_lshrrev_b32 v{t+1}, 4, v{lane}',
           f's_cmp_lt_u32 s{sPkf}, 12', f's_cbranch_scc0 {lab}_pk2']
    out += [f's_add_u32 s48, s46, 1', f's_cmp_eq_u32 s48, 24', f's_cselect_b32 s48, 0, s48',
            f's_lshr_b32 s49, s{sPkf}, 1', f's_and_b32 s50, s{sPkf}, 1',
            f's_lshl_b32 s48, s48, 6', f's_lshl_b32 s50, s50, 5', f's_add_u32 s48, s48, s50',
            f's_mul_i32 s49, s49, {32*1536}', f's_add_u32 s48, s48, s49',
            f'v_mul_u32_u24 v{t+2}, {8*1536}, v{t+1}', f'v_lshl_add_u32 v{t+2}, v{t}, 1, v{t+2}',
            f's_mov_b32 s{sM}, s52', f's_mov_b32 s{sM+1}, s53', f's_mov_b32 s{sM+2}, {192*768*2}', f's_mov_b32 s{sM+3}, 0x20000']
    for e in range(8):
        out.append(f's_add_u32 s49, s48, {e*1536}')
        out.append(f'buffer_load_ushort v{dst+e}, v{t+2}, s[{sM}:{sM+3}], s49 offen')
    out += [f's_branch {lab}_pk3', f'{lab}_pk2:']
    out += [f's_add_u32 s48, s46, 23', f's_cmp_ge_u32 s48, 24', f's_cselect_b32 s49, 24, 0', f's_sub_u32 s48, s48, s49',
            f's_sub_u32 s49, s{sPkf}, 12', f's_lshr_b32 s50, s49, 1', f's_and_b32 s49, s49, 1',
            f's_mul_i32 s48, s48, {32*384}', f's_lshl_b32 s50, s50, 6', f's_lshl_b32 s49, s49, 3',
            f's_add_u32 s48, s48, s50', f's_add_u32 s48, s48, s49',
            f'v_lshrrev_b32 v{t+3}, 2, v{t}', f'v_lshlrev_b32 v{t+3}, 4, v{t+3}',
            f'v_and_b32 v{t+4}, 3, v{t}', f'v_lshl_add_u32 v{t+3}, v{t+4}, 1, v{t+3}',
            f'v_mul_u32_u24 v{t+2}, {4*384}, v{t+1}', f'v_add_u32 v{t+2}, v{t+2}, v{t+3}',
            f's_mov_b32 s{sM}, s54', f's_mov_b32 s{sM+1}, s55', f's_mov_b32 s{sM+2}, {192*768*2}', f's_mov_b32 s{sM+3}, 0x20000']
    for e in range(8):
        out.append(f's_add_u32 s49, s48, {(16*(e>>2) + (e&3))*384}')
        out.append(f'buffer_load_ushort v{dst+e}, v{t+2}, s[{sM}:{sM+3}], s49 offen')
    out += [f'{lab}_pk3:']
    return out

def pack_store(lab, cfg, src, dst):
    out = []
    for d in range(4): out.append(f'v_lshl_or_b32 v{dst+d}, v{src+2*d+1}, 16, v{src+2*d}')
    if cfg.f16:
        out += [f's_cmp_lt_u32 s{sPkf}, 12', f's_cbranch_scc1 {lab}_pk5']
        for e in range(8): out.append(f'v_lshlrev_b32 v{src+e}, 16, v{src+e}')
        for d in range(4): out.append(f'v_cvt_pk_f16_f32 v{dst+d}, v{src+2*d}, v{src+2*d+1}')
        out.append(f'{lab}_pk5:')
    out += [f's_add_u32 s{sM}, s38, {WS_W}', f's_addc_u32 s{sM+1}, s39, 0', f's_mov_b32 s{sM+2}, {W_BYTES}', f's_mov_b32 s{sM+3}, 0x20000',
            f's_lshl_b32 s3, s{sPkF}, 10',
            f'buffer_store_dwordx4 {v(dst,4)}, v{vL16}, s[{sM}:{sM+3}], s3 offen sc1']
    return out

def gen(cfg, name='fused_kernel'):
    k2.MF2[0] = 'v_mfma_f32_16x16x32_f16' if cfg.f16 else k2.MF
    SPREAD[0] = cfg.spread
    INTER[0] = cfg.inter
    PROG[0] = cfg.prog
    EVEN[0] = EVENS.get(cfg.even)
    k2.SNAKE[0] = cfg.snake
    P = []; TR = []
    n3 = [0]
    def st3():
        if cfg.light3 and n3[0] in cfg.l3sel:
            j = cfg.l3sel.index(n3[0])
            P.extend([f's_memtime s[{82+2*j}:{83+2*j}]'])
        n3[0] += 1
        if False:
            P.extend(['s_memtime s[102:103]' if False else 's_memtime s[98:99]', 's_waitcnt lgkmcnt(0)', f'v_writelane_b32 v253, s98, {n3[0]}']); n3[0] += 1
    def emit(l, tr=True):
        P.extend(l)
        if tr: TR.extend([x for x in l if not x.endswith(':')])
    emit(['s_cmp_ge_u32 s2, 256', f's_cbranch_scc1 {name}_done'])
    if cfg.allwg: P += ['s_memrealtime s[82:83]']
    if cfg.light: P += ['s_memtime s[6:7]', 's_memrealtime s[8:9]', 's_waitcnt lgkmcnt(0)', 's_mov_b32 s82, s6', 's_mov_b32 s83, s8']
    st3()
    emit(['s_load_dwordx4 s[4:7], s[0:1], 0',
          's_load_dwordx2 s[38:39], s[0:1], 48',
          's_load_dwordx4 s[52:55], s[0:1], 16',
          'v_lshrrev_b32 v1, 6, v0', 'v_and_b32 v0, 63, v0', 's_nop 0',
          f'v_readfirstlane_b32 s{sWave}, v1',
          f's_mov_b32 s{sIMG}, {IMG_BYTES}', f's_mov_b32 s{sOnes}, 0x3f803f80',
          f's_mov_b32 s{sSelL}, 0x05040100', f's_mov_b32 s{sSelH}, 0x07060302',
          f's_mov_b32 s{sAl}, {hex(f2u(ALPHA))}', f's_mov_b32 s{sEps}, {hex(f2u(1e-5))}', f's_mov_b32 s{sInv}, {hex(f2u(1.0/192))}',
          f'v_lshlrev_b32 v{vL16}, 4, v0', f'v_mov_b32 v{vZ}, 0',
          's_waitcnt lgkmcnt(0)',
          f's_mov_b32 s{sX}, s4', f's_mov_b32 s{sX+1}, s5', f's_mov_b32 s{sX+2}, {IMG_BYTES}', f's_mov_b32 s{sX+3}, 0x20000',
          f's_mov_b32 s{sD}, s6', f's_mov_b32 s{sD+1}, s7', f's_mov_b32 s{sD+2}, {49*384}', f's_mov_b32 s{sD+3}, 0x20000',
          f's_add_u32 s{sH}, s38, {WS_H}', f's_addc_u32 s{sH+1}, s39, 0', f's_mov_b32 s{sH+2}, {IMG_BYTES}', f's_mov_b32 s{sH+3}, 0x20000',
          f's_load_dwordx2 s[{sDbg}:{sDbg+1}], s[0:1], 40', f's_mov_b32 s{sTI}, 0'])
    st3()
    t = Y0
    c = []
    for j in range(4):
        c += [f'v_add_u32 v{t}, {64*j}, v0', f'v_mul_u32_u24 v{t+1}, 2622, v{t}', f'v_lshrrev_b32 v{t+1}, 16, v{t+1}',
              f'v_mul_u32_u24 v{t+2}, 25, v{t+1}', f'v_sub_u32 v{t+2}, v{t}, v{t+2}',
              f'v_subrev_u32 v{t+1}, 1, v{t+1}', f'v_cmp_gt_u32 vcc, 7, v{t+1}', f'v_cmp_gt_u32 s[44:45], 24, v{t+2}',
              f'v_mul_u32_u24 v{t+1}, 384, v{t+1}', f'v_lshl_add_u32 v{t+1}, v{t+2}, 4, v{t+1}', f's_and_b64 vcc, vcc, s[44:45]',
              f'v_subrev_u32 v{t+1}, {1024*j}, v{t+1}' if False else 's_nop 0',
              f'v_cndmask_b32 v{t+8+j}, 2.0, v{t+1}, vcc']
    emit(c)
    c = []
    for m in range(3):
        blk_ = [f's_add_u32 s{sT}, s{sWave}, {4*m}', f's_sub_u32 s{sT2}, s{sT}, 1', f's_cmp_lt_u32 s{sT2}, 7', f's_mul_i32 s{sT2}, s{sT2}, {7*384}',
                f's_cselect_b32 s{sT2}, s{sT2}, 0x70000000', f's_mul_i32 s{sT}, s{sT}, {ROWS}', f's_add_u32 s{sT}, s{sT}, {DWB}']
        for j in range(4):
            blk_ += [f's_add_u32 m0, s{sT}, {1024*j}', 's_nop 0']
            if j == 3: blk_ += ['s_mov_b32 exec_hi, 3']
            blk_ += [f'buffer_load_dwordx4 v{t+8+j}, s[{sD}:{sD+3}], s{sT2} offen lds']
            if j == 3: blk_ += ['s_mov_b32 exec_hi, -1']
        if m < 2: c += blk_
        else: c += [f's_cmp_eq_u32 s{sWave}, 0', f's_cbranch_scc0 {name}_nor8'] + blk_ + [f'{name}_nor8:']
    emit(c)
    pk = [f's_mov_b32 s{sPkF}, -1', f's_cmp_lt_u32 s2, {NPKWG if not cfg.force_fb else 0}', f's_cbranch_scc0 {name}_nopk',
          f's_lshl_b32 s44, s2, 3', f's_lshl_b32 s45, s{sWave}, 1', f's_add_u32 s{sPkF}, s44, s45']
    pk += pack_loads(f'{name}_a', Y0 + 32, ACC, 0) + [f's_add_u32 s{sPkF}, s{sPkF}, 1'] + pack_loads(f'{name}_a2', Y0 + 41, ACC, 0) + [f'{name}_nopk:']
    st3()
    if not cfg.nosync: P += pk
    st3()
    c = [f'v_and_b32 v{t}, 7, v0', f'v_lshrrev_b32 v{t+1}, 3, v0']
    for r in range(4):
        if r < 3: c += [f's_lshl_b32 s{sT}, s{sWave}, 3', f's_add_u32 s{sT}, s{sT}, {32*r}', f'v_add_u32 v{t+2}, s{sT}, v{t+1}']
        else:
            c += [f'v_add_u32 v{t+2}, 96, v{t+1}', f'v_cmp_gt_u32 s[{sMk3}:{sMk3+1}], 24, v0']
        c += [f'v_mul_u32_u24 v{t+3}, 745, v{t+2}', f'v_lshrrev_b32 v{t+3}, 13, v{t+3}',
              f'v_mul_u32_u24 v{t+4}, 11, v{t+3}', f'v_sub_u32 v{t+4}, v{t+2}, v{t+4}',
              f'v_mul_u32_u24 v{t+5}, {2*384}, v{t+3}', f'v_lshl_add_u32 v{t+5}, v{t+4}, 1, v{t+5}',
              f'v_mul_u32_u24 v{t+5}, 384, v{t+5}',
              f'v_lshl_add_u32 v{vRel+r}, v{t}, 4, v{t+5}']
        for dx in range(2):
            mL = sMaskL + 2 * (2 * r + dx); mR = sMaskR + 2 * (2 * r + dx)
            c += [f'v_lshl_add_u32 v{t+6}, v{t+4}, 1, {dx}',
                  f'v_cmp_lt_u32 s[{mL}:{mL+1}], 2, v{t+6}', f'v_cmp_gt_u32 s[{mR}:{mR+1}], 19, v{t+6}']
            if r == 3:
                c += ['s_nop 1', f's_and_b64 s[{mL}:{mL+1}], s[{mL}:{mL+1}], s[{sMk3}:{sMk3+1}]', f's_and_b64 s[{mR}:{mR+1}], s[{mR}:{mR+1}], s[{sMk3}:{sMk3+1}]']
        if r == 0: c += [f'v_mul_u32_u24 v{vLw}, {REC}, v{t+2}']
        if r == 3:
            c += [f's_lshl_b32 s{sT}, s{sWave}, 2', f'v_add_u32 v{vRel+3}, s{sT}, v{vRel+3}',
                  f'v_cndmask_b32 v{vRel+3}, 2.0, v{vRel+3}, s[{sMk3}:{sMk3+1}]',
                  f'v_mul_u32_u24 v{vLw3}, {REC}, v{t+2}', f'v_xor_b32 v{t+6}, s{sWave}, v{t}', f'v_lshl_add_u32 v{vLw3}, v{t+6}, 4, v{vLw3}',
                  f's_lshl_b32 s{sT}, s{sWave}, 7', f'v_add_u32 v{vLw3}, s{sT}, v{vLw3}']
    c += [f'v_lshrrev_b32 v{t}, 2, v0', f'v_and_b32 v{t+1}, 3, v0', f'v_lshrrev_b32 v{t+2}, 3, v{t}',
          f's_lshl_b32 s{sT}, s{sWave}, 1',
          f'v_add_u32 v{t+2}, s{sT}, v{t+2}', f'v_bfe_u32 v{t+3}, v{t}, 1, 2', f'v_xor_b32 v{t+4}, v{t+2}, v{t+3}',
          f'v_lshlrev_b32 v{t+4}, 1, v{t+4}', f'v_lshl_add_u32 v{t+4}, v{t+3}, 4, v{t+4}',
          f'v_and_b32 v{t+5}, 1, v{t}', f'v_add_u32 v{t+4}, v{t+4}, v{t+5}', f'v_lshlrev_b32 v{t+4}, 3, v{t+4}',
          f'v_mul_u32_u24 v{t+5}, {2*REC}, v{t+1}', f'v_add_u32 v{vRd}, v{t+4}, v{t+5}']
    c += [f's_lshl_b32 s{sT2}, s{sWave}, 4', f'v_add_u32 v{t+7}, s{sT2}, v{t}',
          f'v_bfe_u32 v{t+8}, v{t+7}, 3, 1', f'v_lshlrev_b32 v{t+8}, 2, v{t+8}', f'v_xor_b32 v{t+7}, v{t+7}, v{t+8}',
          f'v_lshlrev_b32 v{t+7}, 5, v{t+7}', f'v_lshl_add_u32 v{t+7}, v{t+1}, 3, v{t+7}', f'v_add_u32 v{vY0}, {YB}, v{t+7}']
    c += [f'v_lshrrev_b32 v{t}, 4, v0', f'v_bfe_u32 v{t+1}, v0, 2, 2', f'v_and_b32 v{t+2}, 3, v0',
          f's_mul_i32 s{sT}, s{sWave}, {3*2048}', f's_add_u32 s{sT}, s{sT}, {YB}']
    for h, vr in ((0, vR0), (1, vR1)):
        c += [f'v_lshl_add_u32 v{t+3}, v{t}, 3, v{t+1}', f'v_add_u32 v{t+3}, {4*h}, v{t+3}',
              f'v_and_b32 v{t+4}, 1, v{t}', f'v_lshlrev_b32 v{t+4}, 2, v{t+4}', f'v_xor_b32 v{t+3}, v{t+3}, v{t+4}',
              f'v_lshlrev_b32 v{t+3}, 5, v{t+3}', f'v_lshl_add_u32 v{t+3}, v{t+2}, 3, v{t+3}', f'v_add_u32 v{vr}, s{sT}, v{t+3}']
    vb = VO + 15 + 1
    c += [f'v_lshrrev_b32 v{t}, 2, v0', f's_lshl_b32 s{sT}, s{sWave}, 5', f'v_lshlrev_b32 v{t}, 1, v{t}', f'v_add_u32 v{t}, s{sT}, v{t}',
          f'v_bfe_u32 v{t+1}, v0, 1, 1', f'v_mul_u32_u24 v{t+1}, {ROWS}, v{t+1}', f'v_and_b32 v{t+2}, 1, v0', f'v_mul_u32_u24 v{t+2}, {TAPS}, v{t+2}',
          f'v_add_u32 v{t+1}, v{t+1}, v{t+2}', f'v_sub_u32 v{t}, v{t}, v{t+1}', f'v_add_u32 v{vb}, {DWB}, v{t}',
          f'v_and_b32 v{vO16}, 7, v0', f'v_lshlrev_b32 v{vO16}, 4, v{vO16}']
    emit(c)
    tl = [0]
    def tile_setup(fetch):
        o = [f's_sub_u32 s24, 2, {fetch}' if not cfg.rend else f's_mov_b32 s24, {fetch}',
             f's_lshr_b32 s25, s2, 3', f's_lshl_b32 s24, s24, 5', f's_add_u32 s25, s25, s24',
             f's_and_b32 s26, s2, 7', f's_lshl_b32 s26, s26, 2', f's_and_b32 s27, s25, 3', f's_add_u32 s26, s26, s27',
             f's_lshr_b32 s27, s25, 2',
             f's_mul_i32 s24, s26, {12*384}', f's_lshl_b32 s25, s27, 4', f's_add_u32 s24, s24, s25',
             f's_sub_u32 s24, s24, {3*384+3}', f's_mul_i32 s{sBase}, s24, 384',
             f's_cmp_eq_u32 {fetch}, 3', f's_cselect_b32 s{sBase}, 0x60000000, s{sBase}']
        if cfg.diag_nox: o += [f's_mov_b32 s{sBase}, 0x60000000']
        tl[0] += 1; lab = f'{name}_to{tl[0]}'
        fast = []
        for dy in range(2):
            for dx in range(2):
                fast += [f's_add_u32 s24, s{sBase}, {147456*dy + 384*dx}'] + [f'v_add_u32 v{vo(r,dy,dx)}, s24, v{vRel+r}' for r in range(4)]
        o += [f's_sub_u32 s25, s27, 1', f's_cmp_lt_u32 s25, 22', f's_cselect_b32 s25, 1, 0', f's_cmp_eq_u32 s26, 0', f's_cselect_b32 s25, 0, s25',
              f's_cmp_eq_u32 s{sBase}, 0x60000000', f's_cselect_b32 s25, 1, s25', f's_cmp_eq_u32 s25, 0', f's_cbranch_scc1 {lab}_slow']
        return o + fast + [f's_branch {lab}_done', f'{lab}_slow:'] + tile_offsets() + [f'{lab}_done:']
    strip = lambda l: [x.split(' ;@')[0] for x in l]
    def store_bases():
        o = [f's_mul_i32 s25, s2, 3', f's_add_u32 s25, s25, 2', f's_mul_i32 s25, s25, 12', f's_mul_i32 s26, s{sWave}, 3', f's_add_u32 s25, s25, s26',
             f's_mul_i32 s25, s25, 6144', f's_add_u32 s26, s25, 3072',
             f's_cmp_eq_u32 s{sTI}, {1 if not cfg.diag_nost else 9}', f's_cselect_b32 s{sSt3}, s25, 0x70000000',
             f's_cmp_eq_u32 s{sTI}, {2 if not cfg.diag_nost else 9}', f's_cselect_b32 s{sSt3+3}, s26, 0x70000000']
        for b in (sSt3, sSt3 + 3): o += [f's_add_u32 s{b+1}, s{b}, 6144', f's_add_u32 s{b+2}, s{b}, 12288']
        return o
    emit(tile_setup('0'))
    emit(strip(sum(load_items(cfg, 0, 0), [])))
    st3()
    emit(['s_waitcnt vmcnt(16) lgkmcnt(0)'])
    st3()
    emit(['s_barrier'])
    st3()
    if not cfg.nosync:
        P += [f's_cmp_eq_u32 s{sPkF}, -1', f's_cbranch_scc1 {name}_nops'] + pack_store(f'{name}_b', cfg, Y0 + 41, Y0)
        P += [f's_sub_u32 s{sPkF}, s{sPkF}, 1', f's_sub_u32 s{sPkf}, s{sPkf}, 1'] + pack_store(f'{name}_b2', cfg, Y0 + 32, Y0 + 4) + ['s_nop 1', f'{name}_nops:']
    emit(weights_gather(vb))
    st3()
    emit(['s_waitcnt vmcnt(0)'])
    st3()
    emit([f'v_add_u32 v{vLw}, {SLAB}, v{vLw}', f'v_add_u32 v{vLw3}, {SLAB}, v{vLw3}', f'v_add_u32 v{vRd}, {SLAB}, v{vRd}'])
    for r in range(4):
        for d in range(4): emit(transpose_unit(r, d, 0))
    dfr = lambda k: (k - 1 if (cfg.defer_y and k > 0) else None)
    raw = {k: conv_stage(k, 0, load_items(cfg, (k + 2) % 3, 0), store_items(cfg, k), defer=dfr(k)) for k in range(3)}
    nw = resolve_l([raw[0], raw[1], raw[2]])
    fix = lambda l: [(f's_waitcnt vmcnt({nw[int(x[6:])]})' if x.startswith('WAITL:') else x.split(' ;@')[0]) for x in l]
    body = {key: fix(val) for key, val in raw.items()}
    tags = [x.split(';@')[1].strip() for x in raw[0] if ';@' in x]
    tags = tags[[i for i, x in enumerate(tags) if x.startswith('l')][0]:]
    l1 = strip(sum(load_items(cfg, 1, 0), []))
    emit([f's_mov_b32 s{sT}, 0x70000000'])
    for tg in tags:
        emit([l1.pop(0)] if tg.startswith('l') else [f'buffer_store_dword v{vA}, v{vL16}, s[{sH}:{sH+3}], s{sT} offen'])
    assert not l1
    emit([f'v_subrev_u32 v{vLw}, {SLAB}, v{vLw}', f'v_subrev_u32 v{vLw3}, {SLAB}, v{vLw3}', f's_mov_b32 s{sDS}, {-SLAB & 0xffffffff}', f's_mov_b32 s{sDY}, 24576', f's_mov_b32 s{sDR}, 24576',
          's_waitcnt lgkmcnt(0)'])
    st3()
    emit(['s_barrier'])
    st3()
    if not cfg.nosync:
        P += [f's_cmp_eq_u32 s{sPkF}, -1', f's_cbranch_scc1 {name}_nopub', f's_cmp_eq_u32 s{sWave}, 0', f's_cbranch_scc0 {name}_nopub',
              f'v_mov_b32 v{vB}, 1', 's_mov_b32 exec_lo, 1', 's_mov_b32 exec_hi, 0',
              f'global_atomic_add v{vZ}, v{vB}, s[{sDbg}:{sDbg+1}]', 's_mov_b64 exec, -1', f'{name}_nopub:']
    def after(k, vm=None):
        o = ([f's_waitcnt vmcnt({vm})'] if vm is not None else []) + ['s_waitcnt lgkmcnt(0)', 's_barrier']
        if k == 2 or not cfg.defer_y:
            rd, tg = yin(k)
            o += rd + tg
        o += [f'v_add_u32 v{vRd}, s{sDS}, v{vRd}', f'v_subrev_u32 v{vLw}, s{sDS}, v{vLw}', f'v_subrev_u32 v{vLw3}, s{sDS}, v{vLw3}',
              f'v_add_u32 v{vY0}, s{sDY}, v{vY0}',
              f's_sub_u32 s{sDS}, 0, s{sDS}', f's_sub_u32 s{sDY}, 0, s{sDY}']
        return o
    sn = [0]
    def st2():
        if not cfg.light2: return []
        sn[0] += 1
        return [f's_cmp_eq_u32 s{sTI}, {cfg.l2tile}', f's_cbranch_scc0 {name}_s2_{sn[0]}', f's_memtime s[{STAMP0-2+2*((sn[0]-1)%5+1)}:{STAMP0-1+2*((sn[0]-1)%5+1)}]', f'{name}_s2_{sn[0]}:']
    lns = ln_block(cfg)
    K = k2
    emit([f's_mov_b32 s{sTI}, 0'])
    P += ['.p2align 6', f'{name}_tile:']
    P += st2()
    if not cfg.rend: emit(store_bases())
    emit(body[0] + after(0))
    P += st2()
    emit([f's_add_u32 s3, s{sTI}, 1'] + tile_setup('s3'))
    if cfg.light4:
        b1 = []; n = [0]
        def stmp():
            n[0] += 1; j = n[0] - 1
            return [f's_cmp_eq_u32 s{sTI}, {cfg.l2tile}', f's_cbranch_scc0 {name}_l4_{j}', f's_memtime s[{82+2*j}:{83+2*j}]', f'{name}_l4_{j}:']
        b1 += stmp()
        for x in body[1]:
            if x.startswith(';MARK') and x[5] in cfg.l4sel: b1 += stmp()
            else: b1.append(x)
        af = after(1)
        if 'e' in cfg.l4sel: b1 += stmp() + af[:1] + stmp() + af[1:2] + stmp() + af[2:]
        else: b1 += af
        P += b1; TR += body[1] + after(1)
    else:
        nvm1 = sum(1 for x in body[1] if x.startswith('buffer_'))
        emit(body[1] + after(1, nvm1))
    P += st2()
    pre = [f's_add_u32 s{K.sW}, s38, {WS_W}', f's_addc_u32 s{K.sW+1}, s39, 0', f's_mov_b32 s{K.sW+2}, {W_BYTES}', f's_mov_b32 s{K.sW+3}, 0x20000',
           f's_mul_i32 s{K.sWoff}, s40, 12288', f's_cmp_eq_u32 s40, 1', f's_cselect_b32 s24, {23*24576}, s{K.sWoff}']
    its = []
    for i in range(12):
        it = []
        if i % 4 == 0: it += [f's_add_u32 m0, s{K.sWoff}, {4096*(i//4)}', f's_add_u32 s{sT}, s24, {4096*(i//4)}', 's_nop 0']
        it.append(f'buffer_load_dwordx4 v{vL16}, s[{K.sW}:{K.sW+3}], s{sT} offen offset:{1024*(i%4)} lds')
        its.append(it)
    xbase = [f's_lshr_b32 s24, s2, 3', f's_and_b32 s25, s2, 7', f's_lshl_b32 s25, s25, 2', f's_and_b32 s26, s24, 3', f's_add_u32 s25, s25, s26',
             f's_lshr_b32 s24, s24, 2', f's_mul_i32 s25, s25, 12', f's_mul_i32 s26, s40, 3', f's_add_u32 s25, s25, s26',
             f's_mul_i32 s25, s25, 24', f's_add_u32 s25, s25, s24', f's_mul_i32 s{K.sBX}, s25, 6144']
    vgs = [f'v_and_b32 v{vA}, 0xf0, v{vL16}', f'v_mul_u32_u24 v{K.vG}, 24, v{vA}', f'v_lshrrev_b32 v{vA}, 4, v{vL16}', f'v_and_b32 v{vA}, 0x30, v{vA}',
           f'v_add_u32 v{K.vG}, v{K.vG}, v{vA}']
    xl = lambda p, s_: f'buffer_load_dwordx4 {a(K.pxreg(p,s_), 4)}, v{K.vG}, s[{K.sX}:{K.sX+3}], s{48+p} offen offset:{64*s_}' + (' nt' if cfg.nt_x else '')
    pre = xbase + [f's_mov_b32 s48, s{K.sBX}', f's_add_u32 s49, s48, {cfg.xps}', f's_add_u32 s50, s49, {cfg.xps}'] + vgs + pre
    xearly = [(p, s_) for p in range(3) for s_ in range(6) if K.pxreg(p, s_) + 3 < Wt(2, 0, 0)]
    xlate = [(p, s_) for p in range(3) for s_ in range(6) if (p, s_) not in xearly]
    if cfg.rend: xearly = []; xlate = []
    cl = strip(conv_stage(2, 0, its, store_items(cfg, 2), transp=False, xtra=[[xl(p, s_)] for p, s_ in xearly], defer=dfr(2)))
    P += [f's_cmp_eq_u32 s{sTI}, 2', f's_cbranch_scc0 {name}_nl'] + pre + cl + after(2) + [f's_branch {name}_last', f'{name}_nl:']
    if not cfg.nosync:
        P += [f's_cmp_eq_u32 s{sTI}, 1', f's_cbranch_scc0 {name}_nopoll', f's_cmp_eq_u32 s{sWave}, 0', f's_cbranch_scc0 {name}_nopoll',
              f'global_load_dword v{vP}, v{vZ}, s[{sDbg}:{sDbg+1}] sc1', f'{name}_nopoll:']
    emit(body[2] + after(2) + ['s_waitcnt lgkmcnt(0)'])
    P += st2()
    if not cfg.nosync:
        ft = ACC
        fb = [f's_cmp_eq_u32 s{sTI}, 1', f's_cbranch_scc0 {name}_nochk', f's_cmp_eq_u32 s{sWave}, 0', f's_cbranch_scc0 {name}_nochk',
              f's_waitcnt vmcnt({sum(1 for x in body[2] if x.startswith("buffer_"))})', f'v_readfirstlane_b32 s44, v{vP}', 's_nop 3', f's_cmp_ge_u32 s44, {NPKWG + (1000 if cfg.force_fb else 0)}', f's_cbranch_scc1 {name}_acq',
              f's_mov_b32 s45, {cfg.spin}', f'{name}_spin:',
              f'global_load_dword v{vP}, v{vZ}, s[{sDbg}:{sDbg+1}] sc1', 's_waitcnt vmcnt(0)', f'v_readfirstlane_b32 s44, v{vP}', 's_nop 3',
              f's_cmp_ge_u32 s44, {NPKWG + (1000 if cfg.force_fb else 0)}', f's_cbranch_scc1 {name}_acq',
              's_sub_u32 s45, s45, 1', 's_cmp_lg_u32 s45, 0', f's_cbranch_scc1 {name}_spin',
              's_load_dwordx4 s[52:55], s[0:1], 16', f'v_lshrrev_b32 v{ft}, 4, v{vL16}', f's_mov_b32 s{sPkF}, 0', 's_waitcnt vmcnt(0) lgkmcnt(0)', f'{name}_self:']
        fb += pack_loads(f'{name}_c', ft + 8, ft + 1, ft) + ['s_waitcnt vmcnt(0)'] + pack_store(f'{name}_d', cfg, ft + 8, ft + 16)
        fb += ['s_waitcnt vmcnt(0)', f's_add_u32 s{sPkF}, s{sPkF}, 1', f's_cmp_lt_u32 s{sPkF}, {NPACK}', f's_cbranch_scc1 {name}_self',
               f'{name}_acq:', 'buffer_inv sc1', f'{name}_nochk:']
        P += fb
    P += [f's_call_b64 s[42:43], {name}_ln']; TR += lns
    wHold = [f'v_accvgpr_write_b32 a{HOLD+i}, v{Y0+i}' for i in range(72)]
    wP = [f'v_accvgpr_write_b32 a{K.PF0+i}, v{Y0+i}' for i in range(72)]
    P += [f's_cmp_eq_u32 s{sTI}, 1', f's_cbranch_scc1 {name}_ln1'] + wHold + [f's_branch {name}_lnd', f'{name}_ln1:'] + wP + [f'{name}_lnd:']
    TR += wHold + wP
    P += st2()
    P += [f's_add_u32 s{sTI}, s{sTI}, 1', f's_branch {name}_tile', f'{name}_last:']
    emit(['s_waitcnt vmcnt(0) lgkmcnt(0)', 's_barrier'])
    if cfg.allwg: P += ['s_memrealtime s[84:85]', 's_waitcnt lgkmcnt(0)']
    if cfg.light: P += ['s_memtime s[6:7]', 's_memrealtime s[24:25]', 's_waitcnt lgkmcnt(0)', 's_mov_b32 s84, s6', 's_mov_b32 s85, s24']
    emit(['s_load_dwordx2 s[6:7], s[0:1], 32',
          'v_mbcnt_lo_u32_b32 v0, -1, 0', 'v_mbcnt_hi_u32_b32 v0, -1, v0'])
    emit(K.gelu_consts(cfg) + K.ident_setup())
    emit([f's_add_u32 s{K.sW}, s38, {WS_W}', f's_addc_u32 s{K.sW+1}, s39, 0', f's_mov_b32 s{K.sW+2}, {W_BYTES}', f's_mov_b32 s{K.sW+3}, 0x20000',
          f's_mul_i32 s{K.sWoff}, s40, 12288',
          f's_mul_i32 s{K.sB}, s2, {36*6144}', f's_mul_i32 s41, s40, {3*6144}', f's_add_u32 s{K.sB}, s{K.sB}, s41',
          's_waitcnt lgkmcnt(0)',
          f's_mov_b32 s{K.sO}, s6', f's_mov_b32 s{K.sO+1}, s7', f's_mov_b32 s{K.sO+2}, {IMG_BYTES}', f's_mov_b32 s{K.sO+3}, 0x20000',
          's_mov_b32 s98, s6', 's_mov_b32 s99, s7'])
    emit(xbase + [f's_mov_b32 s48, s{K.sBX}', f's_add_u32 s49, s48, {cfg.xps}', f's_add_u32 s50, s49, {cfg.xps}'])
    emit(K.m_second_dma(cfg, 240) + [xl(p, s_) for p, s_ in xlate])
    P += [f's_call_b64 s[42:43], {name}_ln']; TR += lns
    emit([f'v_accvgpr_write_b32 a{(K.PX0 if cfg.rend else K.H0)+i}, v{Y0+i}' for i in range(72)])
    emit(K.m_g1_first(cfg, early=True))
    if cfg.light: P += ['s_memtime s[6:7]', 's_memrealtime s[4:5]', 's_waitcnt lgkmcnt(0)', 's_mov_b32 s86, s6', 's_mov_b32 s87, s4']
    mp, sub, tr = K.m_main(cfg, name)
    P += mp; TR += tr
    P += K.dump_stamps2(cfg, 13)
    if cfg.light:
        P += ['s_waitcnt vmcnt(0)', 's_memtime s[6:7]', 's_memrealtime s[4:5]', 's_load_dwordx2 s[8:9], s[0:1], 40', 's_waitcnt lgkmcnt(0)', 's_mov_b32 s88, s6', 's_mov_b32 s89, s4'] + [f'v_writelane_b32 v255, s{82+i}, {i}' for i in range(8)] + [
              's_cmp_eq_u32 s2, 17', f's_cbranch_scc0 {name}_done', 's_cmp_eq_u32 s40, 0', f's_cbranch_scc0 {name}_done',
              'v_mbcnt_lo_u32_b32 v0, -1, 0', 'v_mbcnt_hi_u32_b32 v0, -1, v0', 'v_lshlrev_b32 v1, 2, v0', 'v_cmp_gt_u32 vcc, 8, v0', 's_and_saveexec_b64 s[10:11], vcc',
              'global_store_dword v1, v255, s[8:9] offset:16']
    if cfg.allwg:
        P += ['s_waitcnt vmcnt(0)', 's_memrealtime s[86:87]', 's_cmp_eq_u32 s40, 0', f's_cbranch_scc0 {name}_done', 's_waitcnt lgkmcnt(0)',
              's_lshl_b32 s3, s2, 4', f's_add_u32 s3, s3, {200 << 20}', 'v_mov_b32 v5, s3',
              'v_mov_b32 v4, s82', 's_nop 1', 'global_store_dword v5, v4, s[38:39]',
              'v_mov_b32 v4, s84', 's_nop 1', 'global_store_dword v5, v4, s[38:39] offset:4',
              'v_mov_b32 v4, s86', 's_nop 1', 'global_store_dword v5, v4, s[38:39] offset:8']
    if cfg.light2 or cfg.light3 or cfg.light4:
        P += ['s_waitcnt vmcnt(0)', 's_load_dwordx2 s[8:9], s[0:1], 40', 's_waitcnt lgkmcnt(0)',
              's_cmp_eq_u32 s2, 17', f's_cbranch_scc0 {name}_done', 's_cmp_eq_u32 s40, 0', f's_cbranch_scc0 {name}_done']
        P += [f'v_writelane_b32 v255, s{STAMP0+2*i}, {i}' for i in range(5)]
        P += ['v_mbcnt_lo_u32_b32 v0, -1, 0', 'v_mbcnt_hi_u32_b32 v0, -1, v0', 'v_lshlrev_b32 v1, 2, v0', 'v_cmp_gt_u32 vcc, 5, v0', 's_and_saveexec_b64 s[10:11], vcc',
              'global_store_dword v1, v255, s[8:9] offset:64']
    P += [f'{name}_done:', 's_endpgm']
    P += ['.p2align 6', f'{name}_ln:'] + lns + ['s_setpc_b64 s[42:43]']
    P += sub
    return P, TR

def kd(name):
    return k2.kd(name)

if __name__ == '__main__':
    import asmlib
    P, TR = gen(Cfg)
    asmlib.check(TR, 'kf')
    print(len(P))
```

```python
import struct, math

def f2u(f): return struct.unpack('<I', struct.pack('<f', f))[0]
LOG2E = 1.4426950408889634
A1 = 2.0 * math.sqrt(2.0 / math.pi) * LOG2E
B1 = A1 * 0.044715
ALPHA = B1 ** (1.0 / 3.0)
CC = A1 / ALPHA

WS_W = 0
W_BYTES = 24 * 24576
WS_H = 1 << 20
IMG_BYTES = 384 * 384 * 192 * 2

vLds, vDma, vG = 1, 2, 3
vLdsS = (1, 4, 5)
T0 = 8
G0 = 24
S0 = 48
ACC = 96
H0, PF0, PX0, W0, I0 = 0, 72, 144, 216, 248
NB = 8
sW, sH, sX, sO = 8, 12, 16, 20
sPass, sJ, sDst, sDstSum, sSrc, sWoff, sB, sT, sT2, sNegC, sAlpha = 24, 25, 26, 27, 28, 29, 30, 31, 32, 34, 35
sB1, sRd = 36, 37
sRet = 42
sHx = 90
sLdH = 96 - 4
sSt, sLd = 44, 47
sLx, sBX = 95, 51
OOB = 0x70000000

def v(b, n=1): return f'v{b}' if n == 1 else f'v[{b}:{b+n-1}]'
def a(b, n=1): return f'a{b}' if n == 1 else f'a[{b}:{b+n-1}]'
def Sreg(buf, aa, p): return S0 + 24 * buf + 4 * (aa * 3 + p)
def Greg(buf, p): return G0 + 12 * buf + 4 * p
def acc(t, p): return ACC + 4 * (t * 3 + p)
def hreg(p, s): return H0 + 24 * p + 4 * s
def pfreg(p, s): return PF0 + 24 * p + 4 * s
def pxreg(p, s): return PX0 + 24 * p + 4 * s
MF = 'v_mfma_f32_16x16x32_bf16'

class Cfg:
    prof = False
    prof2 = False
    allwg = False
    profpass = 1
    plan = ['ssss', 'sssss', 'sssss', 'ssssh', 'hhhhh', 'hhhhh', 'hhhhh', 'hhxxx', 'xxxxx', 'xxxxx', 'xxxxx', '']
    xpos = [26, 30, 34, 38, 41]
    D = 5
    gsz = 4
    f16 = False
    warm = True
    sub = True
    hskip = False
    hout = False
    rend = False
    freeslot = False
    snake = False
    tail_lds = False
    tail_flags = None
    tail_inter = False
    out_flags = None
    static_ring = False
    wevery = 2
    mid_vm = 12
    diag_nodma = False
    xps = 6144
    xts = 73728
    nt_h = False; nt_x = False; nt_o = False

def f2h(f):
    import numpy as np
    return int(np.float16(f).view(np.uint16))

def gelu_list16(buf, cfg):
    out = []
    grp = [(aa, p) for aa in range(2) for p in range(3)]
    for i in range(0, 6, 2):
        dw = []
        for gi, (aa, p) in enumerate(grp[i:i+2]):
            for d in range(2):
                n = (i // 2 % 2) * 8 + gi * 4 + d * 2
                u = Sreg(buf, aa, p) + 2 * d
                dw.append((u, u + 1, T0 + n, T0 + n + 1, Greg(buf, p) + 2 * aa + d))
        SD = lambda w: f'dst_sel:WORD_{w} dst_unused:UNUSED_PRESERVE src0_sel:WORD_{w}'
        for u0, u1, h, t, g in dw: out.append(f'v_cvt_pk_f16_f32 v{h}, v{u0}, v{u1}')
        for u0, u1, h, t, g in dw: out.append(f'v_pk_fma_f16 v{t}, v{h}, v{h}, s{sNegC} neg_lo:[1,0,0] neg_hi:[1,0,0]')
        for u0, u1, h, t, g in dw: out.append(f'v_pk_mul_f16 v{t}, v{t}, v{h}')
        for w in range(2):
            for u0, u1, h, t, g in dw: out.append(f'v_exp_f16_sdwa v{t}, v{t} {SD(w)}')
        for u0, u1, h, t, g in dw: out.append(f'v_pk_fma_f16 v{t}, v{t}, s{sAlpha}, s{sAlpha}')
        for w in range(2):
            for u0, u1, h, t, g in dw: out.append(f'v_rcp_f16_sdwa v{t}, v{t} {SD(w)}')
        for u0, u1, h, t, g in dw: out.append(f'v_pk_mul_f16 v{g}, v{h}, v{t}')
    return out

def gelu_list(buf, cfg):
    if cfg.f16: return gelu_list16(buf, cfg)
    out = []
    k = 0
    for aa in range(2):
        for p in range(3):
            es = [Sreg(buf, aa, p) + i for i in range(4)]
            ts = [T0 + (k % 2) * 4 + i for i in range(4)]
            k += 1
            for u, t in zip(es, ts): out.append(f'v_fma_f32 v{t}, -v{u}, v{u}, s{sNegC}')
            for u, t in zip(es, ts): out.append(f'v_mul_f32 v{t}, v{t}, v{u}')
            for u, t in zip(es, ts): out.append(f'v_exp_f32 v{t}, v{t}')
            for u, t in zip(es, ts): out.append(f'v_fma_f32 v{t}, v{t}, s{sAlpha}, s{sAlpha}')
            for u, t in zip(es, ts): out.append(f'v_rcp_f32 v{t}, v{t}')
            for u, t in zip(es, ts): out.append(f'v_mul_f32 v{t}, v{u}, v{t}')
            g = Greg(buf, p) + 2 * aa
            out.append(f'v_cvt_pk_bf16_f32 v{g}, v{ts[0]}, v{ts[1]}')
            out.append(f'v_cvt_pk_bf16_f32 v{g+1}, v{ts[2]}, v{ts[3]}')
    return out

def g1_groups(j):
    buf = (j + 1) & 1
    base = (j & 1) * 24576
    gs = []
    for s in range(6):
        for aa in range(2):
            gs.append((base + (2 * s + aa) * 1024,
                       [(lambda w, p=p, s=s, aa=aa: f'{MF} {v(Sreg(buf,aa,p),4)}, {a(w,4)}, {a(hreg(p,s),4)}, ' + ('0' if s == 0 else v(Sreg(buf,aa,p),4))) for p in porder(aa)]))
    return gs

MF2 = [MF]
SNAKE = [False]
def porder(i): return (2, 1, 0) if (SNAKE[0] and i % 2) else (0, 1, 2)
def g2_groups(j, zero=False):
    buf = (j - 1) & 1
    base = (j & 1) * 24576 + 12288
    gs = []
    for t in range(12):
        gs.append((base + t * 1024,
                   [(lambda w, p=p, t=t: f'{MF2[0]} {v(acc(t,p),4)}, {a(w,4)}, {v(Greg(buf,p),4)}, ' + ('0' if zero else v(acc(t,p),4))) for p in porder(t)]))
    return gs

def cost(t):
    op = t.split()[0]
    if op.startswith(('v_exp', 'v_rcp')): return 8
    return 4

def wbuf(g): return W0 + 4 * (g % NB)

def dma_block(k):
    return [f's_add_u32 m0, s{sDst}, {4096*k}', f's_add_u32 s{sT}, s{sSrc}, {4096*k}']
DTAG = ['dma']
def dma(i):
    return f'buffer_load_dwordx4 v{vDma}, s[{sW}:{sW+3}], s{sT} offen offset:{(i%4)*1024} lds ;@{DTAG[0]}'

def superstep(cfg, j0, mid=None, extra_valu=None, extra_at=None, bar_wait=None, dma_on=True, pre=None):
    J = j0 // 2
    sr = cfg.static_ring
    vcur = vLdsS[J % 3] if sr else vLds
    vnxt = vLdsS[(J + 1) % 3] if sr else vLds
    D = cfg.D
    groups = g1_groups(j0) + g2_groups(j0) + g1_groups(j0 + 1) + g2_groups(j0 + 1, zero=(cfg.rend and j0 == 0))
    nxt = g1_groups(j0)
    out = list(pre or [])
    fifo = list(range(0, D))
    waited = cfg.wevery - 1
    fifo = [g for g in fifo if g > waited]
    vl = [gelu_list(j0 & 1, cfg), gelu_list((j0 + 1) & 1, cfg)]
    extra_at = extra_at or {}
    reads_at = {g: [] for g in range(48)}
    for g in range(48):
        r = g + D
        if r <= 46 - 0 and g < 47 - D - 1: reads_at[g].append(r)
    reads_at[47 - D - 1] = [46, 47]
    reads_at[47 - D] = []
    for k in range(D): reads_at[48 - D + k].append(48 + k)
    fs = cfg.freeslot and sr
    dma_salu = lambda i: [f's_add_u32 m0, s{sWoff}, {((J + 2) % 3) * 49152 + 4096 * (i // 4)}', f's_add_u32 s{sT}, s{sWoff}, {((J + 2) % 12) * 49152 + 4096 * (i // 4)}']
    dma_at = {}
    if dma_on and not cfg.diag_nodma:
        for i in range(12): dma_at.setdefault(2 * i, []).append(i)
    for step in range(2):
        valu = list(vl[step])
        tot = sum(cost(t) for t in valu)
        done = 0; vi = 0
        ex = (extra_valu or {}).get(step)
        exi = 0
        for gl in range(24):
            g = step * 24 + gl
            ms = groups[g][1]
            for k, m in enumerate(ms):
                out.append(m(wbuf(g)))
                if k == 0:
                    if g == 48 - D:
                        out.append('s_waitcnt lgkmcnt(0)'); fifo = []; waited = 47
                        out += bar_wait or ['s_waitcnt vmcnt(0)']
                        out.append('s_barrier')
                        if not sr: out.append(f'v_add_u32 v{vLds}, s{sRd}, v{vDma}')
                    for r in reads_at[g]:
                        off = groups[r][0] if r < 48 else nxt[r - 48][0]
                        out.append(f'ds_read_b128 {a(wbuf(r),4)}, v{vcur if r < 48 else vnxt} offset:{off}')
                        fifo.append(r)
                    for i in dma_at.get(g, []):
                        if i % 4 == 0 and not (fs and g > 0):
                            if sr: out += dma_salu(i)
                            else: out += dma_block(i // 4) + ['s_nop 0']
                        out.append(dma(i))
                    if g == 38 and not sr:
                        out += [f's_add_u32 s{sRd}, s{sRd}, 49152', f's_cmp_eq_u32 s{sRd}, 147456', f's_cselect_b32 s{sRd}, 0, s{sRd}']
                    if not fs: out += extra_at.get(g, [])
                if fs:
                    nxt_dma = [i for i in dma_at.get(g + 1, []) if i % 4 == 0]
                    if k == 1:
                        if nxt_dma: out.append(dma_salu(nxt_dma[0])[0])
                        out += extra_at.get(g, [])
                    if k == 2:
                        we = cfg.wevery
                        if g % we == we - 1 and waited < g + we:
                            needg = g + we
                            pend = [r for r in fifo if r > needg]
                            if len(pend) < len(fifo): out.append(f's_waitcnt lgkmcnt({len(pend)})')
                            fifo = pend; waited = needg
                        if nxt_dma: out.append(dma_salu(nxt_dma[0])[1])
                mi = gl * 3 + k + 1
                target = tot * mi / 72.0
                while vi < len(valu) and done + cost(valu[vi]) / 2 <= target:
                    out.append(valu[vi]); done += cost(valu[vi]); vi += 1
                if mi == 72:
                    while vi < len(valu): out.append(valu[vi]); vi += 1
                if ex and ex[0] <= gl < ex[1]:
                    n = len(ex[2]); span = (ex[1] - ex[0]) * 3
                    upto = ((gl - ex[0]) * 3 + k + 1) * n // span
                    while exi < upto: out.append(ex[2][exi]); exi += 1
            we = cfg.wevery
            if g % we == we - 1:
                needg = g + we
                if waited < needg:
                    pend = [r for r in fifo if r > needg]
                    if len(pend) < len(fifo):
                        out.append(f's_waitcnt lgkmcnt({len(pend)})')
                    fifo = pend; waited = needg
        if step == 0 and mid: out += mid
    return out

def mid_block(cfg):
    out = []
    k = 0
    for p in range(3):
        for s in range(6):
            t = T0 + 8 + (k % 2) * 4; k += 1
            r0, r1 = acc(2 * s, p), acc(2 * s + 1, p)
            out.append(f'v_cvt_pk_bf16_f32 v{t}, v{r0}, v{r0+1}')
            out.append(f'v_cvt_pk_bf16_f32 v{t+1}, v{r0+2}, v{r0+3}')
            out.append(f'v_cvt_pk_bf16_f32 v{t+2}, v{r1}, v{r1+1}')
            out.append(f'v_cvt_pk_bf16_f32 v{t+3}, v{r1+2}, v{r1+3}')
            out.append(f'{MF} {v(acc(2*s,p),4)}, {a(I0,4)}, {a(pxreg(p,s),4)}, 0')
            out.append(f'{MF} {v(acc(2*s+1,p),4)}, {a(I0+4,4)}, {a(pxreg(p,s),4)}, 0')
            for i in range(4): out.append(f'v_accvgpr_write_b32 a{pxreg(p,s)+i}, v{t+i}')
    return out

def resid_mfmas(p, s):
    return [f'{MF} {v(acc(2*s,p),4)}, {a(I0,4)}, {a(pxreg(p,s),4)}, {v(acc(2*s,p),4)}',
            f'{MF} {v(acc(2*s+1,p),4)}, {a(I0+4,4)}, {a(pxreg(p,s),4)}, {v(acc(2*s+1,p),4)}']

def mid_block_rend(cfg):
    out = []
    items = [(p, s) for p in range(3) for s in range(6)]
    LAG = 2
    for i in range(18 + LAG):
        m = resid_mfmas(*items[i]) if i < 18 else []
        c = []; w = []
        j = i - LAG
        if j >= 0:
            p, s = items[j]; t = T0 + 8 + (j % 2) * 4
            r0, r1 = acc(2 * s, p), acc(2 * s + 1, p)
            c = [f'v_cvt_pk_bf16_f32 v{t}, v{r0}, v{r0+1}', f'v_cvt_pk_bf16_f32 v{t+1}, v{r0+2}, v{r0+3}',
                 f'v_cvt_pk_bf16_f32 v{t+2}, v{r1}, v{r1+1}', f'v_cvt_pk_bf16_f32 v{t+3}, v{r1+2}, v{r1+3}']
            w = [f'v_accvgpr_write_b32 a{pxreg(p,s)+q}, v{t+q}' for q in range(4)]
        if m: out += [m[0]] + c[:2] + [m[1]] + c[2:] + w
        else: out += c + w
        if i == 0 or i == 1: out += ['s_nop 3']
    return out

def tail_epilogue(cfg, sbase):
    out = []
    nt = ' nt' if cfg.nt_o else ''
    k = 0
    for p in range(3):
        out.append(f's_add_u32 s{sT2}, s{sbase}, {cfg.xps*p}')
        for s in range(6):
            t = T0 + (k % 4) * 4; k += 1
            r0, r1 = acc(2 * s, p), acc(2 * s + 1, p)
            out.append(f'v_cvt_pk_bf16_f32 v{t}, v{r0}, v{r0+1}')
            out.append(f'v_cvt_pk_bf16_f32 v{t+1}, v{r0+2}, v{r0+3}')
            out.append(f'v_cvt_pk_bf16_f32 v{t+2}, v{r1}, v{r1+1}')
            out.append(f'v_cvt_pk_bf16_f32 v{t+3}, v{r1+2}, v{r1+3}')
            out.append(f'buffer_store_dwordx4 {v(t,4)}, v{vG}, s[{sO}:{sO+3}], s{sT2} offen offset:{64*s}{nt}')
    return out

def tail_epilogue_lds(cfg, sbase):
    nt = cfg.tail_flags if cfg.tail_flags is not None else (' nt' if cfg.nt_o else '')
    vW, vR, vG2, t = 4, 5, 6, 7
    out = [f'v_lshrrev_b32 v{t}, 4, v{vDma}',
           f's_mul_i32 s{sT}, s40, 12288', f's_add_u32 s{sT}, s{sT}, 98304',
           f'v_and_b32 v{vW}, 15, v{t}', f'v_bfe_u32 v{vR}, v{t}, 1, 2', f'v_lshrrev_b32 v{vG2}, 4, v{t}', f'v_xor_b32 v{vR}, v{vR}, v{vG2}',
           f'v_lshlrev_b32 v{vW}, 6, v{vW}', f'v_lshl_add_u32 v{vW}, v{vR}, 4, v{vW}', f'v_add_u32 v{vW}, s{sT}, v{vW}',
           f'v_bfe_u32 v{vR}, v{t}, 3, 2', f'v_and_b32 v{vG2}, 3, v{t}', f'v_xor_b32 v{vR}, v{vR}, v{vG2}', f'v_lshlrev_b32 v{vR}, 4, v{vR}',
           f'v_lshrrev_b32 v{vG2}, 2, v{t}', f'v_lshl_add_u32 v{vR}, v{vG2}, 6, v{vR}', f'v_add_u32 v{vR}, s{sT}, v{vR}',
           f'v_mul_u32_u24 v{vG2}, 384, v{vG2}', f'v_and_b32 v{t}, 3, v{t}', f'v_lshl_add_u32 v{vG2}, v{t}, 4, v{vG2}']
    items = [(p, s) for p in range(3) for s in range(6)]
    LAG = 2
    def wr(i):
        p, s = items[i]; tt = T0 + 4 * (i % 2)
        r0, r1 = acc(2 * s, p), acc(2 * s + 1, p)
        return [f'v_cvt_pk_bf16_f32 v{tt}, v{r0}, v{r0+1}', f'v_cvt_pk_bf16_f32 v{tt+1}, v{r0+2}, v{r0+3}',
                f'v_cvt_pk_bf16_f32 v{tt+2}, v{r1}, v{r1+1}', f'v_cvt_pk_bf16_f32 v{tt+3}, v{r1+2}, v{r1+3}',
                f'ds_write_b128 v{vW}, {v(tt,4)} offset:{1024*(i % 12)}']
    rreg = lambda i: G0 + 4 * (i % 6)
    pend = []
    RL = 2
    inter = cfg.rend and cfg.tail_inter
    if inter:
        for j in range(RL): out += resid_mfmas(*items[j])
        out += ['s_nop 7']
    for i in range(18 + 2 * LAG):
        if i < 18:
            w = wr(i)
            if inter and i + RL < 18:
                m = resid_mfmas(*items[i + RL])
                w = [m[0]] + w[:2] + [m[1]] + w[2:]
            out += w; pend.append(('w', i))
        j = i - LAG
        if 0 <= j < 18:
            out.append(f'ds_read_b128 {v(rreg(j),4)}, v{vR} offset:{1024*(j % 12)}'); pend.append(('r', j))
        m = i - 2 * LAG
        if 0 <= m < 18:
            idx = pend.index(('r', m)); n = len(pend) - 1 - idx
            out.append(f's_waitcnt lgkmcnt({n})'); pend = pend[idx + 1:]
            p, s = items[m]
            if s == 0: out.append(f's_add_u32 s{sT2}, s{sbase}, {cfg.xps*p}')
            out.append(f'buffer_store_dwordx4 {v(rreg(m),4)}, v{vG2}, s[{sO}:{sO+3}], s{sT2} offen offset:{64*s}{nt}')
    return out

def st_op(cfg, i):
    p, s = divmod(i, 6)
    return f'buffer_store_dwordx4 {a(pxreg(p,s),4)}, v{vG}, s[{sO}:{sO+3}], s{sSt+p} offen offset:{64*s}' + (cfg.out_flags if cfg.out_flags is not None else (' nt' if cfg.nt_o else '')) + ' ;@st'
def h_op(cfg, i):
    p, s = divmod(i, 6)
    so, im = (sLd + p, 1024 * s) if s < 4 else (sLdH + p, 1024 * (s - 4))
    va = vDma
    srd = sH
    if cfg.rend: so, im, va = sLd + p, 64 * s, vG
    if cfg.rend and cfg.hout: srd = sO
    ld = f'buffer_load_dwordx4 {a(pfreg(p,s),4)}, v{va}, s[{srd}:{srd+3}], s{so} offen offset:{im}' + (' nt' if cfg.nt_h else '') + ' ;@h'
    if cfg.hskip: return f's_mov_b64 exec, s[{sHx}:{sHx+1}]\n' + ld + '\ns_mov_b64 exec, -1'
    return ld
def x_op(cfg, i):
    p, s = divmod(i, 6)
    return f'buffer_load_dwordx4 {a(pxreg(p,s),4)}, v{vG}, s[{sX}:{sX+3}], s{sLx+p} offen offset:{64*s}' + (' nt' if cfg.nt_x else '') + ' ;@x'

def resolve_vm(seq_prev, seq, optional=()):
    def isvm(t):
        o = t.split()[0] if t.split() else ''
        return o.startswith(('buffer_load', 'buffer_store'))
    def tag(t):
        if ';@' in t: return t.split(';@')[1].strip()
        return 'dma' if ' lds' in t else '?'
    fifo = []
    res = None
    for rnd, sq in enumerate((seq_prev, seq)):
        out = []
        for t in sq:
            if t.startswith('WAITVM:'):
                tg = t.split(':')[1]
                idx = [i for i, x in enumerate(fifo) if x == tg]
                if idx:
                    younger = fifo[idx[-1] + 1:]
                    n = sum(1 for x in younger if x not in optional)
                    out.append(f's_waitcnt vmcnt({n})')
                    keep = []; c = 0
                    for x in reversed(fifo):
                        if c >= n: break
                        keep.append(x)
                        if x not in optional: c += 1
                    fifo = keep[::-1]
                continue
            if isvm(t): fifo.append(tag(t))
            assert len(fifo) <= 63, 'too many outstanding'
            out.append(t)
        res = out
    return res

def tile_loads(srd, dst0, soff_base_instrs, nt):
    out = []
    for p in range(3):
        out += soff_base_instrs(p)
        for s in range(6):
            out.append(f'buffer_load_dwordx4 {a(dst0 + 24*p + 4*s, 4)}, v{vG}, s[{srd}:{srd+3}], s{sT2} offen offset:{64*s}' + (' nt' if nt else ''))
    return out

def soff(base, add):
    def f(p):
        return [f's_add_u32 s{sT2}, s{base}, {add + 6144*p}']
    return f

def stamp(cfg, k):
    if not cfg.prof: return []
    b = 52 + 4 * k
    return [f's_memtime s[{b}:{b+1}]', f's_memrealtime s[{b+2}:{b+3}]']

_cs=[0]
def cstamp(cfg, k, cond=None):
    if not cfg.prof2: return []
    _cs[0]+=1; lab=f'mlp_cs{_cs[0]}'
    out=[f's_cmp_eq_u32 s{sPass}, {cfg.profpass}', f's_cbranch_scc0 {lab}']
    if cond: out+=[f's_cmp_eq_u32 s{cond[0]}, {cond[1]}', f's_cbranch_scc0 {lab}']
    out+=[f's_memtime s[{52+2*k}:{53+2*k}]', f'{lab}:']
    return out

def dump_stamps2(cfg, n):
    if not cfg.prof2: return []
    out = ['s_waitcnt lgkmcnt(0)', 's_load_dwordx2 s[42:43], s[0:1], 40', 's_waitcnt lgkmcnt(0)',
           's_mov_b32 s44, s42', 's_mov_b32 s45, s43', 's_mov_b32 s46, 256', 's_mov_b32 s47, 0x20000',
           's_cmp_lg_u32 s2, 17', 's_cbranch_scc1 mlp_nodump', 's_cmp_lg_u32 s40, 0', 's_cbranch_scc1 mlp_nodump',
           'v_mov_b32 v4, 0']
    for k in range(n):
        out += [f'v_mov_b32 v5, s{52+2*k}', f'buffer_store_dword v5, v4, s[44:47], 0 offen offset:{4*k}']
    out += ['mlp_nodump:']
    return out

def dump_stamps(cfg, n):
    if not cfg.prof: return []
    out = ['s_waitcnt lgkmcnt(0)', 's_load_dwordx2 s[42:43], s[0:1], 40', 's_waitcnt lgkmcnt(0)',
           's_mov_b32 s44, s42', 's_mov_b32 s45, s43', 's_mov_b32 s46, 256', 's_mov_b32 s47, 0x20000',
           's_cmp_lg_u32 s2, PROFWG', 's_cbranch_scc1 mlp_nodump', 's_cmp_lg_u32 s40, 0', 's_cbranch_scc1 mlp_nodump',
           'v_mov_b32 v4, 0']
    for k in range(n):
        b = 52 + 4 * k
        out += [f'v_mov_b32 v5, s{b}', f'buffer_store_dword v5, v4, s[44:47], 0 offen offset:{8*k}',
                f'v_mov_b32 v6, s{b+2}', f'buffer_store_dword v6, v4, s[44:47], 0 offen offset:{8*k+4}']
    out += ['mlp_nodump:']
    return [o.replace('PROFWG', '17') for o in out]

def ident_setup():
    return [
        f'v_lshlrev_b32 v{vDma}, 4, v0',
        f'v_mov_b32 v{vLds}, v{vDma}',
        f'v_and_b32 v4, 15, v0',
        f'v_lshrrev_b32 v5, 4, v0',
        f'v_mul_u32_u24 v{vG}, 384, v4',
        f'v_lshl_add_u32 v{vG}, v5, 4, v{vG}',
        f'v_lshrrev_b32 v6, 2, v4',
        f'v_cmp_eq_u32 vcc, v6, v5',
        f'v_and_b32 v6, 1, v4',
        f'v_lshlrev_b32 v6, 4, v6',
        f'v_mov_b32 v7, 0x3f80',
        f'v_lshlrev_b32 v7, v6, v7',
        f'v_cndmask_b32 v7, 0, v7, vcc',
        f'v_and_b32 v6, 2, v4',
        f'v_cmp_eq_u32 vcc, 0, v6',
        's_nop 1',
        f'v_cndmask_b32 v8, 0, v7, vcc',
        f'v_sub_u32 v9, v7, v8',
        f'v_mov_b32 v10, 0',
        f'v_accvgpr_write_b32 a{I0}, v8', f'v_accvgpr_write_b32 a{I0+1}, v9',
        f'v_accvgpr_write_b32 a{I0+2}, v10', f'v_accvgpr_write_b32 a{I0+3}, v10',
        f'v_accvgpr_write_b32 a{I0+4}, v10', f'v_accvgpr_write_b32 a{I0+5}, v10',
        f'v_accvgpr_write_b32 a{I0+6}, v8', f'v_accvgpr_write_b32 a{I0+7}, v9']

def gelu_consts(cfg):
    return [f's_mov_b32 s{sNegC}, {hex(f2u(-CC) if not cfg.f16 else f2h(-CC) * 0x10001)}',
            f's_mov_b32 s{sAlpha}, {hex(f2u(ALPHA) if not cfg.f16 else f2h(ALPHA) * 0x10001)}']

def m_first_dma(cfg):
    a1 = [f's_mul_i32 s41, s40, 3072', f's_add_u32 m0, s41, {98304+24576}', f's_add_u32 s{sT}, s41, {23*24576}']
    a1 += [f'buffer_load_dwordx4 v{vDma}, s[{sW}:{sW+3}], s{sT} offen offset:{i*1024} lds' for i in range(3)]
    a2 = []
    for sl in range(2):
        a2 += [f's_add_u32 s{sDst}, s{sWoff}, {49152*sl}', f's_add_u32 s{sSrc}, s{sWoff}, {49152*sl}']
        for k_ in range(3): a2 += dma_block(k_) + ['s_nop 0'] + [dma(4 * k_ + i).split(' ;@')[0] for i in range(4)]
    nwarm = 0
    if cfg.warm:
        a2 += [f's_lshr_b32 s41, s2, 3', f's_and_b32 s41, s41, 31', f's_mul_i32 s41, s41, 18432', f's_mul_i32 s3, s40, 5120', f's_add_u32 s41, s41, s3']
        for i in range(5):
            if i == 4: a2 += [f's_add_u32 s41, s41, 4096']
            a2 += [f'buffer_load_dwordx4 {a(PF0 + 4*i, 4)}, v{vDma}, s[{sW}:{sW+3}], s41 offen offset:{1024*(i%4)}']
        nwarm = 5
    a2 += [f's_add_u32 s{sDst}, s{sWoff}, 98304', f's_add_u32 s{sDstSum}, s{sWoff}, 147456',
           f's_add_u32 s{sSrc}, s{sWoff}, 98304', f's_mov_b32 s{sRd}, 0', f's_mov_b32 s{sPass}, 0']
    return a1, a2, 12 + nwarm

def m_second_dma(cfg, warm_dst):
    a2 = [f's_add_u32 s{sDst}, s{sWoff}, 49152', f's_add_u32 s{sSrc}, s{sWoff}, 49152']
    for k_ in range(3): a2 += dma_block(k_) + ['s_nop 0'] + [dma(4 * k_ + i).split(' ;@')[0] for i in range(4)]
    if cfg.warm:
        a2 += [f's_lshr_b32 s41, s2, 3', f's_and_b32 s41, s41, 31', f's_mul_i32 s41, s41, 18432', f's_mul_i32 s3, s40, 5120', f's_add_u32 s41, s41, s3']
        for i in range(5):
            if i == 4: a2 += [f's_add_u32 s41, s41, 4096']
            a2 += [f'buffer_load_dwordx4 {v(warm_dst + 4*(i%4), 4)}, v{vDma}, s[{sW}:{sW+3}], s41 offen offset:{1024*(i%4)}']
    a2 += [f's_add_u32 s{sDst}, s{sWoff}, 98304', f's_add_u32 s{sDstSum}, s{sWoff}, 147456',
           f's_add_u32 s{sSrc}, s{sWoff}, 98304', f's_mov_b32 s{sRd}, 0', f's_mov_b32 s{sPass}, 0']
    return a2

def x_first_loads(cfg):
    out = []
    for p in range(3):
        out.append(f's_add_u32 s{sT2}, s{sBX}, {cfg.xps*p}')
        for s in range(6):
            out.append(f'buffer_load_dwordx4 {a(pxreg(p,s), 4)}, v{vG}, s[{sX}:{sX+3}], s{sT2} offen offset:{64*s}' + (' nt' if cfg.nt_x else ''))
    return out

def m_g1_first(cfg, early=False):
    D = cfg.D
    g1 = g1_groups(-1)
    if early: g1 = [(off - 12288, ms) for off, ms in g1]
    lst = [f'v_add_u32 v4, {0 if early else 98304}, v{vLds}']
    for g in range(6):
        lst.append(f'ds_read_b128 {a(wbuf(g),4)}, v4 offset:{g1[g][0]}')
    for g in range(12):
        if g % 2 == 0: lst.append(f's_waitcnt lgkmcnt({min(4, 10 - g) if g < 10 else 0})' if g <= 6 else f's_waitcnt lgkmcnt({max(0, 10 - g)})')
        for m in g1[g][1]: lst.append(m(wbuf(g)))
        if g + 6 < 12: lst.append(f'ds_read_b128 {a(wbuf(g+6),4)}, v4 offset:{g1[g+6][0]}')
    lst += ['s_waitcnt lgkmcnt(0)'] + ([] if early else ['s_barrier'])
    nxt = g1_groups(0)
    for g in range(D): lst.append(f'ds_read_b128 {a(wbuf(g),4)}, v{vLds} offset:{nxt[g][0]}')
    lst.append(f's_waitcnt lgkmcnt({D-cfg.wevery})')
    if cfg.static_ring: lst += [f'v_add_u32 v{vLdsS[1]}, 49152, v{vDma}', f'v_add_u32 v{vLdsS[2]}, 98304, v{vDma}']
    return lst

def m_main(cfg, L):
    P = []
    adv = [f's_add_u32 s{sDst}, s{sDst}, 49152', f's_cmp_ge_u32 s{sDst}, s{sDstSum}', f's_cselect_b32 s{sT}, 147456, 0', f's_sub_u32 s{sDst}, s{sDst}, s{sT}',
           f's_add_u32 s{sSrc}, s{sSrc}, 49152',
           f's_cmp_ge_u32 s{sSrc}, {W_BYTES}',
           f's_cselect_b32 s{sT}, {W_BYTES}, 0',
           f's_sub_u32 s{sSrc}, s{sSrc}, s{sT}']
    st = [st_op(cfg, i) for i in range(18)]
    hl = [h_op(cfg, i) for i in range(18)]
    xl = [x_op(cfg, i) for i in range(18)]
    pools = {'s': st, 'h': hl, 'x': xl}
    extras = [[pools[ch].pop(0).split('\n') for ch in cfg.plan[J]] for J in range(12)]
    assert not st and not hl and not xl
    assert (not cfg.sub) or all(len(extras[J]) == 5 for J in range(1, 11))
    assert not extras[11] and all(len(e) <= len(cfg.xpos) for e in extras)
    setup = [f's_cmp_eq_u32 s{sPass}, 0'] + ([f's_cselect_b64 s[{sHx}:{sHx+1}], 0, -1'] if cfg.hskip else []) + [
             f's_cselect_b32 s{sSt}, {hex(OOB)}, s{sB1}',
             f's_add_u32 s{sSt+1}, s{sSt}, {cfg.xps}', f's_add_u32 s{sSt+2}, s{sSt}, {2*cfg.xps}',
             f's_add_u32 s{sLd}, s{sB}, 73728', f's_add_u32 s{sLx}, s{sBX}, {cfg.xts}',
             f's_cmp_eq_u32 s{sPass}, 2',
             f's_cselect_b32 s{sLd}, {hex(OOB)}, s{sLd}', f's_cselect_b32 s{sLx}, {hex(OOB)}, s{sLx}',
             f's_add_u32 s{sLd+1}, s{sLd}, 6144', f's_add_u32 s{sLd+2}, s{sLd}, 12288',
             f's_add_u32 s{sLx+1}, s{sLx}, {cfg.xps}', f's_add_u32 s{sLx+2}, s{sLx}, {2*cfg.xps}',
             f's_add_u32 s{sLdH}, s{sLd}, 4096', f's_add_u32 s{sLdH+1}, s{sLd+1}, 4096', f's_add_u32 s{sLdH+2}, s{sLd+2}, 4096']
    if cfg.rend:
        setup = [f's_add_u32 s{sT2}, s{sB}, {2*73728}', f's_cmp_eq_u32 s{sPass}, 0', f's_cselect_b64 s[{sHx}:{sHx+1}], 0, -1',
                 f's_cselect_b32 s{sSt}, s{sT2}, s{sB1}', f's_mov_b32 s{sT2}, {cfg.xps}', f's_cselect_b32 s{sT2}, 6144, s{sT2}',
                 f's_cselect_b32 s{sO}, s{sH}, s98', f's_cselect_b32 s{sO+1}, s{sH+1}, s99',
                 f's_add_u32 s{sSt+1}, s{sSt}, s{sT2}', f's_add_u32 s{sSt+2}, s{sSt+1}, s{sT2}',
                 f's_add_u32 s{sLd}, s{sB}, 73728', f's_cmp_eq_u32 s{sPass}, 2', f's_cselect_b32 s{sLd}, {hex(OOB)}, s{sLd}',
                 f's_add_u32 s{sLd+1}, s{sLd}, 6144', f's_add_u32 s{sLd+2}, s{sLd}, 12288',
                 f's_mov_b32 s{sLx}, s{sBX}', f's_add_u32 s{sLx+1}, s{sLx}, {cfg.xps}', f's_add_u32 s{sLx+2}, s{sLx}, {2*cfg.xps}']
        if cfg.hout:
            setup = [f's_add_u32 s{sT2}, s{sBX}, {2*cfg.xts}', f's_cmp_eq_u32 s{sPass}, 0', f's_cselect_b64 s[{sHx}:{sHx+1}], 0, -1',
                     f's_cselect_b32 s{sSt}, s{sT2}, s{sB1}',
                     f's_add_u32 s{sSt+1}, s{sSt}, {cfg.xps}', f's_add_u32 s{sSt+2}, s{sSt}, {2*cfg.xps}',
                     f's_add_u32 s{sLd}, s{sBX}, {cfg.xts}', f's_cmp_eq_u32 s{sPass}, 2', f's_cselect_b32 s{sLd}, {hex(OOB)}, s{sLd}',
                     f's_add_u32 s{sLd+1}, s{sLd}, {cfg.xps}', f's_add_u32 s{sLd+2}, s{sLd}, {2*cfg.xps}',
                     f's_mov_b32 s{sLx}, s{sBX}', f's_add_u32 s{sLx+1}, s{sLx}, {cfg.xps}', f's_add_u32 s{sLx+2}, s{sLx}, {2*cfg.xps}']
    moves = [f'v_accvgpr_mov_b32 a{H0+i}, a{PF0+i}' for i in range(72)]
    parts = []
    for J in range(12):
        DTAG[0] = f'd{J}'
        ea = {47: list(adv) if not cfg.static_ring else []}
        kw = dict(extra_at=ea, bar_wait=[f'WAITVM:d{(J-1)%12}'])
        pre = cstamp(cfg, J)
        if J == 0:
            for k_, op in enumerate(extras[0]): ea.setdefault(cfg.xpos[k_], []).extend(op)
            if cfg.rend:
                kw['mid'] = [f's_cmp_eq_u32 s{sPass}, 0', f's_cbranch_scc1 {L}_nomid', 'WAITVM:x'] + mid_block_rend(cfg) + [f'{L}_nomid:']
            else:
                kw['mid'] = ['WAITVM:x', f's_waitcnt vmcnt({cfg.mid_vm})' if not cfg.diag_nodma else 's_waitcnt vmcnt(0)'] + mid_block(cfg)
            pre = pre + setup
        elif J <= 10:
            if cfg.sub: pre = pre + sum(extras[J], [])
            else:
                for k_, op in enumerate(extras[J]): ea.setdefault(cfg.xpos[k_], []).extend(op)
        if J == 11:
            kw['extra_valu'] = {0: (13, 24, moves)}
            ea.setdefault(12, []).append('WAITVM:h')
        parts.append((pre, superstep(cfg, 2 * J, **kw)))
    DTAG[0] = 'dma'
    endp = cstamp(cfg, 12) + [f's_mov_b32 s{sB1}, s{sBX}', f's_add_u32 s{sB}, s{sB}, 73728', f's_add_u32 s{sBX}, s{sBX}, {cfg.xts}', f's_add_u32 s{sPass}, s{sPass}, 1']
    seq = []
    for J, (pre, body) in enumerate(parts): seq += pre + [f';BEGIN{J}'] + body + [f';END{J}']
    seq += endp
    res = resolve_vm(seq, seq, ('h',) if cfg.hskip else ())
    def part(J):
        i0 = res.index(f';BEGIN{J}'); i1 = res.index(f';END{J}')
        return res[i0 + 1:i1]
    strip = lambda l: [x.split(' ;@')[0] for x in l]
    bodies = [strip(part(J)) for J in range(12)]
    def barwait(b):
        i = b.index('s_barrier'); return i - 1, int(b[i - 1].split('(')[1][:-1])
    if cfg.diag_nodma: assert not cfg.sub
    if cfg.sub:
        ns = [barwait(bodies[J])[1] for J in range(1, 11)]
        nmin = min(ns)
        gen_body = list(bodies[2]); gen_body[barwait(gen_body)[0]] = f's_waitcnt vmcnt({nmin})'
        for J in range(1, 11):
            b = list(bodies[J]); b[barwait(b)[0]] = f's_waitcnt vmcnt({nmin})'
            assert b == gen_body, J
    P += ['.p2align 6', f'{L}_pass:']
    trace = []
    for J in range(12):
        pre = strip(parts[J][0])
        if 1 <= J <= 10 and cfg.sub:
            P += pre + [f's_call_b64 s[{sRet}:{sRet+1}], {L}_body']
            trace += [x for x in pre if not x.endswith(':')] + gen_body
        else:
            b = bodies[J]
            P += pre + b
            trace += [x for x in pre + b if not x.endswith(':')]
    P += endp; trace += endp
    P += [f's_cmp_lt_u32 s{sPass}, 3', f's_cbranch_scc1 {L}_pass']
    tail = ['s_waitcnt lgkmcnt(0)']
    g2 = g2_groups(24)
    for g in range(6): tail.append(f'ds_read_b128 {a(wbuf(g),4)}, v{vLds} offset:{g2[g][0]}')
    for g in range(12):
        if g % 2 == 0: tail.append(f's_waitcnt lgkmcnt({4 if g <= 6 else max(0, 10 - g)})')
        for m in g2[g][1]: tail.append(m(wbuf(g)))
        if g + 6 < 12: tail.append(f'ds_read_b128 {a(wbuf(g+6),4)}, v{vLds} offset:{g2[g+6][0]}')
    if cfg.rend:
        assert cfg.tail_lds
        tail += ['s_waitcnt vmcnt(12)']
        if not cfg.tail_inter:
            for p in range(3):
                for s_ in range(6): tail += resid_mfmas(p, s_)
    tail += ['s_nop 7']
    tail += tail_epilogue_lds(cfg, sB1) if cfg.tail_lds else tail_epilogue(cfg, sB1)
    P += stamp(cfg, 4)
    P += tail
    P += stamp(cfg, 5)
    sub = (['.p2align 6', f'{L}_body:'] + gen_body + [f's_setpc_b64 s[{sRet}:{sRet+1}]']) if cfg.sub else []
    return P, sub, trace + trace + tail

def gen(cfg, name='mlp_kernel'):
    MF2[0] = 'v_mfma_f32_16x16x32_f16' if cfg.f16 else MF
    P = []; TR = []
    def emit(lst, trace=True):
        P.extend(lst)
        if trace: TR.extend(lst)
    emit(['s_cmp_ge_u32 s2, 256', f's_cbranch_scc1 {name}_done',
          's_load_dwordx2 s[4:5], s[0:1], 0',
          's_load_dwordx2 s[6:7], s[0:1], 32',
          's_load_dwordx2 s[38:39], s[0:1], 48',
          'v_lshrrev_b32 v4, 6, v0', 'v_and_b32 v0, 63, v0', 's_nop 0', 'v_readfirstlane_b32 s40, v4'])
    emit(gelu_consts(cfg) + ident_setup())
    emit(['s_waitcnt lgkmcnt(0)',
        f's_add_u32 s{sW}, s38, {WS_W}', f's_addc_u32 s{sW+1}, s39, 0', f's_mov_b32 s{sW+2}, {W_BYTES}', f's_mov_b32 s{sW+3}, 0x20000',
        f's_add_u32 s{sH}, s38, {WS_H}', f's_addc_u32 s{sH+1}, s39, 0', f's_mov_b32 s{sH+2}, {IMG_BYTES}', f's_mov_b32 s{sH+3}, 0x20000',
        f's_mov_b32 s{sX}, s4', f's_mov_b32 s{sX+1}, s5', f's_mov_b32 s{sX+2}, {IMG_BYTES}', f's_mov_b32 s{sX+3}, 0x20000',
        f's_mov_b32 s{sO}, s6', f's_mov_b32 s{sO+1}, s7', f's_mov_b32 s{sO+2}, {IMG_BYTES}', f's_mov_b32 s{sO+3}, 0x20000',
        f's_mul_i32 s{sB}, s2, {36*6144}', f's_mul_i32 s41, s40, {3*6144}', f's_add_u32 s{sB}, s{sB}, s41', f's_mov_b32 s{sBX}, s{sB}',
        f's_mul_i32 s{sWoff}, s40, 12288'])
    if cfg.prof or cfg.prof2: P.extend([f's_mov_b32 s{i}, 0' for i in range(52, 92)])
    P.extend(stamp(cfg, 0))
    a1, a2, nafter = m_first_dma(cfg)
    emit(a1)
    for p in range(3):
        emit([f's_add_u32 s{sT2}, s{sB}, {6144*p}'])
        for s_ in range(6):
            if s_ == 4: emit([f's_add_u32 s{sT2}, s{sT2}, 4096'])
            emit([f'buffer_load_dwordx4 {a(H0 + 24*p + 4*s_, 4)}, v{vDma}, s[{sH}:{sH+3}], s{sT2} offen offset:{1024*(s_ % 4)}' + (' nt' if cfg.nt_h else '')])
    emit(a2)
    emit([f's_waitcnt vmcnt({nafter})', 's_barrier'])
    emit(x_first_loads(cfg))
    emit(m_g1_first(cfg))
    P.extend(stamp(cfg, 1))
    mp, sub, tr = m_main(cfg, name)
    P += mp; TR += tr
    P += dump_stamps(cfg, 6)
    P += dump_stamps2(cfg, 13)
    if cfg.allwg:
        P = P[:2] + ['s_memrealtime s[98:99]'] + P[2:]
        P += ['s_waitcnt vmcnt(0)', 's_memrealtime s[82:83]', 's_cmp_eq_u32 s40, 0', f's_cbranch_scc0 {name}_done',
              's_waitcnt lgkmcnt(0)', 's_lshl_b32 s3, s2, 3', f's_add_u32 s3, s3, {(200 << 20) + 4096}',
              'v_mov_b32 v4, s98', 'v_mov_b32 v5, s3', 's_nop 1', 'global_store_dword v5, v4, s[38:39]',
              'v_mov_b32 v4, s82', 's_nop 1', 'global_store_dword v5, v4, s[38:39] offset:4']
    P += [f'{name}_done:', 's_endpgm']
    P += sub
    return P, TR

def kd(name, lds=0):
    return f'''.amdhsa_kernel {name}
  .amdhsa_next_free_vgpr 512
  .amdhsa_next_free_sgpr 102
  .amdhsa_accum_offset 256
  .amdhsa_group_segment_fixed_size 0
  .amdhsa_kernarg_size 56
  .amdhsa_user_sgpr_count 2
  .amdhsa_user_sgpr_kernarg_segment_ptr 1
  .amdhsa_system_sgpr_workgroup_id_x 1
  .amdhsa_float_denorm_mode_32 3
.end_amdhsa_kernel
'''
if __name__ == '__main__':
    import asmlib
    P, TR = gen(Cfg)
    asmlib.check(TR, 'k2')
    print(len(P), 'lines', 'alpha', ALPHA, 'c', CC)
```

```python
import k2
from k2 import f2u, ALPHA, WS_W, WS_H, W_BYTES, IMG_BYTES

REC = 544
NBLK = 99
SLAB = NBLK * REC
YB = 2 * SLAB
LDS_BYTES = YB + 2 * 24576
TAPS, ROWS = 400, 3616
DWB = YB

vO16 = 0
vP = 1
vL16 = 2
vZ = 3
vRel = 4
vLw, vLw3, vRd, vY0, vR0, vR1, vA, vB = 8, 9, 10, 11, 12, 13, 14, 15
STS = (16, 80)
BLK = 80
ACC = 120
TMP = 136
Y0 = 144
VO = 216
HOLD = 0
CW = 144
sM, sH, sX, sD = 8, 12, 16, 20
sBase, sIMG, sT, sT2, sSelL, sDS, sDY, sOutN, sTI = 28, 30, 31, 32, 33, 34, 35, 36, 37
sWave, sSelH, sPkF, sPkf = 40, 41, 42, 43
sMaskL, sMaskR = 44, 60
sSt3 = 76
sOnes, sAl, sEps, sInv, sOut, sDR = 92, 93, 94, 95, 96, 97
sDbg = 4
sMk3 = 100
NPACK = 576
NPKWG = 72
STAMP0 = 82

def v(b, n=1): return f'v{b}' if n == 1 else f'v[{b}:{b+n-1}]'
def a(b, n=1): return f'a{b}' if n == 1 else f'a[{b}:{b+n-1}]'
def Wt(k, R, C): return CW + 32 * k + 2 * (4 * R + C)
def blk(row, bc): return BLK + 10 * (row % 4) + 2 * bc
def Y(p, s): return Y0 + 24 * p + 4 * s
M4 = 'v_mfma_f32_4x4x4_16b_bf16'
FULL = (1 << 64) - 1

class Cfg(k2.Cfg):
    f16 = True
    nt_h = True; nt_x = True; nt_o = True
    cx_nt = False
    st_flags = ' nt'
    xps = 147456
    xts = 49152
    light = False
    light2 = False
    light3 = False
    exact_vm = True
    touch = False
    l2tile = 0
    inter = False
    otouch = 0
    otouch_on = False
    rend = False
    prog = False
    defer_y = False
    even = None
    allwg = False
    force_fb = False
    ln_pk = True
    light4 = False
    l4sel = '0246'
    spread = 0
    diag_nox = False
    htouch = False
    diag_nost = False
    l3sel = [0, 1, 2, 3, 4]
    early = True
    hskip = True
    spin = 1 << 14
    nosync = False

def setexec(out, cur, val):
    if cur[0] != val:
        out.append(f's_mov_b32 exec_lo, {hex(val & 0xffffffff)}')
        out.append(f's_mov_b32 exec_hi, {hex(val >> 32)}')
        cur[0] = val

def weights_gather(vb):
    out = []
    def reads(k):
        o = []
        for R in range(4):
            for dy in range(2):
                for c in range(4):
                    i = (R * 2 + dy) * 4 + c
                    for dx in range(2):
                        rho, gam = 2 * R + dy, 2 * c + dx
                        o.append(f'ds_read_u16 v{Y0+2*i+dx}, v{vb} offset:{(rho+1)*ROWS + (gam+1)*TAPS + 128*k}')
        return o
    for k in range(3):
        rd = reads(k)
        out += rd[:32] + rd[32:] + ['s_waitcnt lgkmcnt(15)']
        for half in range(2):
            if half == 1: out.append('s_waitcnt lgkmcnt(0)')
            for i in range(16 * half, 16 * half + 16):
                if half == 0 and i == 8: out.append('s_waitcnt lgkmcnt(15)')
                R, dy, c = i // 8, (i // 4) % 2, i % 4
                out.append(f'v_lshl_or_b32 v{Y0+2*i}, v{Y0+2*i+1}, 16, v{Y0+2*i}')
                out.append(f'v_accvgpr_write_b32 a{Wt(k,R,c)+dy}, v{Y0+2*i}')
    return out

def vo(r, dy, dx): return VO + 4 * r + 2 * dy + dx
def tile_offsets():
    out = []
    for dx in range(2):
        for r in range(4):
            l, rr = sMaskL + 2 * (2 * r + dx), sMaskR + 2 * (2 * r + dx)
            out += [f's_mov_b64 s[24:25], -1' if r < 3 else f's_or_b64 s[24:25], s[{l}:{l+1}], s[{rr}:{rr+1}]',
                    f's_cmp_eq_u32 s27, 0', f's_cselect_b64 s[24:25], s[{l}:{l+1}], s[24:25]',
                    f's_cmp_eq_u32 s27, 23', f's_cselect_b64 s[24:25], s[{rr}:{rr+1}], s[24:25]']
            for dy in range(2):
                t = vo(r, dy, dx)
                out += [f's_add_u32 s26, s{sBase}, {147456*dy + 384*dx}', f'v_add_u32 v{t}, s26, v{vRel+r}', f'v_cmp_gt_u32 vcc, s{sIMG}, v{t}',
                        f's_and_b64 vcc, vcc, s[24:25]', f'v_cndmask_b32 v{t}, 2.0, v{t}, vcc']
    return out
def load_items(cfg, stage, sset):
    nt = ' nt' if cfg.cx_nt else ''
    its = []
    for r in range(4):
        for dy in range(2):
            for dx in range(2):
                if r < 3: its.append([f'buffer_load_dwordx4 {v(STS[sset] + 16 * r + 4 * (2 * dy + dx), 4)}, v{vo(r,dy,dx)}, s[{sX}:{sX+3}], 0 offen offset:{128*stage}{nt} ;@l{r}'])
                else: its.append([f'buffer_load_dword v{STS[sset] + 48 + 2 * dy + dx}, v{vo(r,dy,dx)}, s[{sX}:{sX+3}], 0 offen offset:{128*stage}{nt} ;@l{r}'])
    return its
def store_items(cfg, k):
    if cfg.rend: return []
    its = []
    for s, sb in ((k, sSt3), (3 + k, sSt3 + 3)):
        for p in range(3):
            its.append([f'buffer_store_dwordx4 {a(HOLD + 24*p + 4*s, 4)}, v{vL16}, s[{sH}:{sH+3}], s{sb+p} offen offset:{1024*(s % 3)}{cfg.st_flags} ;@s'])
    return [its[0], its[3], its[1], its[4], its[2], its[5]]

def transpose_unit(r, d, sset):
    t = TMP
    if r == 3:
        if d > 0: return []
        L = lambda dy, dx: STS[sset] + 48 + 2 * dy + dx
        return [f'v_perm_b32 v{t}, v{L(0,1)}, v{L(0,0)}, s{sSelL}', f'v_perm_b32 v{t+1}, v{L(1,1)}, v{L(1,0)}, s{sSelL}',
                f'v_perm_b32 v{t+2}, v{L(0,1)}, v{L(0,0)}, s{sSelH}', f'v_perm_b32 v{t+3}, v{L(1,1)}, v{L(1,0)}, s{sSelH}',
                f's_mov_b64 exec, s[{sMk3}:{sMk3+1}]', f'ds_write_b128 v{vLw3}, {v(t,4)}', 's_mov_b64 exec, -1']
    L = lambda dy, dx: STS[sset] + 16 * r + 4 * (2 * dy + dx) + d
    return [f'v_xad_u32 v{vA}, v{vO16}, {16*d}, v{vLw}',
            f'v_perm_b32 v{t}, v{L(0,1)}, v{L(0,0)}, s{sSelL}',
            f'v_perm_b32 v{t+1}, v{L(1,1)}, v{L(1,0)}, s{sSelL}',
            f'v_perm_b32 v{t+2}, v{L(0,1)}, v{L(0,0)}, s{sSelH}',
            f'v_perm_b32 v{t+3}, v{L(1,1)}, v{L(1,0)}, s{sSelH}',
            f'ds_write_b128 v{vA}, {v(t,4)} offset:{32 * REC * r + 128*d}']

def yout(py):
    out = []
    a0 = ACC + 8 * (py & 1); a1 = a0 + 4
    t = TMP + 4
    for oy in range(2):
        out.append(f'v_cvt_pk_bf16_f32 v{t+2*oy}, v{a0+2*oy}, v{a0+2*oy+1}')
        out.append(f'v_cvt_pk_bf16_f32 v{t+2*oy+1}, v{a1+2*oy}, v{a1+2*oy+1}')
        out.append(f'ds_write_b64 v{vY0}, {v(t+2*oy,2)} offset:{(2*py+oy)*2048}')
    return out

def row_reads(br):
    return [f'ds_read_b64 {v(blk(br,bc),2)}, v{vRd} offset:{(br*11+bc)*REC}' for bc in range(5)]

SPREAD = [3]
INTER = [False]
PROG = [False]
DEFPOS = [66]
sl2x = lambda n: (n // 16, n % 16)
EVEN = [None]
EVENS = {
 'a': dict(u0=[4, 12, 18], l0=[22, 24, 26, 28], u1=[30, 36, 41, 46], l1=[50, 52, 54, 56], u2=[58, 62, 67, 72], l2=[75, 77, 79, 81], u3=83, l3=[86, 87, 88, 89], s=[14, 33, 44, 65, 70, 91]),
 'b': dict(u0=[1, 5, 13], l0=[16, 17, 22, 24], u1=[28, 30, 32, 38], l1=[44, 46, 48, 49], u2=[54, 60, 62, 64], l2=[70, 74, 76, 78], u3=80, l3=[82, 83, 84, 85], s=[14, 40, 66, 87, 89, 91]),
}
def yin(k):
    o = []
    for p in range(3):
        for sp in range(2):
            for h in range(2):
                o.append(f'ds_read_b64_tr_b16 {v(Y(p,2*k+sp)+2*h,2)}, v{vR0 if h == 0 else vR1} offset:{p*2048 + sp*1024}')
    return o, [f'v_add_u32 v{vR0}, s{sDR}, v{vR0}', f'v_add_u32 v{vR1}, s{sDR}, v{vR1}', f's_sub_u32 s{sDR}, 0, s{sDR}']

def conv_stage(k, sset, items, stores, transp=True, xtra=(), defer=None):
    out = []
    fifo = []
    issued = {}
    def emit_lds(t, tag):
        out.append(t); fifo.append(tag); issued[tag] = issued.get(tag, 0) + 1
    def need(tag):
        assert issued.get(tag, 0) == 5, ('row not fully requested before use', tag)
        idx = [i for i, x in enumerate(fifo) if x == tag]
        if idx:
            n = len(fifo) - 1 - idx[-1]
            out.append(f's_waitcnt lgkmcnt({min(n,15)})')
            del fifo[:idx[-1] + 1]
    tagof = lambda t: ('w' if t.startswith('ds_') else None)
    NUP = 2 if PROG[0] else 4
    for br in range(NUP):
        for t in row_reads(br): emit_lds(t, ('row', br))
    if transp:
        out.append('WAITL:0')
        for t in transpose_unit(0, 0, sset):
            if tagof(t): emit_lds(t, 'w')
            else: out.append(t)
    fill = {(py, i): [] for py in range(6) for i in range(16)}
    for br in range(NUP, 4):
        for i, t in enumerate(row_reads(br)): fill[(0, 3 * (br - NUP) + i // 2)].append((t, ('row', br)))
    if defer is not None:
        rd, tg = yin(defer)
        for i, t in enumerate(rd): fill[sl2x(DEFPOS[0] + 2 * i)].append((t, 'w'))
        for t in tg: fill[sl2x(DEFPOS[0] + 2 * len(rd))].append((t, None))
    for py in range(6):
        if py > 0:
            for t, p_ in zip(yout(py - 1), [2, 2, 3, 4, 4, 5]): fill[(py, p_)].append((t, tagof(t)))
        if py + 4 <= 8:
            for i, t in enumerate(row_reads(py + 4)): fill[(py, 7 + i)].append((t, ('row', py + 4)))
    sl2 = lambda n: (n // 16, n % 16)
    if EVEN[0]:
        upos = {0: [None] + [sl2(n) for n in EVEN[0]['u0']], 1: [sl2(n) for n in EVEN[0]['u1']], 2: [sl2(n) for n in EVEN[0]['u2']], 3: [sl2(EVEN[0]['u3'])] * 4}
        lpos = {r: [sl2(n) for n in EVEN[0][f'l{r}']] for r in range(4)}
        spos = [sl2(n) for n in EVEN[0]['s']]
    else:
        upos = {0: [None, (0, 1), (0, 3), (0, 5)], 1: [(1, 6), (1, 8), (1, 12), (1, 14)], 2: [(2, 6), (2, 8), (2, 12), (2, 14)], 3: [(3, 6), (3, 8), (3, 12), (3, 14)]}
        lpos = {0: [(0, 12), (0, 14), (1, 0), (1, 1)], 1: [(1, 15), (2, 0), (2, 1), (2, 5)], 2: [(2, 15), (3, 0), (3, 1), (3, 5)], 3: [(3, 15), (4, 0), (4, 1), (4, 6)]}
        spos = [(0, 7), (0, 10), (4, 8), (4, 12), (5, 0), (5, 6)]
    for r in range(4):
        if transp:
            if r > 0: fill[upos[r][0]].append((f'WAITL:{r}', None))
            for d in range(4):
                if upos[r][d] is None: continue
                for t in transpose_unit(r, d, sset): fill[upos[r][d]].append((t, tagof(t)))
        for i in range(4):
            if 4 * r + i < len(items):
                for t in items[4 * r + i]: fill[lpos[r][i]].append((t, None))
    for it, pos in zip(stores, spos):
        for t in it: fill[pos].append((t, None))
    for i, it in enumerate(xtra):
        sl = 2 + 6 * i
        for t in it: fill[(sl // 16, sl % 16)].append((t, None))
    seq = []
    for py in range(6):
        for idx in range(16):
            grp = []
            for t, tag in fill[(py, idx)]:
                grp.append((t, tag))
                glue = t.startswith(('s_mov_b64 exec, s[', 's_add_u32 m0', 's_nop', 'WAITL', 'v_cmp', 's_and_b64')) or (t.startswith('s_add_u32 s') )
                if t.startswith('ds_write_b128') and len(grp) >= 2 and grp[-2][0].startswith('s_mov_b64 exec, s['): glue = True
                if not glue:
                    seq.append((16 * py + idx, grp)); grp = []
            if grp: seq.append((16 * py + idx, grp))
    qi = 0
    ismem = lambda t: t.startswith(('ds_', 'buffer_'))
    isvalu = lambda t: t.startswith('v_') and not t.startswith('v_mfma')
    real = lambda: [t for t in out if not t.startswith(';')]
    lastpos = {}
    nis = [0]
    def put(t, tag=None):
        if tag: emit_lds(t, tag)
        else: out.append(t)
        if not t.startswith(';'): nis[0] += 1
    def emit_group():
        nonlocal qi
        for t, tag in seq[qi][1]: put(t, tag)
        qi += 1
    def first_real(grp):
        for t, _ in grp:
            if not t.startswith(('s_', 'WAITL')): return t
        return grp[0][0]
    for py in range(6):
        for idx in range(16):
            R, C = divmod(idx, 4)
            sl = 16 * py + idx
            if idx == 0 and py in (0, 2, 4): out.append(f';MARK{py}')
            if C == 0:
                n0 = len(out); need(('row', py + R)); nis[0] += len(out) - n0
            for px in range(2):
                aa = ACC + 8 * (py & 1) + 4 * px
                c = '0' if idx == 0 else v(aa, 4)
                if idx == 0 and py >= 2:
                    pendcvt = [t for _, g in seq[qi:] for t, _ in g if t.startswith('v_cvt_pk_bf16') and f'v{aa},' in t + ',' and False]
                    assert not any(t.startswith('v_cvt_pk_bf16') and any(f' v{aa+j},' in t or t.endswith(f' v{aa+j}') for j in range(4)) and e <= 16 * (py - 1) + 15 for e, g in seq[qi:] for t, _ in g), 'yout too late'
                if idx > 0 and nis[0] - lastpos[aa] - 1 < 2: put('s_nop 0')
                if idx > 0 and nis[0] - lastpos[aa] - 1 < 2: put('s_nop 0')
                lastpos[aa] = nis[0]
                put(f'{M4} {v(aa,4)}, {a(Wt(k,R,C),2)}, {v(blk(py+R, px+C),2)}, {c}')
                if not INTER[0] and px == 0: continue
                prev_valu = False
                if qi < len(seq) and seq[qi][0] <= sl:
                    g0 = seq[qi][1]; emit_group(); prev_valu = isvalu(g0[-1][0])
                if px == 1:
                    while qi < len(seq) and seq[qi][0] <= sl and (seq[qi][0] <= sl - SPREAD[0] or sl == 95):
                        late = seq[qi][0] <= sl - SPREAD[0] - 3 or sl == 95
                        if INTER[0] and prev_valu and ismem(first_real(seq[qi][1])) and not late: break
                        g0 = seq[qi][1]; emit_group(); prev_valu = isvalu(g0[-1][0])
    assert qi == len(seq)
    out += [';MARK6', 's_nop 4'] + yout(5)
    return out

def resolve_l(stages):
    seq = []
    for si in range(3):
        for st in stages: seq.append(st)
    fifo = []
    need = {r: [] for r in range(4)}
    for si, st in enumerate(seq):
        for t in st:
            if t.startswith('WAITL:'):
                r = int(t[6:])
                if si >= 1:
                    idx = max(i for i, x in enumerate(fifo) if x == (si - 1, f'l{r}'))
                    need[r].append(len(fifo) - 1 - idx)
            elif ';@' in t: fifo.append((si, t.split(';@')[1].strip()))
    return {r: min(x) for r, x in need.items()}

def ln_block(cfg):
    NP = 3
    out = []
    t = ACC
    s1 = [t + p for p in range(NP)]; s2 = [t + 3 + p for p in range(NP)]
    for i in range(24):
        for p in range(NP):
            r = Y0 + 24 * p + i
            c1 = '0' if i == 0 else f'v{s1[p]}'; c2 = '0' if i == 0 else f'v{s2[p]}'
            out.append(f'v_dot2_f32_bf16 v{s1[p]}, v{r}, s{sOnes}, {c1}')
            out.append(f'v_dot2_f32_bf16 v{s2[p]}, v{r}, v{r}, {c2}')
    out.append('s_nop 2')
    allr = s1 + s2
    tm = [t + 12 + i for i in range(len(allr))]
    for sw in ('v_permlane16_swap_b32', 'v_permlane32_swap_b32'):
        for r, q in zip(allr, tm): out.append(f'v_mov_b32 v{q}, v{r}')
        out.append('s_nop 1')
        for r, q in zip(allr, tm): out.append(f'{sw} v{q}, v{r}')
        out.append('s_nop 1')
        for r, q in zip(allr, tm): out.append(f'v_add_f32 v{r}, v{r}, v{q}')
    rs = [t + 6 + 2 * p for p in range(NP)]; nb = [t + 18 + 2 * p for p in range(NP)]
    for p in range(NP): out.append(f'v_mul_f32 v{s1[p]}, s{sInv}, v{s1[p]}')
    for p in range(NP): out.append(f'v_mul_f32 v{s2[p]}, s{sInv}, v{s2[p]}')
    for p in range(NP): out.append(f'v_fma_f32 v{s2[p]}, -v{s1[p]}, v{s1[p]}, v{s2[p]}')
    for p in range(NP): out.append(f'v_max_f32 v{s2[p]}, 0, v{s2[p]}')
    for p in range(NP): out.append(f'v_add_f32 v{s2[p]}, s{sEps}, v{s2[p]}')
    for p in range(NP): out.append(f'v_rsq_f32 v{rs[p]}, v{s2[p]}')
    out.append('s_nop 0')
    for p in range(NP): out.append(f'v_mul_f32 v{rs[p]}, s{sAl}, v{rs[p]}')
    for p in range(NP): out.append(f'v_mul_f32 v{nb[p]}, -v{s1[p]}, v{rs[p]}')
    k = 0
    for p in range(NP):
        for s in range(6):
            for d in range(4):
                r = Y(p, s) + d
                x0 = t + 12 + 2 * (k % 3); x1 = x0 + 1; k += 1
                out.append(f'v_lshlrev_b32 v{x0}, 16, v{r}')
                out.append(f'v_and_b32 v{x1}, 0xffff0000, v{r}')
                if cfg.ln_pk:
                    out.append(f'v_pk_fma_f32 v[{x0}:{x1}], v[{x0}:{x1}], v[{rs[p]}:{rs[p]+1}], v[{nb[p]}:{nb[p]+1}] op_sel_hi:[1,0,0]')
                else:
                    out.append(f'v_fma_f32 v{x0}, v{x0}, v{rs[p]}, v{nb[p]}')
                    out.append(f'v_fma_f32 v{x1}, v{x1}, v{rs[p]}, v{nb[p]}')
                out.append(f'v_cvt_pk_bf16_f32 v{r}, v{x0}, v{x1}')
    return out

def pack_loads(lab, dst, t, lane):
    out = [f's_mul_hi_u32 s46, s{sPkF}, {(1 << 32) // 24 + 1}',
           f's_mul_i32 s47, s46, 24', f's_sub_u32 s{sPkf}, s{sPkF}, s47',
           f'v_and_b32 v{t}, 15, v{lane}', f'v_lshrrev_b32 v{t+1}, 4, v{lane}',
           f's_cmp_lt_u32 s{sPkf}, 12', f's_cbranch_scc0 {lab}_pk2']
    out += [f's_add_u32 s48, s46, 1', f's_cmp_eq_u32 s48, 24', f's_cselect_b32 s48, 0, s48',
            f's_lshr_b32 s49, s{sPkf}, 1', f's_and_b32 s50, s{sPkf}, 1',
            f's_lshl_b32 s48, s48, 6', f's_lshl_b32 s50, s50, 5', f's_add_u32 s48, s48, s50',
            f's_mul_i32 s49, s49, {32*1536}', f's_add_u32 s48, s48, s49',
            f'v_mul_u32_u24 v{t+2}, {8*1536}, v{t+1}', f'v_lshl_add_u32 v{t+2}, v{t}, 1, v{t+2}',
            f's_mov_b32 s{sM}, s52', f's_mov_b32 s{sM+1}, s53', f's_mov_b32 s{sM+2}, {192*768*2}', f's_mov_b32 s{sM+3}, 0x20000']
    for e in range(8):
        out.append(f's_add_u32 s49, s48, {e*1536}')
        out.append(f'buffer_load_ushort v{dst+e}, v{t+2}, s[{sM}:{sM+3}], s49 offen')
    out += [f's_branch {lab}_pk3', f'{lab}_pk2:']
    out += [f's_add_u32 s48, s46, 23', f's_cmp_ge_u32 s48, 24', f's_cselect_b32 s49, 24, 0', f's_sub_u32 s48, s48, s49',
            f's_sub_u32 s49, s{sPkf}, 12', f's_lshr_b32 s50, s49, 1', f's_and_b32 s49, s49, 1',
            f's_mul_i32 s48, s48, {32*384}', f's_lshl_b32 s50, s50, 6', f's_lshl_b32 s49, s49, 3',
            f's_add_u32 s48, s48, s50', f's_add_u32 s48, s48, s49',
            f'v_lshrrev_b32 v{t+3}, 2, v{t}', f'v_lshlrev_b32 v{t+3}, 4, v{t+3}',
            f'v_and_b32 v{t+4}, 3, v{t}', f'v_lshl_add_u32 v{t+3}, v{t+4}, 1, v{t+3}',
            f'v_mul_u32_u24 v{t+2}, {4*384}, v{t+1}', f'v_add_u32 v{t+2}, v{t+2}, v{t+3}',
            f's_mov_b32 s{sM}, s54', f's_mov_b32 s{sM+1}, s55', f's_mov_b32 s{sM+2}, {192*768*2}', f's_mov_b32 s{sM+3}, 0x20000']
    for e in range(8):
        out.append(f's_add_u32 s49, s48, {(16*(e>>2) + (e&3))*384}')
        out.append(f'buffer_load_ushort v{dst+e}, v{t+2}, s[{sM}:{sM+3}], s49 offen')
    out += [f'{lab}_pk3:']
    return out

def pack_store(lab, cfg, src, dst):
    out = []
    for d in range(4): out.append(f'v_lshl_or_b32 v{dst+d}, v{src+2*d+1}, 16, v{src+2*d}')
    if cfg.f16:
        out += [f's_cmp_lt_u32 s{sPkf}, 12', f's_cbranch_scc1 {lab}_pk5']
        for e in range(8): out.append(f'v_lshlrev_b32 v{src+e}, 16, v{src+e}')
        for d in range(4): out.append(f'v_cvt_pk_f16_f32 v{dst+d}, v{src+2*d}, v{src+2*d+1}')
        out.append(f'{lab}_pk5:')
    out += [f's_add_u32 s{sM}, s38, {WS_W}', f's_addc_u32 s{sM+1}, s39, 0', f's_mov_b32 s{sM+2}, {W_BYTES}', f's_mov_b32 s{sM+3}, 0x20000',
            f's_lshl_b32 s3, s{sPkF}, 10',
            f'buffer_store_dwordx4 {v(dst,4)}, v{vL16}, s[{sM}:{sM+3}], s3 offen sc1']
    return out

def gen(cfg, name='fused_kernel'):
    k2.MF2[0] = 'v_mfma_f32_16x16x32_f16' if cfg.f16 else k2.MF
    SPREAD[0] = cfg.spread
    INTER[0] = cfg.inter
    PROG[0] = cfg.prog
    EVEN[0] = EVENS.get(cfg.even)
    k2.SNAKE[0] = cfg.snake
    P = []; TR = []
    n3 = [0]
    def st3():
        if cfg.light3 and n3[0] in cfg.l3sel:
            j = cfg.l3sel.index(n3[0])
            P.extend([f's_memtime s[{82+2*j}:{83+2*j}]'])
        n3[0] += 1
        if False:
            P.extend(['s_memtime s[102:103]' if False else 's_memtime s[98:99]', 's_waitcnt lgkmcnt(0)', f'v_writelane_b32 v253, s98, {n3[0]}']); n3[0] += 1
    def emit(l, tr=True):
        P.extend(l)
        if tr: TR.extend([x for x in l if not x.endswith(':')])
    emit(['s_cmp_ge_u32 s2, 256', f's_cbranch_scc1 {name}_done'])
    if cfg.allwg: P += ['s_memrealtime s[82:83]']
    if cfg.light: P += ['s_memtime s[6:7]', 's_memrealtime s[8:9]', 's_waitcnt lgkmcnt(0)', 's_mov_b32 s82, s6', 's_mov_b32 s83, s8']
    st3()
    emit(['s_load_dwordx4 s[4:7], s[0:1], 0',
          's_load_dwordx2 s[38:39], s[0:1], 48',
          's_load_dwordx4 s[52:55], s[0:1], 16',
          'v_lshrrev_b32 v1, 6, v0', 'v_and_b32 v0, 63, v0', 's_nop 0',
          f'v_readfirstlane_b32 s{sWave}, v1',
          f's_mov_b32 s{sIMG}, {IMG_BYTES}', f's_mov_b32 s{sOnes}, 0x3f803f80',
          f's_mov_b32 s{sSelL}, 0x05040100', f's_mov_b32 s{sSelH}, 0x07060302',
          f's_mov_b32 s{sAl}, {hex(f2u(ALPHA))}', f's_mov_b32 s{sEps}, {hex(f2u(1e-5))}', f's_mov_b32 s{sInv}, {hex(f2u(1.0/192))}',
          f'v_lshlrev_b32 v{vL16}, 4, v0', f'v_mov_b32 v{vZ}, 0',
          's_waitcnt lgkmcnt(0)',
          f's_mov_b32 s{sX}, s4', f's_mov_b32 s{sX+1}, s5', f's_mov_b32 s{sX+2}, {IMG_BYTES}', f's_mov_b32 s{sX+3}, 0x20000',
          f's_mov_b32 s{sD}, s6', f's_mov_b32 s{sD+1}, s7', f's_mov_b32 s{sD+2}, {49*384}', f's_mov_b32 s{sD+3}, 0x20000',
          f's_add_u32 s{sH}, s38, {WS_H}', f's_addc_u32 s{sH+1}, s39, 0', f's_mov_b32 s{sH+2}, {IMG_BYTES}', f's_mov_b32 s{sH+3}, 0x20000',
          f's_load_dwordx2 s[{sDbg}:{sDbg+1}], s[0:1], 40', f's_mov_b32 s{sTI}, 0'])
    st3()
    t = Y0
    c = []
    for j in range(4):
        c += [f'v_add_u32 v{t}, {64*j}, v0', f'v_mul_u32_u24 v{t+1}, 2622, v{t}', f'v_lshrrev_b32 v{t+1}, 16, v{t+1}',
              f'v_mul_u32_u24 v{t+2}, 25, v{t+1}', f'v_sub_u32 v{t+2}, v{t}, v{t+2}',
              f'v_subrev_u32 v{t+1}, 1, v{t+1}', f'v_cmp_gt_u32 vcc, 7, v{t+1}', f'v_cmp_gt_u32 s[44:45], 24, v{t+2}',
              f'v_mul_u32_u24 v{t+1}, 384, v{t+1}', f'v_lshl_add_u32 v{t+1}, v{t+2}, 4, v{t+1}', f's_and_b64 vcc, vcc, s[44:45]',
              f'v_subrev_u32 v{t+1}, {1024*j}, v{t+1}' if False else 's_nop 0',
              f'v_cndmask_b32 v{t+8+j}, 2.0, v{t+1}, vcc']
    emit(c)
    c = []
    for m in range(3):
        blk_ = [f's_add_u32 s{sT}, s{sWave}, {4*m}', f's_sub_u32 s{sT2}, s{sT}, 1', f's_cmp_lt_u32 s{sT2}, 7', f's_mul_i32 s{sT2}, s{sT2}, {7*384}',
                f's_cselect_b32 s{sT2}, s{sT2}, 0x70000000', f's_mul_i32 s{sT}, s{sT}, {ROWS}', f's_add_u32 s{sT}, s{sT}, {DWB}']
        for j in range(4):
            blk_ += [f's_add_u32 m0, s{sT}, {1024*j}', 's_nop 0']
            if j == 3: blk_ += ['s_mov_b32 exec_hi, 3']
            blk_ += [f'buffer_load_dwordx4 v{t+8+j}, s[{sD}:{sD+3}], s{sT2} offen lds']
            if j == 3: blk_ += ['s_mov_b32 exec_hi, -1']
        if m < 2: c += blk_
        else: c += [f's_cmp_eq_u32 s{sWave}, 0', f's_cbranch_scc0 {name}_nor8'] + blk_ + [f'{name}_nor8:']
    emit(c)
    pk = [f's_mov_b32 s{sPkF}, -1', f's_cmp_lt_u32 s2, {NPKWG if not cfg.force_fb else 0}', f's_cbranch_scc0 {name}_nopk',
          f's_lshl_b32 s44, s2, 3', f's_lshl_b32 s45, s{sWave}, 1', f's_add_u32 s{sPkF}, s44, s45']
    pk += pack_loads(f'{name}_a', Y0 + 32, ACC, 0) + [f's_add_u32 s{sPkF}, s{sPkF}, 1'] + pack_loads(f'{name}_a2', Y0 + 41, ACC, 0) + [f'{name}_nopk:']
    st3()
    if not cfg.nosync: P += pk
    st3()
    c = [f'v_and_b32 v{t}, 7, v0', f'v_lshrrev_b32 v{t+1}, 3, v0']
    for r in range(4):
        if r < 3: c += [f's_lshl_b32 s{sT}, s{sWave}, 3', f's_add_u32 s{sT}, s{sT}, {32*r}', f'v_add_u32 v{t+2}, s{sT}, v{t+1}']
        else:
            c += [f'v_add_u32 v{t+2}, 96, v{t+1}', f'v_cmp_gt_u32 s[{sMk3}:{sMk3+1}], 24, v0']
        c += [f'v_mul_u32_u24 v{t+3}, 745, v{t+2}', f'v_lshrrev_b32 v{t+3}, 13, v{t+3}',
              f'v_mul_u32_u24 v{t+4}, 11, v{t+3}', f'v_sub_u32 v{t+4}, v{t+2}, v{t+4}',
              f'v_mul_u32_u24 v{t+5}, {2*384}, v{t+3}', f'v_lshl_add_u32 v{t+5}, v{t+4}, 1, v{t+5}',
              f'v_mul_u32_u24 v{t+5}, 384, v{t+5}',
              f'v_lshl_add_u32 v{vRel+r}, v{t}, 4, v{t+5}']
        for dx in range(2):
            mL = sMaskL + 2 * (2 * r + dx); mR = sMaskR + 2 * (2 * r + dx)
            c += [f'v_lshl_add_u32 v{t+6}, v{t+4}, 1, {dx}',
                  f'v_cmp_lt_u32 s[{mL}:{mL+1}], 2, v{t+6}', f'v_cmp_gt_u32 s[{mR}:{mR+1}], 19, v{t+6}']
            if r == 3:
                c += ['s_nop 1', f's_and_b64 s[{mL}:{mL+1}], s[{mL}:{mL+1}], s[{sMk3}:{sMk3+1}]', f's_and_b64 s[{mR}:{mR+1}], s[{mR}:{mR+1}], s[{sMk3}:{sMk3+1}]']
        if r == 0: c += [f'v_mul_u32_u24 v{vLw}, {REC}, v{t+2}']
        if r == 3:
            c += [f's_lshl_b32 s{sT}, s{sWave}, 2', f'v_add_u32 v{vRel+3}, s{sT}, v{vRel+3}',
                  f'v_cndmask_b32 v{vRel+3}, 2.0, v{vRel+3}, s[{sMk3}:{sMk3+1}]',
                  f'v_mul_u32_u24 v{vLw3}, {REC}, v{t+2}', f'v_xor_b32 v{t+6}, s{sWave}, v{t}', f'v_lshl_add_u32 v{vLw3}, v{t+6}, 4, v{vLw3}',
                  f's_lshl_b32 s{sT}, s{sWave}, 7', f'v_add_u32 v{vLw3}, s{sT}, v{vLw3}']
    c += [f'v_lshrrev_b32 v{t}, 2, v0', f'v_and_b32 v{t+1}, 3, v0', f'v_lshrrev_b32 v{t+2}, 3, v{t}',
          f's_lshl_b32 s{sT}, s{sWave}, 1',
          f'v_add_u32 v{t+2}, s{sT}, v{t+2}', f'v_bfe_u32 v{t+3}, v{t}, 1, 2', f'v_xor_b32 v{t+4}, v{t+2}, v{t+3}',
          f'v_lshlrev_b32 v{t+4}, 1, v{t+4}', f'v_lshl_add_u32 v{t+4}, v{t+3}, 4, v{t+4}',
          f'v_and_b32 v{t+5}, 1, v{t}', f'v_add_u32 v{t+4}, v{t+4}, v{t+5}', f'v_lshlrev_b32 v{t+4}, 3, v{t+4}',
          f'v_mul_u32_u24 v{t+5}, {2*REC}, v{t+1}', f'v_add_u32 v{vRd}, v{t+4}, v{t+5}']
    c += [f's_lshl_b32 s{sT2}, s{sWave}, 4', f'v_add_u32 v{t+7}, s{sT2}, v{t}',
          f'v_bfe_u32 v{t+8}, v{t+7}, 3, 1', f'v_lshlrev_b32 v{t+8}, 2, v{t+8}', f'v_xor_b32 v{t+7}, v{t+7}, v{t+8}',
          f'v_lshlrev_b32 v{t+7}, 5, v{t+7}', f'v_lshl_add_u32 v{t+7}, v{t+1}, 3, v{t+7}', f'v_add_u32 v{vY0}, {YB}, v{t+7}']
    c += [f'v_lshrrev_b32 v{t}, 4, v0', f'v_bfe_u32 v{t+1}, v0, 2, 2', f'v_and_b32 v{t+2}, 3, v0',
          f's_mul_i32 s{sT}, s{sWave}, {3*2048}', f's_add_u32 s{sT}, s{sT}, {YB}']
    for h, vr in ((0, vR0), (1, vR1)):
        c += [f'v_lshl_add_u32 v{t+3}, v{t}, 3, v{t+1}', f'v_add_u32 v{t+3}, {4*h}, v{t+3}',
              f'v_and_b32 v{t+4}, 1, v{t}', f'v_lshlrev_b32 v{t+4}, 2, v{t+4}', f'v_xor_b32 v{t+3}, v{t+3}, v{t+4}',
              f'v_lshlrev_b32 v{t+3}, 5, v{t+3}', f'v_lshl_add_u32 v{t+3}, v{t+2}, 3, v{t+3}', f'v_add_u32 v{vr}, s{sT}, v{t+3}']
    vb = VO + 15 + 1
    c += [f'v_lshrrev_b32 v{t}, 2, v0', f's_lshl_b32 s{sT}, s{sWave}, 5', f'v_lshlrev_b32 v{t}, 1, v{t}', f'v_add_u32 v{t}, s{sT}, v{t}',
          f'v_bfe_u32 v{t+1}, v0, 1, 1', f'v_mul_u32_u24 v{t+1}, {ROWS}, v{t+1}', f'v_and_b32 v{t+2}, 1, v0', f'v_mul_u32_u24 v{t+2}, {TAPS}, v{t+2}',
          f'v_add_u32 v{t+1}, v{t+1}, v{t+2}', f'v_sub_u32 v{t}, v{t}, v{t+1}', f'v_add_u32 v{vb}, {DWB}, v{t}',
          f'v_and_b32 v{vO16}, 7, v0', f'v_lshlrev_b32 v{vO16}, 4, v{vO16}']
    emit(c)
    tl = [0]
    def tile_setup(fetch):
        o = [f's_sub_u32 s24, 2, {fetch}' if not cfg.rend else f's_mov_b32 s24, {fetch}',
             f's_lshr_b32 s25, s2, 3', f's_lshl_b32 s24, s24, 5', f's_add_u32 s25, s25, s24',
             f's_and_b32 s26, s2, 7', f's_lshl_b32 s26, s26, 2', f's_and_b32 s27, s25, 3', f's_add_u32 s26, s26, s27',
             f's_lshr_b32 s27, s25, 2',
             f's_mul_i32 s24, s26, {12*384}', f's_lshl_b32 s25, s27, 4', f's_add_u32 s24, s24, s25',
             f's_sub_u32 s24, s24, {3*384+3}', f's_mul_i32 s{sBase}, s24, 384',
             f's_cmp_eq_u32 {fetch}, 3', f's_cselect_b32 s{sBase}, 0x60000000, s{sBase}']
        if cfg.diag_nox: o += [f's_mov_b32 s{sBase}, 0x60000000']
        tl[0] += 1; lab = f'{name}_to{tl[0]}'
        fast = []
        for dy in range(2):
            for dx in range(2):
                fast += [f's_add_u32 s24, s{sBase}, {147456*dy + 384*dx}'] + [f'v_add_u32 v{vo(r,dy,dx)}, s24, v{vRel+r}' for r in range(4)]
        o += [f's_sub_u32 s25, s27, 1', f's_cmp_lt_u32 s25, 22', f's_cselect_b32 s25, 1, 0', f's_cmp_eq_u32 s26, 0', f's_cselect_b32 s25, 0, s25',
              f's_cmp_eq_u32 s{sBase}, 0x60000000', f's_cselect_b32 s25, 1, s25', f's_cmp_eq_u32 s25, 0', f's_cbranch_scc1 {lab}_slow']
        return o + fast + [f's_branch {lab}_done', f'{lab}_slow:'] + tile_offsets() + [f'{lab}_done:']
    strip = lambda l: [x.split(' ;@')[0] for x in l]
    def store_bases():
        o = [f's_mul_i32 s25, s2, 3', f's_add_u32 s25, s25, 2', f's_mul_i32 s25, s25, 12', f's_mul_i32 s26, s{sWave}, 3', f's_add_u32 s25, s25, s26',
             f's_mul_i32 s25, s25, 6144', f's_add_u32 s26, s25, 3072',
             f's_cmp_eq_u32 s{sTI}, {1 if not cfg.diag_nost else 9}', f's_cselect_b32 s{sSt3}, s25, 0x70000000',
             f's_cmp_eq_u32 s{sTI}, {2 if not cfg.diag_nost else 9}', f's_cselect_b32 s{sSt3+3}, s26, 0x70000000']
        for b in (sSt3, sSt3 + 3): o += [f's_add_u32 s{b+1}, s{b}, 6144', f's_add_u32 s{b+2}, s{b}, 12288']
        return o
    emit(tile_setup('0'))
    emit(strip(sum(load_items(cfg, 0, 0), [])))
    st3()
    emit(['s_waitcnt vmcnt(16) lgkmcnt(0)'])
    st3()
    emit(['s_barrier'])
    st3()
    if not cfg.nosync:
        P += [f's_cmp_eq_u32 s{sPkF}, -1', f's_cbranch_scc1 {name}_nops'] + pack_store(f'{name}_b', cfg, Y0 + 41, Y0)
        P += [f's_sub_u32 s{sPkF}, s{sPkF}, 1', f's_sub_u32 s{sPkf}, s{sPkf}, 1'] + pack_store(f'{name}_b2', cfg, Y0 + 32, Y0 + 4) + ['s_nop 1', f'{name}_nops:']
    emit(weights_gather(vb))
    st3()
    emit(['s_waitcnt vmcnt(0)'])
    st3()
    emit([f'v_add_u32 v{vLw}, {SLAB}, v{vLw}', f'v_add_u32 v{vLw3}, {SLAB}, v{vLw3}', f'v_add_u32 v{vRd}, {SLAB}, v{vRd}'])
    for r in range(4):
        for d in range(4): emit(transpose_unit(r, d, 0))
    dfr = lambda k: (k - 1 if (cfg.defer_y and k > 0) else None)
    raw = {k: conv_stage(k, 0, load_items(cfg, (k + 2) % 3, 0), store_items(cfg, k), defer=dfr(k)) for k in range(3)}
    nw = resolve_l([raw[0], raw[1], raw[2]])
    fix = lambda l: [(f's_waitcnt vmcnt({nw[int(x[6:])]})' if x.startswith('WAITL:') else x.split(' ;@')[0]) for x in l]
    body = {key: fix(val) for key, val in raw.items()}
    tags = [x.split(';@')[1].strip() for x in raw[0] if ';@' in x]
    tags = tags[[i for i, x in enumerate(tags) if x.startswith('l')][0]:]
    l1 = strip(sum(load_items(cfg, 1, 0), []))
    emit([f's_mov_b32 s{sT}, 0x70000000'])
    for tg in tags:
        emit([l1.pop(0)] if tg.startswith('l') else [f'buffer_store_dword v{vA}, v{vL16}, s[{sH}:{sH+3}], s{sT} offen'])
    assert not l1
    emit([f'v_subrev_u32 v{vLw}, {SLAB}, v{vLw}', f'v_subrev_u32 v{vLw3}, {SLAB}, v{vLw3}', f's_mov_b32 s{sDS}, {-SLAB & 0xffffffff}', f's_mov_b32 s{sDY}, 24576', f's_mov_b32 s{sDR}, 24576',
          's_waitcnt lgkmcnt(0)'])
    st3()
    emit(['s_barrier'])
    st3()
    if not cfg.nosync:
        P += [f's_cmp_eq_u32 s{sPkF}, -1', f's_cbranch_scc1 {name}_nopub', f's_cmp_eq_u32 s{sWave}, 0', f's_cbranch_scc0 {name}_nopub',
              f'v_mov_b32 v{vB}, 1', 's_mov_b32 exec_lo, 1', 's_mov_b32 exec_hi, 0',
              f'global_atomic_add v{vZ}, v{vB}, s[{sDbg}:{sDbg+1}]', 's_mov_b64 exec, -1', f'{name}_nopub:']
    def after(k, vm=None):
        o = ([f's_waitcnt vmcnt({vm})'] if vm is not None else []) + ['s_waitcnt lgkmcnt(0)', 's_barrier']
        if k == 2 or not cfg.defer_y:
            rd, tg = yin(k)
            o += rd + tg
        o += [f'v_add_u32 v{vRd}, s{sDS}, v{vRd}', f'v_subrev_u32 v{vLw}, s{sDS}, v{vLw}', f'v_subrev_u32 v{vLw3}, s{sDS}, v{vLw3}',
              f'v_add_u32 v{vY0}, s{sDY}, v{vY0}',
              f's_sub_u32 s{sDS}, 0, s{sDS}', f's_sub_u32 s{sDY}, 0, s{sDY}']
        return o
    sn = [0]
    def st2():
        if not cfg.light2: return []
        sn[0] += 1
        return [f's_cmp_eq_u32 s{sTI}, {cfg.l2tile}', f's_cbranch_scc0 {name}_s2_{sn[0]}', f's_memtime s[{STAMP0-2+2*((sn[0]-1)%5+1)}:{STAMP0-1+2*((sn[0]-1)%5+1)}]', f'{name}_s2_{sn[0]}:']
    lns = ln_block(cfg)
    K = k2
    emit([f's_mov_b32 s{sTI}, 0'])
    P += ['.p2align 6', f'{name}_tile:']
    P += st2()
    if not cfg.rend: emit(store_bases())
    emit(body[0] + after(0))
    P += st2()
    emit([f's_add_u32 s3, s{sTI}, 1'] + tile_setup('s3'))
    if cfg.light4:
        b1 = []; n = [0]
        def stmp():
            n[0] += 1; j = n[0] - 1
            return [f's_cmp_eq_u32 s{sTI}, {cfg.l2tile}', f's_cbranch_scc0 {name}_l4_{j}', f's_memtime s[{82+2*j}:{83+2*j}]', f'{name}_l4_{j}:']
        b1 += stmp()
        for x in body[1]:
            if x.startswith(';MARK') and x[5] in cfg.l4sel: b1 += stmp()
            else: b1.append(x)
        af = after(1)
        if 'e' in cfg.l4sel: b1 += stmp() + af[:1] + stmp() + af[1:2] + stmp() + af[2:]
        else: b1 += af
        P += b1; TR += body[1] + after(1)
    else:
        nvm1 = sum(1 for x in body[1] if x.startswith('buffer_'))
        emit(body[1] + after(1, nvm1))
    P += st2()
    pre = [f's_add_u32 s{K.sW}, s38, {WS_W}', f's_addc_u32 s{K.sW+1}, s39, 0', f's_mov_b32 s{K.sW+2}, {W_BYTES}', f's_mov_b32 s{K.sW+3}, 0x20000',
           f's_mul_i32 s{K.sWoff}, s40, 12288', f's_cmp_eq_u32 s40, 1', f's_cselect_b32 s24, {23*24576}, s{K.sWoff}']
    its = []
    for i in range(12):
        it = []
        if i % 4 == 0: it += [f's_add_u32 m0, s{K.sWoff}, {4096*(i//4)}', f's_add_u32 s{sT}, s24, {4096*(i//4)}', 's_nop 0']
        it.append(f'buffer_load_dwordx4 v{vL16}, s[{K.sW}:{K.sW+3}], s{sT} offen offset:{1024*(i%4)} lds')
        its.append(it)
    xbase = [f's_lshr_b32 s24, s2, 3', f's_and_b32 s25, s2, 7', f's_lshl_b32 s25, s25, 2', f's_and_b32 s26, s24, 3', f's_add_u32 s25, s25, s26',
             f's_lshr_b32 s24, s24, 2', f's_mul_i32 s25, s25, 12', f's_mul_i32 s26, s40, 3', f's_add_u32 s25, s25, s26',
             f's_mul_i32 s25, s25, 24', f's_add_u32 s25, s25, s24', f's_mul_i32 s{K.sBX}, s25, 6144']
    vgs = [f'v_and_b32 v{vA}, 0xf0, v{vL16}', f'v_mul_u32_u24 v{K.vG}, 24, v{vA}', f'v_lshrrev_b32 v{vA}, 4, v{vL16}', f'v_and_b32 v{vA}, 0x30, v{vA}',
           f'v_add_u32 v{K.vG}, v{K.vG}, v{vA}']
    xl = lambda p, s_: f'buffer_load_dwordx4 {a(K.pxreg(p,s_), 4)}, v{K.vG}, s[{K.sX}:{K.sX+3}], s{48+p} offen offset:{64*s_}' + (' nt' if cfg.nt_x else '')
    pre = xbase + [f's_mov_b32 s48, s{K.sBX}', f's_add_u32 s49, s48, {cfg.xps}', f's_add_u32 s50, s49, {cfg.xps}'] + vgs + pre
    xearly = [(p, s_) for p in range(3) for s_ in range(6) if K.pxreg(p, s_) + 3 < Wt(2, 0, 0)]
    xlate = [(p, s_) for p in range(3) for s_ in range(6) if (p, s_) not in xearly]
    if cfg.rend: xearly = []; xlate = []
    cl = strip(conv_stage(2, 0, its, store_items(cfg, 2), transp=False, xtra=[[xl(p, s_)] for p, s_ in xearly], defer=dfr(2)))
    P += [f's_cmp_eq_u32 s{sTI}, 2', f's_cbranch_scc0 {name}_nl'] + pre + cl + after(2) + [f's_branch {name}_last', f'{name}_nl:']
    if not cfg.nosync:
        P += [f's_cmp_eq_u32 s{sTI}, 1', f's_cbranch_scc0 {name}_nopoll', f's_cmp_eq_u32 s{sWave}, 0', f's_cbranch_scc0 {name}_nopoll',
              f'global_load_dword v{vP}, v{vZ}, s[{sDbg}:{sDbg+1}] sc1', f'{name}_nopoll:']
    emit(body[2] + after(2) + ['s_waitcnt lgkmcnt(0)'])
    P += st2()
    if cfg.otouch_on:
        K = k2
        ot = [f's_cmp_eq_u32 s{sTI}, {cfg.otouch}', f's_cbranch_scc0 {name}_noot', 's_load_dwordx2 s[6:7], s[0:1], 32',
              f's_lshr_b32 s24, s2, 3', f's_and_b32 s25, s2, 7', f's_lshl_b32 s25, s25, 2', f's_and_b32 s26, s24, 3', f's_add_u32 s25, s25, s26',
              f's_lshr_b32 s24, s24, 2', f's_mul_i32 s25, s25, 12', f's_mul_i32 s26, s40, 3', f's_add_u32 s25, s25, s26',
              f's_mul_i32 s25, s25, 24', f's_add_u32 s25, s25, s24', f's_mul_i32 s25, s25, 6144', 's_waitcnt lgkmcnt(0)',
              f's_mov_b32 s{K.sO}, s6', f's_mov_b32 s{K.sO+1}, s7', f's_mov_b32 s{K.sO+2}, {IMG_BYTES}', f's_mov_b32 s{K.sO+3}, 0x20000']
        for t_ in range(3):
            for p in range(3):
                ot += [f's_add_u32 s26, s25, {t_*cfg.xts + p*cfg.xps}', f'buffer_load_dword v233, v{vZ}, s[{K.sO}:{K.sO+3}], s26 offen']
        ot += [f'{name}_noot:']
        P += ot
    if not cfg.nosync:
        ft = ACC
        fb = [f's_cmp_eq_u32 s{sTI}, 1', f's_cbranch_scc0 {name}_nochk', f's_cmp_eq_u32 s{sWave}, 0', f's_cbranch_scc0 {name}_nochk',
              f's_waitcnt vmcnt({sum(1 for x in body[2] if x.startswith("buffer_"))})', f'v_readfirstlane_b32 s44, v{vP}', 's_nop 3', f's_cmp_ge_u32 s44, {NPKWG + (1000 if cfg.force_fb else 0)}', f's_cbranch_scc1 {name}_acq',
              f's_mov_b32 s45, {cfg.spin}', f'{name}_spin:',
              f'global_load_dword v{vP}, v{vZ}, s[{sDbg}:{sDbg+1}] sc1', 's_waitcnt vmcnt(0)', f'v_readfirstlane_b32 s44, v{vP}', 's_nop 3',
              f's_cmp_ge_u32 s44, {NPKWG + (1000 if cfg.force_fb else 0)}', f's_cbranch_scc1 {name}_acq',
              's_sub_u32 s45, s45, 1', 's_cmp_lg_u32 s45, 0', f's_cbranch_scc1 {name}_spin',
              's_load_dwordx4 s[52:55], s[0:1], 16', f'v_lshrrev_b32 v{ft}, 4, v{vL16}', f's_mov_b32 s{sPkF}, 0', 's_waitcnt vmcnt(0) lgkmcnt(0)', f'{name}_self:']
        fb += pack_loads(f'{name}_c', ft + 8, ft + 1, ft) + ['s_waitcnt vmcnt(0)'] + pack_store(f'{name}_d', cfg, ft + 8, ft + 16)
        fb += ['s_waitcnt vmcnt(0)', f's_add_u32 s{sPkF}, s{sPkF}, 1', f's_cmp_lt_u32 s{sPkF}, {NPACK}', f's_cbranch_scc1 {name}_self',
               f'{name}_acq:', 'buffer_inv sc1', f'{name}_nochk:']
        P += fb
    P += [f's_call_b64 s[42:43], {name}_ln']; TR += lns
    wHold = [f'v_accvgpr_write_b32 a{HOLD+i}, v{Y0+i}' for i in range(72)]
    wP = [f'v_accvgpr_write_b32 a{K.PF0+i}, v{Y0+i}' for i in range(72)]
    P += [f's_cmp_eq_u32 s{sTI}, 1', f's_cbranch_scc1 {name}_ln1'] + wHold + [f's_branch {name}_lnd', f'{name}_ln1:'] + wP + [f'{name}_lnd:']
    TR += wHold + wP
    P += st2()
    P += [f's_add_u32 s{sTI}, s{sTI}, 1', f's_branch {name}_tile', f'{name}_last:']
    emit(['s_waitcnt vmcnt(0) lgkmcnt(0)', 's_barrier'])
    if cfg.allwg: P += ['s_memrealtime s[84:85]', 's_waitcnt lgkmcnt(0)']
    if cfg.light: P += ['s_memtime s[6:7]', 's_memrealtime s[24:25]', 's_waitcnt lgkmcnt(0)', 's_mov_b32 s84, s6', 's_mov_b32 s85, s24']
    emit(['s_load_dwordx2 s[6:7], s[0:1], 32',
          'v_mbcnt_lo_u32_b32 v0, -1, 0', 'v_mbcnt_hi_u32_b32 v0, -1, v0'])
    emit(K.gelu_consts(cfg) + K.ident_setup())
    emit([f's_add_u32 s{K.sW}, s38, {WS_W}', f's_addc_u32 s{K.sW+1}, s39, 0', f's_mov_b32 s{K.sW+2}, {W_BYTES}', f's_mov_b32 s{K.sW+3}, 0x20000',
          f's_mul_i32 s{K.sWoff}, s40, 12288',
          f's_mul_i32 s{K.sB}, s2, {36*6144}', f's_mul_i32 s41, s40, {3*6144}', f's_add_u32 s{K.sB}, s{K.sB}, s41',
          's_waitcnt lgkmcnt(0)',
          f's_mov_b32 s{K.sO}, s6', f's_mov_b32 s{K.sO+1}, s7', f's_mov_b32 s{K.sO+2}, {IMG_BYTES}', f's_mov_b32 s{K.sO+3}, 0x20000',
          's_mov_b32 s98, s6', 's_mov_b32 s99, s7'])
    emit(xbase + [f's_mov_b32 s48, s{K.sBX}', f's_add_u32 s49, s48, {cfg.xps}', f's_add_u32 s50, s49, {cfg.xps}'])
    emit(K.m_second_dma(cfg, 240) + [xl(p, s_) for p, s_ in xlate])
    P += [f's_call_b64 s[42:43], {name}_ln']; TR += lns
    emit([f'v_accvgpr_write_b32 a{(K.PX0 if cfg.rend else K.H0)+i}, v{Y0+i}' for i in range(72)])
    emit(K.m_g1_first(cfg, early=True))
    if cfg.light: P += ['s_memtime s[6:7]', 's_memrealtime s[4:5]', 's_waitcnt lgkmcnt(0)', 's_mov_b32 s86, s6', 's_mov_b32 s87, s4']
    mp, sub, tr = K.m_main(cfg, name)
    P += mp; TR += tr
    P += K.dump_stamps2(cfg, 13)
    if cfg.light:
        P += ['s_waitcnt vmcnt(0)', 's_memtime s[6:7]', 's_memrealtime s[4:5]', 's_load_dwordx2 s[8:9], s[0:1], 40', 's_waitcnt lgkmcnt(0)', 's_mov_b32 s88, s6', 's_mov_b32 s89, s4'] + [f'v_writelane_b32 v255, s{82+i}, {i}' for i in range(8)] + [
              's_cmp_eq_u32 s2, 17', f's_cbranch_scc0 {name}_done', 's_cmp_eq_u32 s40, 0', f's_cbranch_scc0 {name}_done',
              'v_mbcnt_lo_u32_b32 v0, -1, 0', 'v_mbcnt_hi_u32_b32 v0, -1, v0', 'v_lshlrev_b32 v1, 2, v0', 'v_cmp_gt_u32 vcc, 8, v0', 's_and_saveexec_b64 s[10:11], vcc',
              'global_store_dword v1, v255, s[8:9] offset:16']
    if cfg.allwg:
        P += ['s_waitcnt vmcnt(0)', 's_memrealtime s[86:87]', 's_cmp_eq_u32 s40, 0', f's_cbranch_scc0 {name}_done', 's_waitcnt lgkmcnt(0)',
              's_lshl_b32 s3, s2, 4', f's_add_u32 s3, s3, {200 << 20}', 'v_mov_b32 v5, s3',
              'v_mov_b32 v4, s82', 's_nop 1', 'global_store_dword v5, v4, s[38:39]',
              'v_mov_b32 v4, s84', 's_nop 1', 'global_store_dword v5, v4, s[38:39] offset:4',
              'v_mov_b32 v4, s86', 's_nop 1', 'global_store_dword v5, v4, s[38:39] offset:8']
    if cfg.light2 or cfg.light3 or cfg.light4:
        P += ['s_waitcnt vmcnt(0)', 's_load_dwordx2 s[8:9], s[0:1], 40', 's_waitcnt lgkmcnt(0)',
              's_cmp_eq_u32 s2, 17', f's_cbranch_scc0 {name}_done', 's_cmp_eq_u32 s40, 0', f's_cbranch_scc0 {name}_done']
        P += [f'v_writelane_b32 v255, s{STAMP0+2*i}, {i}' for i in range(5)]
        P += ['v_mbcnt_lo_u32_b32 v0, -1, 0', 'v_mbcnt_hi_u32_b32 v0, -1, v0', 'v_lshlrev_b32 v1, 2, v0', 'v_cmp_gt_u32 vcc, 5, v0', 's_and_saveexec_b64 s[10:11], vcc',
              'global_store_dword v1, v255, s[8:9] offset:64']
    P += [f'{name}_done:', 's_endpgm']
    P += ['.p2align 6', f'{name}_ln:'] + lns + ['s_setpc_b64 s[42:43]']
    P += sub
    return P, TR

def kd(name):
    return k2.kd(name)

if __name__ == '__main__':
    import asmlib
    P, TR = gen(Cfg)
    asmlib.check(TR, 'kf')
    print(len(P))
```

```python
import struct, math

def f2u(f): return struct.unpack('<I', struct.pack('<f', f))[0]
LOG2E = 1.4426950408889634
A1 = 2.0 * math.sqrt(2.0 / math.pi) * LOG2E
B1 = A1 * 0.044715
ALPHA = B1 ** (1.0 / 3.0)
CC = A1 / ALPHA

WS_W = 0
W_BYTES = 24 * 24576
WS_H = 1 << 20
IMG_BYTES = 384 * 384 * 192 * 2

vLds, vDma, vG = 1, 2, 3
vLdsS = (1, 4, 5)
T0 = 8
G0 = 24
S0 = 48
ACC = 96
H0, PF0, PX0, W0, I0 = 0, 72, 144, 216, 248
NB = 8
sW, sH, sX, sO = 8, 12, 16, 20
sPass, sJ, sDst, sDstSum, sSrc, sWoff, sB, sT, sT2, sNegC, sAlpha = 24, 25, 26, 27, 28, 29, 30, 31, 32, 34, 35
sB1, sRd = 36, 37
sRet = 42
sHx = 90
sLdH = 96 - 4
sSt, sLd = 44, 47
sLx, sBX = 95, 51
OOB = 0x70000000

def v(b, n=1): return f'v{b}' if n == 1 else f'v[{b}:{b+n-1}]'
def a(b, n=1): return f'a{b}' if n == 1 else f'a[{b}:{b+n-1}]'
def Sreg(buf, aa, p): return S0 + 24 * buf + 4 * (aa * 3 + p)
def Greg(buf, p): return G0 + 12 * buf + 4 * p
def acc(t, p): return ACC + 4 * (t * 3 + p)
def hreg(p, s): return H0 + 24 * p + 4 * s
def pfreg(p, s): return PF0 + 24 * p + 4 * s
def pxreg(p, s): return PX0 + 24 * p + 4 * s
MF = 'v_mfma_f32_16x16x32_bf16'

class Cfg:
    prof = False
    prof2 = False
    allwg = False
    profpass = 1
    plan = ['ssss', 'sssss', 'sssss', 'ssssh', 'hhhhh', 'hhhhh', 'hhhhh', 'hhxxx', 'xxxxx', 'xxxxx', 'xxxxx', '']
    xpos = [26, 30, 34, 38, 41]
    D = 5
    gsz = 4
    f16 = False
    warm = True
    sub = True
    hskip = False
    hout = False
    rend = False
    freeslot = False
    snake = False
    tail_lds = False
    tail_flags = None
    xposJ = {}
    tail_inter = False
    out_flags = None
    static_ring = False
    wevery = 2
    mid_vm = 12
    diag_nodma = False
    xps = 6144
    xts = 73728
    nt_h = False; nt_x = False; nt_o = False

def f2h(f):
    import numpy as np
    return int(np.float16(f).view(np.uint16))

def gelu_list16(buf, cfg):
    out = []
    grp = [(aa, p) for aa in range(2) for p in range(3)]
    for i in range(0, 6, 2):
        dw = []
        for gi, (aa, p) in enumerate(grp[i:i+2]):
            for d in range(2):
                n = (i // 2 % 2) * 8 + gi * 4 + d * 2
                u = Sreg(buf, aa, p) + 2 * d
                dw.append((u, u + 1, T0 + n, T0 + n + 1, Greg(buf, p) + 2 * aa + d))
        SD = lambda w: f'dst_sel:WORD_{w} dst_unused:UNUSED_PRESERVE src0_sel:WORD_{w}'
        for u0, u1, h, t, g in dw: out.append(f'v_cvt_pk_f16_f32 v{h}, v{u0}, v{u1}')
        for u0, u1, h, t, g in dw: out.append(f'v_pk_fma_f16 v{t}, v{h}, v{h}, s{sNegC} neg_lo:[1,0,0] neg_hi:[1,0,0]')
        for u0, u1, h, t, g in dw: out.append(f'v_pk_mul_f16 v{t}, v{t}, v{h}')
        for w in range(2):
            for u0, u1, h, t, g in dw: out.append(f'v_exp_f16_sdwa v{t}, v{t} {SD(w)}')
        for u0, u1, h, t, g in dw: out.append(f'v_pk_fma_f16 v{t}, v{t}, s{sAlpha}, s{sAlpha}')
        for w in range(2):
            for u0, u1, h, t, g in dw: out.append(f'v_rcp_f16_sdwa v{t}, v{t} {SD(w)}')
        for u0, u1, h, t, g in dw: out.append(f'v_pk_mul_f16 v{g}, v{h}, v{t}')
    return out

def gelu_list(buf, cfg):
    if cfg.f16: return gelu_list16(buf, cfg)
    out = []
    k = 0
    for aa in range(2):
        for p in range(3):
            es = [Sreg(buf, aa, p) + i for i in range(4)]
            ts = [T0 + (k % 2) * 4 + i for i in range(4)]
            k += 1
            for u, t in zip(es, ts): out.append(f'v_fma_f32 v{t}, -v{u}, v{u}, s{sNegC}')
            for u, t in zip(es, ts): out.append(f'v_mul_f32 v{t}, v{t}, v{u}')
            for u, t in zip(es, ts): out.append(f'v_exp_f32 v{t}, v{t}')
            for u, t in zip(es, ts): out.append(f'v_fma_f32 v{t}, v{t}, s{sAlpha}, s{sAlpha}')
            for u, t in zip(es, ts): out.append(f'v_rcp_f32 v{t}, v{t}')
            for u, t in zip(es, ts): out.append(f'v_mul_f32 v{t}, v{u}, v{t}')
            g = Greg(buf, p) + 2 * aa
            out.append(f'v_cvt_pk_bf16_f32 v{g}, v{ts[0]}, v{ts[1]}')
            out.append(f'v_cvt_pk_bf16_f32 v{g+1}, v{ts[2]}, v{ts[3]}')
    return out

def g1_groups(j):
    buf = (j + 1) & 1
    base = (j & 1) * 24576
    gs = []
    for s in range(6):
        for aa in range(2):
            gs.append((base + (2 * s + aa) * 1024,
                       [(lambda w, p=p, s=s, aa=aa: f'{MF} {v(Sreg(buf,aa,p),4)}, {a(w,4)}, {a(hreg(p,s),4)}, ' + ('0' if s == 0 else v(Sreg(buf,aa,p),4))) for p in porder(aa)]))
    return gs

MF2 = [MF]
SNAKE = [False]
def porder(i): return (2, 1, 0) if (SNAKE[0] and i % 2) else (0, 1, 2)
def g2_groups(j, zero=False):
    buf = (j - 1) & 1
    base = (j & 1) * 24576 + 12288
    gs = []
    for t in range(12):
        gs.append((base + t * 1024,
                   [(lambda w, p=p, t=t: f'{MF2[0]} {v(acc(t,p),4)}, {a(w,4)}, {v(Greg(buf,p),4)}, ' + ('0' if zero else v(acc(t,p),4))) for p in porder(t)]))
    return gs

def cost(t):
    op = t.split()[0]
    if op.startswith(('v_exp', 'v_rcp')): return 8
    return 4

def wbuf(g): return W0 + 4 * (g % NB)

def dma_block(k):
    return [f's_add_u32 m0, s{sDst}, {4096*k}', f's_add_u32 s{sT}, s{sSrc}, {4096*k}']
DTAG = ['dma']
def dma(i):
    return f'buffer_load_dwordx4 v{vDma}, s[{sW}:{sW+3}], s{sT} offen offset:{(i%4)*1024} lds ;@{DTAG[0]}'

def superstep(cfg, j0, mid=None, extra_valu=None, extra_at=None, bar_wait=None, dma_on=True, pre=None):
    J = j0 // 2
    sr = cfg.static_ring
    vcur = vLdsS[J % 3] if sr else vLds
    vnxt = vLdsS[(J + 1) % 3] if sr else vLds
    D = cfg.D
    groups = g1_groups(j0) + g2_groups(j0) + g1_groups(j0 + 1) + g2_groups(j0 + 1, zero=(cfg.rend and j0 == 0))
    nxt = g1_groups(j0)
    out = list(pre or [])
    fifo = list(range(0, D))
    waited = cfg.wevery - 1
    fifo = [g for g in fifo if g > waited]
    vl = [gelu_list(j0 & 1, cfg), gelu_list((j0 + 1) & 1, cfg)]
    extra_at = extra_at or {}
    reads_at = {g: [] for g in range(48)}
    for g in range(48):
        r = g + D
        if r <= 46 - 0 and g < 47 - D - 1: reads_at[g].append(r)
    reads_at[47 - D - 1] = [46, 47]
    reads_at[47 - D] = []
    for k in range(D): reads_at[48 - D + k].append(48 + k)
    fs = cfg.freeslot and sr
    dma_salu = lambda i: [f's_add_u32 m0, s{sWoff}, {((J + 2) % 3) * 49152 + 4096 * (i // 4)}', f's_add_u32 s{sT}, s{sWoff}, {((J + 2) % 12) * 49152 + 4096 * (i // 4)}']
    dma_at = {}
    if dma_on and not cfg.diag_nodma:
        for i in range(12): dma_at.setdefault(2 * i, []).append(i)
    for step in range(2):
        valu = list(vl[step])
        tot = sum(cost(t) for t in valu)
        done = 0; vi = 0
        ex = (extra_valu or {}).get(step)
        exi = 0
        for gl in range(24):
            g = step * 24 + gl
            ms = groups[g][1]
            for k, m in enumerate(ms):
                out.append(m(wbuf(g)))
                if k == 0:
                    if g == 48 - D:
                        out.append('s_waitcnt lgkmcnt(0)'); fifo = []; waited = 47
                        out += bar_wait or ['s_waitcnt vmcnt(0)']
                        out.append('s_barrier')
                        if not sr: out.append(f'v_add_u32 v{vLds}, s{sRd}, v{vDma}')
                    for r in reads_at[g]:
                        off = groups[r][0] if r < 48 else nxt[r - 48][0]
                        out.append(f'ds_read_b128 {a(wbuf(r),4)}, v{vcur if r < 48 else vnxt} offset:{off}')
                        fifo.append(r)
                    for i in dma_at.get(g, []):
                        if i % 4 == 0 and not (fs and g > 0):
                            if sr: out += dma_salu(i)
                            else: out += dma_block(i // 4) + ['s_nop 0']
                        out.append(dma(i))
                    if g == 38 and not sr:
                        out += [f's_add_u32 s{sRd}, s{sRd}, 49152', f's_cmp_eq_u32 s{sRd}, 147456', f's_cselect_b32 s{sRd}, 0, s{sRd}']
                    if not fs: out += extra_at.get(g, [])
                if fs:
                    nxt_dma = [i for i in dma_at.get(g + 1, []) if i % 4 == 0]
                    if k == 1:
                        if nxt_dma: out.append(dma_salu(nxt_dma[0])[0])
                        out += extra_at.get(g, [])
                    if k == 2:
                        we = cfg.wevery
                        if g % we == we - 1 and waited < g + we:
                            needg = g + we
                            pend = [r for r in fifo if r > needg]
                            if len(pend) < len(fifo): out.append(f's_waitcnt lgkmcnt({len(pend)})')
                            fifo = pend; waited = needg
                        if nxt_dma: out.append(dma_salu(nxt_dma[0])[1])
                mi = gl * 3 + k + 1
                target = tot * mi / 72.0
                while vi < len(valu) and done + cost(valu[vi]) / 2 <= target:
                    out.append(valu[vi]); done += cost(valu[vi]); vi += 1
                if mi == 72:
                    while vi < len(valu): out.append(valu[vi]); vi += 1
                if ex and ex[0] <= gl < ex[1]:
                    n = len(ex[2]); span = (ex[1] - ex[0]) * 3
                    upto = ((gl - ex[0]) * 3 + k + 1) * n // span
                    while exi < upto: out.append(ex[2][exi]); exi += 1
            we = cfg.wevery
            if g % we == we - 1:
                needg = g + we
                if waited < needg:
                    pend = [r for r in fifo if r > needg]
                    if len(pend) < len(fifo):
                        out.append(f's_waitcnt lgkmcnt({len(pend)})')
                    fifo = pend; waited = needg
        if step == 0 and mid: out += mid
    return out

def mid_block(cfg):
    out = []
    k = 0
    for p in range(3):
        for s in range(6):
            t = T0 + 8 + (k % 2) * 4; k += 1
            r0, r1 = acc(2 * s, p), acc(2 * s + 1, p)
            out.append(f'v_cvt_pk_bf16_f32 v{t}, v{r0}, v{r0+1}')
            out.append(f'v_cvt_pk_bf16_f32 v{t+1}, v{r0+2}, v{r0+3}')
            out.append(f'v_cvt_pk_bf16_f32 v{t+2}, v{r1}, v{r1+1}')
            out.append(f'v_cvt_pk_bf16_f32 v{t+3}, v{r1+2}, v{r1+3}')
            out.append(f'{MF} {v(acc(2*s,p),4)}, {a(I0,4)}, {a(pxreg(p,s),4)}, 0')
            out.append(f'{MF} {v(acc(2*s+1,p),4)}, {a(I0+4,4)}, {a(pxreg(p,s),4)}, 0')
            for i in range(4): out.append(f'v_accvgpr_write_b32 a{pxreg(p,s)+i}, v{t+i}')
    return out

def resid_mfmas(p, s):
    return [f'{MF} {v(acc(2*s,p),4)}, {a(I0,4)}, {a(pxreg(p,s),4)}, {v(acc(2*s,p),4)}',
            f'{MF} {v(acc(2*s+1,p),4)}, {a(I0+4,4)}, {a(pxreg(p,s),4)}, {v(acc(2*s+1,p),4)}']

def mid_block_rend(cfg):
    out = []
    items = [(p, s) for p in range(3) for s in range(6)]
    LAG = 2
    for i in range(18 + LAG):
        m = resid_mfmas(*items[i]) if i < 18 else []
        c = []; w = []
        j = i - LAG
        if j >= 0:
            p, s = items[j]; t = T0 + 8 + (j % 2) * 4
            r0, r1 = acc(2 * s, p), acc(2 * s + 1, p)
            c = [f'v_cvt_pk_bf16_f32 v{t}, v{r0}, v{r0+1}', f'v_cvt_pk_bf16_f32 v{t+1}, v{r0+2}, v{r0+3}',
                 f'v_cvt_pk_bf16_f32 v{t+2}, v{r1}, v{r1+1}', f'v_cvt_pk_bf16_f32 v{t+3}, v{r1+2}, v{r1+3}']
            w = [f'v_accvgpr_write_b32 a{pxreg(p,s)+q}, v{t+q}' for q in range(4)]
        if m: out += [m[0]] + c[:2] + [m[1]] + c[2:] + w
        else: out += c + w
        if i == 0 or i == 1: out += ['s_nop 3']
    return out

def tail_epilogue(cfg, sbase):
    out = []
    nt = ' nt' if cfg.nt_o else ''
    k = 0
    for p in range(3):
        out.append(f's_add_u32 s{sT2}, s{sbase}, {cfg.xps*p}')
        for s in range(6):
            t = T0 + (k % 4) * 4; k += 1
            r0, r1 = acc(2 * s, p), acc(2 * s + 1, p)
            out.append(f'v_cvt_pk_bf16_f32 v{t}, v{r0}, v{r0+1}')
            out.append(f'v_cvt_pk_bf16_f32 v{t+1}, v{r0+2}, v{r0+3}')
            out.append(f'v_cvt_pk_bf16_f32 v{t+2}, v{r1}, v{r1+1}')
            out.append(f'v_cvt_pk_bf16_f32 v{t+3}, v{r1+2}, v{r1+3}')
            out.append(f'buffer_store_dwordx4 {v(t,4)}, v{vG}, s[{sO}:{sO+3}], s{sT2} offen offset:{64*s}{nt}')
    return out

def tail_epilogue_lds(cfg, sbase):
    nt = cfg.tail_flags if cfg.tail_flags is not None else (' nt' if cfg.nt_o else '')
    vW, vR, vG2, t = 4, 5, 6, 7
    out = [f'v_lshrrev_b32 v{t}, 4, v{vDma}',
           f's_mul_i32 s{sT}, s40, 12288', f's_add_u32 s{sT}, s{sT}, 98304',
           f'v_and_b32 v{vW}, 15, v{t}', f'v_bfe_u32 v{vR}, v{t}, 1, 2', f'v_lshrrev_b32 v{vG2}, 4, v{t}', f'v_xor_b32 v{vR}, v{vR}, v{vG2}',
           f'v_lshlrev_b32 v{vW}, 6, v{vW}', f'v_lshl_add_u32 v{vW}, v{vR}, 4, v{vW}', f'v_add_u32 v{vW}, s{sT}, v{vW}',
           f'v_bfe_u32 v{vR}, v{t}, 3, 2', f'v_and_b32 v{vG2}, 3, v{t}', f'v_xor_b32 v{vR}, v{vR}, v{vG2}', f'v_lshlrev_b32 v{vR}, 4, v{vR}',
           f'v_lshrrev_b32 v{vG2}, 2, v{t}', f'v_lshl_add_u32 v{vR}, v{vG2}, 6, v{vR}', f'v_add_u32 v{vR}, s{sT}, v{vR}',
           f'v_mul_u32_u24 v{vG2}, 384, v{vG2}', f'v_and_b32 v{t}, 3, v{t}', f'v_lshl_add_u32 v{vG2}, v{t}, 4, v{vG2}']
    items = [(p, s) for p in range(3) for s in range(6)]
    LAG = 2
    def wr(i):
        p, s = items[i]; tt = T0 + 4 * (i % 2)
        r0, r1 = acc(2 * s, p), acc(2 * s + 1, p)
        return [f'v_cvt_pk_bf16_f32 v{tt}, v{r0}, v{r0+1}', f'v_cvt_pk_bf16_f32 v{tt+1}, v{r0+2}, v{r0+3}',
                f'v_cvt_pk_bf16_f32 v{tt+2}, v{r1}, v{r1+1}', f'v_cvt_pk_bf16_f32 v{tt+3}, v{r1+2}, v{r1+3}',
                f'ds_write_b128 v{vW}, {v(tt,4)} offset:{1024*(i % 12)}']
    rreg = lambda i: G0 + 4 * (i % 6)
    pend = []
    RL = 2
    inter = cfg.rend and cfg.tail_inter
    if inter:
        for j in range(RL): out += resid_mfmas(*items[j])
        out += ['s_nop 7']
    for i in range(18 + 2 * LAG):
        if i < 18:
            w = wr(i)
            if inter and i + RL < 18:
                m = resid_mfmas(*items[i + RL])
                w = [m[0]] + w[:2] + [m[1]] + w[2:]
            out += w; pend.append(('w', i))
        j = i - LAG
        if 0 <= j < 18:
            out.append(f'ds_read_b128 {v(rreg(j),4)}, v{vR} offset:{1024*(j % 12)}'); pend.append(('r', j))
        m = i - 2 * LAG
        if 0 <= m < 18:
            idx = pend.index(('r', m)); n = len(pend) - 1 - idx
            out.append(f's_waitcnt lgkmcnt({n})'); pend = pend[idx + 1:]
            p, s = items[m]
            if s == 0: out.append(f's_add_u32 s{sT2}, s{sbase}, {cfg.xps*p}')
            out.append(f'buffer_store_dwordx4 {v(rreg(m),4)}, v{vG2}, s[{sO}:{sO+3}], s{sT2} offen offset:{64*s}{nt}')
    return out

def st_op(cfg, i):
    p, s = divmod(i, 6)
    return f'buffer_store_dwordx4 {a(pxreg(p,s),4)}, v{vG}, s[{sO}:{sO+3}], s{sSt+p} offen offset:{64*s}' + (cfg.out_flags if cfg.out_flags is not None else (' nt' if cfg.nt_o else '')) + ' ;@st'
def h_op(cfg, i):
    p, s = divmod(i, 6)
    so, im = (sLd + p, 1024 * s) if s < 4 else (sLdH + p, 1024 * (s - 4))
    va = vDma
    srd = sH
    if cfg.rend: so, im, va = sLd + p, 64 * s, vG
    if cfg.rend and cfg.hout: srd = sO
    ld = f'buffer_load_dwordx4 {a(pfreg(p,s),4)}, v{va}, s[{srd}:{srd+3}], s{so} offen offset:{im}' + (' nt' if cfg.nt_h else '') + ' ;@h'
    if cfg.hskip: return f's_mov_b64 exec, s[{sHx}:{sHx+1}]\n' + ld + '\ns_mov_b64 exec, -1'
    return ld
def x_op(cfg, i):
    p, s = divmod(i, 6)
    return f'buffer_load_dwordx4 {a(pxreg(p,s),4)}, v{vG}, s[{sX}:{sX+3}], s{sLx+p} offen offset:{64*s}' + (' nt' if cfg.nt_x else '') + ' ;@x'

def resolve_vm(seq_prev, seq, optional=()):
    def isvm(t):
        o = t.split()[0] if t.split() else ''
        return o.startswith(('buffer_load', 'buffer_store'))
    def tag(t):
        if ';@' in t: return t.split(';@')[1].strip()
        return 'dma' if ' lds' in t else '?'
    fifo = []
    res = None
    for rnd, sq in enumerate((seq_prev, seq)):
        out = []
        for t in sq:
            if t.startswith('WAITVM:'):
                tg = t.split(':')[1]
                idx = [i for i, x in enumerate(fifo) if x == tg]
                if idx:
                    younger = fifo[idx[-1] + 1:]
                    n = sum(1 for x in younger if x not in optional)
                    out.append(f's_waitcnt vmcnt({n})')
                    keep = []; c = 0
                    for x in reversed(fifo):
                        if c >= n: break
                        keep.append(x)
                        if x not in optional: c += 1
                    fifo = keep[::-1]
                continue
            if isvm(t): fifo.append(tag(t))
            assert len(fifo) <= 63, 'too many outstanding'
            out.append(t)
        res = out
    return res

def tile_loads(srd, dst0, soff_base_instrs, nt):
    out = []
    for p in range(3):
        out += soff_base_instrs(p)
        for s in range(6):
            out.append(f'buffer_load_dwordx4 {a(dst0 + 24*p + 4*s, 4)}, v{vG}, s[{srd}:{srd+3}], s{sT2} offen offset:{64*s}' + (' nt' if nt else ''))
    return out

def soff(base, add):
    def f(p):
        return [f's_add_u32 s{sT2}, s{base}, {add + 6144*p}']
    return f

def stamp(cfg, k):
    if not cfg.prof: return []
    b = 52 + 4 * k
    return [f's_memtime s[{b}:{b+1}]', f's_memrealtime s[{b+2}:{b+3}]']

_cs=[0]
def cstamp(cfg, k, cond=None):
    if not cfg.prof2: return []
    _cs[0]+=1; lab=f'mlp_cs{_cs[0]}'
    out=[f's_cmp_eq_u32 s{sPass}, {cfg.profpass}', f's_cbranch_scc0 {lab}']
    if cond: out+=[f's_cmp_eq_u32 s{cond[0]}, {cond[1]}', f's_cbranch_scc0 {lab}']
    out+=[f's_memtime s[{52+2*k}:{53+2*k}]', f'{lab}:']
    return out

def dump_stamps2(cfg, n):
    if not cfg.prof2: return []
    out = ['s_waitcnt lgkmcnt(0)', 's_load_dwordx2 s[42:43], s[0:1], 40', 's_waitcnt lgkmcnt(0)',
           's_mov_b32 s44, s42', 's_mov_b32 s45, s43', 's_mov_b32 s46, 256', 's_mov_b32 s47, 0x20000',
           's_cmp_lg_u32 s2, 17', 's_cbranch_scc1 mlp_nodump', 's_cmp_lg_u32 s40, 0', 's_cbranch_scc1 mlp_nodump',
           'v_mov_b32 v4, 0']
    for k in range(n):
        out += [f'v_mov_b32 v5, s{52+2*k}', f'buffer_store_dword v5, v4, s[44:47], 0 offen offset:{4*k}']
    out += ['mlp_nodump:']
    return out

def dump_stamps(cfg, n):
    if not cfg.prof: return []
    out = ['s_waitcnt lgkmcnt(0)', 's_load_dwordx2 s[42:43], s[0:1], 40', 's_waitcnt lgkmcnt(0)',
           's_mov_b32 s44, s42', 's_mov_b32 s45, s43', 's_mov_b32 s46, 256', 's_mov_b32 s47, 0x20000',
           's_cmp_lg_u32 s2, PROFWG', 's_cbranch_scc1 mlp_nodump', 's_cmp_lg_u32 s40, 0', 's_cbranch_scc1 mlp_nodump',
           'v_mov_b32 v4, 0']
    for k in range(n):
        b = 52 + 4 * k
        out += [f'v_mov_b32 v5, s{b}', f'buffer_store_dword v5, v4, s[44:47], 0 offen offset:{8*k}',
                f'v_mov_b32 v6, s{b+2}', f'buffer_store_dword v6, v4, s[44:47], 0 offen offset:{8*k+4}']
    out += ['mlp_nodump:']
    return [o.replace('PROFWG', '17') for o in out]

def ident_setup():
    return [
        f'v_lshlrev_b32 v{vDma}, 4, v0',
        f'v_mov_b32 v{vLds}, v{vDma}',
        f'v_and_b32 v4, 15, v0',
        f'v_lshrrev_b32 v5, 4, v0',
        f'v_mul_u32_u24 v{vG}, 384, v4',
        f'v_lshl_add_u32 v{vG}, v5, 4, v{vG}',
        f'v_lshrrev_b32 v6, 2, v4',
        f'v_cmp_eq_u32 vcc, v6, v5',
        f'v_and_b32 v6, 1, v4',
        f'v_lshlrev_b32 v6, 4, v6',
        f'v_mov_b32 v7, 0x3f80',
        f'v_lshlrev_b32 v7, v6, v7',
        f'v_cndmask_b32 v7, 0, v7, vcc',
        f'v_and_b32 v6, 2, v4',
        f'v_cmp_eq_u32 vcc, 0, v6',
        's_nop 1',
        f'v_cndmask_b32 v8, 0, v7, vcc',
        f'v_sub_u32 v9, v7, v8',
        f'v_mov_b32 v10, 0',
        f'v_accvgpr_write_b32 a{I0}, v8', f'v_accvgpr_write_b32 a{I0+1}, v9',
        f'v_accvgpr_write_b32 a{I0+2}, v10', f'v_accvgpr_write_b32 a{I0+3}, v10',
        f'v_accvgpr_write_b32 a{I0+4}, v10', f'v_accvgpr_write_b32 a{I0+5}, v10',
        f'v_accvgpr_write_b32 a{I0+6}, v8', f'v_accvgpr_write_b32 a{I0+7}, v9']

def gelu_consts(cfg):
    return [f's_mov_b32 s{sNegC}, {hex(f2u(-CC) if not cfg.f16 else f2h(-CC) * 0x10001)}',
            f's_mov_b32 s{sAlpha}, {hex(f2u(ALPHA) if not cfg.f16 else f2h(ALPHA) * 0x10001)}']

def m_first_dma(cfg):
    a1 = [f's_mul_i32 s41, s40, 3072', f's_add_u32 m0, s41, {98304+24576}', f's_add_u32 s{sT}, s41, {23*24576}']
    a1 += [f'buffer_load_dwordx4 v{vDma}, s[{sW}:{sW+3}], s{sT} offen offset:{i*1024} lds' for i in range(3)]
    a2 = []
    for sl in range(2):
        a2 += [f's_add_u32 s{sDst}, s{sWoff}, {49152*sl}', f's_add_u32 s{sSrc}, s{sWoff}, {49152*sl}']
        for k_ in range(3): a2 += dma_block(k_) + ['s_nop 0'] + [dma(4 * k_ + i).split(' ;@')[0] for i in range(4)]
    nwarm = 0
    if cfg.warm:
        a2 += [f's_lshr_b32 s41, s2, 3', f's_and_b32 s41, s41, 31', f's_mul_i32 s41, s41, 18432', f's_mul_i32 s3, s40, 5120', f's_add_u32 s41, s41, s3']
        for i in range(5):
            if i == 4: a2 += [f's_add_u32 s41, s41, 4096']
            a2 += [f'buffer_load_dwordx4 {a(PF0 + 4*i, 4)}, v{vDma}, s[{sW}:{sW+3}], s41 offen offset:{1024*(i%4)}']
        nwarm = 5
    a2 += [f's_add_u32 s{sDst}, s{sWoff}, 98304', f's_add_u32 s{sDstSum}, s{sWoff}, 147456',
           f's_add_u32 s{sSrc}, s{sWoff}, 98304', f's_mov_b32 s{sRd}, 0', f's_mov_b32 s{sPass}, 0']
    return a1, a2, 12 + nwarm

def m_second_dma(cfg, warm_dst):
    a2 = [f's_add_u32 s{sDst}, s{sWoff}, 49152', f's_add_u32 s{sSrc}, s{sWoff}, 49152']
    for k_ in range(3): a2 += dma_block(k_) + ['s_nop 0'] + [dma(4 * k_ + i).split(' ;@')[0] for i in range(4)]
    if cfg.warm:
        a2 += [f's_lshr_b32 s41, s2, 3', f's_and_b32 s41, s41, 31', f's_mul_i32 s41, s41, 18432', f's_mul_i32 s3, s40, 5120', f's_add_u32 s41, s41, s3']
        for i in range(5):
            if i == 4: a2 += [f's_add_u32 s41, s41, 4096']
            a2 += [f'buffer_load_dwordx4 {v(warm_dst + 4*(i%4), 4)}, v{vDma}, s[{sW}:{sW+3}], s41 offen offset:{1024*(i%4)}']
    a2 += [f's_add_u32 s{sDst}, s{sWoff}, 98304', f's_add_u32 s{sDstSum}, s{sWoff}, 147456',
           f's_add_u32 s{sSrc}, s{sWoff}, 98304', f's_mov_b32 s{sRd}, 0', f's_mov_b32 s{sPass}, 0']
    return a2

def x_first_loads(cfg):
    out = []
    for p in range(3):
        out.append(f's_add_u32 s{sT2}, s{sBX}, {cfg.xps*p}')
        for s in range(6):
            out.append(f'buffer_load_dwordx4 {a(pxreg(p,s), 4)}, v{vG}, s[{sX}:{sX+3}], s{sT2} offen offset:{64*s}' + (' nt' if cfg.nt_x else ''))
    return out

def m_g1_first(cfg, early=False):
    D = cfg.D
    g1 = g1_groups(-1)
    if early: g1 = [(off - 12288, ms) for off, ms in g1]
    lst = [f'v_add_u32 v4, {0 if early else 98304}, v{vLds}']
    for g in range(6):
        lst.append(f'ds_read_b128 {a(wbuf(g),4)}, v4 offset:{g1[g][0]}')
    for g in range(12):
        if g % 2 == 0: lst.append(f's_waitcnt lgkmcnt({min(4, 10 - g) if g < 10 else 0})' if g <= 6 else f's_waitcnt lgkmcnt({max(0, 10 - g)})')
        for m in g1[g][1]: lst.append(m(wbuf(g)))
        if g + 6 < 12: lst.append(f'ds_read_b128 {a(wbuf(g+6),4)}, v4 offset:{g1[g+6][0]}')
    lst += ['s_waitcnt lgkmcnt(0)'] + ([] if early else ['s_barrier'])
    nxt = g1_groups(0)
    for g in range(D): lst.append(f'ds_read_b128 {a(wbuf(g),4)}, v{vLds} offset:{nxt[g][0]}')
    lst.append(f's_waitcnt lgkmcnt({D-cfg.wevery})')
    if cfg.static_ring: lst += [f'v_add_u32 v{vLdsS[1]}, 49152, v{vDma}', f'v_add_u32 v{vLdsS[2]}, 98304, v{vDma}']
    return lst

def m_main(cfg, L):
    P = []
    adv = [f's_add_u32 s{sDst}, s{sDst}, 49152', f's_cmp_ge_u32 s{sDst}, s{sDstSum}', f's_cselect_b32 s{sT}, 147456, 0', f's_sub_u32 s{sDst}, s{sDst}, s{sT}',
           f's_add_u32 s{sSrc}, s{sSrc}, 49152',
           f's_cmp_ge_u32 s{sSrc}, {W_BYTES}',
           f's_cselect_b32 s{sT}, {W_BYTES}, 0',
           f's_sub_u32 s{sSrc}, s{sSrc}, s{sT}']
    st = [st_op(cfg, i) for i in range(18)]
    hl = [h_op(cfg, i) for i in range(18)]
    xl = [x_op(cfg, i) for i in range(18)]
    pools = {'s': st, 'h': hl, 'x': xl}
    extras = [[pools[ch].pop(0).split('\n') for ch in cfg.plan[J]] for J in range(12)]
    assert not st and not hl and not xl
    assert (not cfg.sub) or all(len(extras[J]) == 5 for J in range(1, 11))
    xp = lambda J: cfg.xposJ.get(J, cfg.xpos)
    assert not extras[11] and all(len(e) <= len(xp(J)) for J, e in enumerate(extras))
    assert all(q >= 24 for q in xp(0)[:len(extras[0])])
    setup = [f's_cmp_eq_u32 s{sPass}, 0'] + ([f's_cselect_b64 s[{sHx}:{sHx+1}], 0, -1'] if cfg.hskip else []) + [
             f's_cselect_b32 s{sSt}, {hex(OOB)}, s{sB1}',
             f's_add_u32 s{sSt+1}, s{sSt}, {cfg.xps}', f's_add_u32 s{sSt+2}, s{sSt}, {2*cfg.xps}',
             f's_add_u32 s{sLd}, s{sB}, 73728', f's_add_u32 s{sLx}, s{sBX}, {cfg.xts}',
             f's_cmp_eq_u32 s{sPass}, 2',
             f's_cselect_b32 s{sLd}, {hex(OOB)}, s{sLd}', f's_cselect_b32 s{sLx}, {hex(OOB)}, s{sLx}',
             f's_add_u32 s{sLd+1}, s{sLd}, 6144', f's_add_u32 s{sLd+2}, s{sLd}, 12288',
             f's_add_u32 s{sLx+1}, s{sLx}, {cfg.xps}', f's_add_u32 s{sLx+2}, s{sLx}, {2*cfg.xps}',
             f's_add_u32 s{sLdH}, s{sLd}, 4096', f's_add_u32 s{sLdH+1}, s{sLd+1}, 4096', f's_add_u32 s{sLdH+2}, s{sLd+2}, 4096']
    if cfg.rend:
        setup = [f's_add_u32 s{sT2}, s{sB}, {2*73728}', f's_cmp_eq_u32 s{sPass}, 0', f's_cselect_b64 s[{sHx}:{sHx+1}], 0, -1',
                 f's_cselect_b32 s{sSt}, s{sT2}, s{sB1}', f's_mov_b32 s{sT2}, {cfg.xps}', f's_cselect_b32 s{sT2}, 6144, s{sT2}',
                 f's_cselect_b32 s{sO}, s{sH}, s98', f's_cselect_b32 s{sO+1}, s{sH+1}, s99',
                 f's_add_u32 s{sSt+1}, s{sSt}, s{sT2}', f's_add_u32 s{sSt+2}, s{sSt+1}, s{sT2}',
                 f's_add_u32 s{sLd}, s{sB}, 73728', f's_cmp_eq_u32 s{sPass}, 2', f's_cselect_b32 s{sLd}, {hex(OOB)}, s{sLd}',
                 f's_add_u32 s{sLd+1}, s{sLd}, 6144', f's_add_u32 s{sLd+2}, s{sLd}, 12288',
                 f's_mov_b32 s{sLx}, s{sBX}', f's_add_u32 s{sLx+1}, s{sLx}, {cfg.xps}', f's_add_u32 s{sLx+2}, s{sLx}, {2*cfg.xps}']
        if cfg.hout:
            setup = [f's_add_u32 s{sT2}, s{sBX}, {2*cfg.xts}', f's_cmp_eq_u32 s{sPass}, 0', f's_cselect_b64 s[{sHx}:{sHx+1}], 0, -1',
                     f's_cselect_b32 s{sSt}, s{sT2}, s{sB1}',
                     f's_add_u32 s{sSt+1}, s{sSt}, {cfg.xps}', f's_add_u32 s{sSt+2}, s{sSt}, {2*cfg.xps}',
                     f's_add_u32 s{sLd}, s{sBX}, {cfg.xts}', f's_cmp_eq_u32 s{sPass}, 2', f's_cselect_b32 s{sLd}, {hex(OOB)}, s{sLd}',
                     f's_add_u32 s{sLd+1}, s{sLd}, {cfg.xps}', f's_add_u32 s{sLd+2}, s{sLd}, {2*cfg.xps}',
                     f's_mov_b32 s{sLx}, s{sBX}', f's_add_u32 s{sLx+1}, s{sLx}, {cfg.xps}', f's_add_u32 s{sLx+2}, s{sLx}, {2*cfg.xps}']
    moves = [f'v_accvgpr_mov_b32 a{H0+i}, a{PF0+i}' for i in range(72)]
    parts = []
    for J in range(12):
        DTAG[0] = f'd{J}'
        ea = {47: list(adv) if not cfg.static_ring else []}
        kw = dict(extra_at=ea, bar_wait=[f'WAITVM:d{(J-1)%12}'])
        pre = cstamp(cfg, J)
        if J == 0:
            for k_, op in enumerate(extras[0]): ea.setdefault(xp(0)[k_], []).extend(op)
            if cfg.rend:
                kw['mid'] = [f's_cmp_eq_u32 s{sPass}, 0', f's_cbranch_scc1 {L}_nomid', 'WAITVM:x'] + mid_block_rend(cfg) + [f'{L}_nomid:']
            else:
                kw['mid'] = ['WAITVM:x', f's_waitcnt vmcnt({cfg.mid_vm})' if not cfg.diag_nodma else 's_waitcnt vmcnt(0)'] + mid_block(cfg)
            pre = pre + setup
        elif J <= 10:
            if cfg.sub: pre = pre + sum(extras[J], [])
            else:
                for k_, op in enumerate(extras[J]): ea.setdefault(xp(J)[k_], []).extend(op)
        if J == 11:
            kw['extra_valu'] = {0: (13, 24, moves)}
            ea.setdefault(12, []).append('WAITVM:h')
        parts.append((pre, superstep(cfg, 2 * J, **kw)))
    DTAG[0] = 'dma'
    endp = cstamp(cfg, 12) + [f's_mov_b32 s{sB1}, s{sBX}', f's_add_u32 s{sB}, s{sB}, 73728', f's_add_u32 s{sBX}, s{sBX}, {cfg.xts}', f's_add_u32 s{sPass}, s{sPass}, 1']
    seq = []
    for J, (pre, body) in enumerate(parts): seq += pre + [f';BEGIN{J}'] + body + [f';END{J}']
    seq += endp
    res = resolve_vm(seq, seq, ('h',) if cfg.hskip else ())
    def part(J):
        i0 = res.index(f';BEGIN{J}'); i1 = res.index(f';END{J}')
        return res[i0 + 1:i1]
    strip = lambda l: [x.split(' ;@')[0] for x in l]
    bodies = [strip(part(J)) for J in range(12)]
    def barwait(b):
        i = b.index('s_barrier'); return i - 1, int(b[i - 1].split('(')[1][:-1])
    if cfg.diag_nodma: assert not cfg.sub
    if cfg.sub:
        ns = [barwait(bodies[J])[1] for J in range(1, 11)]
        nmin = min(ns)
        gen_body = list(bodies[2]); gen_body[barwait(gen_body)[0]] = f's_waitcnt vmcnt({nmin})'
        for J in range(1, 11):
            b = list(bodies[J]); b[barwait(b)[0]] = f's_waitcnt vmcnt({nmin})'
            assert b == gen_body, J
    P += ['.p2align 6', f'{L}_pass:']
    trace = []
    for J in range(12):
        pre = strip(parts[J][0])
        if 1 <= J <= 10 and cfg.sub:
            P += pre + [f's_call_b64 s[{sRet}:{sRet+1}], {L}_body']
            trace += [x for x in pre if not x.endswith(':')] + gen_body
        else:
            b = bodies[J]
            P += pre + b
            trace += [x for x in pre + b if not x.endswith(':')]
    P += endp; trace += endp
    P += [f's_cmp_lt_u32 s{sPass}, 3', f's_cbranch_scc1 {L}_pass']
    tail = ['s_waitcnt lgkmcnt(0)']
    g2 = g2_groups(24)
    for g in range(6): tail.append(f'ds_read_b128 {a(wbuf(g),4)}, v{vLds} offset:{g2[g][0]}')
    for g in range(12):
        if g % 2 == 0: tail.append(f's_waitcnt lgkmcnt({4 if g <= 6 else max(0, 10 - g)})')
        for m in g2[g][1]: tail.append(m(wbuf(g)))
        if g + 6 < 12: tail.append(f'ds_read_b128 {a(wbuf(g+6),4)}, v{vLds} offset:{g2[g+6][0]}')
    if cfg.rend:
        assert cfg.tail_lds
        tail += ['s_waitcnt vmcnt(12)']
        if not cfg.tail_inter:
            for p in range(3):
                for s_ in range(6): tail += resid_mfmas(p, s_)
    tail += ['s_nop 7']
    tail += tail_epilogue_lds(cfg, sB1) if cfg.tail_lds else tail_epilogue(cfg, sB1)
    P += stamp(cfg, 4)
    P += tail
    P += stamp(cfg, 5)
    sub = (['.p2align 6', f'{L}_body:'] + gen_body + [f's_setpc_b64 s[{sRet}:{sRet+1}]']) if cfg.sub else []
    return P, sub, trace + trace + tail

def gen(cfg, name='mlp_kernel'):
    MF2[0] = 'v_mfma_f32_16x16x32_f16' if cfg.f16 else MF
    P = []; TR = []
    def emit(lst, trace=True):
        P.extend(lst)
        if trace: TR.extend(lst)
    emit(['s_cmp_ge_u32 s2, 256', f's_cbranch_scc1 {name}_done',
          's_load_dwordx2 s[4:5], s[0:1], 0',
          's_load_dwordx2 s[6:7], s[0:1], 32',
          's_load_dwordx2 s[38:39], s[0:1], 48',
          'v_lshrrev_b32 v4, 6, v0', 'v_and_b32 v0, 63, v0', 's_nop 0', 'v_readfirstlane_b32 s40, v4'])
    emit(gelu_consts(cfg) + ident_setup())
    emit(['s_waitcnt lgkmcnt(0)',
        f's_add_u32 s{sW}, s38, {WS_W}', f's_addc_u32 s{sW+1}, s39, 0', f's_mov_b32 s{sW+2}, {W_BYTES}', f's_mov_b32 s{sW+3}, 0x20000',
        f's_add_u32 s{sH}, s38, {WS_H}', f's_addc_u32 s{sH+1}, s39, 0', f's_mov_b32 s{sH+2}, {IMG_BYTES}', f's_mov_b32 s{sH+3}, 0x20000',
        f's_mov_b32 s{sX}, s4', f's_mov_b32 s{sX+1}, s5', f's_mov_b32 s{sX+2}, {IMG_BYTES}', f's_mov_b32 s{sX+3}, 0x20000',
        f's_mov_b32 s{sO}, s6', f's_mov_b32 s{sO+1}, s7', f's_mov_b32 s{sO+2}, {IMG_BYTES}', f's_mov_b32 s{sO+3}, 0x20000',
        f's_mul_i32 s{sB}, s2, {36*6144}', f's_mul_i32 s41, s40, {3*6144}', f's_add_u32 s{sB}, s{sB}, s41', f's_mov_b32 s{sBX}, s{sB}',
        f's_mul_i32 s{sWoff}, s40, 12288'])
    if cfg.prof or cfg.prof2: P.extend([f's_mov_b32 s{i}, 0' for i in range(52, 92)])
    P.extend(stamp(cfg, 0))
    a1, a2, nafter = m_first_dma(cfg)
    emit(a1)
    for p in range(3):
        emit([f's_add_u32 s{sT2}, s{sB}, {6144*p}'])
        for s_ in range(6):
            if s_ == 4: emit([f's_add_u32 s{sT2}, s{sT2}, 4096'])
            emit([f'buffer_load_dwordx4 {a(H0 + 24*p + 4*s_, 4)}, v{vDma}, s[{sH}:{sH+3}], s{sT2} offen offset:{1024*(s_ % 4)}' + (' nt' if cfg.nt_h else '')])
    emit(a2)
    emit([f's_waitcnt vmcnt({nafter})', 's_barrier'])
    emit(x_first_loads(cfg))
    emit(m_g1_first(cfg))
    P.extend(stamp(cfg, 1))
    mp, sub, tr = m_main(cfg, name)
    P += mp; TR += tr
    P += dump_stamps(cfg, 6)
    P += dump_stamps2(cfg, 13)
    if cfg.allwg:
        P = P[:2] + ['s_memrealtime s[98:99]'] + P[2:]
        P += ['s_waitcnt vmcnt(0)', 's_memrealtime s[82:83]', 's_cmp_eq_u32 s40, 0', f's_cbranch_scc0 {name}_done',
              's_waitcnt lgkmcnt(0)', 's_lshl_b32 s3, s2, 3', f's_add_u32 s3, s3, {(200 << 20) + 4096}',
              'v_mov_b32 v4, s98', 'v_mov_b32 v5, s3', 's_nop 1', 'global_store_dword v5, v4, s[38:39]',
              'v_mov_b32 v4, s82', 's_nop 1', 'global_store_dword v5, v4, s[38:39] offset:4']
    P += [f'{name}_done:', 's_endpgm']
    P += sub
    return P, TR

def kd(name, lds=0):
    return f'''.amdhsa_kernel {name}
  .amdhsa_next_free_vgpr 512
  .amdhsa_next_free_sgpr 102
  .amdhsa_accum_offset 256
  .amdhsa_group_segment_fixed_size 0
  .amdhsa_kernarg_size 56
  .amdhsa_user_sgpr_count 2
  .amdhsa_user_sgpr_kernarg_segment_ptr 1
  .amdhsa_system_sgpr_workgroup_id_x 1
  .amdhsa_float_denorm_mode_32 3
.end_amdhsa_kernel
'''
if __name__ == '__main__':
    import asmlib
    P, TR = gen(Cfg)
    asmlib.check(TR, 'k2')
    print(len(P), 'lines', 'alpha', ALPHA, 'c', CC)
```

```python
import k2
from k2 import f2u, ALPHA, WS_W, WS_H, W_BYTES, IMG_BYTES

REC = 544
NBLK = 99
SLAB = NBLK * REC
YB = 2 * SLAB
LDS_BYTES = YB + 2 * 24576
TAPS, ROWS = 400, 3616
DWB = YB

vO16 = 0
vP = 1
vL16 = 2
vZ = 3
vRel = 4
vLw, vLw3, vRd, vY0, vR0, vR1, vA, vB = 8, 9, 10, 11, 12, 13, 14, 15
STS = (16, 80)
BLK = 80
ACC = 120
TMP = 136
Y0 = 144
VO = 216
HOLD = 0
CW = 144
sM, sH, sX, sD = 8, 12, 16, 20
sBase, sIMG, sT, sT2, sSelL, sDS, sDY, sOutN, sTI = 28, 30, 31, 32, 33, 34, 35, 36, 37
sWave, sSelH, sPkF, sPkf = 40, 41, 42, 43
sMaskL, sMaskR = 44, 60
sSt3 = 76
sOnes, sAl, sEps, sInv, sOut, sDR = 92, 93, 94, 95, 96, 97
sDbg = 4
sMk3 = 100
NPACK = 576
NPKWG = 72
STAMP0 = 82

def v(b, n=1): return f'v{b}' if n == 1 else f'v[{b}:{b+n-1}]'
def a(b, n=1): return f'a{b}' if n == 1 else f'a[{b}:{b+n-1}]'
def Wt(k, R, C): return CW + 32 * k + 2 * (4 * R + C)
def blk(row, bc): return BLK + 10 * (row % 4) + 2 * bc
def Y(p, s): return Y0 + 24 * p + 4 * s
M4 = 'v_mfma_f32_4x4x4_16b_bf16'
FULL = (1 << 64) - 1

class Cfg(k2.Cfg):
    f16 = True
    nt_h = True; nt_x = True; nt_o = True
    cx_nt = False
    st_flags = ' nt'
    xps = 147456
    xts = 49152
    light = False
    light2 = False
    light3 = False
    exact_vm = True
    touch = False
    l2tile = 0
    inter = False
    ewarm = False
    otouch = 0
    otouch_on = False
    rend = False
    prog = False
    defer_y = False
    even = None
    allwg = False
    force_fb = False
    ln_pk = True
    light4 = False
    l4sel = '0246'
    spread = 0
    diag_nox = False
    htouch = False
    diag_nost = False
    l3sel = [0, 1, 2, 3, 4]
    early = True
    hskip = True
    spin = 1 << 14
    nosync = False

def setexec(out, cur, val):
    if cur[0] != val:
        out.append(f's_mov_b32 exec_lo, {hex(val & 0xffffffff)}')
        out.append(f's_mov_b32 exec_hi, {hex(val >> 32)}')
        cur[0] = val

def weights_gather(vb):
    out = []
    def reads(k):
        o = []
        for R in range(4):
            for dy in range(2):
                for c in range(4):
                    i = (R * 2 + dy) * 4 + c
                    for dx in range(2):
                        rho, gam = 2 * R + dy, 2 * c + dx
                        o.append(f'ds_read_u16 v{Y0+2*i+dx}, v{vb} offset:{(rho+1)*ROWS + (gam+1)*TAPS + 128*k}')
        return o
    for k in range(3):
        rd = reads(k)
        out += rd[:32] + rd[32:] + ['s_waitcnt lgkmcnt(15)']
        for half in range(2):
            if half == 1: out.append('s_waitcnt lgkmcnt(0)')
            for i in range(16 * half, 16 * half + 16):
                if half == 0 and i == 8: out.append('s_waitcnt lgkmcnt(15)')
                R, dy, c = i // 8, (i // 4) % 2, i % 4
                out.append(f'v_lshl_or_b32 v{Y0+2*i}, v{Y0+2*i+1}, 16, v{Y0+2*i}')
                out.append(f'v_accvgpr_write_b32 a{Wt(k,R,c)+dy}, v{Y0+2*i}')
    return out

def vo(r, dy, dx): return VO + 4 * r + 2 * dy + dx
def tile_offsets():
    out = []
    for dx in range(2):
        for r in range(4):
            l, rr = sMaskL + 2 * (2 * r + dx), sMaskR + 2 * (2 * r + dx)
            out += [f's_mov_b64 s[24:25], -1' if r < 3 else f's_or_b64 s[24:25], s[{l}:{l+1}], s[{rr}:{rr+1}]',
                    f's_cmp_eq_u32 s27, 0', f's_cselect_b64 s[24:25], s[{l}:{l+1}], s[24:25]',
                    f's_cmp_eq_u32 s27, 23', f's_cselect_b64 s[24:25], s[{rr}:{rr+1}], s[24:25]']
            for dy in range(2):
                t = vo(r, dy, dx)
                out += [f's_add_u32 s26, s{sBase}, {147456*dy + 384*dx}', f'v_add_u32 v{t}, s26, v{vRel+r}', f'v_cmp_gt_u32 vcc, s{sIMG}, v{t}',
                        f's_and_b64 vcc, vcc, s[24:25]', f'v_cndmask_b32 v{t}, 2.0, v{t}, vcc']
    return out
def load_items(cfg, stage, sset):
    nt = ' nt' if cfg.cx_nt else ''
    its = []
    for r in range(4):
        for dy in range(2):
            for dx in range(2):
                if r < 3: its.append([f'buffer_load_dwordx4 {v(STS[sset] + 16 * r + 4 * (2 * dy + dx), 4)}, v{vo(r,dy,dx)}, s[{sX}:{sX+3}], 0 offen offset:{128*stage}{nt} ;@l{r}'])
                else: its.append([f'buffer_load_dword v{STS[sset] + 48 + 2 * dy + dx}, v{vo(r,dy,dx)}, s[{sX}:{sX+3}], 0 offen offset:{128*stage}{nt} ;@l{r}'])
    return its
def store_items(cfg, k):
    if cfg.rend: return []
    its = []
    for s, sb in ((k, sSt3), (3 + k, sSt3 + 3)):
        for p in range(3):
            its.append([f'buffer_store_dwordx4 {a(HOLD + 24*p + 4*s, 4)}, v{vL16}, s[{sH}:{sH+3}], s{sb+p} offen offset:{1024*(s % 3)}{cfg.st_flags} ;@s'])
    return [its[0], its[3], its[1], its[4], its[2], its[5]]

def transpose_unit(r, d, sset):
    t = TMP
    if r == 3:
        if d > 0: return []
        L = lambda dy, dx: STS[sset] + 48 + 2 * dy + dx
        return [f'v_perm_b32 v{t}, v{L(0,1)}, v{L(0,0)}, s{sSelL}', f'v_perm_b32 v{t+1}, v{L(1,1)}, v{L(1,0)}, s{sSelL}',
                f'v_perm_b32 v{t+2}, v{L(0,1)}, v{L(0,0)}, s{sSelH}', f'v_perm_b32 v{t+3}, v{L(1,1)}, v{L(1,0)}, s{sSelH}',
                f's_mov_b64 exec, s[{sMk3}:{sMk3+1}]', f'ds_write_b128 v{vLw3}, {v(t,4)}', 's_mov_b64 exec, -1']
    L = lambda dy, dx: STS[sset] + 16 * r + 4 * (2 * dy + dx) + d
    return [f'v_xad_u32 v{vA}, v{vO16}, {16*d}, v{vLw}',
            f'v_perm_b32 v{t}, v{L(0,1)}, v{L(0,0)}, s{sSelL}',
            f'v_perm_b32 v{t+1}, v{L(1,1)}, v{L(1,0)}, s{sSelL}',
            f'v_perm_b32 v{t+2}, v{L(0,1)}, v{L(0,0)}, s{sSelH}',
            f'v_perm_b32 v{t+3}, v{L(1,1)}, v{L(1,0)}, s{sSelH}',
            f'ds_write_b128 v{vA}, {v(t,4)} offset:{32 * REC * r + 128*d}']

def yout(py):
    out = []
    a0 = ACC + 8 * (py & 1); a1 = a0 + 4
    t = TMP + 4
    for oy in range(2):
        out.append(f'v_cvt_pk_bf16_f32 v{t+2*oy}, v{a0+2*oy}, v{a0+2*oy+1}')
        out.append(f'v_cvt_pk_bf16_f32 v{t+2*oy+1}, v{a1+2*oy}, v{a1+2*oy+1}')
        out.append(f'ds_write_b64 v{vY0}, {v(t+2*oy,2)} offset:{(2*py+oy)*2048}')
    return out

def row_reads(br):
    return [f'ds_read_b64 {v(blk(br,bc),2)}, v{vRd} offset:{(br*11+bc)*REC}' for bc in range(5)]

SPREAD = [3]
INTER = [False]
PROG = [False]
DEFPOS = [66]
sl2x = lambda n: (n // 16, n % 16)
EVEN = [None]
EVENS = {
 'a': dict(u0=[4, 12, 18], l0=[22, 24, 26, 28], u1=[30, 36, 41, 46], l1=[50, 52, 54, 56], u2=[58, 62, 67, 72], l2=[75, 77, 79, 81], u3=83, l3=[86, 87, 88, 89], s=[14, 33, 44, 65, 70, 91]),
 'b': dict(u0=[1, 5, 13], l0=[16, 17, 22, 24], u1=[28, 30, 32, 38], l1=[44, 46, 48, 49], u2=[54, 60, 62, 64], l2=[70, 74, 76, 78], u3=80, l3=[82, 83, 84, 85], s=[14, 40, 66, 87, 89, 91]),
}
def yin(k):
    o = []
    for p in range(3):
        for sp in range(2):
            for h in range(2):
                o.append(f'ds_read_b64_tr_b16 {v(Y(p,2*k+sp)+2*h,2)}, v{vR0 if h == 0 else vR1} offset:{p*2048 + sp*1024}')
    return o, [f'v_add_u32 v{vR0}, s{sDR}, v{vR0}', f'v_add_u32 v{vR1}, s{sDR}, v{vR1}', f's_sub_u32 s{sDR}, 0, s{sDR}']

def conv_stage(k, sset, items, stores, transp=True, xtra=(), defer=None):
    out = []
    fifo = []
    issued = {}
    def emit_lds(t, tag):
        out.append(t); fifo.append(tag); issued[tag] = issued.get(tag, 0) + 1
    def need(tag):
        assert issued.get(tag, 0) == 5, ('row not fully requested before use', tag)
        idx = [i for i, x in enumerate(fifo) if x == tag]
        if idx:
            n = len(fifo) - 1 - idx[-1]
            out.append(f's_waitcnt lgkmcnt({min(n,15)})')
            del fifo[:idx[-1] + 1]
    tagof = lambda t: ('w' if t.startswith('ds_') else None)
    NUP = 2 if PROG[0] else 4
    for br in range(NUP):
        for t in row_reads(br): emit_lds(t, ('row', br))
    if transp:
        out.append('WAITL:0')
        for t in transpose_unit(0, 0, sset):
            if tagof(t): emit_lds(t, 'w')
            else: out.append(t)
    fill = {(py, i): [] for py in range(6) for i in range(16)}
    for br in range(NUP, 4):
        for i, t in enumerate(row_reads(br)): fill[(0, 3 * (br - NUP) + i // 2)].append((t, ('row', br)))
    if defer is not None:
        rd, tg = yin(defer)
        for i, t in enumerate(rd): fill[sl2x(DEFPOS[0] + 2 * i)].append((t, 'w'))
        for t in tg: fill[sl2x(DEFPOS[0] + 2 * len(rd))].append((t, None))
    for py in range(6):
        if py > 0:
            for t, p_ in zip(yout(py - 1), [2, 2, 3, 4, 4, 5]): fill[(py, p_)].append((t, tagof(t)))
        if py + 4 <= 8:
            for i, t in enumerate(row_reads(py + 4)): fill[(py, 7 + i)].append((t, ('row', py + 4)))
    sl2 = lambda n: (n // 16, n % 16)
    if EVEN[0]:
        upos = {0: [None] + [sl2(n) for n in EVEN[0]['u0']], 1: [sl2(n) for n in EVEN[0]['u1']], 2: [sl2(n) for n in EVEN[0]['u2']], 3: [sl2(EVEN[0]['u3'])] * 4}
        lpos = {r: [sl2(n) for n in EVEN[0][f'l{r}']] for r in range(4)}
        spos = [sl2(n) for n in EVEN[0]['s']]
    else:
        upos = {0: [None, (0, 1), (0, 3), (0, 5)], 1: [(1, 6), (1, 8), (1, 12), (1, 14)], 2: [(2, 6), (2, 8), (2, 12), (2, 14)], 3: [(3, 6), (3, 8), (3, 12), (3, 14)]}
        lpos = {0: [(0, 12), (0, 14), (1, 0), (1, 1)], 1: [(1, 15), (2, 0), (2, 1), (2, 5)], 2: [(2, 15), (3, 0), (3, 1), (3, 5)], 3: [(3, 15), (4, 0), (4, 1), (4, 6)]}
        spos = [(0, 7), (0, 10), (4, 8), (4, 12), (5, 0), (5, 6)]
    for r in range(4):
        if transp:
            if r > 0: fill[upos[r][0]].append((f'WAITL:{r}', None))
            for d in range(4):
                if upos[r][d] is None: continue
                for t in transpose_unit(r, d, sset): fill[upos[r][d]].append((t, tagof(t)))
        for i in range(4):
            if 4 * r + i < len(items):
                for t in items[4 * r + i]: fill[lpos[r][i]].append((t, None))
    for it, pos in zip(stores, spos):
        for t in it: fill[pos].append((t, None))
    for i, it in enumerate(xtra):
        sl = 2 + 6 * i
        for t in it: fill[(sl // 16, sl % 16)].append((t, None))
    seq = []
    for py in range(6):
        for idx in range(16):
            grp = []
            for t, tag in fill[(py, idx)]:
                grp.append((t, tag))
                glue = t.startswith(('s_mov_b64 exec, s[', 's_add_u32 m0', 's_nop', 'WAITL', 'v_cmp', 's_and_b64')) or (t.startswith('s_add_u32 s') )
                if t.startswith('ds_write_b128') and len(grp) >= 2 and grp[-2][0].startswith('s_mov_b64 exec, s['): glue = True
                if not glue:
                    seq.append((16 * py + idx, grp)); grp = []
            if grp: seq.append((16 * py + idx, grp))
    qi = 0
    ismem = lambda t: t.startswith(('ds_', 'buffer_'))
    isvalu = lambda t: t.startswith('v_') and not t.startswith('v_mfma')
    real = lambda: [t for t in out if not t.startswith(';')]
    lastpos = {}
    nis = [0]
    def put(t, tag=None):
        if tag: emit_lds(t, tag)
        else: out.append(t)
        if not t.startswith(';'): nis[0] += 1
    def emit_group():
        nonlocal qi
        for t, tag in seq[qi][1]: put(t, tag)
        qi += 1
    def first_real(grp):
        for t, _ in grp:
            if not t.startswith(('s_', 'WAITL')): return t
        return grp[0][0]
    for py in range(6):
        for idx in range(16):
            R, C = divmod(idx, 4)
            sl = 16 * py + idx
            if idx == 0 and py in (0, 2, 4): out.append(f';MARK{py}')
            if C == 0:
                n0 = len(out); need(('row', py + R)); nis[0] += len(out) - n0
            for px in range(2):
                aa = ACC + 8 * (py & 1) + 4 * px
                c = '0' if idx == 0 else v(aa, 4)
                if idx == 0 and py >= 2:
                    pendcvt = [t for _, g in seq[qi:] for t, _ in g if t.startswith('v_cvt_pk_bf16') and f'v{aa},' in t + ',' and False]
                    assert not any(t.startswith('v_cvt_pk_bf16') and any(f' v{aa+j},' in t or t.endswith(f' v{aa+j}') for j in range(4)) and e <= 16 * (py - 1) + 15 for e, g in seq[qi:] for t, _ in g), 'yout too late'
                if idx > 0 and nis[0] - lastpos[aa] - 1 < 2: put('s_nop 0')
                if idx > 0 and nis[0] - lastpos[aa] - 1 < 2: put('s_nop 0')
                lastpos[aa] = nis[0]
                put(f'{M4} {v(aa,4)}, {a(Wt(k,R,C),2)}, {v(blk(py+R, px+C),2)}, {c}')
                if not INTER[0] and px == 0: continue
                prev_valu = False
                if qi < len(seq) and seq[qi][0] <= sl:
                    g0 = seq[qi][1]; emit_group(); prev_valu = isvalu(g0[-1][0])
                if px == 1:
                    while qi < len(seq) and seq[qi][0] <= sl and (seq[qi][0] <= sl - SPREAD[0] or sl == 95):
                        late = seq[qi][0] <= sl - SPREAD[0] - 3 or sl == 95
                        if INTER[0] and prev_valu and ismem(first_real(seq[qi][1])) and not late: break
                        g0 = seq[qi][1]; emit_group(); prev_valu = isvalu(g0[-1][0])
    assert qi == len(seq)
    out += [';MARK6', 's_nop 4'] + yout(5)
    return out

def resolve_l(stages):
    seq = []
    for si in range(3):
        for st in stages: seq.append(st)
    fifo = []
    need = {r: [] for r in range(4)}
    for si, st in enumerate(seq):
        for t in st:
            if t.startswith('WAITL:'):
                r = int(t[6:])
                if si >= 1:
                    idx = max(i for i, x in enumerate(fifo) if x == (si - 1, f'l{r}'))
                    need[r].append(len(fifo) - 1 - idx)
            elif ';@' in t: fifo.append((si, t.split(';@')[1].strip()))
    return {r: min(x) for r, x in need.items()}

def ln_block(cfg):
    NP = 3
    out = []
    t = ACC
    s1 = [t + p for p in range(NP)]; s2 = [t + 3 + p for p in range(NP)]
    for i in range(24):
        for p in range(NP):
            r = Y0 + 24 * p + i
            c1 = '0' if i == 0 else f'v{s1[p]}'; c2 = '0' if i == 0 else f'v{s2[p]}'
            out.append(f'v_dot2_f32_bf16 v{s1[p]}, v{r}, s{sOnes}, {c1}')
            out.append(f'v_dot2_f32_bf16 v{s2[p]}, v{r}, v{r}, {c2}')
    out.append('s_nop 2')
    allr = s1 + s2
    tm = [t + 12 + i for i in range(len(allr))]
    for sw in ('v_permlane16_swap_b32', 'v_permlane32_swap_b32'):
        for r, q in zip(allr, tm): out.append(f'v_mov_b32 v{q}, v{r}')
        out.append('s_nop 1')
        for r, q in zip(allr, tm): out.append(f'{sw} v{q}, v{r}')
        out.append('s_nop 1')
        for r, q in zip(allr, tm): out.append(f'v_add_f32 v{r}, v{r}, v{q}')
    rs = [t + 6 + 2 * p for p in range(NP)]; nb = [t + 18 + 2 * p for p in range(NP)]
    for p in range(NP): out.append(f'v_mul_f32 v{s1[p]}, s{sInv}, v{s1[p]}')
    for p in range(NP): out.append(f'v_mul_f32 v{s2[p]}, s{sInv}, v{s2[p]}')
    for p in range(NP): out.append(f'v_fma_f32 v{s2[p]}, -v{s1[p]}, v{s1[p]}, v{s2[p]}')
    for p in range(NP): out.append(f'v_max_f32 v{s2[p]}, 0, v{s2[p]}')
    for p in range(NP): out.append(f'v_add_f32 v{s2[p]}, s{sEps}, v{s2[p]}')
    for p in range(NP): out.append(f'v_rsq_f32 v{rs[p]}, v{s2[p]}')
    out.append('s_nop 0')
    for p in range(NP): out.append(f'v_mul_f32 v{rs[p]}, s{sAl}, v{rs[p]}')
    for p in range(NP): out.append(f'v_mul_f32 v{nb[p]}, -v{s1[p]}, v{rs[p]}')
    k = 0
    for p in range(NP):
        for s in range(6):
            for d in range(4):
                r = Y(p, s) + d
                x0 = t + 12 + 2 * (k % 3); x1 = x0 + 1; k += 1
                out.append(f'v_lshlrev_b32 v{x0}, 16, v{r}')
                out.append(f'v_and_b32 v{x1}, 0xffff0000, v{r}')
                if cfg.ln_pk:
                    out.append(f'v_pk_fma_f32 v[{x0}:{x1}], v[{x0}:{x1}], v[{rs[p]}:{rs[p]+1}], v[{nb[p]}:{nb[p]+1}] op_sel_hi:[1,0,0]')
                else:
                    out.append(f'v_fma_f32 v{x0}, v{x0}, v{rs[p]}, v{nb[p]}')
                    out.append(f'v_fma_f32 v{x1}, v{x1}, v{rs[p]}, v{nb[p]}')
                out.append(f'v_cvt_pk_bf16_f32 v{r}, v{x0}, v{x1}')
    return out

def pack_loads(lab, dst, t, lane):
    out = [f's_mul_hi_u32 s46, s{sPkF}, {(1 << 32) // 24 + 1}',
           f's_mul_i32 s47, s46, 24', f's_sub_u32 s{sPkf}, s{sPkF}, s47',
           f'v_and_b32 v{t}, 15, v{lane}', f'v_lshrrev_b32 v{t+1}, 4, v{lane}',
           f's_cmp_lt_u32 s{sPkf}, 12', f's_cbranch_scc0 {lab}_pk2']
    out += [f's_add_u32 s48, s46, 1', f's_cmp_eq_u32 s48, 24', f's_cselect_b32 s48, 0, s48',
            f's_lshr_b32 s49, s{sPkf}, 1', f's_and_b32 s50, s{sPkf}, 1',
            f's_lshl_b32 s48, s48, 6', f's_lshl_b32 s50, s50, 5', f's_add_u32 s48, s48, s50',
            f's_mul_i32 s49, s49, {32*1536}', f's_add_u32 s48, s48, s49',
            f'v_mul_u32_u24 v{t+2}, {8*1536}, v{t+1}', f'v_lshl_add_u32 v{t+2}, v{t}, 1, v{t+2}',
            f's_mov_b32 s{sM}, s52', f's_mov_b32 s{sM+1}, s53', f's_mov_b32 s{sM+2}, {192*768*2}', f's_mov_b32 s{sM+3}, 0x20000']
    for e in range(8):
        out.append(f's_add_u32 s49, s48, {e*1536}')
        out.append(f'buffer_load_ushort v{dst+e}, v{t+2}, s[{sM}:{sM+3}], s49 offen')
    out += [f's_branch {lab}_pk3', f'{lab}_pk2:']
    out += [f's_add_u32 s48, s46, 23', f's_cmp_ge_u32 s48, 24', f's_cselect_b32 s49, 24, 0', f's_sub_u32 s48, s48, s49',
            f's_sub_u32 s49, s{sPkf}, 12', f's_lshr_b32 s50, s49, 1', f's_and_b32 s49, s49, 1',
            f's_mul_i32 s48, s48, {32*384}', f's_lshl_b32 s50, s50, 6', f's_lshl_b32 s49, s49, 3',
            f's_add_u32 s48, s48, s50', f's_add_u32 s48, s48, s49',
            f'v_lshrrev_b32 v{t+3}, 2, v{t}', f'v_lshlrev_b32 v{t+3}, 4, v{t+3}',
            f'v_and_b32 v{t+4}, 3, v{t}', f'v_lshl_add_u32 v{t+3}, v{t+4}, 1, v{t+3}',
            f'v_mul_u32_u24 v{t+2}, {4*384}, v{t+1}', f'v_add_u32 v{t+2}, v{t+2}, v{t+3}',
            f's_mov_b32 s{sM}, s54', f's_mov_b32 s{sM+1}, s55', f's_mov_b32 s{sM+2}, {192*768*2}', f's_mov_b32 s{sM+3}, 0x20000']
    for e in range(8):
        out.append(f's_add_u32 s49, s48, {(16*(e>>2) + (e&3))*384}')
        out.append(f'buffer_load_ushort v{dst+e}, v{t+2}, s[{sM}:{sM+3}], s49 offen')
    out += [f'{lab}_pk3:']
    return out

def pack_store(lab, cfg, src, dst):
    out = []
    for d in range(4): out.append(f'v_lshl_or_b32 v{dst+d}, v{src+2*d+1}, 16, v{src+2*d}')
    if cfg.f16:
        out += [f's_cmp_lt_u32 s{sPkf}, 12', f's_cbranch_scc1 {lab}_pk5']
        for e in range(8): out.append(f'v_lshlrev_b32 v{src+e}, 16, v{src+e}')
        for d in range(4): out.append(f'v_cvt_pk_f16_f32 v{dst+d}, v{src+2*d}, v{src+2*d+1}')
        out.append(f'{lab}_pk5:')
    out += [f's_add_u32 s{sM}, s38, {WS_W}', f's_addc_u32 s{sM+1}, s39, 0', f's_mov_b32 s{sM+2}, {W_BYTES}', f's_mov_b32 s{sM+3}, 0x20000',
            f's_lshl_b32 s3, s{sPkF}, 10',
            f'buffer_store_dwordx4 {v(dst,4)}, v{vL16}, s[{sM}:{sM+3}], s3 offen sc1']
    return out

def gen(cfg, name='fused_kernel'):
    k2.MF2[0] = 'v_mfma_f32_16x16x32_f16' if cfg.f16 else k2.MF
    SPREAD[0] = cfg.spread
    INTER[0] = cfg.inter
    PROG[0] = cfg.prog
    EVEN[0] = EVENS.get(cfg.even)
    k2.SNAKE[0] = cfg.snake
    P = []; TR = []
    n3 = [0]
    def st3():
        if cfg.light3 and n3[0] in cfg.l3sel:
            j = cfg.l3sel.index(n3[0])
            P.extend([f's_memtime s[{82+2*j}:{83+2*j}]'])
        n3[0] += 1
        if False:
            P.extend(['s_memtime s[102:103]' if False else 's_memtime s[98:99]', 's_waitcnt lgkmcnt(0)', f'v_writelane_b32 v253, s98, {n3[0]}']); n3[0] += 1
    def emit(l, tr=True):
        P.extend(l)
        if tr: TR.extend([x for x in l if not x.endswith(':')])
    emit(['s_cmp_ge_u32 s2, 256', f's_cbranch_scc1 {name}_done'])
    if cfg.allwg: P += ['s_memrealtime s[82:83]']
    if cfg.light: P += ['s_memtime s[6:7]', 's_memrealtime s[8:9]', 's_waitcnt lgkmcnt(0)', 's_mov_b32 s82, s6', 's_mov_b32 s83, s8']
    st3()
    emit(['s_load_dwordx4 s[4:7], s[0:1], 0',
          's_load_dwordx2 s[38:39], s[0:1], 48',
          's_load_dwordx4 s[52:55], s[0:1], 16',
          'v_lshrrev_b32 v1, 6, v0', 'v_and_b32 v0, 63, v0', 's_nop 0',
          f'v_readfirstlane_b32 s{sWave}, v1',
          f's_mov_b32 s{sIMG}, {IMG_BYTES}', f's_mov_b32 s{sOnes}, 0x3f803f80',
          f's_mov_b32 s{sSelL}, 0x05040100', f's_mov_b32 s{sSelH}, 0x07060302',
          f's_mov_b32 s{sAl}, {hex(f2u(ALPHA))}', f's_mov_b32 s{sEps}, {hex(f2u(1e-5))}', f's_mov_b32 s{sInv}, {hex(f2u(1.0/192))}',
          f'v_lshlrev_b32 v{vL16}, 4, v0', f'v_mov_b32 v{vZ}, 0',
          's_waitcnt lgkmcnt(0)',
          f's_mov_b32 s{sX}, s4', f's_mov_b32 s{sX+1}, s5', f's_mov_b32 s{sX+2}, {IMG_BYTES}', f's_mov_b32 s{sX+3}, 0x20000',
          f's_mov_b32 s{sD}, s6', f's_mov_b32 s{sD+1}, s7', f's_mov_b32 s{sD+2}, {49*384}', f's_mov_b32 s{sD+3}, 0x20000',
          f's_add_u32 s{sH}, s38, {WS_H}', f's_addc_u32 s{sH+1}, s39, 0', f's_mov_b32 s{sH+2}, {IMG_BYTES}', f's_mov_b32 s{sH+3}, 0x20000',
          f's_load_dwordx2 s[{sDbg}:{sDbg+1}], s[0:1], 40', f's_mov_b32 s{sTI}, 0'])
    st3()
    t = Y0
    c = []
    for j in range(4):
        c += [f'v_add_u32 v{t}, {64*j}, v0', f'v_mul_u32_u24 v{t+1}, 2622, v{t}', f'v_lshrrev_b32 v{t+1}, 16, v{t+1}',
              f'v_mul_u32_u24 v{t+2}, 25, v{t+1}', f'v_sub_u32 v{t+2}, v{t}, v{t+2}',
              f'v_subrev_u32 v{t+1}, 1, v{t+1}', f'v_cmp_gt_u32 vcc, 7, v{t+1}', f'v_cmp_gt_u32 s[44:45], 24, v{t+2}',
              f'v_mul_u32_u24 v{t+1}, 384, v{t+1}', f'v_lshl_add_u32 v{t+1}, v{t+2}, 4, v{t+1}', f's_and_b64 vcc, vcc, s[44:45]',
              f'v_subrev_u32 v{t+1}, {1024*j}, v{t+1}' if False else 's_nop 0',
              f'v_cndmask_b32 v{t+8+j}, 2.0, v{t+1}, vcc']
    emit(c)
    c = []
    for m in range(3):
        blk_ = [f's_add_u32 s{sT}, s{sWave}, {4*m}', f's_sub_u32 s{sT2}, s{sT}, 1', f's_cmp_lt_u32 s{sT2}, 7', f's_mul_i32 s{sT2}, s{sT2}, {7*384}',
                f's_cselect_b32 s{sT2}, s{sT2}, 0x70000000', f's_mul_i32 s{sT}, s{sT}, {ROWS}', f's_add_u32 s{sT}, s{sT}, {DWB}']
        for j in range(4):
            blk_ += [f's_add_u32 m0, s{sT}, {1024*j}', 's_nop 0']
            if j == 3: blk_ += ['s_mov_b32 exec_hi, 3']
            blk_ += [f'buffer_load_dwordx4 v{t+8+j}, s[{sD}:{sD+3}], s{sT2} offen lds']
            if j == 3: blk_ += ['s_mov_b32 exec_hi, -1']
        if m < 2: c += blk_
        else: c += [f's_cmp_eq_u32 s{sWave}, 0', f's_cbranch_scc0 {name}_nor8'] + blk_ + [f'{name}_nor8:']
    emit(c)
    pk = [f's_mov_b32 s{sPkF}, -1', f's_cmp_lt_u32 s2, {NPKWG if not cfg.force_fb else 0}', f's_cbranch_scc0 {name}_nopk',
          f's_lshl_b32 s44, s2, 3', f's_lshl_b32 s45, s{sWave}, 1', f's_add_u32 s{sPkF}, s44, s45']
    pk += pack_loads(f'{name}_a', Y0 + 32, ACC, 0) + [f's_add_u32 s{sPkF}, s{sPkF}, 1'] + pack_loads(f'{name}_a2', Y0 + 41, ACC, 0) + [f'{name}_nopk:']
    st3()
    if not cfg.nosync: P += pk
    st3()
    c = [f'v_and_b32 v{t}, 7, v0', f'v_lshrrev_b32 v{t+1}, 3, v0']
    for r in range(4):
        if r < 3: c += [f's_lshl_b32 s{sT}, s{sWave}, 3', f's_add_u32 s{sT}, s{sT}, {32*r}', f'v_add_u32 v{t+2}, s{sT}, v{t+1}']
        else:
            c += [f'v_add_u32 v{t+2}, 96, v{t+1}', f'v_cmp_gt_u32 s[{sMk3}:{sMk3+1}], 24, v0']
        c += [f'v_mul_u32_u24 v{t+3}, 745, v{t+2}', f'v_lshrrev_b32 v{t+3}, 13, v{t+3}',
              f'v_mul_u32_u24 v{t+4}, 11, v{t+3}', f'v_sub_u32 v{t+4}, v{t+2}, v{t+4}',
              f'v_mul_u32_u24 v{t+5}, {2*384}, v{t+3}', f'v_lshl_add_u32 v{t+5}, v{t+4}, 1, v{t+5}',
              f'v_mul_u32_u24 v{t+5}, 384, v{t+5}',
              f'v_lshl_add_u32 v{vRel+r}, v{t}, 4, v{t+5}']
        for dx in range(2):
            mL = sMaskL + 2 * (2 * r + dx); mR = sMaskR + 2 * (2 * r + dx)
            c += [f'v_lshl_add_u32 v{t+6}, v{t+4}, 1, {dx}',
                  f'v_cmp_lt_u32 s[{mL}:{mL+1}], 2, v{t+6}', f'v_cmp_gt_u32 s[{mR}:{mR+1}], 19, v{t+6}']
            if r == 3:
                c += ['s_nop 1', f's_and_b64 s[{mL}:{mL+1}], s[{mL}:{mL+1}], s[{sMk3}:{sMk3+1}]', f's_and_b64 s[{mR}:{mR+1}], s[{mR}:{mR+1}], s[{sMk3}:{sMk3+1}]']
        if r == 0: c += [f'v_mul_u32_u24 v{vLw}, {REC}, v{t+2}']
        if r == 3:
            c += [f's_lshl_b32 s{sT}, s{sWave}, 2', f'v_add_u32 v{vRel+3}, s{sT}, v{vRel+3}',
                  f'v_cndmask_b32 v{vRel+3}, 2.0, v{vRel+3}, s[{sMk3}:{sMk3+1}]',
                  f'v_mul_u32_u24 v{vLw3}, {REC}, v{t+2}', f'v_xor_b32 v{t+6}, s{sWave}, v{t}', f'v_lshl_add_u32 v{vLw3}, v{t+6}, 4, v{vLw3}',
                  f's_lshl_b32 s{sT}, s{sWave}, 7', f'v_add_u32 v{vLw3}, s{sT}, v{vLw3}']
    c += [f'v_lshrrev_b32 v{t}, 2, v0', f'v_and_b32 v{t+1}, 3, v0', f'v_lshrrev_b32 v{t+2}, 3, v{t}',
          f's_lshl_b32 s{sT}, s{sWave}, 1',
          f'v_add_u32 v{t+2}, s{sT}, v{t+2}', f'v_bfe_u32 v{t+3}, v{t}, 1, 2', f'v_xor_b32 v{t+4}, v{t+2}, v{t+3}',
          f'v_lshlrev_b32 v{t+4}, 1, v{t+4}', f'v_lshl_add_u32 v{t+4}, v{t+3}, 4, v{t+4}',
          f'v_and_b32 v{t+5}, 1, v{t}', f'v_add_u32 v{t+4}, v{t+4}, v{t+5}', f'v_lshlrev_b32 v{t+4}, 3, v{t+4}',
          f'v_mul_u32_u24 v{t+5}, {2*REC}, v{t+1}', f'v_add_u32 v{vRd}, v{t+4}, v{t+5}']
    c += [f's_lshl_b32 s{sT2}, s{sWave}, 4', f'v_add_u32 v{t+7}, s{sT2}, v{t}',
          f'v_bfe_u32 v{t+8}, v{t+7}, 3, 1', f'v_lshlrev_b32 v{t+8}, 2, v{t+8}', f'v_xor_b32 v{t+7}, v{t+7}, v{t+8}',
          f'v_lshlrev_b32 v{t+7}, 5, v{t+7}', f'v_lshl_add_u32 v{t+7}, v{t+1}, 3, v{t+7}', f'v_add_u32 v{vY0}, {YB}, v{t+7}']
    c += [f'v_lshrrev_b32 v{t}, 4, v0', f'v_bfe_u32 v{t+1}, v0, 2, 2', f'v_and_b32 v{t+2}, 3, v0',
          f's_mul_i32 s{sT}, s{sWave}, {3*2048}', f's_add_u32 s{sT}, s{sT}, {YB}']
    for h, vr in ((0, vR0), (1, vR1)):
        c += [f'v_lshl_add_u32 v{t+3}, v{t}, 3, v{t+1}', f'v_add_u32 v{t+3}, {4*h}, v{t+3}',
              f'v_and_b32 v{t+4}, 1, v{t}', f'v_lshlrev_b32 v{t+4}, 2, v{t+4}', f'v_xor_b32 v{t+3}, v{t+3}, v{t+4}',
              f'v_lshlrev_b32 v{t+3}, 5, v{t+3}', f'v_lshl_add_u32 v{t+3}, v{t+2}, 3, v{t+3}', f'v_add_u32 v{vr}, s{sT}, v{t+3}']
    vb = VO + 15 + 1
    c += [f'v_lshrrev_b32 v{t}, 2, v0', f's_lshl_b32 s{sT}, s{sWave}, 5', f'v_lshlrev_b32 v{t}, 1, v{t}', f'v_add_u32 v{t}, s{sT}, v{t}',
          f'v_bfe_u32 v{t+1}, v0, 1, 1', f'v_mul_u32_u24 v{t+1}, {ROWS}, v{t+1}', f'v_and_b32 v{t+2}, 1, v0', f'v_mul_u32_u24 v{t+2}, {TAPS}, v{t+2}',
          f'v_add_u32 v{t+1}, v{t+1}, v{t+2}', f'v_sub_u32 v{t}, v{t}, v{t+1}', f'v_add_u32 v{vb}, {DWB}, v{t}',
          f'v_and_b32 v{vO16}, 7, v0', f'v_lshlrev_b32 v{vO16}, 4, v{vO16}']
    emit(c)
    tl = [0]
    def tile_setup(fetch):
        o = [f's_sub_u32 s24, 2, {fetch}' if not cfg.rend else f's_mov_b32 s24, {fetch}',
             f's_lshr_b32 s25, s2, 3', f's_lshl_b32 s24, s24, 5', f's_add_u32 s25, s25, s24',
             f's_and_b32 s26, s2, 7', f's_lshl_b32 s26, s26, 2', f's_and_b32 s27, s25, 3', f's_add_u32 s26, s26, s27',
             f's_lshr_b32 s27, s25, 2',
             f's_mul_i32 s24, s26, {12*384}', f's_lshl_b32 s25, s27, 4', f's_add_u32 s24, s24, s25',
             f's_sub_u32 s24, s24, {3*384+3}', f's_mul_i32 s{sBase}, s24, 384',
             f's_cmp_eq_u32 {fetch}, 3', f's_cselect_b32 s{sBase}, 0x60000000, s{sBase}']
        if cfg.diag_nox: o += [f's_mov_b32 s{sBase}, 0x60000000']
        tl[0] += 1; lab = f'{name}_to{tl[0]}'
        fast = []
        for dy in range(2):
            for dx in range(2):
                fast += [f's_add_u32 s24, s{sBase}, {147456*dy + 384*dx}'] + [f'v_add_u32 v{vo(r,dy,dx)}, s24, v{vRel+r}' for r in range(4)]
        o += [f's_sub_u32 s25, s27, 1', f's_cmp_lt_u32 s25, 22', f's_cselect_b32 s25, 1, 0', f's_cmp_eq_u32 s26, 0', f's_cselect_b32 s25, 0, s25',
              f's_cmp_eq_u32 s{sBase}, 0x60000000', f's_cselect_b32 s25, 1, s25', f's_cmp_eq_u32 s25, 0', f's_cbranch_scc1 {lab}_slow']
        return o + fast + [f's_branch {lab}_done', f'{lab}_slow:'] + tile_offsets() + [f'{lab}_done:']
    strip = lambda l: [x.split(' ;@')[0] for x in l]
    def store_bases():
        o = [f's_mul_i32 s25, s2, 3', f's_add_u32 s25, s25, 2', f's_mul_i32 s25, s25, 12', f's_mul_i32 s26, s{sWave}, 3', f's_add_u32 s25, s25, s26',
             f's_mul_i32 s25, s25, 6144', f's_add_u32 s26, s25, 3072',
             f's_cmp_eq_u32 s{sTI}, {1 if not cfg.diag_nost else 9}', f's_cselect_b32 s{sSt3}, s25, 0x70000000',
             f's_cmp_eq_u32 s{sTI}, {2 if not cfg.diag_nost else 9}', f's_cselect_b32 s{sSt3+3}, s26, 0x70000000']
        for b in (sSt3, sSt3 + 3): o += [f's_add_u32 s{b+1}, s{b}, 6144', f's_add_u32 s{b+2}, s{b}, 12288']
        return o
    emit(tile_setup('0'))
    emit(strip(sum(load_items(cfg, 0, 0), [])))
    st3()
    emit(['s_waitcnt vmcnt(16) lgkmcnt(0)'])
    st3()
    emit(['s_barrier'])
    st3()
    if not cfg.nosync:
        P += [f's_cmp_eq_u32 s{sPkF}, -1', f's_cbranch_scc1 {name}_nops'] + pack_store(f'{name}_b', cfg, Y0 + 41, Y0)
        P += [f's_sub_u32 s{sPkF}, s{sPkF}, 1', f's_sub_u32 s{sPkf}, s{sPkf}, 1'] + pack_store(f'{name}_b2', cfg, Y0 + 32, Y0 + 4) + ['s_nop 1', f'{name}_nops:']
    emit(weights_gather(vb))
    st3()
    emit(['s_waitcnt vmcnt(0)'])
    st3()
    emit([f'v_add_u32 v{vLw}, {SLAB}, v{vLw}', f'v_add_u32 v{vLw3}, {SLAB}, v{vLw3}', f'v_add_u32 v{vRd}, {SLAB}, v{vRd}'])
    for r in range(4):
        for d in range(4): emit(transpose_unit(r, d, 0))
    dfr = lambda k: (k - 1 if (cfg.defer_y and k > 0) else None)
    raw = {k: conv_stage(k, 0, load_items(cfg, (k + 2) % 3, 0), store_items(cfg, k), defer=dfr(k)) for k in range(3)}
    nw = resolve_l([raw[0], raw[1], raw[2]])
    fix = lambda l: [(f's_waitcnt vmcnt({nw[int(x[6:])]})' if x.startswith('WAITL:') else x.split(' ;@')[0]) for x in l]
    body = {key: fix(val) for key, val in raw.items()}
    tags = [x.split(';@')[1].strip() for x in raw[0] if ';@' in x]
    tags = tags[[i for i, x in enumerate(tags) if x.startswith('l')][0]:]
    l1 = strip(sum(load_items(cfg, 1, 0), []))
    emit([f's_mov_b32 s{sT}, 0x70000000'])
    for tg in tags:
        emit([l1.pop(0)] if tg.startswith('l') else [f'buffer_store_dword v{vA}, v{vL16}, s[{sH}:{sH+3}], s{sT} offen'])
    assert not l1
    emit([f'v_subrev_u32 v{vLw}, {SLAB}, v{vLw}', f'v_subrev_u32 v{vLw3}, {SLAB}, v{vLw3}', f's_mov_b32 s{sDS}, {-SLAB & 0xffffffff}', f's_mov_b32 s{sDY}, 24576', f's_mov_b32 s{sDR}, 24576',
          's_waitcnt lgkmcnt(0)'])
    st3()
    emit(['s_barrier'])
    st3()
    if not cfg.nosync:
        P += [f's_cmp_eq_u32 s{sPkF}, -1', f's_cbranch_scc1 {name}_nopub', f's_cmp_eq_u32 s{sWave}, 0', f's_cbranch_scc0 {name}_nopub',
              f'v_mov_b32 v{vB}, 1', 's_mov_b32 exec_lo, 1', 's_mov_b32 exec_hi, 0',
              f'global_atomic_add v{vZ}, v{vB}, s[{sDbg}:{sDbg+1}]', 's_mov_b64 exec, -1', f'{name}_nopub:']
    def after(k, vm=None):
        o = ([f's_waitcnt vmcnt({vm})'] if vm is not None else []) + ['s_waitcnt lgkmcnt(0)', 's_barrier']
        if k == 2 or not cfg.defer_y:
            rd, tg = yin(k)
            o += rd + tg
        o += [f'v_add_u32 v{vRd}, s{sDS}, v{vRd}', f'v_subrev_u32 v{vLw}, s{sDS}, v{vLw}', f'v_subrev_u32 v{vLw3}, s{sDS}, v{vLw3}',
              f'v_add_u32 v{vY0}, s{sDY}, v{vY0}',
              f's_sub_u32 s{sDS}, 0, s{sDS}', f's_sub_u32 s{sDY}, 0, s{sDY}']
        return o
    sn = [0]
    def st2():
        if not cfg.light2: return []
        sn[0] += 1
        return [f's_cmp_eq_u32 s{sTI}, {cfg.l2tile}', f's_cbranch_scc0 {name}_s2_{sn[0]}', f's_memtime s[{STAMP0-2+2*((sn[0]-1)%5+1)}:{STAMP0-1+2*((sn[0]-1)%5+1)}]', f'{name}_s2_{sn[0]}:']
    lns = ln_block(cfg)
    K = k2
    emit([f's_mov_b32 s{sTI}, 0'])
    P += ['.p2align 6', f'{name}_tile:']
    P += st2()
    if not cfg.rend: emit(store_bases())
    emit(body[0] + after(0))
    P += st2()
    emit([f's_add_u32 s3, s{sTI}, 1'] + tile_setup('s3'))
    if cfg.ewarm:
        K = k2
        ew = [f's_cmp_eq_u32 s{sTI}, 2', f's_cbranch_scc0 {name}_noew',
              f's_add_u32 s{K.sW}, s38, {WS_W}', f's_addc_u32 s{K.sW+1}, s39, 0', f's_mov_b32 s{K.sW+2}, {W_BYTES}', f's_mov_b32 s{K.sW+3}, 0x20000',
              f's_lshr_b32 s24, s2, 3', f's_and_b32 s24, s24, 7', f's_mul_i32 s24, s24, 73728', f's_mul_i32 s25, s{sWave}, 18432', f's_add_u32 s24, s24, s25',
              f'v_lshlrev_b32 v{vA}, 3, v{vL16}']
        for j in range(3):
            ew += [f's_add_u32 s25, s24, {8192*j}', f'buffer_load_dword v233, v{vA}, s[{K.sW}:{K.sW+3}], s25 offen']
        ew += [f'{name}_noew:']
        P += ew
    if cfg.light4:
        b1 = []; n = [0]
        def stmp():
            n[0] += 1; j = n[0] - 1
            return [f's_cmp_eq_u32 s{sTI}, {cfg.l2tile}', f's_cbranch_scc0 {name}_l4_{j}', f's_memtime s[{82+2*j}:{83+2*j}]', f'{name}_l4_{j}:']
        b1 += stmp()
        for x in body[1]:
            if x.startswith(';MARK') and x[5] in cfg.l4sel: b1 += stmp()
            else: b1.append(x)
        af = after(1)
        if 'e' in cfg.l4sel: b1 += stmp() + af[:1] + stmp() + af[1:2] + stmp() + af[2:]
        else: b1 += af
        P += b1; TR += body[1] + after(1)
    else:
        nvm1 = sum(1 for x in body[1] if x.startswith('buffer_'))
        emit(body[1] + after(1, nvm1))
    P += st2()
    pre = [f's_add_u32 s{K.sW}, s38, {WS_W}', f's_addc_u32 s{K.sW+1}, s39, 0', f's_mov_b32 s{K.sW+2}, {W_BYTES}', f's_mov_b32 s{K.sW+3}, 0x20000',
           f's_mul_i32 s{K.sWoff}, s40, 12288', f's_cmp_eq_u32 s40, 1', f's_cselect_b32 s24, {23*24576}, s{K.sWoff}']
    its = []
    for i in range(12):
        it = []
        if i % 4 == 0: it += [f's_add_u32 m0, s{K.sWoff}, {4096*(i//4)}', f's_add_u32 s{sT}, s24, {4096*(i//4)}', 's_nop 0']
        it.append(f'buffer_load_dwordx4 v{vL16}, s[{K.sW}:{K.sW+3}], s{sT} offen offset:{1024*(i%4)} lds')
        its.append(it)
    xbase = [f's_lshr_b32 s24, s2, 3', f's_and_b32 s25, s2, 7', f's_lshl_b32 s25, s25, 2', f's_and_b32 s26, s24, 3', f's_add_u32 s25, s25, s26',
             f's_lshr_b32 s24, s24, 2', f's_mul_i32 s25, s25, 12', f's_mul_i32 s26, s40, 3', f's_add_u32 s25, s25, s26',
             f's_mul_i32 s25, s25, 24', f's_add_u32 s25, s25, s24', f's_mul_i32 s{K.sBX}, s25, 6144']
    vgs = [f'v_and_b32 v{vA}, 0xf0, v{vL16}', f'v_mul_u32_u24 v{K.vG}, 24, v{vA}', f'v_lshrrev_b32 v{vA}, 4, v{vL16}', f'v_and_b32 v{vA}, 0x30, v{vA}',
           f'v_add_u32 v{K.vG}, v{K.vG}, v{vA}']
    xl = lambda p, s_: f'buffer_load_dwordx4 {a(K.pxreg(p,s_), 4)}, v{K.vG}, s[{K.sX}:{K.sX+3}], s{48+p} offen offset:{64*s_}' + (' nt' if cfg.nt_x else '')
    pre = xbase + [f's_mov_b32 s48, s{K.sBX}', f's_add_u32 s49, s48, {cfg.xps}', f's_add_u32 s50, s49, {cfg.xps}'] + vgs + pre
    xearly = [(p, s_) for p in range(3) for s_ in range(6) if K.pxreg(p, s_) + 3 < Wt(2, 0, 0)]
    xlate = [(p, s_) for p in range(3) for s_ in range(6) if (p, s_) not in xearly]
    if cfg.rend: xearly = []; xlate = []
    cl = strip(conv_stage(2, 0, its, store_items(cfg, 2), transp=False, xtra=[[xl(p, s_)] for p, s_ in xearly], defer=dfr(2)))
    P += [f's_cmp_eq_u32 s{sTI}, 2', f's_cbranch_scc0 {name}_nl'] + pre + cl + after(2) + [f's_branch {name}_last', f'{name}_nl:']
    if not cfg.nosync:
        P += [f's_cmp_eq_u32 s{sTI}, 1', f's_cbranch_scc0 {name}_nopoll', f's_cmp_eq_u32 s{sWave}, 0', f's_cbranch_scc0 {name}_nopoll',
              f'global_load_dword v{vP}, v{vZ}, s[{sDbg}:{sDbg+1}] sc1', f'{name}_nopoll:']
    emit(body[2] + after(2) + ['s_waitcnt lgkmcnt(0)'])
    P += st2()
    if cfg.otouch_on:
        K = k2
        ot = [f's_cmp_eq_u32 s{sTI}, {cfg.otouch}', f's_cbranch_scc0 {name}_noot', 's_load_dwordx2 s[6:7], s[0:1], 32',
              f's_lshr_b32 s24, s2, 3', f's_and_b32 s25, s2, 7', f's_lshl_b32 s25, s25, 2', f's_and_b32 s26, s24, 3', f's_add_u32 s25, s25, s26',
              f's_lshr_b32 s24, s24, 2', f's_mul_i32 s25, s25, 12', f's_mul_i32 s26, s40, 3', f's_add_u32 s25, s25, s26',
              f's_mul_i32 s25, s25, 24', f's_add_u32 s25, s25, s24', f's_mul_i32 s25, s25, 6144', 's_waitcnt lgkmcnt(0)',
              f's_mov_b32 s{K.sO}, s6', f's_mov_b32 s{K.sO+1}, s7', f's_mov_b32 s{K.sO+2}, {IMG_BYTES}', f's_mov_b32 s{K.sO+3}, 0x20000']
        for t_ in range(3):
            for p in range(3):
                ot += [f's_add_u32 s26, s25, {t_*cfg.xts + p*cfg.xps}', f'buffer_load_dword v233, v{vZ}, s[{K.sO}:{K.sO+3}], s26 offen']
        ot += [f'{name}_noot:']
        P += ot
    if not cfg.nosync:
        ft = ACC
        fb = [f's_cmp_eq_u32 s{sTI}, 1', f's_cbranch_scc0 {name}_nochk', f's_cmp_eq_u32 s{sWave}, 0', f's_cbranch_scc0 {name}_nochk',
              f's_waitcnt vmcnt({sum(1 for x in body[2] if x.startswith("buffer_"))})', f'v_readfirstlane_b32 s44, v{vP}', 's_nop 3', f's_cmp_ge_u32 s44, {NPKWG + (1000 if cfg.force_fb else 0)}', f's_cbranch_scc1 {name}_acq',
              f's_mov_b32 s45, {cfg.spin}', f'{name}_spin:',
              f'global_load_dword v{vP}, v{vZ}, s[{sDbg}:{sDbg+1}] sc1', 's_waitcnt vmcnt(0)', f'v_readfirstlane_b32 s44, v{vP}', 's_nop 3',
              f's_cmp_ge_u32 s44, {NPKWG + (1000 if cfg.force_fb else 0)}', f's_cbranch_scc1 {name}_acq',
              's_sub_u32 s45, s45, 1', 's_cmp_lg_u32 s45, 0', f's_cbranch_scc1 {name}_spin',
              's_load_dwordx4 s[52:55], s[0:1], 16', f'v_lshrrev_b32 v{ft}, 4, v{vL16}', f's_mov_b32 s{sPkF}, 0', 's_waitcnt vmcnt(0) lgkmcnt(0)', f'{name}_self:']
        fb += pack_loads(f'{name}_c', ft + 8, ft + 1, ft) + ['s_waitcnt vmcnt(0)'] + pack_store(f'{name}_d', cfg, ft + 8, ft + 16)
        fb += ['s_waitcnt vmcnt(0)', f's_add_u32 s{sPkF}, s{sPkF}, 1', f's_cmp_lt_u32 s{sPkF}, {NPACK}', f's_cbranch_scc1 {name}_self',
               f'{name}_acq:', 'buffer_inv sc1', f'{name}_nochk:']
        P += fb
    P += [f's_call_b64 s[42:43], {name}_ln']; TR += lns
    wHold = [f'v_accvgpr_write_b32 a{HOLD+i}, v{Y0+i}' for i in range(72)]
    wP = [f'v_accvgpr_write_b32 a{K.PF0+i}, v{Y0+i}' for i in range(72)]
    P += [f's_cmp_eq_u32 s{sTI}, 1', f's_cbranch_scc1 {name}_ln1'] + wHold + [f's_branch {name}_lnd', f'{name}_ln1:'] + wP + [f'{name}_lnd:']
    TR += wHold + wP
    P += st2()
    P += [f's_add_u32 s{sTI}, s{sTI}, 1', f's_branch {name}_tile', f'{name}_last:']
    emit(['s_waitcnt vmcnt(0) lgkmcnt(0)', 's_barrier'])
    if cfg.allwg: P += ['s_memrealtime s[84:85]', 's_waitcnt lgkmcnt(0)']
    if cfg.light: P += ['s_memtime s[6:7]', 's_memrealtime s[24:25]', 's_waitcnt lgkmcnt(0)', 's_mov_b32 s84, s6', 's_mov_b32 s85, s24']
    emit(['s_load_dwordx2 s[6:7], s[0:1], 32',
          'v_mbcnt_lo_u32_b32 v0, -1, 0', 'v_mbcnt_hi_u32_b32 v0, -1, v0'])
    emit(K.gelu_consts(cfg) + K.ident_setup())
    emit([f's_add_u32 s{K.sW}, s38, {WS_W}', f's_addc_u32 s{K.sW+1}, s39, 0', f's_mov_b32 s{K.sW+2}, {W_BYTES}', f's_mov_b32 s{K.sW+3}, 0x20000',
          f's_mul_i32 s{K.sWoff}, s40, 12288',
          f's_mul_i32 s{K.sB}, s2, {36*6144}', f's_mul_i32 s41, s40, {3*6144}', f's_add_u32 s{K.sB}, s{K.sB}, s41',
          's_waitcnt lgkmcnt(0)',
          f's_mov_b32 s{K.sO}, s6', f's_mov_b32 s{K.sO+1}, s7', f's_mov_b32 s{K.sO+2}, {IMG_BYTES}', f's_mov_b32 s{K.sO+3}, 0x20000',
          's_mov_b32 s98, s6', 's_mov_b32 s99, s7'])
    emit(xbase + [f's_mov_b32 s48, s{K.sBX}', f's_add_u32 s49, s48, {cfg.xps}', f's_add_u32 s50, s49, {cfg.xps}'])
    emit(K.m_second_dma(cfg, 240) + [xl(p, s_) for p, s_ in xlate])
    P += [f's_call_b64 s[42:43], {name}_ln']; TR += lns
    emit([f'v_accvgpr_write_b32 a{(K.PX0 if cfg.rend else K.H0)+i}, v{Y0+i}' for i in range(72)])
    emit(K.m_g1_first(cfg, early=True))
    if cfg.light: P += ['s_memtime s[6:7]', 's_memrealtime s[4:5]', 's_waitcnt lgkmcnt(0)', 's_mov_b32 s86, s6', 's_mov_b32 s87, s4']
    mp, sub, tr = K.m_main(cfg, name)
    P += mp; TR += tr
    P += K.dump_stamps2(cfg, 13)
    if cfg.light:
        P += ['s_waitcnt vmcnt(0)', 's_memtime s[6:7]', 's_memrealtime s[4:5]', 's_load_dwordx2 s[8:9], s[0:1], 40', 's_waitcnt lgkmcnt(0)', 's_mov_b32 s88, s6', 's_mov_b32 s89, s4'] + [f'v_writelane_b32 v255, s{82+i}, {i}' for i in range(8)] + [
              's_cmp_eq_u32 s2, 17', f's_cbranch_scc0 {name}_done', 's_cmp_eq_u32 s40, 0', f's_cbranch_scc0 {name}_done',
              'v_mbcnt_lo_u32_b32 v0, -1, 0', 'v_mbcnt_hi_u32_b32 v0, -1, v0', 'v_lshlrev_b32 v1, 2, v0', 'v_cmp_gt_u32 vcc, 8, v0', 's_and_saveexec_b64 s[10:11], vcc',
              'global_store_dword v1, v255, s[8:9] offset:16']
    if cfg.allwg:
        P += ['s_waitcnt vmcnt(0)', 's_memrealtime s[86:87]', 's_cmp_eq_u32 s40, 0', f's_cbranch_scc0 {name}_done', 's_waitcnt lgkmcnt(0)',
              's_lshl_b32 s3, s2, 4', f's_add_u32 s3, s3, {200 << 20}', 'v_mov_b32 v5, s3',
              'v_mov_b32 v4, s82', 's_nop 1', 'global_store_dword v5, v4, s[38:39]',
              'v_mov_b32 v4, s84', 's_nop 1', 'global_store_dword v5, v4, s[38:39] offset:4',
              'v_mov_b32 v4, s86', 's_nop 1', 'global_store_dword v5, v4, s[38:39] offset:8']
    if cfg.light2 or cfg.light3 or cfg.light4:
        P += ['s_waitcnt vmcnt(0)', 's_load_dwordx2 s[8:9], s[0:1], 40', 's_waitcnt lgkmcnt(0)',
              's_cmp_eq_u32 s2, 17', f's_cbranch_scc0 {name}_done', 's_cmp_eq_u32 s40, 0', f's_cbranch_scc0 {name}_done']
        P += [f'v_writelane_b32 v255, s{STAMP0+2*i}, {i}' for i in range(5)]
        P += ['v_mbcnt_lo_u32_b32 v0, -1, 0', 'v_mbcnt_hi_u32_b32 v0, -1, v0', 'v_lshlrev_b32 v1, 2, v0', 'v_cmp_gt_u32 vcc, 5, v0', 's_and_saveexec_b64 s[10:11], vcc',
              'global_store_dword v1, v255, s[8:9] offset:64']
    P += [f'{name}_done:', 's_endpgm']
    P += ['.p2align 6', f'{name}_ln:'] + lns + ['s_setpc_b64 s[42:43]']
    P += sub
    return P, TR

def kd(name):
    return k2.kd(name)

if __name__ == '__main__':
    import asmlib
    P, TR = gen(Cfg)
    asmlib.check(TR, 'kf')
    print(len(P))
```

```python
import struct, math

def f2u(f): return struct.unpack('<I', struct.pack('<f', f))[0]
LOG2E = 1.4426950408889634
A1 = 2.0 * math.sqrt(2.0 / math.pi) * LOG2E
B1 = A1 * 0.044715
ALPHA = B1 ** (1.0 / 3.0)
CC = A1 / ALPHA

WS_W = 0
W_BYTES = 24 * 24576
WS_H = 1 << 20
IMG_BYTES = 384 * 384 * 192 * 2

vLds, vDma, vG = 1, 2, 3
vLdsS = (1, 4, 5)
T0 = 8
G0 = 24
S0 = 48
ACC = 96
H0, PF0, PX0, W0, I0 = 0, 72, 144, 216, 248
NB = 8
sW, sH, sX, sO = 8, 12, 16, 20
sPass, sJ, sDst, sDstSum, sSrc, sWoff, sB, sT, sT2, sNegC, sAlpha = 24, 25, 26, 27, 28, 29, 30, 31, 32, 34, 35
sB1, sRd = 36, 37
sRet = 42
sHx = 90
sLdH = 96 - 4
sSt, sLd = 44, 47
sLx, sBX = 95, 51
OOB = 0x70000000

def v(b, n=1): return f'v{b}' if n == 1 else f'v[{b}:{b+n-1}]'
def a(b, n=1): return f'a{b}' if n == 1 else f'a[{b}:{b+n-1}]'
def Sreg(buf, aa, p): return S0 + 24 * buf + 4 * (aa * 3 + p)
def Greg(buf, p): return G0 + 12 * buf + 4 * p
def acc(t, p): return ACC + 4 * (t * 3 + p)
def hreg(p, s): return H0 + 24 * p + 4 * s
def pfreg(p, s): return PF0 + 24 * p + 4 * s
def pxreg(p, s): return PX0 + 24 * p + 4 * s
MF = 'v_mfma_f32_16x16x32_bf16'

class Cfg:
    prof = False
    prof2 = False
    allwg = False
    profpass = 1
    plan = ['ssss', 'sssss', 'sssss', 'ssssh', 'hhhhh', 'hhhhh', 'hhhhh', 'hhxxx', 'xxxxx', 'xxxxx', 'xxxxx', '']
    xpos = [26, 30, 34, 38, 41]
    D = 5
    gsz = 4
    f16 = False
    warm = True
    sub = True
    hskip = False
    hlds = False
    dma_dense = False
    hout = False
    rend = False
    freeslot = False
    snake = False
    tail_lds = False
    tail_flags = None
    xposJ = {}
    tail_inter = False
    out_flags = None
    static_ring = False
    wevery = 2
    mid_vm = 12
    diag_nodma = False
    xps = 6144
    xts = 73728
    nt_h = False; nt_x = False; nt_o = False

def f2h(f):
    import numpy as np
    return int(np.float16(f).view(np.uint16))

def gelu_list16(buf, cfg):
    out = []
    grp = [(aa, p) for aa in range(2) for p in range(3)]
    for i in range(0, 6, 2):
        dw = []
        for gi, (aa, p) in enumerate(grp[i:i+2]):
            for d in range(2):
                n = (i // 2 % 2) * 8 + gi * 4 + d * 2
                u = Sreg(buf, aa, p) + 2 * d
                dw.append((u, u + 1, T0 + n, T0 + n + 1, Greg(buf, p) + 2 * aa + d))
        SD = lambda w: f'dst_sel:WORD_{w} dst_unused:UNUSED_PRESERVE src0_sel:WORD_{w}'
        for u0, u1, h, t, g in dw: out.append(f'v_cvt_pk_f16_f32 v{h}, v{u0}, v{u1}')
        for u0, u1, h, t, g in dw: out.append(f'v_pk_fma_f16 v{t}, v{h}, v{h}, s{sNegC} neg_lo:[1,0,0] neg_hi:[1,0,0]')
        for u0, u1, h, t, g in dw: out.append(f'v_pk_mul_f16 v{t}, v{t}, v{h}')
        for w in range(2):
            for u0, u1, h, t, g in dw: out.append(f'v_exp_f16_sdwa v{t}, v{t} {SD(w)}')
        for u0, u1, h, t, g in dw: out.append(f'v_pk_fma_f16 v{t}, v{t}, s{sAlpha}, s{sAlpha}')
        for w in range(2):
            for u0, u1, h, t, g in dw: out.append(f'v_rcp_f16_sdwa v{t}, v{t} {SD(w)}')
        for u0, u1, h, t, g in dw: out.append(f'v_pk_mul_f16 v{g}, v{h}, v{t}')
    return out

def gelu_list(buf, cfg):
    if cfg.f16: return gelu_list16(buf, cfg)
    out = []
    k = 0
    for aa in range(2):
        for p in range(3):
            es = [Sreg(buf, aa, p) + i for i in range(4)]
            ts = [T0 + (k % 2) * 4 + i for i in range(4)]
            k += 1
            for u, t in zip(es, ts): out.append(f'v_fma_f32 v{t}, -v{u}, v{u}, s{sNegC}')
            for u, t in zip(es, ts): out.append(f'v_mul_f32 v{t}, v{t}, v{u}')
            for u, t in zip(es, ts): out.append(f'v_exp_f32 v{t}, v{t}')
            for u, t in zip(es, ts): out.append(f'v_fma_f32 v{t}, v{t}, s{sAlpha}, s{sAlpha}')
            for u, t in zip(es, ts): out.append(f'v_rcp_f32 v{t}, v{t}')
            for u, t in zip(es, ts): out.append(f'v_mul_f32 v{t}, v{u}, v{t}')
            g = Greg(buf, p) + 2 * aa
            out.append(f'v_cvt_pk_bf16_f32 v{g}, v{ts[0]}, v{ts[1]}')
            out.append(f'v_cvt_pk_bf16_f32 v{g+1}, v{ts[2]}, v{ts[3]}')
    return out

def g1_groups(j):
    buf = (j + 1) & 1
    base = (j & 1) * 24576
    gs = []
    for s in range(6):
        for aa in range(2):
            gs.append((base + (2 * s + aa) * 1024,
                       [(lambda w, p=p, s=s, aa=aa: f'{MF} {v(Sreg(buf,aa,p),4)}, {a(w,4)}, {a(hreg(p,s),4)}, ' + ('0' if s == 0 else v(Sreg(buf,aa,p),4))) for p in porder(aa)]))
    return gs

MF2 = [MF]
SNAKE = [False]
def porder(i): return (2, 1, 0) if (SNAKE[0] and i % 2) else (0, 1, 2)
def g2_groups(j, zero=False):
    buf = (j - 1) & 1
    base = (j & 1) * 24576 + 12288
    gs = []
    for t in range(12):
        gs.append((base + t * 1024,
                   [(lambda w, p=p, t=t: f'{MF2[0]} {v(acc(t,p),4)}, {a(w,4)}, {v(Greg(buf,p),4)}, ' + ('0' if zero else v(acc(t,p),4))) for p in porder(t)]))
    return gs

def cost(t):
    op = t.split()[0]
    if op.startswith(('v_exp', 'v_rcp')): return 8
    return 4

def wbuf(g): return W0 + 4 * (g % NB)

def dma_block(k):
    return [f's_add_u32 m0, s{sDst}, {4096*k}', f's_add_u32 s{sT}, s{sSrc}, {4096*k}']
DTAG = ['dma']
def dma(i):
    return f'buffer_load_dwordx4 v{vDma}, s[{sW}:{sW+3}], s{sT} offen offset:{(i%4)*1024} lds ;@{DTAG[0]}'

def superstep(cfg, j0, mid=None, extra_valu=None, extra_at=None, bar_wait=None, dma_on=True, pre=None):
    J = j0 // 2
    sr = cfg.static_ring
    NS = 2 if cfg.hlds else 3
    vcur = vLdsS[J % NS] if sr else vLds
    vnxt = vLdsS[(J + 1) % NS] if sr else vLds
    D = cfg.D
    groups = g1_groups(j0) + g2_groups(j0) + g1_groups(j0 + 1) + g2_groups(j0 + 1, zero=(cfg.rend and j0 == 0))
    nxt = g1_groups(j0)
    out = list(pre or [])
    fifo = list(range(0, D))
    waited = cfg.wevery - 1
    fifo = [g for g in fifo if g > waited]
    vl = [gelu_list(j0 & 1, cfg), gelu_list((j0 + 1) & 1, cfg)]
    extra_at = extra_at or {}
    reads_at = {g: [] for g in range(48)}
    for g in range(48):
        r = g + D
        if r <= 46 - 0 and g < 47 - D - 1: reads_at[g].append(r)
    reads_at[47 - D - 1] = [46, 47]
    reads_at[47 - D] = []
    for k in range(D): reads_at[48 - D + k].append(48 + k)
    fs = cfg.freeslot and sr
    dma_salu = lambda i: [f's_add_u32 m0, s{sWoff}, {((J + NS - 1) % NS) * 49152 + 4096 * (i // 4)}', f's_add_u32 s{sT}, s{sWoff}, {((J + NS - 1) % 12) * 49152 + 4096 * (i // 4)}']
    dma_at = {}
    if dma_on and not cfg.diag_nodma:
        for i in range(12): dma_at.setdefault(i if cfg.dma_dense else 2 * i, []).append(i)
    for step in range(2):
        valu = list(vl[step])
        tot = sum(cost(t) for t in valu)
        done = 0; vi = 0
        ex = (extra_valu or {}).get(step)
        exi = 0
        for gl in range(24):
            g = step * 24 + gl
            ms = groups[g][1]
            for k, m in enumerate(ms):
                out.append(m(wbuf(g)))
                if k == 0:
                    if g == 48 - D:
                        out.append('s_waitcnt lgkmcnt(0)'); fifo = []; waited = 47
                        out += bar_wait or ['s_waitcnt vmcnt(0)']
                        out.append('s_barrier')
                        if not sr: out.append(f'v_add_u32 v{vLds}, s{sRd}, v{vDma}')
                    for r in reads_at[g]:
                        off = groups[r][0] if r < 48 else nxt[r - 48][0]
                        out.append(f'ds_read_b128 {a(wbuf(r),4)}, v{vcur if r < 48 else vnxt} offset:{off}')
                        fifo.append(r)
                    for i in dma_at.get(g, []):
                        if i % 4 == 0 and not (fs and g > 0):
                            if sr: out += dma_salu(i)
                            else: out += dma_block(i // 4) + ['s_nop 0']
                        out.append(dma(i))
                    if g == 38 and not sr:
                        out += [f's_add_u32 s{sRd}, s{sRd}, 49152', f's_cmp_eq_u32 s{sRd}, 147456', f's_cselect_b32 s{sRd}, 0, s{sRd}']
                    if not fs: out += extra_at.get(g, [])
                if fs:
                    nxt_dma = [i for i in dma_at.get(g + 1, []) if i % 4 == 0]
                    if k == 1:
                        if nxt_dma: out.append(dma_salu(nxt_dma[0])[0])
                        out += extra_at.get(g, [])
                    if k == 2:
                        we = cfg.wevery
                        if g % we == we - 1 and waited < g + we:
                            needg = g + we
                            pend = [r for r in fifo if r > needg]
                            if len(pend) < len(fifo): out.append(f's_waitcnt lgkmcnt({len(pend)})')
                            fifo = pend; waited = needg
                        if nxt_dma: out.append(dma_salu(nxt_dma[0])[1])
                mi = gl * 3 + k + 1
                target = tot * mi / 72.0
                while vi < len(valu) and done + cost(valu[vi]) / 2 <= target:
                    out.append(valu[vi]); done += cost(valu[vi]); vi += 1
                if mi == 72:
                    while vi < len(valu): out.append(valu[vi]); vi += 1
                if ex and ex[0] <= gl < ex[1]:
                    n = len(ex[2]); span = (ex[1] - ex[0]) * 3
                    upto = ((gl - ex[0]) * 3 + k + 1) * n // span
                    while exi < upto: out.append(ex[2][exi]); exi += 1
            we = cfg.wevery
            if g % we == we - 1:
                needg = g + we
                if waited < needg:
                    pend = [r for r in fifo if r > needg]
                    if len(pend) < len(fifo):
                        out.append(f's_waitcnt lgkmcnt({len(pend)})')
                    fifo = pend; waited = needg
        if step == 0 and mid: out += mid
    return out

def mid_block(cfg):
    out = []
    k = 0
    for p in range(3):
        for s in range(6):
            t = T0 + 8 + (k % 2) * 4; k += 1
            r0, r1 = acc(2 * s, p), acc(2 * s + 1, p)
            out.append(f'v_cvt_pk_bf16_f32 v{t}, v{r0}, v{r0+1}')
            out.append(f'v_cvt_pk_bf16_f32 v{t+1}, v{r0+2}, v{r0+3}')
            out.append(f'v_cvt_pk_bf16_f32 v{t+2}, v{r1}, v{r1+1}')
            out.append(f'v_cvt_pk_bf16_f32 v{t+3}, v{r1+2}, v{r1+3}')
            out.append(f'{MF} {v(acc(2*s,p),4)}, {a(I0,4)}, {a(pxreg(p,s),4)}, 0')
            out.append(f'{MF} {v(acc(2*s+1,p),4)}, {a(I0+4,4)}, {a(pxreg(p,s),4)}, 0')
            for i in range(4): out.append(f'v_accvgpr_write_b32 a{pxreg(p,s)+i}, v{t+i}')
    return out

def resid_mfmas(p, s):
    return [f'{MF} {v(acc(2*s,p),4)}, {a(I0,4)}, {a(pxreg(p,s),4)}, {v(acc(2*s,p),4)}',
            f'{MF} {v(acc(2*s+1,p),4)}, {a(I0+4,4)}, {a(pxreg(p,s),4)}, {v(acc(2*s+1,p),4)}']

def mid_block_rend(cfg):
    out = []
    items = [(p, s) for p in range(3) for s in range(6)]
    LAG = 2
    for i in range(18 + LAG):
        m = resid_mfmas(*items[i]) if i < 18 else []
        c = []; w = []
        j = i - LAG
        if j >= 0:
            p, s = items[j]; t = T0 + 8 + (j % 2) * 4
            r0, r1 = acc(2 * s, p), acc(2 * s + 1, p)
            c = [f'v_cvt_pk_bf16_f32 v{t}, v{r0}, v{r0+1}', f'v_cvt_pk_bf16_f32 v{t+1}, v{r0+2}, v{r0+3}',
                 f'v_cvt_pk_bf16_f32 v{t+2}, v{r1}, v{r1+1}', f'v_cvt_pk_bf16_f32 v{t+3}, v{r1+2}, v{r1+3}']
            w = [f'v_accvgpr_write_b32 a{pxreg(p,s)+q}, v{t+q}' for q in range(4)]
        if m: out += [m[0]] + c[:2] + [m[1]] + c[2:] + w
        else: out += c + w
        if i == 0 or i == 1: out += ['s_nop 3']
    return out

def tail_epilogue(cfg, sbase):
    out = []
    nt = ' nt' if cfg.nt_o else ''
    k = 0
    for p in range(3):
        out.append(f's_add_u32 s{sT2}, s{sbase}, {cfg.xps*p}')
        for s in range(6):
            t = T0 + (k % 4) * 4; k += 1
            r0, r1 = acc(2 * s, p), acc(2 * s + 1, p)
            out.append(f'v_cvt_pk_bf16_f32 v{t}, v{r0}, v{r0+1}')
            out.append(f'v_cvt_pk_bf16_f32 v{t+1}, v{r0+2}, v{r0+3}')
            out.append(f'v_cvt_pk_bf16_f32 v{t+2}, v{r1}, v{r1+1}')
            out.append(f'v_cvt_pk_bf16_f32 v{t+3}, v{r1+2}, v{r1+3}')
            out.append(f'buffer_store_dwordx4 {v(t,4)}, v{vG}, s[{sO}:{sO+3}], s{sT2} offen offset:{64*s}{nt}')
    return out

def tail_epilogue_lds(cfg, sbase):
    nt = cfg.tail_flags if cfg.tail_flags is not None else (' nt' if cfg.nt_o else '')
    vW, vR, vG2, t = 4, 5, 6, 7
    out = [f'v_lshrrev_b32 v{t}, 4, v{vDma}',
           f's_mul_i32 s{sT}, s40, 12288', f's_add_u32 s{sT}, s{sT}, 98304',
           f'v_and_b32 v{vW}, 15, v{t}', f'v_bfe_u32 v{vR}, v{t}, 1, 2', f'v_lshrrev_b32 v{vG2}, 4, v{t}', f'v_xor_b32 v{vR}, v{vR}, v{vG2}',
           f'v_lshlrev_b32 v{vW}, 6, v{vW}', f'v_lshl_add_u32 v{vW}, v{vR}, 4, v{vW}', f'v_add_u32 v{vW}, s{sT}, v{vW}',
           f'v_bfe_u32 v{vR}, v{t}, 3, 2', f'v_and_b32 v{vG2}, 3, v{t}', f'v_xor_b32 v{vR}, v{vR}, v{vG2}', f'v_lshlrev_b32 v{vR}, 4, v{vR}',
           f'v_lshrrev_b32 v{vG2}, 2, v{t}', f'v_lshl_add_u32 v{vR}, v{vG2}, 6, v{vR}', f'v_add_u32 v{vR}, s{sT}, v{vR}',
           f'v_mul_u32_u24 v{vG2}, 384, v{vG2}', f'v_and_b32 v{t}, 3, v{t}', f'v_lshl_add_u32 v{vG2}, v{t}, 4, v{vG2}']
    items = [(p, s) for p in range(3) for s in range(6)]
    LAG = 2
    def wr(i):
        p, s = items[i]; tt = T0 + 4 * (i % 2)
        r0, r1 = acc(2 * s, p), acc(2 * s + 1, p)
        return [f'v_cvt_pk_bf16_f32 v{tt}, v{r0}, v{r0+1}', f'v_cvt_pk_bf16_f32 v{tt+1}, v{r0+2}, v{r0+3}',
                f'v_cvt_pk_bf16_f32 v{tt+2}, v{r1}, v{r1+1}', f'v_cvt_pk_bf16_f32 v{tt+3}, v{r1+2}, v{r1+3}',
                f'ds_write_b128 v{vW}, {v(tt,4)} offset:{1024*(i % 12)}']
    rreg = lambda i: G0 + 4 * (i % 6)
    pend = []
    RL = 2
    inter = cfg.rend and cfg.tail_inter
    if inter:
        for j in range(RL): out += resid_mfmas(*items[j])
        out += ['s_nop 7']
    for i in range(18 + 2 * LAG):
        if i < 18:
            w = wr(i)
            if inter and i + RL < 18:
                m = resid_mfmas(*items[i + RL])
                w = [m[0]] + w[:2] + [m[1]] + w[2:]
            out += w; pend.append(('w', i))
        j = i - LAG
        if 0 <= j < 18:
            out.append(f'ds_read_b128 {v(rreg(j),4)}, v{vR} offset:{1024*(j % 12)}'); pend.append(('r', j))
        m = i - 2 * LAG
        if 0 <= m < 18:
            idx = pend.index(('r', m)); n = len(pend) - 1 - idx
            out.append(f's_waitcnt lgkmcnt({n})'); pend = pend[idx + 1:]
            p, s = items[m]
            if s == 0: out.append(f's_add_u32 s{sT2}, s{sbase}, {cfg.xps*p}')
            out.append(f'buffer_store_dwordx4 {v(rreg(m),4)}, v{vG2}, s[{sO}:{sO+3}], s{sT2} offen offset:{64*s}{nt}')
    return out

def st_op(cfg, i):
    p, s = divmod(i, 6)
    return f'buffer_store_dwordx4 {a(pxreg(p,s),4)}, v{vG}, s[{sO}:{sO+3}], s{sSt+p} offen offset:{64*s}' + (cfg.out_flags if cfg.out_flags is not None else (' nt' if cfg.nt_o else '')) + ' ;@st'
def h_op(cfg, i):
    p, s = divmod(i, 6)
    so, im = (sLd + p, 1024 * s) if s < 4 else (sLdH + p, 1024 * (s - 4))
    va = vDma
    srd = sH
    if cfg.rend: so, im, va = sLd + p, 64 * s, vG
    if cfg.rend and cfg.hout: srd = sO
    ld = f'buffer_load_dwordx4 {a(pfreg(p,s),4)}, v{va}, s[{srd}:{srd+3}], s{so} offen offset:{im}' + (' nt' if cfg.nt_h else '') + ' ;@h'
    if cfg.hskip: return f's_mov_b64 exec, s[{sHx}:{sHx+1}]\n' + ld + '\ns_mov_b64 exec, -1'
    return ld
def x_op(cfg, i):
    p, s = divmod(i, 6)
    return f'buffer_load_dwordx4 {a(pxreg(p,s),4)}, v{vG}, s[{sX}:{sX+3}], s{sLx+p} offen offset:{64*s}' + (' nt' if cfg.nt_x else '') + ' ;@x'

def resolve_vm(seq_prev, seq, optional=()):
    def isvm(t):
        o = t.split()[0] if t.split() else ''
        return o.startswith(('buffer_load', 'buffer_store'))
    def tag(t):
        if ';@' in t: return t.split(';@')[1].strip()
        return 'dma' if ' lds' in t else '?'
    fifo = []
    res = None
    for rnd, sq in enumerate((seq_prev, seq)):
        out = []
        for t in sq:
            if t.startswith('WAITVM:'):
                tg = t.split(':')[1]
                idx = [i for i, x in enumerate(fifo) if x == tg]
                if idx:
                    younger = fifo[idx[-1] + 1:]
                    n = sum(1 for x in younger if x not in optional)
                    out.append(f's_waitcnt vmcnt({n})')
                    keep = []; c = 0
                    for x in reversed(fifo):
                        if c >= n: break
                        keep.append(x)
                        if x not in optional: c += 1
                    fifo = keep[::-1]
                continue
            if isvm(t): fifo.append(tag(t))
            assert len(fifo) <= 63, 'too many outstanding'
            out.append(t)
        res = out
    return res

def tile_loads(srd, dst0, soff_base_instrs, nt):
    out = []
    for p in range(3):
        out += soff_base_instrs(p)
        for s in range(6):
            out.append(f'buffer_load_dwordx4 {a(dst0 + 24*p + 4*s, 4)}, v{vG}, s[{srd}:{srd+3}], s{sT2} offen offset:{64*s}' + (' nt' if nt else ''))
    return out

def soff(base, add):
    def f(p):
        return [f's_add_u32 s{sT2}, s{base}, {add + 6144*p}']
    return f

def stamp(cfg, k):
    if not cfg.prof: return []
    b = 52 + 4 * k
    return [f's_memtime s[{b}:{b+1}]', f's_memrealtime s[{b+2}:{b+3}]']

_cs=[0]
def cstamp(cfg, k, cond=None):
    if not cfg.prof2: return []
    _cs[0]+=1; lab=f'mlp_cs{_cs[0]}'
    out=[f's_cmp_eq_u32 s{sPass}, {cfg.profpass}', f's_cbranch_scc0 {lab}']
    if cond: out+=[f's_cmp_eq_u32 s{cond[0]}, {cond[1]}', f's_cbranch_scc0 {lab}']
    out+=[f's_memtime s[{52+2*k}:{53+2*k}]', f'{lab}:']
    return out

def dump_stamps2(cfg, n):
    if not cfg.prof2: return []
    out = ['s_waitcnt lgkmcnt(0)', 's_load_dwordx2 s[42:43], s[0:1], 40', 's_waitcnt lgkmcnt(0)',
           's_mov_b32 s44, s42', 's_mov_b32 s45, s43', 's_mov_b32 s46, 256', 's_mov_b32 s47, 0x20000',
           's_cmp_lg_u32 s2, 17', 's_cbranch_scc1 mlp_nodump', 's_cmp_lg_u32 s40, 0', 's_cbranch_scc1 mlp_nodump',
           'v_mov_b32 v4, 0']
    for k in range(n):
        out += [f'v_mov_b32 v5, s{52+2*k}', f'buffer_store_dword v5, v4, s[44:47], 0 offen offset:{4*k}']
    out += ['mlp_nodump:']
    return out

def dump_stamps(cfg, n):
    if not cfg.prof: return []
    out = ['s_waitcnt lgkmcnt(0)', 's_load_dwordx2 s[42:43], s[0:1], 40', 's_waitcnt lgkmcnt(0)',
           's_mov_b32 s44, s42', 's_mov_b32 s45, s43', 's_mov_b32 s46, 256', 's_mov_b32 s47, 0x20000',
           's_cmp_lg_u32 s2, PROFWG', 's_cbranch_scc1 mlp_nodump', 's_cmp_lg_u32 s40, 0', 's_cbranch_scc1 mlp_nodump',
           'v_mov_b32 v4, 0']
    for k in range(n):
        b = 52 + 4 * k
        out += [f'v_mov_b32 v5, s{b}', f'buffer_store_dword v5, v4, s[44:47], 0 offen offset:{8*k}',
                f'v_mov_b32 v6, s{b+2}', f'buffer_store_dword v6, v4, s[44:47], 0 offen offset:{8*k+4}']
    out += ['mlp_nodump:']
    return [o.replace('PROFWG', '17') for o in out]

def ident_setup():
    return [
        f'v_lshlrev_b32 v{vDma}, 4, v0',
        f'v_mov_b32 v{vLds}, v{vDma}',
        f'v_and_b32 v4, 15, v0',
        f'v_lshrrev_b32 v5, 4, v0',
        f'v_mul_u32_u24 v{vG}, 384, v4',
        f'v_lshl_add_u32 v{vG}, v5, 4, v{vG}',
        f'v_lshrrev_b32 v6, 2, v4',
        f'v_cmp_eq_u32 vcc, v6, v5',
        f'v_and_b32 v6, 1, v4',
        f'v_lshlrev_b32 v6, 4, v6',
        f'v_mov_b32 v7, 0x3f80',
        f'v_lshlrev_b32 v7, v6, v7',
        f'v_cndmask_b32 v7, 0, v7, vcc',
        f'v_and_b32 v6, 2, v4',
        f'v_cmp_eq_u32 vcc, 0, v6',
        's_nop 1',
        f'v_cndmask_b32 v8, 0, v7, vcc',
        f'v_sub_u32 v9, v7, v8',
        f'v_mov_b32 v10, 0',
        f'v_accvgpr_write_b32 a{I0}, v8', f'v_accvgpr_write_b32 a{I0+1}, v9',
        f'v_accvgpr_write_b32 a{I0+2}, v10', f'v_accvgpr_write_b32 a{I0+3}, v10',
        f'v_accvgpr_write_b32 a{I0+4}, v10', f'v_accvgpr_write_b32 a{I0+5}, v10',
        f'v_accvgpr_write_b32 a{I0+6}, v8', f'v_accvgpr_write_b32 a{I0+7}, v9']

def gelu_consts(cfg):
    return [f's_mov_b32 s{sNegC}, {hex(f2u(-CC) if not cfg.f16 else f2h(-CC) * 0x10001)}',
            f's_mov_b32 s{sAlpha}, {hex(f2u(ALPHA) if not cfg.f16 else f2h(ALPHA) * 0x10001)}']

def m_first_dma(cfg):
    a1 = [f's_mul_i32 s41, s40, 3072', f's_add_u32 m0, s41, {98304+24576}', f's_add_u32 s{sT}, s41, {23*24576}']
    a1 += [f'buffer_load_dwordx4 v{vDma}, s[{sW}:{sW+3}], s{sT} offen offset:{i*1024} lds' for i in range(3)]
    a2 = []
    for sl in range(2):
        a2 += [f's_add_u32 s{sDst}, s{sWoff}, {49152*sl}', f's_add_u32 s{sSrc}, s{sWoff}, {49152*sl}']
        for k_ in range(3): a2 += dma_block(k_) + ['s_nop 0'] + [dma(4 * k_ + i).split(' ;@')[0] for i in range(4)]
    nwarm = 0
    if cfg.warm:
        a2 += [f's_lshr_b32 s41, s2, 3', f's_and_b32 s41, s41, 31', f's_mul_i32 s41, s41, 18432', f's_mul_i32 s3, s40, 5120', f's_add_u32 s41, s41, s3']
        for i in range(5):
            if i == 4: a2 += [f's_add_u32 s41, s41, 4096']
            a2 += [f'buffer_load_dwordx4 {a(PF0 + 4*i, 4)}, v{vDma}, s[{sW}:{sW+3}], s41 offen offset:{1024*(i%4)}']
        nwarm = 5
    a2 += [f's_add_u32 s{sDst}, s{sWoff}, 98304', f's_add_u32 s{sDstSum}, s{sWoff}, 147456',
           f's_add_u32 s{sSrc}, s{sWoff}, 98304', f's_mov_b32 s{sRd}, 0', f's_mov_b32 s{sPass}, 0']
    return a1, a2, 12 + nwarm

def m_second_dma(cfg, warm_dst):
    a2 = []
    if not cfg.hlds:
        a2 = [f's_add_u32 s{sDst}, s{sWoff}, 49152', f's_add_u32 s{sSrc}, s{sWoff}, 49152']
        for k_ in range(3): a2 += dma_block(k_) + ['s_nop 0'] + [dma(4 * k_ + i).split(' ;@')[0] for i in range(4)]
    if cfg.warm:
        a2 += [f's_lshr_b32 s41, s2, 3', f's_and_b32 s41, s41, 31', f's_mul_i32 s41, s41, 18432', f's_mul_i32 s3, s40, 5120', f's_add_u32 s41, s41, s3']
        for i in range(5):
            if i == 4: a2 += [f's_add_u32 s41, s41, 4096']
            a2 += [f'buffer_load_dwordx4 {v(warm_dst + 4*(i%(2 if cfg.hlds else 4)), 4)}, v{vDma}, s[{sW}:{sW+3}], s41 offen offset:{1024*(i%4)}']
    a2 += [f's_add_u32 s{sDst}, s{sWoff}, 98304', f's_add_u32 s{sDstSum}, s{sWoff}, 147456',
           f's_add_u32 s{sSrc}, s{sWoff}, 98304', f's_mov_b32 s{sRd}, 0', f's_mov_b32 s{sPass}, 0']
    return a2

def x_first_loads(cfg):
    out = []
    for p in range(3):
        out.append(f's_add_u32 s{sT2}, s{sBX}, {cfg.xps*p}')
        for s in range(6):
            out.append(f'buffer_load_dwordx4 {a(pxreg(p,s), 4)}, v{vG}, s[{sX}:{sX+3}], s{sT2} offen offset:{64*s}' + (' nt' if cfg.nt_x else ''))
    return out

def m_g1_first(cfg, early=False):
    D = cfg.D
    g1 = g1_groups(-1)
    if early: g1 = [(off - 12288, ms) for off, ms in g1]
    lst = [f'v_add_u32 v4, {0 if early else 98304}, v{vLds}']
    for g in range(6):
        lst.append(f'ds_read_b128 {a(wbuf(g),4)}, v4 offset:{g1[g][0]}')
    for g in range(12):
        if g % 2 == 0: lst.append(f's_waitcnt lgkmcnt({min(4, 10 - g) if g < 10 else 0})' if g <= 6 else f's_waitcnt lgkmcnt({max(0, 10 - g)})')
        for m in g1[g][1]: lst.append(m(wbuf(g)))
        if g + 6 < 12: lst.append(f'ds_read_b128 {a(wbuf(g+6),4)}, v4 offset:{g1[g+6][0]}')
    lst += ['s_waitcnt lgkmcnt(0)'] + ([] if early else ['s_barrier'])
    nxt = g1_groups(0)
    for g in range(D): lst.append(f'ds_read_b128 {a(wbuf(g),4)}, v{vLds} offset:{nxt[g][0]}')
    lst.append(f's_waitcnt lgkmcnt({D-cfg.wevery})')
    if cfg.static_ring: lst += [f'v_add_u32 v{vLdsS[1]}, 49152, v{vDma}'] + ([] if cfg.hlds else [f'v_add_u32 v{vLdsS[2]}, 98304, v{vDma}'])
    return lst

HB = 98304
vHl, vH2 = 5, 240
def h2_to_lds(y0):
    out = [f's_lshl_b32 s{sT}, s40, 14', f's_add_u32 s{sT}, s{sT}, {HB}', f'v_add_u32 v{vHl}, s{sT}, v{vDma}']
    for i in range(16): out.append(f'ds_write_b128 v{vHl}, {v(y0 + 4*i, 4)} offset:{1024*i}')
    for i in range(8): out.append(f'v_mov_b32 v{vH2+i}, v{y0+64+i}')
    return out
def h_switch(L):
    mv = [f'v_accvgpr_mov_b32 a{H0+i}, a{PF0+i}' for i in range(72)]
    ld = [f'ds_read_b128 {a(H0 + 4*i, 4)}, v{vHl} offset:{1024*i}' for i in range(16)]
    ld += [f'v_accvgpr_write_b32 a{H0+64+i}, v{vH2+i}' for i in range(8)] + ['s_waitcnt lgkmcnt(0)']
    return [f's_cmp_eq_u32 s{sPass}, 0', f's_cbranch_scc1 {L}_hs0', f's_cmp_eq_u32 s{sPass}, 1', f's_cbranch_scc0 {L}_hsd'] + ld + [f's_branch {L}_hsd', f'{L}_hs0:'] + mv + [f'{L}_hsd:']

def m_main(cfg, L):
    P = []
    adv = [f's_add_u32 s{sDst}, s{sDst}, 49152', f's_cmp_ge_u32 s{sDst}, s{sDstSum}', f's_cselect_b32 s{sT}, 147456, 0', f's_sub_u32 s{sDst}, s{sDst}, s{sT}',
           f's_add_u32 s{sSrc}, s{sSrc}, 49152',
           f's_cmp_ge_u32 s{sSrc}, {W_BYTES}',
           f's_cselect_b32 s{sT}, {W_BYTES}, 0',
           f's_sub_u32 s{sSrc}, s{sSrc}, s{sT}']
    st = [st_op(cfg, i) for i in range(18)]
    hl = [h_op(cfg, i) for i in range(18)] if not cfg.hlds else []
    xl = [x_op(cfg, i) for i in range(18)]
    pools = {'s': st, 'h': hl, 'x': xl}
    extras = [[pools[ch].pop(0).split('\n') for ch in cfg.plan[J]] for J in range(12)]
    assert not st and not hl and not xl
    assert (not cfg.sub) or all(len(extras[J]) == 5 for J in range(1, 11))
    xp = lambda J: cfg.xposJ.get(J, cfg.xpos)
    assert not extras[11] and all(len(e) <= len(xp(J)) for J, e in enumerate(extras))
    assert all(q >= 24 for q in xp(0)[:len(extras[0])])
    setup = [f's_cmp_eq_u32 s{sPass}, 0'] + ([f's_cselect_b64 s[{sHx}:{sHx+1}], 0, -1'] if cfg.hskip else []) + [
             f's_cselect_b32 s{sSt}, {hex(OOB)}, s{sB1}',
             f's_add_u32 s{sSt+1}, s{sSt}, {cfg.xps}', f's_add_u32 s{sSt+2}, s{sSt}, {2*cfg.xps}',
             f's_add_u32 s{sLd}, s{sB}, 73728', f's_add_u32 s{sLx}, s{sBX}, {cfg.xts}',
             f's_cmp_eq_u32 s{sPass}, 2',
             f's_cselect_b32 s{sLd}, {hex(OOB)}, s{sLd}', f's_cselect_b32 s{sLx}, {hex(OOB)}, s{sLx}',
             f's_add_u32 s{sLd+1}, s{sLd}, 6144', f's_add_u32 s{sLd+2}, s{sLd}, 12288',
             f's_add_u32 s{sLx+1}, s{sLx}, {cfg.xps}', f's_add_u32 s{sLx+2}, s{sLx}, {2*cfg.xps}',
             f's_add_u32 s{sLdH}, s{sLd}, 4096', f's_add_u32 s{sLdH+1}, s{sLd+1}, 4096', f's_add_u32 s{sLdH+2}, s{sLd+2}, 4096']
    if cfg.rend:
        setup = [f's_add_u32 s{sT2}, s{sB}, {2*73728}', f's_cmp_eq_u32 s{sPass}, 0', f's_cselect_b64 s[{sHx}:{sHx+1}], 0, -1',
                 f's_cselect_b32 s{sSt}, s{sT2}, s{sB1}', f's_mov_b32 s{sT2}, {cfg.xps}', f's_cselect_b32 s{sT2}, 6144, s{sT2}',
                 f's_cselect_b32 s{sO}, s{sH}, s98', f's_cselect_b32 s{sO+1}, s{sH+1}, s99',
                 f's_add_u32 s{sSt+1}, s{sSt}, s{sT2}', f's_add_u32 s{sSt+2}, s{sSt+1}, s{sT2}',
                 f's_add_u32 s{sLd}, s{sB}, 73728', f's_cmp_eq_u32 s{sPass}, 2', f's_cselect_b32 s{sLd}, {hex(OOB)}, s{sLd}',
                 f's_add_u32 s{sLd+1}, s{sLd}, 6144', f's_add_u32 s{sLd+2}, s{sLd}, 12288',
                 f's_mov_b32 s{sLx}, s{sBX}', f's_add_u32 s{sLx+1}, s{sLx}, {cfg.xps}', f's_add_u32 s{sLx+2}, s{sLx}, {2*cfg.xps}']
        if cfg.hlds:
            setup = [f's_cmp_eq_u32 s{sPass}, 0', f's_cselect_b32 s{sSt}, {hex(OOB)}, s{sB1}',
                     f's_add_u32 s{sSt+1}, s{sSt}, {cfg.xps}', f's_add_u32 s{sSt+2}, s{sSt}, {2*cfg.xps}',
                     f's_mov_b32 s{sLx}, s{sBX}', f's_add_u32 s{sLx+1}, s{sLx}, {cfg.xps}', f's_add_u32 s{sLx+2}, s{sLx}, {2*cfg.xps}']
        elif cfg.hout:
            setup = [f's_add_u32 s{sT2}, s{sBX}, {2*cfg.xts}', f's_cmp_eq_u32 s{sPass}, 0', f's_cselect_b64 s[{sHx}:{sHx+1}], 0, -1',
                     f's_cselect_b32 s{sSt}, s{sT2}, s{sB1}',
                     f's_add_u32 s{sSt+1}, s{sSt}, {cfg.xps}', f's_add_u32 s{sSt+2}, s{sSt}, {2*cfg.xps}',
                     f's_add_u32 s{sLd}, s{sBX}, {cfg.xts}', f's_cmp_eq_u32 s{sPass}, 2', f's_cselect_b32 s{sLd}, {hex(OOB)}, s{sLd}',
                     f's_add_u32 s{sLd+1}, s{sLd}, {cfg.xps}', f's_add_u32 s{sLd+2}, s{sLd}, {2*cfg.xps}',
                     f's_mov_b32 s{sLx}, s{sBX}', f's_add_u32 s{sLx+1}, s{sLx}, {cfg.xps}', f's_add_u32 s{sLx+2}, s{sLx}, {2*cfg.xps}']
    moves = [f'v_accvgpr_mov_b32 a{H0+i}, a{PF0+i}' for i in range(72)]
    parts = []
    for J in range(12):
        DTAG[0] = f'd{J}'
        ea = {47: list(adv) if not cfg.static_ring else []}
        kw = dict(extra_at=ea, bar_wait=[f'WAITVM:d{(J - (0 if cfg.hlds else 1)) % 12}'])
        pre = cstamp(cfg, J)
        if J == 0:
            for k_, op in enumerate(extras[0]): ea.setdefault(xp(0)[k_], []).extend(op)
            if cfg.rend:
                kw['mid'] = [f's_cmp_eq_u32 s{sPass}, 0', f's_cbranch_scc1 {L}_nomid', 'WAITVM:x'] + mid_block_rend(cfg) + [f'{L}_nomid:']
            else:
                kw['mid'] = ['WAITVM:x', f's_waitcnt vmcnt({cfg.mid_vm})' if not cfg.diag_nodma else 's_waitcnt vmcnt(0)'] + mid_block(cfg)
            pre = pre + setup
        elif J <= 10:
            if cfg.sub: pre = pre + sum(extras[J], [])
            else:
                for k_, op in enumerate(extras[J]): ea.setdefault(xp(J)[k_], []).extend(op)
        if J == 11:
            if cfg.hlds: kw['mid'] = h_switch(L)
            else:
                kw['extra_valu'] = {0: (13, 24, moves)}
                ea.setdefault(12, []).append('WAITVM:h')
        parts.append((pre, superstep(cfg, 2 * J, **kw)))
    DTAG[0] = 'dma'
    endp = cstamp(cfg, 12) + [f's_mov_b32 s{sB1}, s{sBX}', f's_add_u32 s{sB}, s{sB}, 73728', f's_add_u32 s{sBX}, s{sBX}, {cfg.xts}', f's_add_u32 s{sPass}, s{sPass}, 1']
    seq = []
    for J, (pre, body) in enumerate(parts): seq += pre + [f';BEGIN{J}'] + body + [f';END{J}']
    seq += endp
    res = resolve_vm(seq, seq, ('h',) if cfg.hskip else ())
    def part(J):
        i0 = res.index(f';BEGIN{J}'); i1 = res.index(f';END{J}')
        return res[i0 + 1:i1]
    strip = lambda l: [x.split(' ;@')[0] for x in l]
    bodies = [strip(part(J)) for J in range(12)]
    def barwait(b):
        i = b.index('s_barrier'); return i - 1, int(b[i - 1].split('(')[1][:-1])
    if cfg.diag_nodma: assert not cfg.sub
    if cfg.sub:
        ns = [barwait(bodies[J])[1] for J in range(1, 11)]
        nmin = min(ns)
        gen_body = list(bodies[2]); gen_body[barwait(gen_body)[0]] = f's_waitcnt vmcnt({nmin})'
        for J in range(1, 11):
            b = list(bodies[J]); b[barwait(b)[0]] = f's_waitcnt vmcnt({nmin})'
            assert b == gen_body, J
    P += ['.p2align 6', f'{L}_pass:']
    trace = []
    for J in range(12):
        pre = strip(parts[J][0])
        if 1 <= J <= 10 and cfg.sub:
            P += pre + [f's_call_b64 s[{sRet}:{sRet+1}], {L}_body']
            trace += [x for x in pre if not x.endswith(':')] + gen_body
        else:
            b = bodies[J]
            P += pre + b
            trace += [x for x in pre + b if not x.endswith(':')]
    P += endp; trace += endp
    P += [f's_cmp_lt_u32 s{sPass}, 3', f's_cbranch_scc1 {L}_pass']
    tail = ['s_waitcnt lgkmcnt(0)']
    g2 = g2_groups(24)
    for g in range(6): tail.append(f'ds_read_b128 {a(wbuf(g),4)}, v{vLds} offset:{g2[g][0]}')
    for g in range(12):
        if g % 2 == 0: tail.append(f's_waitcnt lgkmcnt({4 if g <= 6 else max(0, 10 - g)})')
        for m in g2[g][1]: tail.append(m(wbuf(g)))
        if g + 6 < 12: tail.append(f'ds_read_b128 {a(wbuf(g+6),4)}, v{vLds} offset:{g2[g+6][0]}')
    if cfg.rend:
        assert cfg.tail_lds
        tail += ['s_waitcnt vmcnt(12)']
        if not cfg.tail_inter:
            for p in range(3):
                for s_ in range(6): tail += resid_mfmas(p, s_)
    tail += ['s_nop 7']
    tail += tail_epilogue_lds(cfg, sB1) if cfg.tail_lds else tail_epilogue(cfg, sB1)
    P += stamp(cfg, 4)
    P += tail
    P += stamp(cfg, 5)
    sub = (['.p2align 6', f'{L}_body:'] + gen_body + [f's_setpc_b64 s[{sRet}:{sRet+1}]']) if cfg.sub else []
    return P, sub, trace + trace + tail

def gen(cfg, name='mlp_kernel'):
    MF2[0] = 'v_mfma_f32_16x16x32_f16' if cfg.f16 else MF
    P = []; TR = []
    def emit(lst, trace=True):
        P.extend(lst)
        if trace: TR.extend(lst)
    emit(['s_cmp_ge_u32 s2, 256', f's_cbranch_scc1 {name}_done',
          's_load_dwordx2 s[4:5], s[0:1], 0',
          's_load_dwordx2 s[6:7], s[0:1], 32',
          's_load_dwordx2 s[38:39], s[0:1], 48',
          'v_lshrrev_b32 v4, 6, v0', 'v_and_b32 v0, 63, v0', 's_nop 0', 'v_readfirstlane_b32 s40, v4'])
    emit(gelu_consts(cfg) + ident_setup())
    emit(['s_waitcnt lgkmcnt(0)',
        f's_add_u32 s{sW}, s38, {WS_W}', f's_addc_u32 s{sW+1}, s39, 0', f's_mov_b32 s{sW+2}, {W_BYTES}', f's_mov_b32 s{sW+3}, 0x20000',
        f's_add_u32 s{sH}, s38, {WS_H}', f's_addc_u32 s{sH+1}, s39, 0', f's_mov_b32 s{sH+2}, {IMG_BYTES}', f's_mov_b32 s{sH+3}, 0x20000',
        f's_mov_b32 s{sX}, s4', f's_mov_b32 s{sX+1}, s5', f's_mov_b32 s{sX+2}, {IMG_BYTES}', f's_mov_b32 s{sX+3}, 0x20000',
        f's_mov_b32 s{sO}, s6', f's_mov_b32 s{sO+1}, s7', f's_mov_b32 s{sO+2}, {IMG_BYTES}', f's_mov_b32 s{sO+3}, 0x20000',
        f's_mul_i32 s{sB}, s2, {36*6144}', f's_mul_i32 s41, s40, {3*6144}', f's_add_u32 s{sB}, s{sB}, s41', f's_mov_b32 s{sBX}, s{sB}',
        f's_mul_i32 s{sWoff}, s40, 12288'])
    if cfg.prof or cfg.prof2: P.extend([f's_mov_b32 s{i}, 0' for i in range(52, 92)])
    P.extend(stamp(cfg, 0))
    a1, a2, nafter = m_first_dma(cfg)
    emit(a1)
    for p in range(3):
        emit([f's_add_u32 s{sT2}, s{sB}, {6144*p}'])
        for s_ in range(6):
            if s_ == 4: emit([f's_add_u32 s{sT2}, s{sT2}, 4096'])
            emit([f'buffer_load_dwordx4 {a(H0 + 24*p + 4*s_, 4)}, v{vDma}, s[{sH}:{sH+3}], s{sT2} offen offset:{1024*(s_ % 4)}' + (' nt' if cfg.nt_h else '')])
    emit(a2)
    emit([f's_waitcnt vmcnt({nafter})', 's_barrier'])
    emit(x_first_loads(cfg))
    emit(m_g1_first(cfg))
    P.extend(stamp(cfg, 1))
    mp, sub, tr = m_main(cfg, name)
    P += mp; TR += tr
    P += dump_stamps(cfg, 6)
    P += dump_stamps2(cfg, 13)
    if cfg.allwg:
        P = P[:2] + ['s_memrealtime s[98:99]'] + P[2:]
        P += ['s_waitcnt vmcnt(0)', 's_memrealtime s[82:83]', 's_cmp_eq_u32 s40, 0', f's_cbranch_scc0 {name}_done',
              's_waitcnt lgkmcnt(0)', 's_lshl_b32 s3, s2, 3', f's_add_u32 s3, s3, {(200 << 20) + 4096}',
              'v_mov_b32 v4, s98', 'v_mov_b32 v5, s3', 's_nop 1', 'global_store_dword v5, v4, s[38:39]',
              'v_mov_b32 v4, s82', 's_nop 1', 'global_store_dword v5, v4, s[38:39] offset:4']
    P += [f'{name}_done:', 's_endpgm']
    P += sub
    return P, TR

def kd(name, lds=0):
    return f'''.amdhsa_kernel {name}
  .amdhsa_next_free_vgpr 512
  .amdhsa_next_free_sgpr 102
  .amdhsa_accum_offset 256
  .amdhsa_group_segment_fixed_size 0
  .amdhsa_kernarg_size 56
  .amdhsa_user_sgpr_count 2
  .amdhsa_user_sgpr_kernarg_segment_ptr 1
  .amdhsa_system_sgpr_workgroup_id_x 1
  .amdhsa_float_denorm_mode_32 3
.end_amdhsa_kernel
'''
if __name__ == '__main__':
    import asmlib
    P, TR = gen(Cfg)
    asmlib.check(TR, 'k2')
    print(len(P), 'lines', 'alpha', ALPHA, 'c', CC)
```

```python
import k2
from k2 import f2u, ALPHA, WS_W, WS_H, W_BYTES, IMG_BYTES

REC = 544
NBLK = 99
SLAB = NBLK * REC
YB = 2 * SLAB
LDS_BYTES = YB + 2 * 24576
TAPS, ROWS = 400, 3616
DWB = YB

vO16 = 0
vP = 1
vL16 = 2
vZ = 3
vRel = 4
vLw, vLw3, vRd, vY0, vR0, vR1, vA, vB = 8, 9, 10, 11, 12, 13, 14, 15
STS = (16, 80)
BLK = 80
ACC = 120
TMP = 136
Y0 = 144
VO = 216
HOLD = 0
CW = 144
sM, sH, sX, sD = 8, 12, 16, 20
sBase, sIMG, sT, sT2, sSelL, sDS, sDY, sOutN, sTI = 28, 30, 31, 32, 33, 34, 35, 36, 37
sWave, sSelH, sPkF, sPkf = 40, 41, 42, 43
sMaskL, sMaskR = 44, 60
sSt3 = 76
sOnes, sAl, sEps, sInv, sOut, sDR = 92, 93, 94, 95, 96, 97
sDbg = 4
sMk3 = 100
NPACK = 576
NPKWG = 72
STAMP0 = 82

def v(b, n=1): return f'v{b}' if n == 1 else f'v[{b}:{b+n-1}]'
def a(b, n=1): return f'a{b}' if n == 1 else f'a[{b}:{b+n-1}]'
def Wt(k, R, C): return CW + 32 * k + 2 * (4 * R + C)
def blk(row, bc): return BLK + 10 * (row % 4) + 2 * bc
def Y(p, s): return Y0 + 24 * p + 4 * s
M4 = 'v_mfma_f32_4x4x4_16b_bf16'
FULL = (1 << 64) - 1

class Cfg(k2.Cfg):
    f16 = True
    nt_h = True; nt_x = True; nt_o = True
    cx_nt = False
    st_flags = ' nt'
    xps = 147456
    xts = 49152
    light = False
    light2 = False
    light3 = False
    exact_vm = True
    touch = False
    l2tile = 0
    inter = False
    ewarm = False
    otouch = 0
    otouch_on = False
    rend = False
    prog = False
    defer_y = False
    even = None
    allwg = False
    force_fb = False
    ln_pk = True
    light4 = False
    l4sel = '0246'
    spread = 0
    diag_nox = False
    htouch = False
    diag_nost = False
    l3sel = [0, 1, 2, 3, 4]
    early = True
    hskip = True
    spin = 1 << 14
    nosync = False

def setexec(out, cur, val):
    if cur[0] != val:
        out.append(f's_mov_b32 exec_lo, {hex(val & 0xffffffff)}')
        out.append(f's_mov_b32 exec_hi, {hex(val >> 32)}')
        cur[0] = val

def weights_gather(vb):
    out = []
    def reads(k):
        o = []
        for R in range(4):
            for dy in range(2):
                for c in range(4):
                    i = (R * 2 + dy) * 4 + c
                    for dx in range(2):
                        rho, gam = 2 * R + dy, 2 * c + dx
                        o.append(f'ds_read_u16 v{Y0+2*i+dx}, v{vb} offset:{(rho+1)*ROWS + (gam+1)*TAPS + 128*k}')
        return o
    for k in range(3):
        rd = reads(k)
        out += rd[:32] + rd[32:] + ['s_waitcnt lgkmcnt(15)']
        for half in range(2):
            if half == 1: out.append('s_waitcnt lgkmcnt(0)')
            for i in range(16 * half, 16 * half + 16):
                if half == 0 and i == 8: out.append('s_waitcnt lgkmcnt(15)')
                R, dy, c = i // 8, (i // 4) % 2, i % 4
                out.append(f'v_lshl_or_b32 v{Y0+2*i}, v{Y0+2*i+1}, 16, v{Y0+2*i}')
                out.append(f'v_accvgpr_write_b32 a{Wt(k,R,c)+dy}, v{Y0+2*i}')
    return out

def vo(r, dy, dx): return VO + 4 * r + 2 * dy + dx
def tile_offsets():
    out = []
    for dx in range(2):
        for r in range(4):
            l, rr = sMaskL + 2 * (2 * r + dx), sMaskR + 2 * (2 * r + dx)
            out += [f's_mov_b64 s[24:25], -1' if r < 3 else f's_or_b64 s[24:25], s[{l}:{l+1}], s[{rr}:{rr+1}]',
                    f's_cmp_eq_u32 s27, 0', f's_cselect_b64 s[24:25], s[{l}:{l+1}], s[24:25]',
                    f's_cmp_eq_u32 s27, 23', f's_cselect_b64 s[24:25], s[{rr}:{rr+1}], s[24:25]']
            for dy in range(2):
                t = vo(r, dy, dx)
                out += [f's_add_u32 s26, s{sBase}, {147456*dy + 384*dx}', f'v_add_u32 v{t}, s26, v{vRel+r}', f'v_cmp_gt_u32 vcc, s{sIMG}, v{t}',
                        f's_and_b64 vcc, vcc, s[24:25]', f'v_cndmask_b32 v{t}, 2.0, v{t}, vcc']
    return out
def load_items(cfg, stage, sset):
    nt = ' nt' if cfg.cx_nt else ''
    its = []
    for r in range(4):
        for dy in range(2):
            for dx in range(2):
                if r < 3: its.append([f'buffer_load_dwordx4 {v(STS[sset] + 16 * r + 4 * (2 * dy + dx), 4)}, v{vo(r,dy,dx)}, s[{sX}:{sX+3}], 0 offen offset:{128*stage}{nt} ;@l{r}'])
                else: its.append([f'buffer_load_dword v{STS[sset] + 48 + 2 * dy + dx}, v{vo(r,dy,dx)}, s[{sX}:{sX+3}], 0 offen offset:{128*stage}{nt} ;@l{r}'])
    return its
def store_items(cfg, k):
    if cfg.rend: return []
    its = []
    for s, sb in ((k, sSt3), (3 + k, sSt3 + 3)):
        for p in range(3):
            its.append([f'buffer_store_dwordx4 {a(HOLD + 24*p + 4*s, 4)}, v{vL16}, s[{sH}:{sH+3}], s{sb+p} offen offset:{1024*(s % 3)}{cfg.st_flags} ;@s'])
    return [its[0], its[3], its[1], its[4], its[2], its[5]]

def transpose_unit(r, d, sset):
    t = TMP
    if r == 3:
        if d > 0: return []
        L = lambda dy, dx: STS[sset] + 48 + 2 * dy + dx
        return [f'v_perm_b32 v{t}, v{L(0,1)}, v{L(0,0)}, s{sSelL}', f'v_perm_b32 v{t+1}, v{L(1,1)}, v{L(1,0)}, s{sSelL}',
                f'v_perm_b32 v{t+2}, v{L(0,1)}, v{L(0,0)}, s{sSelH}', f'v_perm_b32 v{t+3}, v{L(1,1)}, v{L(1,0)}, s{sSelH}',
                f's_mov_b64 exec, s[{sMk3}:{sMk3+1}]', f'ds_write_b128 v{vLw3}, {v(t,4)}', 's_mov_b64 exec, -1']
    L = lambda dy, dx: STS[sset] + 16 * r + 4 * (2 * dy + dx) + d
    return [f'v_xad_u32 v{vA}, v{vO16}, {16*d}, v{vLw}',
            f'v_perm_b32 v{t}, v{L(0,1)}, v{L(0,0)}, s{sSelL}',
            f'v_perm_b32 v{t+1}, v{L(1,1)}, v{L(1,0)}, s{sSelL}',
            f'v_perm_b32 v{t+2}, v{L(0,1)}, v{L(0,0)}, s{sSelH}',
            f'v_perm_b32 v{t+3}, v{L(1,1)}, v{L(1,0)}, s{sSelH}',
            f'ds_write_b128 v{vA}, {v(t,4)} offset:{32 * REC * r + 128*d}']

def yout(py):
    out = []
    a0 = ACC + 8 * (py & 1); a1 = a0 + 4
    t = TMP + 4
    for oy in range(2):
        out.append(f'v_cvt_pk_bf16_f32 v{t+2*oy}, v{a0+2*oy}, v{a0+2*oy+1}')
        out.append(f'v_cvt_pk_bf16_f32 v{t+2*oy+1}, v{a1+2*oy}, v{a1+2*oy+1}')
        out.append(f'ds_write_b64 v{vY0}, {v(t+2*oy,2)} offset:{(2*py+oy)*2048}')
    return out

def row_reads(br):
    return [f'ds_read_b64 {v(blk(br,bc),2)}, v{vRd} offset:{(br*11+bc)*REC}' for bc in range(5)]

SPREAD = [3]
INTER = [False]
PROG = [False]
DEFPOS = [66]
sl2x = lambda n: (n // 16, n % 16)
EVEN = [None]
EVENS = {
 'a': dict(u0=[4, 12, 18], l0=[22, 24, 26, 28], u1=[30, 36, 41, 46], l1=[50, 52, 54, 56], u2=[58, 62, 67, 72], l2=[75, 77, 79, 81], u3=83, l3=[86, 87, 88, 89], s=[14, 33, 44, 65, 70, 91]),
 'b': dict(u0=[1, 5, 13], l0=[16, 17, 22, 24], u1=[28, 30, 32, 38], l1=[44, 46, 48, 49], u2=[54, 60, 62, 64], l2=[70, 74, 76, 78], u3=80, l3=[82, 83, 84, 85], s=[14, 40, 66, 87, 89, 91]),
}
def yin(k):
    o = []
    for p in range(3):
        for sp in range(2):
            for h in range(2):
                o.append(f'ds_read_b64_tr_b16 {v(Y(p,2*k+sp)+2*h,2)}, v{vR0 if h == 0 else vR1} offset:{p*2048 + sp*1024}')
    return o, [f'v_add_u32 v{vR0}, s{sDR}, v{vR0}', f'v_add_u32 v{vR1}, s{sDR}, v{vR1}', f's_sub_u32 s{sDR}, 0, s{sDR}']

def conv_stage(k, sset, items, stores, transp=True, xtra=(), defer=None):
    out = []
    fifo = []
    issued = {}
    def emit_lds(t, tag):
        out.append(t); fifo.append(tag); issued[tag] = issued.get(tag, 0) + 1
    def need(tag):
        assert issued.get(tag, 0) == 5, ('row not fully requested before use', tag)
        idx = [i for i, x in enumerate(fifo) if x == tag]
        if idx:
            n = len(fifo) - 1 - idx[-1]
            out.append(f's_waitcnt lgkmcnt({min(n,15)})')
            del fifo[:idx[-1] + 1]
    tagof = lambda t: ('w' if t.startswith('ds_') else None)
    NUP = 2 if PROG[0] else 4
    for br in range(NUP):
        for t in row_reads(br): emit_lds(t, ('row', br))
    if transp:
        out.append('WAITL:0')
        for t in transpose_unit(0, 0, sset):
            if tagof(t): emit_lds(t, 'w')
            else: out.append(t)
    fill = {(py, i): [] for py in range(6) for i in range(16)}
    for br in range(NUP, 4):
        for i, t in enumerate(row_reads(br)): fill[(0, 3 * (br - NUP) + i // 2)].append((t, ('row', br)))
    if defer is not None:
        rd, tg = yin(defer)
        for i, t in enumerate(rd): fill[sl2x(DEFPOS[0] + 2 * i)].append((t, 'w'))
        for t in tg: fill[sl2x(DEFPOS[0] + 2 * len(rd))].append((t, None))
    for py in range(6):
        if py > 0:
            for t, p_ in zip(yout(py - 1), [2, 2, 3, 4, 4, 5]): fill[(py, p_)].append((t, tagof(t)))
        if py + 4 <= 8:
            for i, t in enumerate(row_reads(py + 4)): fill[(py, 7 + i)].append((t, ('row', py + 4)))
    sl2 = lambda n: (n // 16, n % 16)
    if EVEN[0]:
        upos = {0: [None] + [sl2(n) for n in EVEN[0]['u0']], 1: [sl2(n) for n in EVEN[0]['u1']], 2: [sl2(n) for n in EVEN[0]['u2']], 3: [sl2(EVEN[0]['u3'])] * 4}
        lpos = {r: [sl2(n) for n in EVEN[0][f'l{r}']] for r in range(4)}
        spos = [sl2(n) for n in EVEN[0]['s']]
    else:
        upos = {0: [None, (0, 1), (0, 3), (0, 5)], 1: [(1, 6), (1, 8), (1, 12), (1, 14)], 2: [(2, 6), (2, 8), (2, 12), (2, 14)], 3: [(3, 6), (3, 8), (3, 12), (3, 14)]}
        lpos = {0: [(0, 12), (0, 14), (1, 0), (1, 1)], 1: [(1, 15), (2, 0), (2, 1), (2, 5)], 2: [(2, 15), (3, 0), (3, 1), (3, 5)], 3: [(3, 15), (4, 0), (4, 1), (4, 6)]}
        spos = [(0, 7), (0, 10), (4, 8), (4, 12), (5, 0), (5, 6)]
    for r in range(4):
        if transp:
            if r > 0: fill[upos[r][0]].append((f'WAITL:{r}', None))
            for d in range(4):
                if upos[r][d] is None: continue
                for t in transpose_unit(r, d, sset): fill[upos[r][d]].append((t, tagof(t)))
        for i in range(4):
            if 4 * r + i < len(items):
                for t in items[4 * r + i]: fill[lpos[r][i]].append((t, None))
    for it, pos in zip(stores, spos):
        for t in it: fill[pos].append((t, None))
    for i, it in enumerate(xtra):
        sl = 2 + 6 * i
        for t in it: fill[(sl // 16, sl % 16)].append((t, None))
    seq = []
    for py in range(6):
        for idx in range(16):
            grp = []
            for t, tag in fill[(py, idx)]:
                grp.append((t, tag))
                glue = t.startswith(('s_mov_b64 exec, s[', 's_add_u32 m0', 's_nop', 'WAITL', 'v_cmp', 's_and_b64')) or (t.startswith('s_add_u32 s') )
                if t.startswith('ds_write_b128') and len(grp) >= 2 and grp[-2][0].startswith('s_mov_b64 exec, s['): glue = True
                if not glue:
                    seq.append((16 * py + idx, grp)); grp = []
            if grp: seq.append((16 * py + idx, grp))
    qi = 0
    ismem = lambda t: t.startswith(('ds_', 'buffer_'))
    isvalu = lambda t: t.startswith('v_') and not t.startswith('v_mfma')
    real = lambda: [t for t in out if not t.startswith(';')]
    lastpos = {}
    nis = [0]
    def put(t, tag=None):
        if tag: emit_lds(t, tag)
        else: out.append(t)
        if not t.startswith(';'): nis[0] += 1
    def emit_group():
        nonlocal qi
        for t, tag in seq[qi][1]: put(t, tag)
        qi += 1
    def first_real(grp):
        for t, _ in grp:
            if not t.startswith(('s_', 'WAITL')): return t
        return grp[0][0]
    for py in range(6):
        for idx in range(16):
            R, C = divmod(idx, 4)
            sl = 16 * py + idx
            if idx == 0 and py in (0, 2, 4): out.append(f';MARK{py}')
            if C == 0:
                n0 = len(out); need(('row', py + R)); nis[0] += len(out) - n0
            for px in range(2):
                aa = ACC + 8 * (py & 1) + 4 * px
                c = '0' if idx == 0 else v(aa, 4)
                if idx == 0 and py >= 2:
                    pendcvt = [t for _, g in seq[qi:] for t, _ in g if t.startswith('v_cvt_pk_bf16') and f'v{aa},' in t + ',' and False]
                    assert not any(t.startswith('v_cvt_pk_bf16') and any(f' v{aa+j},' in t or t.endswith(f' v{aa+j}') for j in range(4)) and e <= 16 * (py - 1) + 15 for e, g in seq[qi:] for t, _ in g), 'yout too late'
                if idx > 0 and nis[0] - lastpos[aa] - 1 < 2: put('s_nop 0')
                if idx > 0 and nis[0] - lastpos[aa] - 1 < 2: put('s_nop 0')
                lastpos[aa] = nis[0]
                put(f'{M4} {v(aa,4)}, {a(Wt(k,R,C),2)}, {v(blk(py+R, px+C),2)}, {c}')
                if not INTER[0] and px == 0: continue
                prev_valu = False
                if qi < len(seq) and seq[qi][0] <= sl:
                    g0 = seq[qi][1]; emit_group(); prev_valu = isvalu(g0[-1][0])
                if px == 1:
                    while qi < len(seq) and seq[qi][0] <= sl and (seq[qi][0] <= sl - SPREAD[0] or sl == 95):
                        late = seq[qi][0] <= sl - SPREAD[0] - 3 or sl == 95
                        if INTER[0] and prev_valu and ismem(first_real(seq[qi][1])) and not late: break
                        g0 = seq[qi][1]; emit_group(); prev_valu = isvalu(g0[-1][0])
    assert qi == len(seq)
    out += [';MARK6', 's_nop 4'] + yout(5)
    return out

def resolve_l(stages):
    seq = []
    for si in range(3):
        for st in stages: seq.append(st)
    fifo = []
    need = {r: [] for r in range(4)}
    for si, st in enumerate(seq):
        for t in st:
            if t.startswith('WAITL:'):
                r = int(t[6:])
                if si >= 1:
                    idx = max(i for i, x in enumerate(fifo) if x == (si - 1, f'l{r}'))
                    need[r].append(len(fifo) - 1 - idx)
            elif ';@' in t: fifo.append((si, t.split(';@')[1].strip()))
    return {r: min(x) for r, x in need.items()}

def ln_block(cfg):
    NP = 3
    out = []
    t = ACC
    s1 = [t + p for p in range(NP)]; s2 = [t + 3 + p for p in range(NP)]
    for i in range(24):
        for p in range(NP):
            r = Y0 + 24 * p + i
            c1 = '0' if i == 0 else f'v{s1[p]}'; c2 = '0' if i == 0 else f'v{s2[p]}'
            out.append(f'v_dot2_f32_bf16 v{s1[p]}, v{r}, s{sOnes}, {c1}')
            out.append(f'v_dot2_f32_bf16 v{s2[p]}, v{r}, v{r}, {c2}')
    out.append('s_nop 2')
    allr = s1 + s2
    tm = [t + 12 + i for i in range(len(allr))]
    for sw in ('v_permlane16_swap_b32', 'v_permlane32_swap_b32'):
        for r, q in zip(allr, tm): out.append(f'v_mov_b32 v{q}, v{r}')
        out.append('s_nop 1')
        for r, q in zip(allr, tm): out.append(f'{sw} v{q}, v{r}')
        out.append('s_nop 1')
        for r, q in zip(allr, tm): out.append(f'v_add_f32 v{r}, v{r}, v{q}')
    rs = [t + 6 + 2 * p for p in range(NP)]; nb = [t + 18 + 2 * p for p in range(NP)]
    for p in range(NP): out.append(f'v_mul_f32 v{s1[p]}, s{sInv}, v{s1[p]}')
    for p in range(NP): out.append(f'v_mul_f32 v{s2[p]}, s{sInv}, v{s2[p]}')
    for p in range(NP): out.append(f'v_fma_f32 v{s2[p]}, -v{s1[p]}, v{s1[p]}, v{s2[p]}')
    for p in range(NP): out.append(f'v_max_f32 v{s2[p]}, 0, v{s2[p]}')
    for p in range(NP): out.append(f'v_add_f32 v{s2[p]}, s{sEps}, v{s2[p]}')
    for p in range(NP): out.append(f'v_rsq_f32 v{rs[p]}, v{s2[p]}')
    out.append('s_nop 0')
    for p in range(NP): out.append(f'v_mul_f32 v{rs[p]}, s{sAl}, v{rs[p]}')
    for p in range(NP): out.append(f'v_mul_f32 v{nb[p]}, -v{s1[p]}, v{rs[p]}')
    k = 0
    for p in range(NP):
        for s in range(6):
            for d in range(4):
                r = Y(p, s) + d
                x0 = t + 12 + 2 * (k % 3); x1 = x0 + 1; k += 1
                out.append(f'v_lshlrev_b32 v{x0}, 16, v{r}')
                out.append(f'v_and_b32 v{x1}, 0xffff0000, v{r}')
                if cfg.ln_pk:
                    out.append(f'v_pk_fma_f32 v[{x0}:{x1}], v[{x0}:{x1}], v[{rs[p]}:{rs[p]+1}], v[{nb[p]}:{nb[p]+1}] op_sel_hi:[1,0,0]')
                else:
                    out.append(f'v_fma_f32 v{x0}, v{x0}, v{rs[p]}, v{nb[p]}')
                    out.append(f'v_fma_f32 v{x1}, v{x1}, v{rs[p]}, v{nb[p]}')
                out.append(f'v_cvt_pk_bf16_f32 v{r}, v{x0}, v{x1}')
    return out

def pack_loads(lab, dst, t, lane):
    out = [f's_mul_hi_u32 s46, s{sPkF}, {(1 << 32) // 24 + 1}',
           f's_mul_i32 s47, s46, 24', f's_sub_u32 s{sPkf}, s{sPkF}, s47',
           f'v_and_b32 v{t}, 15, v{lane}', f'v_lshrrev_b32 v{t+1}, 4, v{lane}',
           f's_cmp_lt_u32 s{sPkf}, 12', f's_cbranch_scc0 {lab}_pk2']
    out += [f's_add_u32 s48, s46, 1', f's_cmp_eq_u32 s48, 24', f's_cselect_b32 s48, 0, s48',
            f's_lshr_b32 s49, s{sPkf}, 1', f's_and_b32 s50, s{sPkf}, 1',
            f's_lshl_b32 s48, s48, 6', f's_lshl_b32 s50, s50, 5', f's_add_u32 s48, s48, s50',
            f's_mul_i32 s49, s49, {32*1536}', f's_add_u32 s48, s48, s49',
            f'v_mul_u32_u24 v{t+2}, {8*1536}, v{t+1}', f'v_lshl_add_u32 v{t+2}, v{t}, 1, v{t+2}',
            f's_mov_b32 s{sM}, s52', f's_mov_b32 s{sM+1}, s53', f's_mov_b32 s{sM+2}, {192*768*2}', f's_mov_b32 s{sM+3}, 0x20000']
    for e in range(8):
        out.append(f's_add_u32 s49, s48, {e*1536}')
        out.append(f'buffer_load_ushort v{dst+e}, v{t+2}, s[{sM}:{sM+3}], s49 offen')
    out += [f's_branch {lab}_pk3', f'{lab}_pk2:']
    out += [f's_add_u32 s48, s46, 23', f's_cmp_ge_u32 s48, 24', f's_cselect_b32 s49, 24, 0', f's_sub_u32 s48, s48, s49',
            f's_sub_u32 s49, s{sPkf}, 12', f's_lshr_b32 s50, s49, 1', f's_and_b32 s49, s49, 1',
            f's_mul_i32 s48, s48, {32*384}', f's_lshl_b32 s50, s50, 6', f's_lshl_b32 s49, s49, 3',
            f's_add_u32 s48, s48, s50', f's_add_u32 s48, s48, s49',
            f'v_lshrrev_b32 v{t+3}, 2, v{t}', f'v_lshlrev_b32 v{t+3}, 4, v{t+3}',
            f'v_and_b32 v{t+4}, 3, v{t}', f'v_lshl_add_u32 v{t+3}, v{t+4}, 1, v{t+3}',
            f'v_mul_u32_u24 v{t+2}, {4*384}, v{t+1}', f'v_add_u32 v{t+2}, v{t+2}, v{t+3}',
            f's_mov_b32 s{sM}, s54', f's_mov_b32 s{sM+1}, s55', f's_mov_b32 s{sM+2}, {192*768*2}', f's_mov_b32 s{sM+3}, 0x20000']
    for e in range(8):
        out.append(f's_add_u32 s49, s48, {(16*(e>>2) + (e&3))*384}')
        out.append(f'buffer_load_ushort v{dst+e}, v{t+2}, s[{sM}:{sM+3}], s49 offen')
    out += [f'{lab}_pk3:']
    return out

def pack_store(lab, cfg, src, dst):
    out = []
    for d in range(4): out.append(f'v_lshl_or_b32 v{dst+d}, v{src+2*d+1}, 16, v{src+2*d}')
    if cfg.f16:
        out += [f's_cmp_lt_u32 s{sPkf}, 12', f's_cbranch_scc1 {lab}_pk5']
        for e in range(8): out.append(f'v_lshlrev_b32 v{src+e}, 16, v{src+e}')
        for d in range(4): out.append(f'v_cvt_pk_f16_f32 v{dst+d}, v{src+2*d}, v{src+2*d+1}')
        out.append(f'{lab}_pk5:')
    out += [f's_add_u32 s{sM}, s38, {WS_W}', f's_addc_u32 s{sM+1}, s39, 0', f's_mov_b32 s{sM+2}, {W_BYTES}', f's_mov_b32 s{sM+3}, 0x20000',
            f's_lshl_b32 s3, s{sPkF}, 10',
            f'buffer_store_dwordx4 {v(dst,4)}, v{vL16}, s[{sM}:{sM+3}], s3 offen sc1']
    return out

def gen(cfg, name='fused_kernel'):
    k2.MF2[0] = 'v_mfma_f32_16x16x32_f16' if cfg.f16 else k2.MF
    SPREAD[0] = cfg.spread
    INTER[0] = cfg.inter
    PROG[0] = cfg.prog
    EVEN[0] = EVENS.get(cfg.even)
    k2.SNAKE[0] = cfg.snake
    P = []; TR = []
    n3 = [0]
    def st3():
        if cfg.light3 and n3[0] in cfg.l3sel:
            j = cfg.l3sel.index(n3[0])
            P.extend([f's_memtime s[{82+2*j}:{83+2*j}]'])
        n3[0] += 1
        if False:
            P.extend(['s_memtime s[102:103]' if False else 's_memtime s[98:99]', 's_waitcnt lgkmcnt(0)', f'v_writelane_b32 v253, s98, {n3[0]}']); n3[0] += 1
    def emit(l, tr=True):
        P.extend(l)
        if tr: TR.extend([x for x in l if not x.endswith(':')])
    emit(['s_cmp_ge_u32 s2, 256', f's_cbranch_scc1 {name}_done'])
    if cfg.allwg: P += ['s_memrealtime s[82:83]']
    if cfg.light: P += ['s_memtime s[6:7]', 's_memrealtime s[8:9]', 's_waitcnt lgkmcnt(0)', 's_mov_b32 s82, s6', 's_mov_b32 s83, s8']
    st3()
    emit(['s_load_dwordx4 s[4:7], s[0:1], 0',
          's_load_dwordx2 s[38:39], s[0:1], 48',
          's_load_dwordx4 s[52:55], s[0:1], 16',
          'v_lshrrev_b32 v1, 6, v0', 'v_and_b32 v0, 63, v0', 's_nop 0',
          f'v_readfirstlane_b32 s{sWave}, v1',
          f's_mov_b32 s{sIMG}, {IMG_BYTES}', f's_mov_b32 s{sOnes}, 0x3f803f80',
          f's_mov_b32 s{sSelL}, 0x05040100', f's_mov_b32 s{sSelH}, 0x07060302',
          f's_mov_b32 s{sAl}, {hex(f2u(ALPHA))}', f's_mov_b32 s{sEps}, {hex(f2u(1e-5))}', f's_mov_b32 s{sInv}, {hex(f2u(1.0/192))}',
          f'v_lshlrev_b32 v{vL16}, 4, v0', f'v_mov_b32 v{vZ}, 0',
          's_waitcnt lgkmcnt(0)',
          f's_mov_b32 s{sX}, s4', f's_mov_b32 s{sX+1}, s5', f's_mov_b32 s{sX+2}, {IMG_BYTES}', f's_mov_b32 s{sX+3}, 0x20000',
          f's_mov_b32 s{sD}, s6', f's_mov_b32 s{sD+1}, s7', f's_mov_b32 s{sD+2}, {49*384}', f's_mov_b32 s{sD+3}, 0x20000',
          f's_add_u32 s{sH}, s38, {WS_H}', f's_addc_u32 s{sH+1}, s39, 0', f's_mov_b32 s{sH+2}, {IMG_BYTES}', f's_mov_b32 s{sH+3}, 0x20000',
          f's_load_dwordx2 s[{sDbg}:{sDbg+1}], s[0:1], 40', f's_mov_b32 s{sTI}, 0'])
    st3()
    t = Y0
    c = []
    for j in range(4):
        c += [f'v_add_u32 v{t}, {64*j}, v0', f'v_mul_u32_u24 v{t+1}, 2622, v{t}', f'v_lshrrev_b32 v{t+1}, 16, v{t+1}',
              f'v_mul_u32_u24 v{t+2}, 25, v{t+1}', f'v_sub_u32 v{t+2}, v{t}, v{t+2}',
              f'v_subrev_u32 v{t+1}, 1, v{t+1}', f'v_cmp_gt_u32 vcc, 7, v{t+1}', f'v_cmp_gt_u32 s[44:45], 24, v{t+2}',
              f'v_mul_u32_u24 v{t+1}, 384, v{t+1}', f'v_lshl_add_u32 v{t+1}, v{t+2}, 4, v{t+1}', f's_and_b64 vcc, vcc, s[44:45]',
              f'v_subrev_u32 v{t+1}, {1024*j}, v{t+1}' if False else 's_nop 0',
              f'v_cndmask_b32 v{t+8+j}, 2.0, v{t+1}, vcc']
    emit(c)
    c = []
    for m in range(3):
        blk_ = [f's_add_u32 s{sT}, s{sWave}, {4*m}', f's_sub_u32 s{sT2}, s{sT}, 1', f's_cmp_lt_u32 s{sT2}, 7', f's_mul_i32 s{sT2}, s{sT2}, {7*384}',
                f's_cselect_b32 s{sT2}, s{sT2}, 0x70000000', f's_mul_i32 s{sT}, s{sT}, {ROWS}', f's_add_u32 s{sT}, s{sT}, {DWB}']
        for j in range(4):
            blk_ += [f's_add_u32 m0, s{sT}, {1024*j}', 's_nop 0']
            if j == 3: blk_ += ['s_mov_b32 exec_hi, 3']
            blk_ += [f'buffer_load_dwordx4 v{t+8+j}, s[{sD}:{sD+3}], s{sT2} offen lds']
            if j == 3: blk_ += ['s_mov_b32 exec_hi, -1']
        if m < 2: c += blk_
        else: c += [f's_cmp_eq_u32 s{sWave}, 0', f's_cbranch_scc0 {name}_nor8'] + blk_ + [f'{name}_nor8:']
    emit(c)
    pk = [f's_mov_b32 s{sPkF}, -1', f's_cmp_lt_u32 s2, {NPKWG if not cfg.force_fb else 0}', f's_cbranch_scc0 {name}_nopk',
          f's_lshl_b32 s44, s2, 3', f's_lshl_b32 s45, s{sWave}, 1', f's_add_u32 s{sPkF}, s44, s45']
    pk += pack_loads(f'{name}_a', Y0 + 32, ACC, 0) + [f's_add_u32 s{sPkF}, s{sPkF}, 1'] + pack_loads(f'{name}_a2', Y0 + 41, ACC, 0) + [f'{name}_nopk:']
    st3()
    if not cfg.nosync: P += pk
    st3()
    c = [f'v_and_b32 v{t}, 7, v0', f'v_lshrrev_b32 v{t+1}, 3, v0']
    for r in range(4):
        if r < 3: c += [f's_lshl_b32 s{sT}, s{sWave}, 3', f's_add_u32 s{sT}, s{sT}, {32*r}', f'v_add_u32 v{t+2}, s{sT}, v{t+1}']
        else:
            c += [f'v_add_u32 v{t+2}, 96, v{t+1}', f'v_cmp_gt_u32 s[{sMk3}:{sMk3+1}], 24, v0']
        c += [f'v_mul_u32_u24 v{t+3}, 745, v{t+2}', f'v_lshrrev_b32 v{t+3}, 13, v{t+3}',
              f'v_mul_u32_u24 v{t+4}, 11, v{t+3}', f'v_sub_u32 v{t+4}, v{t+2}, v{t+4}',
              f'v_mul_u32_u24 v{t+5}, {2*384}, v{t+3}', f'v_lshl_add_u32 v{t+5}, v{t+4}, 1, v{t+5}',
              f'v_mul_u32_u24 v{t+5}, 384, v{t+5}',
              f'v_lshl_add_u32 v{vRel+r}, v{t}, 4, v{t+5}']
        for dx in range(2):
            mL = sMaskL + 2 * (2 * r + dx); mR = sMaskR + 2 * (2 * r + dx)
            c += [f'v_lshl_add_u32 v{t+6}, v{t+4}, 1, {dx}',
                  f'v_cmp_lt_u32 s[{mL}:{mL+1}], 2, v{t+6}', f'v_cmp_gt_u32 s[{mR}:{mR+1}], 19, v{t+6}']
            if r == 3:
                c += ['s_nop 1', f's_and_b64 s[{mL}:{mL+1}], s[{mL}:{mL+1}], s[{sMk3}:{sMk3+1}]', f's_and_b64 s[{mR}:{mR+1}], s[{mR}:{mR+1}], s[{sMk3}:{sMk3+1}]']
        if r == 0: c += [f'v_mul_u32_u24 v{vLw}, {REC}, v{t+2}']
        if r == 3:
            c += [f's_lshl_b32 s{sT}, s{sWave}, 2', f'v_add_u32 v{vRel+3}, s{sT}, v{vRel+3}',
                  f'v_cndmask_b32 v{vRel+3}, 2.0, v{vRel+3}, s[{sMk3}:{sMk3+1}]',
                  f'v_mul_u32_u24 v{vLw3}, {REC}, v{t+2}', f'v_xor_b32 v{t+6}, s{sWave}, v{t}', f'v_lshl_add_u32 v{vLw3}, v{t+6}, 4, v{vLw3}',
                  f's_lshl_b32 s{sT}, s{sWave}, 7', f'v_add_u32 v{vLw3}, s{sT}, v{vLw3}']
    c += [f'v_lshrrev_b32 v{t}, 2, v0', f'v_and_b32 v{t+1}, 3, v0', f'v_lshrrev_b32 v{t+2}, 3, v{t}',
          f's_lshl_b32 s{sT}, s{sWave}, 1',
          f'v_add_u32 v{t+2}, s{sT}, v{t+2}', f'v_bfe_u32 v{t+3}, v{t}, 1, 2', f'v_xor_b32 v{t+4}, v{t+2}, v{t+3}',
          f'v_lshlrev_b32 v{t+4}, 1, v{t+4}', f'v_lshl_add_u32 v{t+4}, v{t+3}, 4, v{t+4}',
          f'v_and_b32 v{t+5}, 1, v{t}', f'v_add_u32 v{t+4}, v{t+4}, v{t+5}', f'v_lshlrev_b32 v{t+4}, 3, v{t+4}',
          f'v_mul_u32_u24 v{t+5}, {2*REC}, v{t+1}', f'v_add_u32 v{vRd}, v{t+4}, v{t+5}']
    c += [f's_lshl_b32 s{sT2}, s{sWave}, 4', f'v_add_u32 v{t+7}, s{sT2}, v{t}',
          f'v_bfe_u32 v{t+8}, v{t+7}, 3, 1', f'v_lshlrev_b32 v{t+8}, 2, v{t+8}', f'v_xor_b32 v{t+7}, v{t+7}, v{t+8}',
          f'v_lshlrev_b32 v{t+7}, 5, v{t+7}', f'v_lshl_add_u32 v{t+7}, v{t+1}, 3, v{t+7}', f'v_add_u32 v{vY0}, {YB}, v{t+7}']
    c += [f'v_lshrrev_b32 v{t}, 4, v0', f'v_bfe_u32 v{t+1}, v0, 2, 2', f'v_and_b32 v{t+2}, 3, v0',
          f's_mul_i32 s{sT}, s{sWave}, {3*2048}', f's_add_u32 s{sT}, s{sT}, {YB}']
    for h, vr in ((0, vR0), (1, vR1)):
        c += [f'v_lshl_add_u32 v{t+3}, v{t}, 3, v{t+1}', f'v_add_u32 v{t+3}, {4*h}, v{t+3}',
              f'v_and_b32 v{t+4}, 1, v{t}', f'v_lshlrev_b32 v{t+4}, 2, v{t+4}', f'v_xor_b32 v{t+3}, v{t+3}, v{t+4}',
              f'v_lshlrev_b32 v{t+3}, 5, v{t+3}', f'v_lshl_add_u32 v{t+3}, v{t+2}, 3, v{t+3}', f'v_add_u32 v{vr}, s{sT}, v{t+3}']
    vb = VO + 15 + 1
    c += [f'v_lshrrev_b32 v{t}, 2, v0', f's_lshl_b32 s{sT}, s{sWave}, 5', f'v_lshlrev_b32 v{t}, 1, v{t}', f'v_add_u32 v{t}, s{sT}, v{t}',
          f'v_bfe_u32 v{t+1}, v0, 1, 1', f'v_mul_u32_u24 v{t+1}, {ROWS}, v{t+1}', f'v_and_b32 v{t+2}, 1, v0', f'v_mul_u32_u24 v{t+2}, {TAPS}, v{t+2}',
          f'v_add_u32 v{t+1}, v{t+1}, v{t+2}', f'v_sub_u32 v{t}, v{t}, v{t+1}', f'v_add_u32 v{vb}, {DWB}, v{t}',
          f'v_and_b32 v{vO16}, 7, v0', f'v_lshlrev_b32 v{vO16}, 4, v{vO16}']
    emit(c)
    tl = [0]
    def tile_setup(fetch):
        o = [f's_sub_u32 s24, 2, {fetch}' if not cfg.rend else f's_mov_b32 s24, {fetch}',
             f's_lshr_b32 s25, s2, 3', f's_lshl_b32 s24, s24, 5', f's_add_u32 s25, s25, s24',
             f's_and_b32 s26, s2, 7', f's_lshl_b32 s26, s26, 2', f's_and_b32 s27, s25, 3', f's_add_u32 s26, s26, s27',
             f's_lshr_b32 s27, s25, 2',
             f's_mul_i32 s24, s26, {12*384}', f's_lshl_b32 s25, s27, 4', f's_add_u32 s24, s24, s25',
             f's_sub_u32 s24, s24, {3*384+3}', f's_mul_i32 s{sBase}, s24, 384',
             f's_cmp_eq_u32 {fetch}, 3', f's_cselect_b32 s{sBase}, 0x60000000, s{sBase}']
        if cfg.diag_nox: o += [f's_mov_b32 s{sBase}, 0x60000000']
        tl[0] += 1; lab = f'{name}_to{tl[0]}'
        fast = []
        for dy in range(2):
            for dx in range(2):
                fast += [f's_add_u32 s24, s{sBase}, {147456*dy + 384*dx}'] + [f'v_add_u32 v{vo(r,dy,dx)}, s24, v{vRel+r}' for r in range(4)]
        o += [f's_sub_u32 s25, s27, 1', f's_cmp_lt_u32 s25, 22', f's_cselect_b32 s25, 1, 0', f's_cmp_eq_u32 s26, 0', f's_cselect_b32 s25, 0, s25',
              f's_cmp_eq_u32 s{sBase}, 0x60000000', f's_cselect_b32 s25, 1, s25', f's_cmp_eq_u32 s25, 0', f's_cbranch_scc1 {lab}_slow']
        return o + fast + [f's_branch {lab}_done', f'{lab}_slow:'] + tile_offsets() + [f'{lab}_done:']
    strip = lambda l: [x.split(' ;@')[0] for x in l]
    def store_bases():
        o = [f's_mul_i32 s25, s2, 3', f's_add_u32 s25, s25, 2', f's_mul_i32 s25, s25, 12', f's_mul_i32 s26, s{sWave}, 3', f's_add_u32 s25, s25, s26',
             f's_mul_i32 s25, s25, 6144', f's_add_u32 s26, s25, 3072',
             f's_cmp_eq_u32 s{sTI}, {1 if not cfg.diag_nost else 9}', f's_cselect_b32 s{sSt3}, s25, 0x70000000',
             f's_cmp_eq_u32 s{sTI}, {2 if not cfg.diag_nost else 9}', f's_cselect_b32 s{sSt3+3}, s26, 0x70000000']
        for b in (sSt3, sSt3 + 3): o += [f's_add_u32 s{b+1}, s{b}, 6144', f's_add_u32 s{b+2}, s{b}, 12288']
        return o
    emit(tile_setup('0'))
    emit(strip(sum(load_items(cfg, 0, 0), [])))
    st3()
    emit(['s_waitcnt vmcnt(16) lgkmcnt(0)'])
    st3()
    emit(['s_barrier'])
    st3()
    if not cfg.nosync:
        P += [f's_cmp_eq_u32 s{sPkF}, -1', f's_cbranch_scc1 {name}_nops'] + pack_store(f'{name}_b', cfg, Y0 + 41, Y0)
        P += [f's_sub_u32 s{sPkF}, s{sPkF}, 1', f's_sub_u32 s{sPkf}, s{sPkf}, 1'] + pack_store(f'{name}_b2', cfg, Y0 + 32, Y0 + 4) + ['s_nop 1', f'{name}_nops:']
    emit(weights_gather(vb))
    st3()
    emit(['s_waitcnt vmcnt(0)'])
    st3()
    emit([f'v_add_u32 v{vLw}, {SLAB}, v{vLw}', f'v_add_u32 v{vLw3}, {SLAB}, v{vLw3}', f'v_add_u32 v{vRd}, {SLAB}, v{vRd}'])
    for r in range(4):
        for d in range(4): emit(transpose_unit(r, d, 0))
    dfr = lambda k: (k - 1 if (cfg.defer_y and k > 0) else None)
    raw = {k: conv_stage(k, 0, load_items(cfg, (k + 2) % 3, 0), store_items(cfg, k), defer=dfr(k)) for k in range(3)}
    nw = resolve_l([raw[0], raw[1], raw[2]])
    fix = lambda l: [(f's_waitcnt vmcnt({nw[int(x[6:])]})' if x.startswith('WAITL:') else x.split(' ;@')[0]) for x in l]
    body = {key: fix(val) for key, val in raw.items()}
    tags = [x.split(';@')[1].strip() for x in raw[0] if ';@' in x]
    tags = tags[[i for i, x in enumerate(tags) if x.startswith('l')][0]:]
    l1 = strip(sum(load_items(cfg, 1, 0), []))
    emit([f's_mov_b32 s{sT}, 0x70000000'])
    for tg in tags:
        emit([l1.pop(0)] if tg.startswith('l') else [f'buffer_store_dword v{vA}, v{vL16}, s[{sH}:{sH+3}], s{sT} offen'])
    assert not l1
    emit([f'v_subrev_u32 v{vLw}, {SLAB}, v{vLw}', f'v_subrev_u32 v{vLw3}, {SLAB}, v{vLw3}', f's_mov_b32 s{sDS}, {-SLAB & 0xffffffff}', f's_mov_b32 s{sDY}, 24576', f's_mov_b32 s{sDR}, 24576',
          's_waitcnt lgkmcnt(0)'])
    st3()
    emit(['s_barrier'])
    st3()
    if not cfg.nosync:
        P += [f's_cmp_eq_u32 s{sPkF}, -1', f's_cbranch_scc1 {name}_nopub', f's_cmp_eq_u32 s{sWave}, 0', f's_cbranch_scc0 {name}_nopub',
              f'v_mov_b32 v{vB}, 1', 's_mov_b32 exec_lo, 1', 's_mov_b32 exec_hi, 0',
              f'global_atomic_add v{vZ}, v{vB}, s[{sDbg}:{sDbg+1}]', 's_mov_b64 exec, -1', f'{name}_nopub:']
    def after(k, vm=None):
        o = ([f's_waitcnt vmcnt({vm})'] if vm is not None else []) + ['s_waitcnt lgkmcnt(0)', 's_barrier']
        if k == 2 or not cfg.defer_y:
            rd, tg = yin(k)
            o += rd + tg
        o += [f'v_add_u32 v{vRd}, s{sDS}, v{vRd}', f'v_subrev_u32 v{vLw}, s{sDS}, v{vLw}', f'v_subrev_u32 v{vLw3}, s{sDS}, v{vLw3}',
              f'v_add_u32 v{vY0}, s{sDY}, v{vY0}',
              f's_sub_u32 s{sDS}, 0, s{sDS}', f's_sub_u32 s{sDY}, 0, s{sDY}']
        return o
    sn = [0]
    def st2():
        if not cfg.light2: return []
        sn[0] += 1
        return [f's_cmp_eq_u32 s{sTI}, {cfg.l2tile}', f's_cbranch_scc0 {name}_s2_{sn[0]}', f's_memtime s[{STAMP0-2+2*((sn[0]-1)%5+1)}:{STAMP0-1+2*((sn[0]-1)%5+1)}]', f'{name}_s2_{sn[0]}:']
    lns = ln_block(cfg)
    K = k2
    emit([f's_mov_b32 s{sTI}, 0'])
    P += ['.p2align 6', f'{name}_tile:']
    P += st2()
    if not cfg.rend: emit(store_bases())
    emit(body[0] + after(0))
    P += st2()
    emit([f's_add_u32 s3, s{sTI}, 1'] + tile_setup('s3'))
    if cfg.ewarm:
        K = k2
        ew = [f's_cmp_eq_u32 s{sTI}, 2', f's_cbranch_scc0 {name}_noew',
              f's_add_u32 s{K.sW}, s38, {WS_W}', f's_addc_u32 s{K.sW+1}, s39, 0', f's_mov_b32 s{K.sW+2}, {W_BYTES}', f's_mov_b32 s{K.sW+3}, 0x20000',
              f's_lshr_b32 s24, s2, 3', f's_and_b32 s24, s24, 7', f's_mul_i32 s24, s24, 73728', f's_mul_i32 s25, s{sWave}, 18432', f's_add_u32 s24, s24, s25',
              f'v_lshlrev_b32 v{vA}, 3, v{vL16}']
        for j in range(3):
            ew += [f's_add_u32 s25, s24, {8192*j}', f'buffer_load_dword v233, v{vA}, s[{K.sW}:{K.sW+3}], s25 offen']
        ew += [f'{name}_noew:']
        P += ew
    if cfg.light4:
        b1 = []; n = [0]
        def stmp():
            n[0] += 1; j = n[0] - 1
            return [f's_cmp_eq_u32 s{sTI}, {cfg.l2tile}', f's_cbranch_scc0 {name}_l4_{j}', f's_memtime s[{82+2*j}:{83+2*j}]', f'{name}_l4_{j}:']
        b1 += stmp()
        for x in body[1]:
            if x.startswith(';MARK') and x[5] in cfg.l4sel: b1 += stmp()
            else: b1.append(x)
        af = after(1)
        if 'e' in cfg.l4sel: b1 += stmp() + af[:1] + stmp() + af[1:2] + stmp() + af[2:]
        else: b1 += af
        P += b1; TR += body[1] + after(1)
    else:
        nvm1 = sum(1 for x in body[1] if x.startswith('buffer_'))
        emit(body[1] + after(1, nvm1))
    P += st2()
    pre = [f's_add_u32 s{K.sW}, s38, {WS_W}', f's_addc_u32 s{K.sW+1}, s39, 0', f's_mov_b32 s{K.sW+2}, {W_BYTES}', f's_mov_b32 s{K.sW+3}, 0x20000',
           f's_mul_i32 s{K.sWoff}, s40, 12288', f's_cmp_eq_u32 s40, 1', f's_cselect_b32 s24, {23*24576}, s{K.sWoff}']
    its = []
    for i in range(12):
        it = []
        if i % 4 == 0: it += [f's_add_u32 m0, s{K.sWoff}, {4096*(i//4)}', f's_add_u32 s{sT}, s24, {4096*(i//4)}', 's_nop 0']
        it.append(f'buffer_load_dwordx4 v{vL16}, s[{K.sW}:{K.sW+3}], s{sT} offen offset:{1024*(i%4)} lds')
        its.append(it)
    xbase = [f's_lshr_b32 s24, s2, 3', f's_and_b32 s25, s2, 7', f's_lshl_b32 s25, s25, 2', f's_and_b32 s26, s24, 3', f's_add_u32 s25, s25, s26',
             f's_lshr_b32 s24, s24, 2', f's_mul_i32 s25, s25, 12', f's_mul_i32 s26, s40, 3', f's_add_u32 s25, s25, s26',
             f's_mul_i32 s25, s25, 24', f's_add_u32 s25, s25, s24', f's_mul_i32 s{K.sBX}, s25, 6144']
    vgs = [f'v_and_b32 v{vA}, 0xf0, v{vL16}', f'v_mul_u32_u24 v{K.vG}, 24, v{vA}', f'v_lshrrev_b32 v{vA}, 4, v{vL16}', f'v_and_b32 v{vA}, 0x30, v{vA}',
           f'v_add_u32 v{K.vG}, v{K.vG}, v{vA}']
    xl = lambda p, s_: f'buffer_load_dwordx4 {a(K.pxreg(p,s_), 4)}, v{K.vG}, s[{K.sX}:{K.sX+3}], s{48+p} offen offset:{64*s_}' + (' nt' if cfg.nt_x else '')
    pre = xbase + [f's_mov_b32 s48, s{K.sBX}', f's_add_u32 s49, s48, {cfg.xps}', f's_add_u32 s50, s49, {cfg.xps}'] + vgs + pre
    xearly = [(p, s_) for p in range(3) for s_ in range(6) if K.pxreg(p, s_) + 3 < Wt(2, 0, 0)]
    xlate = [(p, s_) for p in range(3) for s_ in range(6) if (p, s_) not in xearly]
    if cfg.rend: xearly = []; xlate = []
    cl = strip(conv_stage(2, 0, its, store_items(cfg, 2), transp=False, xtra=[[xl(p, s_)] for p, s_ in xearly], defer=dfr(2)))
    P += [f's_cmp_eq_u32 s{sTI}, 2', f's_cbranch_scc0 {name}_nl'] + pre + cl + after(2) + [f's_branch {name}_last', f'{name}_nl:']
    if not cfg.nosync:
        P += [f's_cmp_eq_u32 s{sTI}, 1', f's_cbranch_scc0 {name}_nopoll', f's_cmp_eq_u32 s{sWave}, 0', f's_cbranch_scc0 {name}_nopoll',
              f'global_load_dword v{vP}, v{vZ}, s[{sDbg}:{sDbg+1}] sc1', f'{name}_nopoll:']
    emit(body[2] + after(2) + ['s_waitcnt lgkmcnt(0)'])
    P += st2()
    if cfg.otouch_on:
        K = k2
        ot = [f's_cmp_eq_u32 s{sTI}, {cfg.otouch}', f's_cbranch_scc0 {name}_noot', 's_load_dwordx2 s[6:7], s[0:1], 32',
              f's_lshr_b32 s24, s2, 3', f's_and_b32 s25, s2, 7', f's_lshl_b32 s25, s25, 2', f's_and_b32 s26, s24, 3', f's_add_u32 s25, s25, s26',
              f's_lshr_b32 s24, s24, 2', f's_mul_i32 s25, s25, 12', f's_mul_i32 s26, s40, 3', f's_add_u32 s25, s25, s26',
              f's_mul_i32 s25, s25, 24', f's_add_u32 s25, s25, s24', f's_mul_i32 s25, s25, 6144', 's_waitcnt lgkmcnt(0)',
              f's_mov_b32 s{K.sO}, s6', f's_mov_b32 s{K.sO+1}, s7', f's_mov_b32 s{K.sO+2}, {IMG_BYTES}', f's_mov_b32 s{K.sO+3}, 0x20000']
        for t_ in range(3):
            for p in range(3):
                ot += [f's_add_u32 s26, s25, {t_*cfg.xts + p*cfg.xps}', f'buffer_load_dword v233, v{vZ}, s[{K.sO}:{K.sO+3}], s26 offen']
        ot += [f'{name}_noot:']
        P += ot
    if not cfg.nosync:
        ft = ACC
        fb = [f's_cmp_eq_u32 s{sTI}, 1', f's_cbranch_scc0 {name}_nochk', f's_cmp_eq_u32 s{sWave}, 0', f's_cbranch_scc0 {name}_nochk',
              f's_waitcnt vmcnt({sum(1 for x in body[2] if x.startswith("buffer_"))})', f'v_readfirstlane_b32 s44, v{vP}', 's_nop 3', f's_cmp_ge_u32 s44, {NPKWG + (1000 if cfg.force_fb else 0)}', f's_cbranch_scc1 {name}_acq',
              f's_mov_b32 s45, {cfg.spin}', f'{name}_spin:',
              f'global_load_dword v{vP}, v{vZ}, s[{sDbg}:{sDbg+1}] sc1', 's_waitcnt vmcnt(0)', f'v_readfirstlane_b32 s44, v{vP}', 's_nop 3',
              f's_cmp_ge_u32 s44, {NPKWG + (1000 if cfg.force_fb else 0)}', f's_cbranch_scc1 {name}_acq',
              's_sub_u32 s45, s45, 1', 's_cmp_lg_u32 s45, 0', f's_cbranch_scc1 {name}_spin',
              's_load_dwordx4 s[52:55], s[0:1], 16', f'v_lshrrev_b32 v{ft}, 4, v{vL16}', f's_mov_b32 s{sPkF}, 0', 's_waitcnt vmcnt(0) lgkmcnt(0)', f'{name}_self:']
        fb += pack_loads(f'{name}_c', ft + 8, ft + 1, ft) + ['s_waitcnt vmcnt(0)'] + pack_store(f'{name}_d', cfg, ft + 8, ft + 16)
        fb += ['s_waitcnt vmcnt(0)', f's_add_u32 s{sPkF}, s{sPkF}, 1', f's_cmp_lt_u32 s{sPkF}, {NPACK}', f's_cbranch_scc1 {name}_self',
               f'{name}_acq:', 'buffer_inv sc1', f'{name}_nochk:']
        P += fb
    P += [f's_call_b64 s[42:43], {name}_ln']; TR += lns
    wHold = [f'v_accvgpr_write_b32 a{HOLD+i}, v{Y0+i}' for i in range(72)]
    wP = [f'v_accvgpr_write_b32 a{K.PF0+i}, v{Y0+i}' for i in range(72)]
    P += [f's_cmp_eq_u32 s{sTI}, 1', f's_cbranch_scc1 {name}_ln1'] + wHold + [f's_branch {name}_lnd', f'{name}_ln1:'] + wP + [f'{name}_lnd:']
    TR += wHold + wP
    P += st2()
    P += [f's_add_u32 s{sTI}, s{sTI}, 1', f's_branch {name}_tile', f'{name}_last:']
    emit(['s_waitcnt vmcnt(0) lgkmcnt(0)', 's_barrier'])
    if cfg.allwg: P += ['s_memrealtime s[84:85]', 's_waitcnt lgkmcnt(0)']
    if cfg.light: P += ['s_memtime s[6:7]', 's_memrealtime s[24:25]', 's_waitcnt lgkmcnt(0)', 's_mov_b32 s84, s6', 's_mov_b32 s85, s24']
    emit(['s_load_dwordx2 s[6:7], s[0:1], 32',
          'v_mbcnt_lo_u32_b32 v0, -1, 0', 'v_mbcnt_hi_u32_b32 v0, -1, v0'])
    emit(K.gelu_consts(cfg) + K.ident_setup())
    emit([f's_add_u32 s{K.sW}, s38, {WS_W}', f's_addc_u32 s{K.sW+1}, s39, 0', f's_mov_b32 s{K.sW+2}, {W_BYTES}', f's_mov_b32 s{K.sW+3}, 0x20000',
          f's_mul_i32 s{K.sWoff}, s40, 12288',
          f's_mul_i32 s{K.sB}, s2, {36*6144}', f's_mul_i32 s41, s40, {3*6144}', f's_add_u32 s{K.sB}, s{K.sB}, s41',
          's_waitcnt lgkmcnt(0)',
          f's_mov_b32 s{K.sO}, s6', f's_mov_b32 s{K.sO+1}, s7', f's_mov_b32 s{K.sO+2}, {IMG_BYTES}', f's_mov_b32 s{K.sO+3}, 0x20000',
          's_mov_b32 s98, s6', 's_mov_b32 s99, s7'])
    emit(xbase + [f's_mov_b32 s48, s{K.sBX}', f's_add_u32 s49, s48, {cfg.xps}', f's_add_u32 s50, s49, {cfg.xps}'])
    emit(K.m_second_dma(cfg, 248 if cfg.hlds else 240) + [xl(p, s_) for p, s_ in xlate])
    P += [f's_call_b64 s[42:43], {name}_ln']; TR += lns
    if cfg.hlds: emit(K.h2_to_lds(Y0))
    else: emit([f'v_accvgpr_write_b32 a{(K.PX0 if cfg.rend else K.H0)+i}, v{Y0+i}' for i in range(72)])
    emit(K.m_g1_first(cfg, early=True))
    if cfg.light: P += ['s_memtime s[6:7]', 's_memrealtime s[4:5]', 's_waitcnt lgkmcnt(0)', 's_mov_b32 s86, s6', 's_mov_b32 s87, s4']
    mp, sub, tr = K.m_main(cfg, name)
    P += mp; TR += tr
    P += K.dump_stamps2(cfg, 13)
    if cfg.light:
        P += ['s_waitcnt vmcnt(0)', 's_memtime s[6:7]', 's_memrealtime s[4:5]', 's_load_dwordx2 s[8:9], s[0:1], 40', 's_waitcnt lgkmcnt(0)', 's_mov_b32 s88, s6', 's_mov_b32 s89, s4'] + [f'v_writelane_b32 v255, s{82+i}, {i}' for i in range(8)] + [
              's_cmp_eq_u32 s2, 17', f's_cbranch_scc0 {name}_done', 's_cmp_eq_u32 s40, 0', f's_cbranch_scc0 {name}_done',
              'v_mbcnt_lo_u32_b32 v0, -1, 0', 'v_mbcnt_hi_u32_b32 v0, -1, v0', 'v_lshlrev_b32 v1, 2, v0', 'v_cmp_gt_u32 vcc, 8, v0', 's_and_saveexec_b64 s[10:11], vcc',
              'global_store_dword v1, v255, s[8:9] offset:16']
    if cfg.allwg:
        P += ['s_waitcnt vmcnt(0)', 's_memrealtime s[86:87]', 's_cmp_eq_u32 s40, 0', f's_cbranch_scc0 {name}_done', 's_waitcnt lgkmcnt(0)',
              's_lshl_b32 s3, s2, 4', f's_add_u32 s3, s3, {200 << 20}', 'v_mov_b32 v5, s3',
              'v_mov_b32 v4, s82', 's_nop 1', 'global_store_dword v5, v4, s[38:39]',
              'v_mov_b32 v4, s84', 's_nop 1', 'global_store_dword v5, v4, s[38:39] offset:4',
              'v_mov_b32 v4, s86', 's_nop 1', 'global_store_dword v5, v4, s[38:39] offset:8']
    if cfg.light2 or cfg.light3 or cfg.light4:
        P += ['s_waitcnt vmcnt(0)', 's_load_dwordx2 s[8:9], s[0:1], 40', 's_waitcnt lgkmcnt(0)',
              's_cmp_eq_u32 s2, 17', f's_cbranch_scc0 {name}_done', 's_cmp_eq_u32 s40, 0', f's_cbranch_scc0 {name}_done']
        P += [f'v_writelane_b32 v255, s{STAMP0+2*i}, {i}' for i in range(5)]
        P += ['v_mbcnt_lo_u32_b32 v0, -1, 0', 'v_mbcnt_hi_u32_b32 v0, -1, v0', 'v_lshlrev_b32 v1, 2, v0', 'v_cmp_gt_u32 vcc, 5, v0', 's_and_saveexec_b64 s[10:11], vcc',
              'global_store_dword v1, v255, s[8:9] offset:64']
    P += [f'{name}_done:', 's_endpgm']
    P += ['.p2align 6', f'{name}_ln:'] + lns + ['s_setpc_b64 s[42:43]']
    P += sub
    return P, TR

def kd(name):
    return k2.kd(name)

if __name__ == '__main__':
    import asmlib
    P, TR = gen(Cfg)
    asmlib.check(TR, 'kf')
    print(len(P))
```

```python
import k2
from k2 import f2u, ALPHA, WS_W, WS_H, W_BYTES, IMG_BYTES

REC = 544
NBLK = 99
SLAB = NBLK * REC
YB = 2 * SLAB
LDS_BYTES = YB + 2 * 24576
TAPS, ROWS = 400, 3616
DWB = YB

vO16 = 0
vP = 1
vL16 = 2
vZ = 3
vRel = 4
vLw, vLw3, vRd, vY0, vR0, vR1, vA, vB = 8, 9, 10, 11, 12, 13, 14, 15
STS = (16, 80)
BLK = 80
ACC = 120
TMP = 136
Y0 = 144
VO = 216
HOLD = 0
CW = 144
sM, sH, sX, sD = 8, 12, 16, 20
sBase, sIMG, sT, sT2, sSelL, sDS, sDY, sOutN, sTI = 28, 30, 31, 32, 33, 34, 35, 36, 37
sWave, sSelH, sPkF, sPkf = 40, 41, 42, 43
sMaskL, sMaskR = 44, 60
sSt3 = 76
sOnes, sAl, sEps, sInv, sOut, sDR = 92, 93, 94, 95, 96, 97
sDbg = 4
sMk3 = 100
NPACK = 576
NPKWG = 72
STAMP0 = 82

def v(b, n=1): return f'v{b}' if n == 1 else f'v[{b}:{b+n-1}]'
def a(b, n=1): return f'a{b}' if n == 1 else f'a[{b}:{b+n-1}]'
def Wt(k, R, C): return CW + 32 * k + 2 * (4 * R + C)
def blk(row, bc): return BLK + 10 * (row % 4) + 2 * bc
def Y(p, s): return Y0 + 24 * p + 4 * s
M4 = 'v_mfma_f32_4x4x4_16b_bf16'
FULL = (1 << 64) - 1

class Cfg(k2.Cfg):
    f16 = True
    nt_h = True; nt_x = True; nt_o = True
    cx_nt = False
    st_flags = ' nt'
    xps = 147456
    xts = 49152
    light = False
    light2 = False
    light3 = False
    exact_vm = True
    touch = False
    l2tile = 0
    inter = False
    latepub = False
    ewarm = False
    otouch = 0
    otouch_on = False
    rend = False
    prog = False
    defer_y = False
    even = None
    allwg = False
    force_fb = False
    ln_pk = True
    light4 = False
    l4sel = '0246'
    spread = 0
    diag_nox = False
    htouch = False
    diag_nost = False
    l3sel = [0, 1, 2, 3, 4]
    early = True
    hskip = True
    spin = 1 << 14
    nosync = False

def setexec(out, cur, val):
    if cur[0] != val:
        out.append(f's_mov_b32 exec_lo, {hex(val & 0xffffffff)}')
        out.append(f's_mov_b32 exec_hi, {hex(val >> 32)}')
        cur[0] = val

def weights_gather(vb):
    out = []
    def reads(k):
        o = []
        for R in range(4):
            for dy in range(2):
                for c in range(4):
                    i = (R * 2 + dy) * 4 + c
                    for dx in range(2):
                        rho, gam = 2 * R + dy, 2 * c + dx
                        o.append(f'ds_read_u16 v{Y0+2*i+dx}, v{vb} offset:{(rho+1)*ROWS + (gam+1)*TAPS + 128*k}')
        return o
    for k in range(3):
        rd = reads(k)
        out += rd[:32] + rd[32:] + ['s_waitcnt lgkmcnt(15)']
        for half in range(2):
            if half == 1: out.append('s_waitcnt lgkmcnt(0)')
            for i in range(16 * half, 16 * half + 16):
                if half == 0 and i == 8: out.append('s_waitcnt lgkmcnt(15)')
                R, dy, c = i // 8, (i // 4) % 2, i % 4
                out.append(f'v_lshl_or_b32 v{Y0+2*i}, v{Y0+2*i+1}, 16, v{Y0+2*i}')
                out.append(f'v_accvgpr_write_b32 a{Wt(k,R,c)+dy}, v{Y0+2*i}')
    return out

def vo(r, dy, dx): return VO + 4 * r + 2 * dy + dx
def tile_offsets():
    out = []
    for dx in range(2):
        for r in range(4):
            l, rr = sMaskL + 2 * (2 * r + dx), sMaskR + 2 * (2 * r + dx)
            out += [f's_mov_b64 s[24:25], -1' if r < 3 else f's_or_b64 s[24:25], s[{l}:{l+1}], s[{rr}:{rr+1}]',
                    f's_cmp_eq_u32 s27, 0', f's_cselect_b64 s[24:25], s[{l}:{l+1}], s[24:25]',
                    f's_cmp_eq_u32 s27, 23', f's_cselect_b64 s[24:25], s[{rr}:{rr+1}], s[24:25]']
            for dy in range(2):
                t = vo(r, dy, dx)
                out += [f's_add_u32 s26, s{sBase}, {147456*dy + 384*dx}', f'v_add_u32 v{t}, s26, v{vRel+r}', f'v_cmp_gt_u32 vcc, s{sIMG}, v{t}',
                        f's_and_b64 vcc, vcc, s[24:25]', f'v_cndmask_b32 v{t}, 2.0, v{t}, vcc']
    return out
def load_items(cfg, stage, sset):
    nt = ' nt' if cfg.cx_nt else ''
    its = []
    for r in range(4):
        for dy in range(2):
            for dx in range(2):
                if r < 3: its.append([f'buffer_load_dwordx4 {v(STS[sset] + 16 * r + 4 * (2 * dy + dx), 4)}, v{vo(r,dy,dx)}, s[{sX}:{sX+3}], 0 offen offset:{128*stage}{nt} ;@l{r}'])
                else: its.append([f'buffer_load_dword v{STS[sset] + 48 + 2 * dy + dx}, v{vo(r,dy,dx)}, s[{sX}:{sX+3}], 0 offen offset:{128*stage}{nt} ;@l{r}'])
    return its
def store_items(cfg, k):
    if cfg.rend: return []
    its = []
    for s, sb in ((k, sSt3), (3 + k, sSt3 + 3)):
        for p in range(3):
            its.append([f'buffer_store_dwordx4 {a(HOLD + 24*p + 4*s, 4)}, v{vL16}, s[{sH}:{sH+3}], s{sb+p} offen offset:{1024*(s % 3)}{cfg.st_flags} ;@s'])
    return [its[0], its[3], its[1], its[4], its[2], its[5]]

def transpose_unit(r, d, sset):
    t = TMP
    if r == 3:
        if d > 0: return []
        L = lambda dy, dx: STS[sset] + 48 + 2 * dy + dx
        return [f'v_perm_b32 v{t}, v{L(0,1)}, v{L(0,0)}, s{sSelL}', f'v_perm_b32 v{t+1}, v{L(1,1)}, v{L(1,0)}, s{sSelL}',
                f'v_perm_b32 v{t+2}, v{L(0,1)}, v{L(0,0)}, s{sSelH}', f'v_perm_b32 v{t+3}, v{L(1,1)}, v{L(1,0)}, s{sSelH}',
                f's_mov_b64 exec, s[{sMk3}:{sMk3+1}]', f'ds_write_b128 v{vLw3}, {v(t,4)}', 's_mov_b64 exec, -1']
    L = lambda dy, dx: STS[sset] + 16 * r + 4 * (2 * dy + dx) + d
    return [f'v_xad_u32 v{vA}, v{vO16}, {16*d}, v{vLw}',
            f'v_perm_b32 v{t}, v{L(0,1)}, v{L(0,0)}, s{sSelL}',
            f'v_perm_b32 v{t+1}, v{L(1,1)}, v{L(1,0)}, s{sSelL}',
            f'v_perm_b32 v{t+2}, v{L(0,1)}, v{L(0,0)}, s{sSelH}',
            f'v_perm_b32 v{t+3}, v{L(1,1)}, v{L(1,0)}, s{sSelH}',
            f'ds_write_b128 v{vA}, {v(t,4)} offset:{32 * REC * r + 128*d}']

def yout(py):
    out = []
    a0 = ACC + 8 * (py & 1); a1 = a0 + 4
    t = TMP + 4
    for oy in range(2):
        out.append(f'v_cvt_pk_bf16_f32 v{t+2*oy}, v{a0+2*oy}, v{a0+2*oy+1}')
        out.append(f'v_cvt_pk_bf16_f32 v{t+2*oy+1}, v{a1+2*oy}, v{a1+2*oy+1}')
        out.append(f'ds_write_b64 v{vY0}, {v(t+2*oy,2)} offset:{(2*py+oy)*2048}')
    return out

def row_reads(br):
    return [f'ds_read_b64 {v(blk(br,bc),2)}, v{vRd} offset:{(br*11+bc)*REC}' for bc in range(5)]

SPREAD = [3]
INTER = [False]
PROG = [False]
DEFPOS = [66]
sl2x = lambda n: (n // 16, n % 16)
EVEN = [None]
EVENS = {
 'a': dict(u0=[4, 12, 18], l0=[22, 24, 26, 28], u1=[30, 36, 41, 46], l1=[50, 52, 54, 56], u2=[58, 62, 67, 72], l2=[75, 77, 79, 81], u3=83, l3=[86, 87, 88, 89], s=[14, 33, 44, 65, 70, 91]),
 'b': dict(u0=[1, 5, 13], l0=[16, 17, 22, 24], u1=[28, 30, 32, 38], l1=[44, 46, 48, 49], u2=[54, 60, 62, 64], l2=[70, 74, 76, 78], u3=80, l3=[82, 83, 84, 85], s=[14, 40, 66, 87, 89, 91]),
}
def yin(k):
    o = []
    for p in range(3):
        for sp in range(2):
            for h in range(2):
                o.append(f'ds_read_b64_tr_b16 {v(Y(p,2*k+sp)+2*h,2)}, v{vR0 if h == 0 else vR1} offset:{p*2048 + sp*1024}')
    return o, [f'v_add_u32 v{vR0}, s{sDR}, v{vR0}', f'v_add_u32 v{vR1}, s{sDR}, v{vR1}', f's_sub_u32 s{sDR}, 0, s{sDR}']

def conv_stage(k, sset, items, stores, transp=True, xtra=(), defer=None):
    out = []
    fifo = []
    issued = {}
    def emit_lds(t, tag):
        out.append(t); fifo.append(tag); issued[tag] = issued.get(tag, 0) + 1
    def need(tag):
        assert issued.get(tag, 0) == 5, ('row not fully requested before use', tag)
        idx = [i for i, x in enumerate(fifo) if x == tag]
        if idx:
            n = len(fifo) - 1 - idx[-1]
            out.append(f's_waitcnt lgkmcnt({min(n,15)})')
            del fifo[:idx[-1] + 1]
    tagof = lambda t: ('w' if t.startswith('ds_') else None)
    NUP = 2 if PROG[0] else 4
    for br in range(NUP):
        for t in row_reads(br): emit_lds(t, ('row', br))
    if transp:
        out.append('WAITL:0')
        for t in transpose_unit(0, 0, sset):
            if tagof(t): emit_lds(t, 'w')
            else: out.append(t)
    fill = {(py, i): [] for py in range(6) for i in range(16)}
    for br in range(NUP, 4):
        for i, t in enumerate(row_reads(br)): fill[(0, 3 * (br - NUP) + i // 2)].append((t, ('row', br)))
    if defer is not None:
        rd, tg = yin(defer)
        for i, t in enumerate(rd): fill[sl2x(DEFPOS[0] + 2 * i)].append((t, 'w'))
        for t in tg: fill[sl2x(DEFPOS[0] + 2 * len(rd))].append((t, None))
    for py in range(6):
        if py > 0:
            for t, p_ in zip(yout(py - 1), [2, 2, 3, 4, 4, 5]): fill[(py, p_)].append((t, tagof(t)))
        if py + 4 <= 8:
            for i, t in enumerate(row_reads(py + 4)): fill[(py, 7 + i)].append((t, ('row', py + 4)))
    sl2 = lambda n: (n // 16, n % 16)
    if EVEN[0]:
        upos = {0: [None] + [sl2(n) for n in EVEN[0]['u0']], 1: [sl2(n) for n in EVEN[0]['u1']], 2: [sl2(n) for n in EVEN[0]['u2']], 3: [sl2(EVEN[0]['u3'])] * 4}
        lpos = {r: [sl2(n) for n in EVEN[0][f'l{r}']] for r in range(4)}
        spos = [sl2(n) for n in EVEN[0]['s']]
    else:
        upos = {0: [None, (0, 1), (0, 3), (0, 5)], 1: [(1, 6), (1, 8), (1, 12), (1, 14)], 2: [(2, 6), (2, 8), (2, 12), (2, 14)], 3: [(3, 6), (3, 8), (3, 12), (3, 14)]}
        lpos = {0: [(0, 12), (0, 14), (1, 0), (1, 1)], 1: [(1, 15), (2, 0), (2, 1), (2, 5)], 2: [(2, 15), (3, 0), (3, 1), (3, 5)], 3: [(3, 15), (4, 0), (4, 1), (4, 6)]}
        spos = [(0, 7), (0, 10), (4, 8), (4, 12), (5, 0), (5, 6)]
    for r in range(4):
        if transp:
            if r > 0: fill[upos[r][0]].append((f'WAITL:{r}', None))
            for d in range(4):
                if upos[r][d] is None: continue
                for t in transpose_unit(r, d, sset): fill[upos[r][d]].append((t, tagof(t)))
        for i in range(4):
            if 4 * r + i < len(items):
                for t in items[4 * r + i]: fill[lpos[r][i]].append((t, None))
    for it, pos in zip(stores, spos):
        for t in it: fill[pos].append((t, None))
    for i, it in enumerate(xtra):
        sl = 2 + 6 * i
        for t in it: fill[(sl // 16, sl % 16)].append((t, None))
    seq = []
    for py in range(6):
        for idx in range(16):
            grp = []
            for t, tag in fill[(py, idx)]:
                grp.append((t, tag))
                glue = t.startswith(('s_mov_b64 exec, s[', 's_add_u32 m0', 's_nop', 'WAITL', 'v_cmp', 's_and_b64')) or (t.startswith('s_add_u32 s') )
                if t.startswith('ds_write_b128') and len(grp) >= 2 and grp[-2][0].startswith('s_mov_b64 exec, s['): glue = True
                if not glue:
                    seq.append((16 * py + idx, grp)); grp = []
            if grp: seq.append((16 * py + idx, grp))
    qi = 0
    ismem = lambda t: t.startswith(('ds_', 'buffer_'))
    isvalu = lambda t: t.startswith('v_') and not t.startswith('v_mfma')
    real = lambda: [t for t in out if not t.startswith(';')]
    lastpos = {}
    nis = [0]
    def put(t, tag=None):
        if tag: emit_lds(t, tag)
        else: out.append(t)
        if not t.startswith(';'): nis[0] += 1
    def emit_group():
        nonlocal qi
        for t, tag in seq[qi][1]: put(t, tag)
        qi += 1
    def first_real(grp):
        for t, _ in grp:
            if not t.startswith(('s_', 'WAITL')): return t
        return grp[0][0]
    for py in range(6):
        for idx in range(16):
            R, C = divmod(idx, 4)
            sl = 16 * py + idx
            if idx == 0 and py in (0, 2, 4): out.append(f';MARK{py}')
            if C == 0:
                n0 = len(out); need(('row', py + R)); nis[0] += len(out) - n0
            for px in range(2):
                aa = ACC + 8 * (py & 1) + 4 * px
                c = '0' if idx == 0 else v(aa, 4)
                if idx == 0 and py >= 2:
                    pendcvt = [t for _, g in seq[qi:] for t, _ in g if t.startswith('v_cvt_pk_bf16') and f'v{aa},' in t + ',' and False]
                    assert not any(t.startswith('v_cvt_pk_bf16') and any(f' v{aa+j},' in t or t.endswith(f' v{aa+j}') for j in range(4)) and e <= 16 * (py - 1) + 15 for e, g in seq[qi:] for t, _ in g), 'yout too late'
                if idx > 0 and nis[0] - lastpos[aa] - 1 < 2: put('s_nop 0')
                if idx > 0 and nis[0] - lastpos[aa] - 1 < 2: put('s_nop 0')
                lastpos[aa] = nis[0]
                put(f'{M4} {v(aa,4)}, {a(Wt(k,R,C),2)}, {v(blk(py+R, px+C),2)}, {c}')
                if not INTER[0] and px == 0: continue
                prev_valu = False
                if qi < len(seq) and seq[qi][0] <= sl:
                    g0 = seq[qi][1]; emit_group(); prev_valu = isvalu(g0[-1][0])
                if px == 1:
                    while qi < len(seq) and seq[qi][0] <= sl and (seq[qi][0] <= sl - SPREAD[0] or sl == 95):
                        late = seq[qi][0] <= sl - SPREAD[0] - 3 or sl == 95
                        if INTER[0] and prev_valu and ismem(first_real(seq[qi][1])) and not late: break
                        g0 = seq[qi][1]; emit_group(); prev_valu = isvalu(g0[-1][0])
    assert qi == len(seq)
    out += [';MARK6', 's_nop 4'] + yout(5)
    return out

def resolve_l(stages):
    seq = []
    for si in range(3):
        for st in stages: seq.append(st)
    fifo = []
    need = {r: [] for r in range(4)}
    for si, st in enumerate(seq):
        for t in st:
            if t.startswith('WAITL:'):
                r = int(t[6:])
                if si >= 1:
                    idx = max(i for i, x in enumerate(fifo) if x == (si - 1, f'l{r}'))
                    need[r].append(len(fifo) - 1 - idx)
            elif ';@' in t: fifo.append((si, t.split(';@')[1].strip()))
    return {r: min(x) for r, x in need.items()}

def ln_block(cfg):
    NP = 3
    out = []
    t = ACC
    s1 = [t + p for p in range(NP)]; s2 = [t + 3 + p for p in range(NP)]
    for i in range(24):
        for p in range(NP):
            r = Y0 + 24 * p + i
            c1 = '0' if i == 0 else f'v{s1[p]}'; c2 = '0' if i == 0 else f'v{s2[p]}'
            out.append(f'v_dot2_f32_bf16 v{s1[p]}, v{r}, s{sOnes}, {c1}')
            out.append(f'v_dot2_f32_bf16 v{s2[p]}, v{r}, v{r}, {c2}')
    out.append('s_nop 2')
    allr = s1 + s2
    tm = [t + 12 + i for i in range(len(allr))]
    for sw in ('v_permlane16_swap_b32', 'v_permlane32_swap_b32'):
        for r, q in zip(allr, tm): out.append(f'v_mov_b32 v{q}, v{r}')
        out.append('s_nop 1')
        for r, q in zip(allr, tm): out.append(f'{sw} v{q}, v{r}')
        out.append('s_nop 1')
        for r, q in zip(allr, tm): out.append(f'v_add_f32 v{r}, v{r}, v{q}')
    rs = [t + 6 + 2 * p for p in range(NP)]; nb = [t + 18 + 2 * p for p in range(NP)]
    for p in range(NP): out.append(f'v_mul_f32 v{s1[p]}, s{sInv}, v{s1[p]}')
    for p in range(NP): out.append(f'v_mul_f32 v{s2[p]}, s{sInv}, v{s2[p]}')
    for p in range(NP): out.append(f'v_fma_f32 v{s2[p]}, -v{s1[p]}, v{s1[p]}, v{s2[p]}')
    for p in range(NP): out.append(f'v_max_f32 v{s2[p]}, 0, v{s2[p]}')
    for p in range(NP): out.append(f'v_add_f32 v{s2[p]}, s{sEps}, v{s2[p]}')
    for p in range(NP): out.append(f'v_rsq_f32 v{rs[p]}, v{s2[p]}')
    out.append('s_nop 0')
    for p in range(NP): out.append(f'v_mul_f32 v{rs[p]}, s{sAl}, v{rs[p]}')
    for p in range(NP): out.append(f'v_mul_f32 v{nb[p]}, -v{s1[p]}, v{rs[p]}')
    k = 0
    for p in range(NP):
        for s in range(6):
            for d in range(4):
                r = Y(p, s) + d
                x0 = t + 12 + 2 * (k % 3); x1 = x0 + 1; k += 1
                out.append(f'v_lshlrev_b32 v{x0}, 16, v{r}')
                out.append(f'v_and_b32 v{x1}, 0xffff0000, v{r}')
                if cfg.ln_pk:
                    out.append(f'v_pk_fma_f32 v[{x0}:{x1}], v[{x0}:{x1}], v[{rs[p]}:{rs[p]+1}], v[{nb[p]}:{nb[p]+1}] op_sel_hi:[1,0,0]')
                else:
                    out.append(f'v_fma_f32 v{x0}, v{x0}, v{rs[p]}, v{nb[p]}')
                    out.append(f'v_fma_f32 v{x1}, v{x1}, v{rs[p]}, v{nb[p]}')
                out.append(f'v_cvt_pk_bf16_f32 v{r}, v{x0}, v{x1}')
    return out

def pack_loads(lab, dst, t, lane):
    out = [f's_mul_hi_u32 s46, s{sPkF}, {(1 << 32) // 24 + 1}',
           f's_mul_i32 s47, s46, 24', f's_sub_u32 s{sPkf}, s{sPkF}, s47',
           f'v_and_b32 v{t}, 15, v{lane}', f'v_lshrrev_b32 v{t+1}, 4, v{lane}',
           f's_cmp_lt_u32 s{sPkf}, 12', f's_cbranch_scc0 {lab}_pk2']
    out += [f's_add_u32 s48, s46, 1', f's_cmp_eq_u32 s48, 24', f's_cselect_b32 s48, 0, s48',
            f's_lshr_b32 s49, s{sPkf}, 1', f's_and_b32 s50, s{sPkf}, 1',
            f's_lshl_b32 s48, s48, 6', f's_lshl_b32 s50, s50, 5', f's_add_u32 s48, s48, s50',
            f's_mul_i32 s49, s49, {32*1536}', f's_add_u32 s48, s48, s49',
            f'v_mul_u32_u24 v{t+2}, {8*1536}, v{t+1}', f'v_lshl_add_u32 v{t+2}, v{t}, 1, v{t+2}',
            f's_mov_b32 s{sM}, s52', f's_mov_b32 s{sM+1}, s53', f's_mov_b32 s{sM+2}, {192*768*2}', f's_mov_b32 s{sM+3}, 0x20000']
    for e in range(8):
        out.append(f's_add_u32 s49, s48, {e*1536}')
        out.append(f'buffer_load_ushort v{dst+e}, v{t+2}, s[{sM}:{sM+3}], s49 offen')
    out += [f's_branch {lab}_pk3', f'{lab}_pk2:']
    out += [f's_add_u32 s48, s46, 23', f's_cmp_ge_u32 s48, 24', f's_cselect_b32 s49, 24, 0', f's_sub_u32 s48, s48, s49',
            f's_sub_u32 s49, s{sPkf}, 12', f's_lshr_b32 s50, s49, 1', f's_and_b32 s49, s49, 1',
            f's_mul_i32 s48, s48, {32*384}', f's_lshl_b32 s50, s50, 6', f's_lshl_b32 s49, s49, 3',
            f's_add_u32 s48, s48, s50', f's_add_u32 s48, s48, s49',
            f'v_lshrrev_b32 v{t+3}, 2, v{t}', f'v_lshlrev_b32 v{t+3}, 4, v{t+3}',
            f'v_and_b32 v{t+4}, 3, v{t}', f'v_lshl_add_u32 v{t+3}, v{t+4}, 1, v{t+3}',
            f'v_mul_u32_u24 v{t+2}, {4*384}, v{t+1}', f'v_add_u32 v{t+2}, v{t+2}, v{t+3}',
            f's_mov_b32 s{sM}, s54', f's_mov_b32 s{sM+1}, s55', f's_mov_b32 s{sM+2}, {192*768*2}', f's_mov_b32 s{sM+3}, 0x20000']
    for e in range(8):
        out.append(f's_add_u32 s49, s48, {(16*(e>>2) + (e&3))*384}')
        out.append(f'buffer_load_ushort v{dst+e}, v{t+2}, s[{sM}:{sM+3}], s49 offen')
    out += [f'{lab}_pk3:']
    return out

def pack_store(lab, cfg, src, dst):
    out = []
    for d in range(4): out.append(f'v_lshl_or_b32 v{dst+d}, v{src+2*d+1}, 16, v{src+2*d}')
    if cfg.f16:
        out += [f's_cmp_lt_u32 s{sPkf}, 12', f's_cbranch_scc1 {lab}_pk5']
        for e in range(8): out.append(f'v_lshlrev_b32 v{src+e}, 16, v{src+e}')
        for d in range(4): out.append(f'v_cvt_pk_f16_f32 v{dst+d}, v{src+2*d}, v{src+2*d+1}')
        out.append(f'{lab}_pk5:')
    out += [f's_add_u32 s{sM}, s38, {WS_W}', f's_addc_u32 s{sM+1}, s39, 0', f's_mov_b32 s{sM+2}, {W_BYTES}', f's_mov_b32 s{sM+3}, 0x20000',
            f's_lshl_b32 s3, s{sPkF}, 10',
            f'buffer_store_dwordx4 {v(dst,4)}, v{vL16}, s[{sM}:{sM+3}], s3 offen sc1']
    return out

def gen(cfg, name='fused_kernel'):
    k2.MF2[0] = 'v_mfma_f32_16x16x32_f16' if cfg.f16 else k2.MF
    SPREAD[0] = cfg.spread
    INTER[0] = cfg.inter
    PROG[0] = cfg.prog
    EVEN[0] = EVENS.get(cfg.even)
    k2.SNAKE[0] = cfg.snake
    P = []; TR = []
    n3 = [0]
    def st3():
        if cfg.light3 and n3[0] in cfg.l3sel:
            j = cfg.l3sel.index(n3[0])
            P.extend([f's_memtime s[{82+2*j}:{83+2*j}]'])
        n3[0] += 1
        if False:
            P.extend(['s_memtime s[102:103]' if False else 's_memtime s[98:99]', 's_waitcnt lgkmcnt(0)', f'v_writelane_b32 v253, s98, {n3[0]}']); n3[0] += 1
    def emit(l, tr=True):
        P.extend(l)
        if tr: TR.extend([x for x in l if not x.endswith(':')])
    emit(['s_cmp_ge_u32 s2, 256', f's_cbranch_scc1 {name}_done'])
    if cfg.allwg: P += ['s_memrealtime s[82:83]']
    if cfg.light: P += ['s_memtime s[6:7]', 's_memrealtime s[8:9]', 's_waitcnt lgkmcnt(0)', 's_mov_b32 s82, s6', 's_mov_b32 s83, s8']
    st3()
    emit(['s_load_dwordx4 s[4:7], s[0:1], 0',
          's_load_dwordx2 s[38:39], s[0:1], 48',
          's_load_dwordx4 s[52:55], s[0:1], 16',
          'v_lshrrev_b32 v1, 6, v0', 'v_and_b32 v0, 63, v0', 's_nop 0',
          f'v_readfirstlane_b32 s{sWave}, v1',
          f's_mov_b32 s{sIMG}, {IMG_BYTES}', f's_mov_b32 s{sOnes}, 0x3f803f80',
          f's_mov_b32 s{sSelL}, 0x05040100', f's_mov_b32 s{sSelH}, 0x07060302',
          f's_mov_b32 s{sAl}, {hex(f2u(ALPHA))}', f's_mov_b32 s{sEps}, {hex(f2u(1e-5))}', f's_mov_b32 s{sInv}, {hex(f2u(1.0/192))}',
          f'v_lshlrev_b32 v{vL16}, 4, v0', f'v_mov_b32 v{vZ}, 0',
          's_waitcnt lgkmcnt(0)',
          f's_mov_b32 s{sX}, s4', f's_mov_b32 s{sX+1}, s5', f's_mov_b32 s{sX+2}, {IMG_BYTES}', f's_mov_b32 s{sX+3}, 0x20000',
          f's_mov_b32 s{sD}, s6', f's_mov_b32 s{sD+1}, s7', f's_mov_b32 s{sD+2}, {49*384}', f's_mov_b32 s{sD+3}, 0x20000',
          f's_add_u32 s{sH}, s38, {WS_H}', f's_addc_u32 s{sH+1}, s39, 0', f's_mov_b32 s{sH+2}, {IMG_BYTES}', f's_mov_b32 s{sH+3}, 0x20000',
          f's_load_dwordx2 s[{sDbg}:{sDbg+1}], s[0:1], 40', f's_mov_b32 s{sTI}, 0'])
    st3()
    t = Y0
    c = []
    for j in range(4):
        c += [f'v_add_u32 v{t}, {64*j}, v0', f'v_mul_u32_u24 v{t+1}, 2622, v{t}', f'v_lshrrev_b32 v{t+1}, 16, v{t+1}',
              f'v_mul_u32_u24 v{t+2}, 25, v{t+1}', f'v_sub_u32 v{t+2}, v{t}, v{t+2}',
              f'v_subrev_u32 v{t+1}, 1, v{t+1}', f'v_cmp_gt_u32 vcc, 7, v{t+1}', f'v_cmp_gt_u32 s[44:45], 24, v{t+2}',
              f'v_mul_u32_u24 v{t+1}, 384, v{t+1}', f'v_lshl_add_u32 v{t+1}, v{t+2}, 4, v{t+1}', f's_and_b64 vcc, vcc, s[44:45]',
              f'v_subrev_u32 v{t+1}, {1024*j}, v{t+1}' if False else 's_nop 0',
              f'v_cndmask_b32 v{t+8+j}, 2.0, v{t+1}, vcc']
    emit(c)
    c = []
    for m in range(3):
        blk_ = [f's_add_u32 s{sT}, s{sWave}, {4*m}', f's_sub_u32 s{sT2}, s{sT}, 1', f's_cmp_lt_u32 s{sT2}, 7', f's_mul_i32 s{sT2}, s{sT2}, {7*384}',
                f's_cselect_b32 s{sT2}, s{sT2}, 0x70000000', f's_mul_i32 s{sT}, s{sT}, {ROWS}', f's_add_u32 s{sT}, s{sT}, {DWB}']
        for j in range(4):
            blk_ += [f's_add_u32 m0, s{sT}, {1024*j}', 's_nop 0']
            if j == 3: blk_ += ['s_mov_b32 exec_hi, 3']
            blk_ += [f'buffer_load_dwordx4 v{t+8+j}, s[{sD}:{sD+3}], s{sT2} offen lds']
            if j == 3: blk_ += ['s_mov_b32 exec_hi, -1']
        if m < 2: c += blk_
        else: c += [f's_cmp_eq_u32 s{sWave}, 0', f's_cbranch_scc0 {name}_nor8'] + blk_ + [f'{name}_nor8:']
    emit(c)
    pk = [f's_mov_b32 s{sPkF}, -1', f's_cmp_lt_u32 s2, {NPKWG if not cfg.force_fb else 0}', f's_cbranch_scc0 {name}_nopk',
          f's_lshl_b32 s44, s2, 3', f's_lshl_b32 s45, s{sWave}, 1', f's_add_u32 s{sPkF}, s44, s45']
    pk += pack_loads(f'{name}_a', Y0 + 32, ACC, 0) + [f's_add_u32 s{sPkF}, s{sPkF}, 1'] + pack_loads(f'{name}_a2', Y0 + 41, ACC, 0) + [f'{name}_nopk:']
    st3()
    if not cfg.nosync: P += pk
    st3()
    c = [f'v_and_b32 v{t}, 7, v0', f'v_lshrrev_b32 v{t+1}, 3, v0']
    for r in range(4):
        if r < 3: c += [f's_lshl_b32 s{sT}, s{sWave}, 3', f's_add_u32 s{sT}, s{sT}, {32*r}', f'v_add_u32 v{t+2}, s{sT}, v{t+1}']
        else:
            c += [f'v_add_u32 v{t+2}, 96, v{t+1}', f'v_cmp_gt_u32 s[{sMk3}:{sMk3+1}], 24, v0']
        c += [f'v_mul_u32_u24 v{t+3}, 745, v{t+2}', f'v_lshrrev_b32 v{t+3}, 13, v{t+3}',
              f'v_mul_u32_u24 v{t+4}, 11, v{t+3}', f'v_sub_u32 v{t+4}, v{t+2}, v{t+4}',
              f'v_mul_u32_u24 v{t+5}, {2*384}, v{t+3}', f'v_lshl_add_u32 v{t+5}, v{t+4}, 1, v{t+5}',
              f'v_mul_u32_u24 v{t+5}, 384, v{t+5}',
              f'v_lshl_add_u32 v{vRel+r}, v{t}, 4, v{t+5}']
        for dx in range(2):
            mL = sMaskL + 2 * (2 * r + dx); mR = sMaskR + 2 * (2 * r + dx)
            c += [f'v_lshl_add_u32 v{t+6}, v{t+4}, 1, {dx}',
                  f'v_cmp_lt_u32 s[{mL}:{mL+1}], 2, v{t+6}', f'v_cmp_gt_u32 s[{mR}:{mR+1}], 19, v{t+6}']
            if r == 3:
                c += ['s_nop 1', f's_and_b64 s[{mL}:{mL+1}], s[{mL}:{mL+1}], s[{sMk3}:{sMk3+1}]', f's_and_b64 s[{mR}:{mR+1}], s[{mR}:{mR+1}], s[{sMk3}:{sMk3+1}]']
        if r == 0: c += [f'v_mul_u32_u24 v{vLw}, {REC}, v{t+2}']
        if r == 3:
            c += [f's_lshl_b32 s{sT}, s{sWave}, 2', f'v_add_u32 v{vRel+3}, s{sT}, v{vRel+3}',
                  f'v_cndmask_b32 v{vRel+3}, 2.0, v{vRel+3}, s[{sMk3}:{sMk3+1}]',
                  f'v_mul_u32_u24 v{vLw3}, {REC}, v{t+2}', f'v_xor_b32 v{t+6}, s{sWave}, v{t}', f'v_lshl_add_u32 v{vLw3}, v{t+6}, 4, v{vLw3}',
                  f's_lshl_b32 s{sT}, s{sWave}, 7', f'v_add_u32 v{vLw3}, s{sT}, v{vLw3}']
    c += [f'v_lshrrev_b32 v{t}, 2, v0', f'v_and_b32 v{t+1}, 3, v0', f'v_lshrrev_b32 v{t+2}, 3, v{t}',
          f's_lshl_b32 s{sT}, s{sWave}, 1',
          f'v_add_u32 v{t+2}, s{sT}, v{t+2}', f'v_bfe_u32 v{t+3}, v{t}, 1, 2', f'v_xor_b32 v{t+4}, v{t+2}, v{t+3}',
          f'v_lshlrev_b32 v{t+4}, 1, v{t+4}', f'v_lshl_add_u32 v{t+4}, v{t+3}, 4, v{t+4}',
          f'v_and_b32 v{t+5}, 1, v{t}', f'v_add_u32 v{t+4}, v{t+4}, v{t+5}', f'v_lshlrev_b32 v{t+4}, 3, v{t+4}',
          f'v_mul_u32_u24 v{t+5}, {2*REC}, v{t+1}', f'v_add_u32 v{vRd}, v{t+4}, v{t+5}']
    c += [f's_lshl_b32 s{sT2}, s{sWave}, 4', f'v_add_u32 v{t+7}, s{sT2}, v{t}',
          f'v_bfe_u32 v{t+8}, v{t+7}, 3, 1', f'v_lshlrev_b32 v{t+8}, 2, v{t+8}', f'v_xor_b32 v{t+7}, v{t+7}, v{t+8}',
          f'v_lshlrev_b32 v{t+7}, 5, v{t+7}', f'v_lshl_add_u32 v{t+7}, v{t+1}, 3, v{t+7}', f'v_add_u32 v{vY0}, {YB}, v{t+7}']
    c += [f'v_lshrrev_b32 v{t}, 4, v0', f'v_bfe_u32 v{t+1}, v0, 2, 2', f'v_and_b32 v{t+2}, 3, v0',
          f's_mul_i32 s{sT}, s{sWave}, {3*2048}', f's_add_u32 s{sT}, s{sT}, {YB}']
    for h, vr in ((0, vR0), (1, vR1)):
        c += [f'v_lshl_add_u32 v{t+3}, v{t}, 3, v{t+1}', f'v_add_u32 v{t+3}, {4*h}, v{t+3}',
              f'v_and_b32 v{t+4}, 1, v{t}', f'v_lshlrev_b32 v{t+4}, 2, v{t+4}', f'v_xor_b32 v{t+3}, v{t+3}, v{t+4}',
              f'v_lshlrev_b32 v{t+3}, 5, v{t+3}', f'v_lshl_add_u32 v{t+3}, v{t+2}, 3, v{t+3}', f'v_add_u32 v{vr}, s{sT}, v{t+3}']
    vb = VO + 15 + 1
    c += [f'v_lshrrev_b32 v{t}, 2, v0', f's_lshl_b32 s{sT}, s{sWave}, 5', f'v_lshlrev_b32 v{t}, 1, v{t}', f'v_add_u32 v{t}, s{sT}, v{t}',
          f'v_bfe_u32 v{t+1}, v0, 1, 1', f'v_mul_u32_u24 v{t+1}, {ROWS}, v{t+1}', f'v_and_b32 v{t+2}, 1, v0', f'v_mul_u32_u24 v{t+2}, {TAPS}, v{t+2}',
          f'v_add_u32 v{t+1}, v{t+1}, v{t+2}', f'v_sub_u32 v{t}, v{t}, v{t+1}', f'v_add_u32 v{vb}, {DWB}, v{t}',
          f'v_and_b32 v{vO16}, 7, v0', f'v_lshlrev_b32 v{vO16}, 4, v{vO16}']
    emit(c)
    tl = [0]
    def tile_setup(fetch):
        o = [f's_sub_u32 s24, 2, {fetch}' if not cfg.rend else f's_mov_b32 s24, {fetch}',
             f's_lshr_b32 s25, s2, 3', f's_lshl_b32 s24, s24, 5', f's_add_u32 s25, s25, s24',
             f's_and_b32 s26, s2, 7', f's_lshl_b32 s26, s26, 2', f's_and_b32 s27, s25, 3', f's_add_u32 s26, s26, s27',
             f's_lshr_b32 s27, s25, 2',
             f's_mul_i32 s24, s26, {12*384}', f's_lshl_b32 s25, s27, 4', f's_add_u32 s24, s24, s25',
             f's_sub_u32 s24, s24, {3*384+3}', f's_mul_i32 s{sBase}, s24, 384',
             f's_cmp_eq_u32 {fetch}, 3', f's_cselect_b32 s{sBase}, 0x60000000, s{sBase}']
        if cfg.diag_nox: o += [f's_mov_b32 s{sBase}, 0x60000000']
        tl[0] += 1; lab = f'{name}_to{tl[0]}'
        fast = []
        for dy in range(2):
            for dx in range(2):
                fast += [f's_add_u32 s24, s{sBase}, {147456*dy + 384*dx}'] + [f'v_add_u32 v{vo(r,dy,dx)}, s24, v{vRel+r}' for r in range(4)]
        o += [f's_sub_u32 s25, s27, 1', f's_cmp_lt_u32 s25, 22', f's_cselect_b32 s25, 1, 0', f's_cmp_eq_u32 s26, 0', f's_cselect_b32 s25, 0, s25',
              f's_cmp_eq_u32 s{sBase}, 0x60000000', f's_cselect_b32 s25, 1, s25', f's_cmp_eq_u32 s25, 0', f's_cbranch_scc1 {lab}_slow']
        return o + fast + [f's_branch {lab}_done', f'{lab}_slow:'] + tile_offsets() + [f'{lab}_done:']
    strip = lambda l: [x.split(' ;@')[0] for x in l]
    def store_bases():
        o = [f's_mul_i32 s25, s2, 3', f's_add_u32 s25, s25, 2', f's_mul_i32 s25, s25, 12', f's_mul_i32 s26, s{sWave}, 3', f's_add_u32 s25, s25, s26',
             f's_mul_i32 s25, s25, 6144', f's_add_u32 s26, s25, 3072',
             f's_cmp_eq_u32 s{sTI}, {1 if not cfg.diag_nost else 9}', f's_cselect_b32 s{sSt3}, s25, 0x70000000',
             f's_cmp_eq_u32 s{sTI}, {2 if not cfg.diag_nost else 9}', f's_cselect_b32 s{sSt3+3}, s26, 0x70000000']
        for b in (sSt3, sSt3 + 3): o += [f's_add_u32 s{b+1}, s{b}, 6144', f's_add_u32 s{b+2}, s{b}, 12288']
        return o
    emit(tile_setup('0'))
    emit(strip(sum(load_items(cfg, 0, 0), [])))
    st3()
    emit(['s_waitcnt vmcnt(16) lgkmcnt(0)'])
    st3()
    emit(['s_barrier'])
    st3()
    if not cfg.nosync:
        P += [f's_cmp_eq_u32 s{sPkF}, -1', f's_cbranch_scc1 {name}_nops'] + pack_store(f'{name}_b', cfg, Y0 + 41, Y0)
        P += [f's_sub_u32 s{sPkF}, s{sPkF}, 1', f's_sub_u32 s{sPkf}, s{sPkf}, 1'] + pack_store(f'{name}_b2', cfg, Y0 + 32, Y0 + 4) + ['s_nop 1', f'{name}_nops:']
    emit(weights_gather(vb))
    st3()
    if cfg.latepub and not cfg.nosync:
        P += [f's_cmp_eq_u32 s{sPkF}, -1', f's_cbranch_scc1 {name}_w0', 's_waitcnt vmcnt(2)', f's_branch {name}_w1', f'{name}_w0:', 's_waitcnt vmcnt(0)', f'{name}_w1:']
        TR += ['s_waitcnt vmcnt(0)']
    else:
        emit(['s_waitcnt vmcnt(0)'])
    st3()
    emit([f'v_add_u32 v{vLw}, {SLAB}, v{vLw}', f'v_add_u32 v{vLw3}, {SLAB}, v{vLw3}', f'v_add_u32 v{vRd}, {SLAB}, v{vRd}'])
    for r in range(4):
        for d in range(4): emit(transpose_unit(r, d, 0))
    dfr = lambda k: (k - 1 if (cfg.defer_y and k > 0) else None)
    raw = {k: conv_stage(k, 0, load_items(cfg, (k + 2) % 3, 0), store_items(cfg, k), defer=dfr(k)) for k in range(3)}
    nw = resolve_l([raw[0], raw[1], raw[2]])
    fix = lambda l: [(f's_waitcnt vmcnt({nw[int(x[6:])]})' if x.startswith('WAITL:') else x.split(' ;@')[0]) for x in l]
    body = {key: fix(val) for key, val in raw.items()}
    tags = [x.split(';@')[1].strip() for x in raw[0] if ';@' in x]
    tags = tags[[i for i, x in enumerate(tags) if x.startswith('l')][0]:]
    l1 = strip(sum(load_items(cfg, 1, 0), []))
    emit([f's_mov_b32 s{sT}, 0x70000000'])
    for tg in tags:
        emit([l1.pop(0)] if tg.startswith('l') else [f'buffer_store_dword v{vA}, v{vL16}, s[{sH}:{sH+3}], s{sT} offen'])
    assert not l1
    emit([f'v_subrev_u32 v{vLw}, {SLAB}, v{vLw}', f'v_subrev_u32 v{vLw3}, {SLAB}, v{vLw3}', f's_mov_b32 s{sDS}, {-SLAB & 0xffffffff}', f's_mov_b32 s{sDY}, 24576', f's_mov_b32 s{sDR}, 24576',
          's_waitcnt lgkmcnt(0)'])
    st3()
    emit(['s_barrier'])
    st3()
    if not cfg.nosync and not cfg.latepub:
        P += [f's_cmp_eq_u32 s{sPkF}, -1', f's_cbranch_scc1 {name}_nopub', f's_cmp_eq_u32 s{sWave}, 0', f's_cbranch_scc0 {name}_nopub',
              f'v_mov_b32 v{vB}, 1', 's_mov_b32 exec_lo, 1', 's_mov_b32 exec_hi, 0',
              f'global_atomic_add v{vZ}, v{vB}, s[{sDbg}:{sDbg+1}]', 's_mov_b64 exec, -1', f'{name}_nopub:']
    def after(k, vm=None):
        o = ([f's_waitcnt vmcnt({vm})'] if vm is not None else []) + ['s_waitcnt lgkmcnt(0)', 's_barrier']
        if k == 2 or not cfg.defer_y:
            rd, tg = yin(k)
            o += rd + tg
        o += [f'v_add_u32 v{vRd}, s{sDS}, v{vRd}', f'v_subrev_u32 v{vLw}, s{sDS}, v{vLw}', f'v_subrev_u32 v{vLw3}, s{sDS}, v{vLw3}',
              f'v_add_u32 v{vY0}, s{sDY}, v{vY0}',
              f's_sub_u32 s{sDS}, 0, s{sDS}', f's_sub_u32 s{sDY}, 0, s{sDY}']
        return o
    sn = [0]
    def st2():
        if not cfg.light2: return []
        sn[0] += 1
        return [f's_cmp_eq_u32 s{sTI}, {cfg.l2tile}', f's_cbranch_scc0 {name}_s2_{sn[0]}', f's_memtime s[{STAMP0-2+2*((sn[0]-1)%5+1)}:{STAMP0-1+2*((sn[0]-1)%5+1)}]', f'{name}_s2_{sn[0]}:']
    lns = ln_block(cfg)
    K = k2
    emit([f's_mov_b32 s{sTI}, 0'])
    P += ['.p2align 6', f'{name}_tile:']
    P += st2()
    if not cfg.rend: emit(store_bases())
    emit(body[0] + after(0))
    P += st2()
    emit([f's_add_u32 s3, s{sTI}, 1'] + tile_setup('s3'))
    if cfg.ewarm:
        K = k2
        ew = [f's_cmp_eq_u32 s{sTI}, 2', f's_cbranch_scc0 {name}_noew',
              f's_add_u32 s{K.sW}, s38, {WS_W}', f's_addc_u32 s{K.sW+1}, s39, 0', f's_mov_b32 s{K.sW+2}, {W_BYTES}', f's_mov_b32 s{K.sW+3}, 0x20000',
              f's_lshr_b32 s24, s2, 3', f's_and_b32 s24, s24, 7', f's_mul_i32 s24, s24, 73728', f's_mul_i32 s25, s{sWave}, 18432', f's_add_u32 s24, s24, s25',
              f'v_lshlrev_b32 v{vA}, 3, v{vL16}']
        for j in range(3):
            ew += [f's_add_u32 s25, s24, {8192*j}', f'buffer_load_dword v233, v{vA}, s[{K.sW}:{K.sW+3}], s25 offen']
        ew += [f'{name}_noew:']
        P += ew
    if cfg.light4:
        b1 = []; n = [0]
        def stmp():
            n[0] += 1; j = n[0] - 1
            return [f's_cmp_eq_u32 s{sTI}, {cfg.l2tile}', f's_cbranch_scc0 {name}_l4_{j}', f's_memtime s[{82+2*j}:{83+2*j}]', f'{name}_l4_{j}:']
        b1 += stmp()
        for x in body[1]:
            if x.startswith(';MARK') and x[5] in cfg.l4sel: b1 += stmp()
            else: b1.append(x)
        af = after(1)
        if 'e' in cfg.l4sel: b1 += stmp() + af[:1] + stmp() + af[1:2] + stmp() + af[2:]
        else: b1 += af
        P += b1; TR += body[1] + after(1)
    else:
        nvm1 = sum(1 for x in body[1] if x.startswith('buffer_'))
        emit(body[1] + after(1, nvm1))
        if cfg.latepub and not cfg.nosync:
            P += [f's_cmp_eq_u32 s{sTI}, 0', f's_cbranch_scc0 {name}_nopub', f's_cmp_eq_u32 s{sPkF}, -1', f's_cbranch_scc1 {name}_nopub',
                  f's_cmp_eq_u32 s{sWave}, 0', f's_cbranch_scc0 {name}_nopub',
                  f'v_mov_b32 v{vB}, 1', 's_mov_b32 exec_lo, 1', 's_mov_b32 exec_hi, 0',
                  f'global_atomic_add v{vZ}, v{vB}, s[{sDbg}:{sDbg+1}]', 's_mov_b64 exec, -1', f'{name}_nopub:']
    P += st2()
    pre = [f's_add_u32 s{K.sW}, s38, {WS_W}', f's_addc_u32 s{K.sW+1}, s39, 0', f's_mov_b32 s{K.sW+2}, {W_BYTES}', f's_mov_b32 s{K.sW+3}, 0x20000',
           f's_mul_i32 s{K.sWoff}, s40, 12288', f's_cmp_eq_u32 s40, 1', f's_cselect_b32 s24, {23*24576}, s{K.sWoff}']
    its = []
    for i in range(12):
        it = []
        if i % 4 == 0: it += [f's_add_u32 m0, s{K.sWoff}, {4096*(i//4)}', f's_add_u32 s{sT}, s24, {4096*(i//4)}', 's_nop 0']
        it.append(f'buffer_load_dwordx4 v{vL16}, s[{K.sW}:{K.sW+3}], s{sT} offen offset:{1024*(i%4)} lds')
        its.append(it)
    xbase = [f's_lshr_b32 s24, s2, 3', f's_and_b32 s25, s2, 7', f's_lshl_b32 s25, s25, 2', f's_and_b32 s26, s24, 3', f's_add_u32 s25, s25, s26',
             f's_lshr_b32 s24, s24, 2', f's_mul_i32 s25, s25, 12', f's_mul_i32 s26, s40, 3', f's_add_u32 s25, s25, s26',
             f's_mul_i32 s25, s25, 24', f's_add_u32 s25, s25, s24', f's_mul_i32 s{K.sBX}, s25, 6144']
    vgs = [f'v_and_b32 v{vA}, 0xf0, v{vL16}', f'v_mul_u32_u24 v{K.vG}, 24, v{vA}', f'v_lshrrev_b32 v{vA}, 4, v{vL16}', f'v_and_b32 v{vA}, 0x30, v{vA}',
           f'v_add_u32 v{K.vG}, v{K.vG}, v{vA}']
    xl = lambda p, s_: f'buffer_load_dwordx4 {a(K.pxreg(p,s_), 4)}, v{K.vG}, s[{K.sX}:{K.sX+3}], s{48+p} offen offset:{64*s_}' + (' nt' if cfg.nt_x else '')
    pre = xbase + [f's_mov_b32 s48, s{K.sBX}', f's_add_u32 s49, s48, {cfg.xps}', f's_add_u32 s50, s49, {cfg.xps}'] + vgs + pre
    xearly = [(p, s_) for p in range(3) for s_ in range(6) if K.pxreg(p, s_) + 3 < Wt(2, 0, 0)]
    xlate = [(p, s_) for p in range(3) for s_ in range(6) if (p, s_) not in xearly]
    if cfg.rend: xearly = []; xlate = []
    cl = strip(conv_stage(2, 0, its, store_items(cfg, 2), transp=False, xtra=[[xl(p, s_)] for p, s_ in xearly], defer=dfr(2)))
    P += [f's_cmp_eq_u32 s{sTI}, 2', f's_cbranch_scc0 {name}_nl'] + pre + cl + after(2) + [f's_branch {name}_last', f'{name}_nl:']
    if not cfg.nosync:
        P += [f's_cmp_eq_u32 s{sTI}, 1', f's_cbranch_scc0 {name}_nopoll', f's_cmp_eq_u32 s{sWave}, 0', f's_cbranch_scc0 {name}_nopoll',
              f'global_load_dword v{vP}, v{vZ}, s[{sDbg}:{sDbg+1}] sc1', f'{name}_nopoll:']
    emit(body[2] + after(2) + ['s_waitcnt lgkmcnt(0)'])
    P += st2()
    if cfg.otouch_on:
        K = k2
        ot = [f's_cmp_eq_u32 s{sTI}, {cfg.otouch}', f's_cbranch_scc0 {name}_noot', 's_load_dwordx2 s[6:7], s[0:1], 32',
              f's_lshr_b32 s24, s2, 3', f's_and_b32 s25, s2, 7', f's_lshl_b32 s25, s25, 2', f's_and_b32 s26, s24, 3', f's_add_u32 s25, s25, s26',
              f's_lshr_b32 s24, s24, 2', f's_mul_i32 s25, s25, 12', f's_mul_i32 s26, s40, 3', f's_add_u32 s25, s25, s26',
              f's_mul_i32 s25, s25, 24', f's_add_u32 s25, s25, s24', f's_mul_i32 s25, s25, 6144', 's_waitcnt lgkmcnt(0)',
              f's_mov_b32 s{K.sO}, s6', f's_mov_b32 s{K.sO+1}, s7', f's_mov_b32 s{K.sO+2}, {IMG_BYTES}', f's_mov_b32 s{K.sO+3}, 0x20000']
        for t_ in range(3):
            for p in range(3):
                ot += [f's_add_u32 s26, s25, {t_*cfg.xts + p*cfg.xps}', f'buffer_load_dword v233, v{vZ}, s[{K.sO}:{K.sO+3}], s26 offen']
        ot += [f'{name}_noot:']
        P += ot
    if not cfg.nosync:
        ft = ACC
        fb = [f's_cmp_eq_u32 s{sTI}, 1', f's_cbranch_scc0 {name}_nochk', f's_cmp_eq_u32 s{sWave}, 0', f's_cbranch_scc0 {name}_nochk',
              f's_waitcnt vmcnt({sum(1 for x in body[2] if x.startswith("buffer_"))})', f'v_readfirstlane_b32 s44, v{vP}', 's_nop 3', f's_cmp_ge_u32 s44, {NPKWG + (1000 if cfg.force_fb else 0)}', f's_cbranch_scc1 {name}_acq',
              f's_mov_b32 s45, {cfg.spin}', f'{name}_spin:',
              f'global_load_dword v{vP}, v{vZ}, s[{sDbg}:{sDbg+1}] sc1', 's_waitcnt vmcnt(0)', f'v_readfirstlane_b32 s44, v{vP}', 's_nop 3',
              f's_cmp_ge_u32 s44, {NPKWG + (1000 if cfg.force_fb else 0)}', f's_cbranch_scc1 {name}_acq',
              's_sub_u32 s45, s45, 1', 's_cmp_lg_u32 s45, 0', f's_cbranch_scc1 {name}_spin',
              's_load_dwordx4 s[52:55], s[0:1], 16', f'v_lshrrev_b32 v{ft}, 4, v{vL16}', f's_mov_b32 s{sPkF}, 0', 's_waitcnt vmcnt(0) lgkmcnt(0)', f'{name}_self:']
        fb += pack_loads(f'{name}_c', ft + 8, ft + 1, ft) + ['s_waitcnt vmcnt(0)'] + pack_store(f'{name}_d', cfg, ft + 8, ft + 16)
        fb += ['s_waitcnt vmcnt(0)', f's_add_u32 s{sPkF}, s{sPkF}, 1', f's_cmp_lt_u32 s{sPkF}, {NPACK}', f's_cbranch_scc1 {name}_self',
               f'{name}_acq:', 'buffer_inv sc1', f'{name}_nochk:']
        P += fb
    P += [f's_call_b64 s[42:43], {name}_ln']; TR += lns
    wHold = [f'v_accvgpr_write_b32 a{HOLD+i}, v{Y0+i}' for i in range(72)]
    wP = [f'v_accvgpr_write_b32 a{K.PF0+i}, v{Y0+i}' for i in range(72)]
    P += [f's_cmp_eq_u32 s{sTI}, 1', f's_cbranch_scc1 {name}_ln1'] + wHold + [f's_branch {name}_lnd', f'{name}_ln1:'] + wP + [f'{name}_lnd:']
    TR += wHold + wP
    P += st2()
    P += [f's_add_u32 s{sTI}, s{sTI}, 1', f's_branch {name}_tile', f'{name}_last:']
    emit(['s_waitcnt vmcnt(0) lgkmcnt(0)', 's_barrier'])
    if cfg.allwg: P += ['s_memrealtime s[84:85]', 's_waitcnt lgkmcnt(0)']
    if cfg.light: P += ['s_memtime s[6:7]', 's_memrealtime s[24:25]', 's_waitcnt lgkmcnt(0)', 's_mov_b32 s84, s6', 's_mov_b32 s85, s24']
    emit(['s_load_dwordx2 s[6:7], s[0:1], 32',
          'v_mbcnt_lo_u32_b32 v0, -1, 0', 'v_mbcnt_hi_u32_b32 v0, -1, v0'])
    emit(K.gelu_consts(cfg) + K.ident_setup())
    emit([f's_add_u32 s{K.sW}, s38, {WS_W}', f's_addc_u32 s{K.sW+1}, s39, 0', f's_mov_b32 s{K.sW+2}, {W_BYTES}', f's_mov_b32 s{K.sW+3}, 0x20000',
          f's_mul_i32 s{K.sWoff}, s40, 12288',
          f's_mul_i32 s{K.sB}, s2, {36*6144}', f's_mul_i32 s41, s40, {3*6144}', f's_add_u32 s{K.sB}, s{K.sB}, s41',
          's_waitcnt lgkmcnt(0)',
          f's_mov_b32 s{K.sO}, s6', f's_mov_b32 s{K.sO+1}, s7', f's_mov_b32 s{K.sO+2}, {IMG_BYTES}', f's_mov_b32 s{K.sO+3}, 0x20000',
          's_mov_b32 s98, s6', 's_mov_b32 s99, s7'])
    emit(xbase + [f's_mov_b32 s48, s{K.sBX}', f's_add_u32 s49, s48, {cfg.xps}', f's_add_u32 s50, s49, {cfg.xps}'])
    emit(K.m_second_dma(cfg, 248 if cfg.hlds else 240) + [xl(p, s_) for p, s_ in xlate])
    P += [f's_call_b64 s[42:43], {name}_ln']; TR += lns
    if cfg.hlds: emit(K.h2_to_lds(Y0))
    else: emit([f'v_accvgpr_write_b32 a{(K.PX0 if cfg.rend else K.H0)+i}, v{Y0+i}' for i in range(72)])
    emit(K.m_g1_first(cfg, early=True))
    if cfg.light: P += ['s_memtime s[6:7]', 's_memrealtime s[4:5]', 's_waitcnt lgkmcnt(0)', 's_mov_b32 s86, s6', 's_mov_b32 s87, s4']
    mp, sub, tr = K.m_main(cfg, name)
    P += mp; TR += tr
    P += K.dump_stamps2(cfg, 13)
    if cfg.light:
        P += ['s_waitcnt vmcnt(0)', 's_memtime s[6:7]', 's_memrealtime s[4:5]', 's_load_dwordx2 s[8:9], s[0:1], 40', 's_waitcnt lgkmcnt(0)', 's_mov_b32 s88, s6', 's_mov_b32 s89, s4'] + [f'v_writelane_b32 v255, s{82+i}, {i}' for i in range(8)] + [
              's_cmp_eq_u32 s2, 17', f's_cbranch_scc0 {name}_done', 's_cmp_eq_u32 s40, 0', f's_cbranch_scc0 {name}_done',
              'v_mbcnt_lo_u32_b32 v0, -1, 0', 'v_mbcnt_hi_u32_b32 v0, -1, v0', 'v_lshlrev_b32 v1, 2, v0', 'v_cmp_gt_u32 vcc, 8, v0', 's_and_saveexec_b64 s[10:11], vcc',
              'global_store_dword v1, v255, s[8:9] offset:16']
    if cfg.allwg:
        P += ['s_waitcnt vmcnt(0)', 's_memrealtime s[86:87]', 's_cmp_eq_u32 s40, 0', f's_cbranch_scc0 {name}_done', 's_waitcnt lgkmcnt(0)',
              's_lshl_b32 s3, s2, 4', f's_add_u32 s3, s3, {200 << 20}', 'v_mov_b32 v5, s3',
              'v_mov_b32 v4, s82', 's_nop 1', 'global_store_dword v5, v4, s[38:39]',
              'v_mov_b32 v4, s84', 's_nop 1', 'global_store_dword v5, v4, s[38:39] offset:4',
              'v_mov_b32 v4, s86', 's_nop 1', 'global_store_dword v5, v4, s[38:39] offset:8']
    if cfg.light2 or cfg.light3 or cfg.light4:
        P += ['s_waitcnt vmcnt(0)', 's_load_dwordx2 s[8:9], s[0:1], 40', 's_waitcnt lgkmcnt(0)',
              's_cmp_eq_u32 s2, 17', f's_cbranch_scc0 {name}_done', 's_cmp_eq_u32 s40, 0', f's_cbranch_scc0 {name}_done']
        P += [f'v_writelane_b32 v255, s{STAMP0+2*i}, {i}' for i in range(5)]
        P += ['v_mbcnt_lo_u32_b32 v0, -1, 0', 'v_mbcnt_hi_u32_b32 v0, -1, v0', 'v_lshlrev_b32 v1, 2, v0', 'v_cmp_gt_u32 vcc, 5, v0', 's_and_saveexec_b64 s[10:11], vcc',
              'global_store_dword v1, v255, s[8:9] offset:64']
    P += [f'{name}_done:', 's_endpgm']
    P += ['.p2align 6', f'{name}_ln:'] + lns + ['s_setpc_b64 s[42:43]']
    P += sub
    return P, TR

def kd(name):
    return k2.kd(name)

if __name__ == '__main__':
    import asmlib
    P, TR = gen(Cfg)
    asmlib.check(TR, 'kf')
    print(len(P))
```
